```python
import torch

def _softmax(x, axis=-1):
    return torch.softmax(x, dim=axis)

def _gelu(x):
    return torch.nn.functional.gelu(x, approximate='tanh')

def _silu(x):
    return torch.nn.functional.silu(x)

def _sigmoid(x):
    return torch.sigmoid(x)

def _layernorm(x, axis=-1, eps=1e-05):
    m = x.mean(dim=axis, keepdim=True)
    v = x.var(dim=axis, keepdim=True, unbiased=False)
    return (x - m) / torch.sqrt(v + eps)

def _scatter_add(tgt, idx, src, axis=0):
    return tgt.clone().index_add_(axis, idx, src)

def _segment_sum(src, seg, n):
    out = torch.zeros((n,) + src.shape[1:], dtype=src.dtype)
    return out.index_add_(0, seg, src)

def _pad(x, pw):
    flat = tuple((v for pair in reversed(pw) for v in pair))
    return torch.nn.functional.pad(x, flat)
kernel_name = 'parallel_sum__memory_aug_recurrent_mem_tr__mixer_channel_mlp__prompt'

def setup_inputs():

    _w = lambda a: (lambda t: t.to(torch.bfloat16) if t.is_floating_point() else t)(torch.as_tensor(a))

    def _A_setup():
        B, S, Dm = (1, 2048, 576)
        H, Dh = (32, 128)
        M, seg = (8, 32)
        seg = min(seg, S)
        S = S // seg * seg
        return {'x': _w((lambda *s: torch.randn(*s, dtype=torch.bfloat16) * 0.05)(B, S, Dm)), 'mem0': _w((lambda *s: torch.randn(*s, dtype=torch.bfloat16) * 0.2)(B, M, Dm)), 'Wq': _w((lambda *s: torch.randn(*s, dtype=torch.bfloat16) * 1.6)(Dm, H, Dh) * Dm ** (-0.5)), 'Wk': _w((lambda *s: torch.randn(*s, dtype=torch.bfloat16) * 1.6)(Dm, H, Dh) * Dm ** (-0.5)), 'Wv': _w((lambda *s: torch.randn(*s, dtype=torch.bfloat16) * 0.2)(Dm, H, Dh) * Dm ** (-0.5)), 'Wo': _w((lambda *s: torch.randn(*s, dtype=torch.bfloat16) * 0.2)(H, Dh, Dm) * (H * Dh) ** (-0.5)), 'seg_len': seg}
    _A_in = _A_setup()

    def _B_setup():
        B, S, D, F = (1, 2048, 576, 4608)
        return {'x': _w((lambda *s: torch.randn(*s, dtype=torch.bfloat16) * 0.05)(B, S, D)), 'w1': _w((lambda *s: torch.randn(*s, dtype=torch.bfloat16) * 0.8)(D, F) * D ** (-0.5)), 'b1': _w((lambda *s: torch.randn(*s, dtype=torch.bfloat16) * 0.4)(F)), 'w2': _w((lambda *s: torch.randn(*s, dtype=torch.bfloat16) * 0.05)(F, D) * F ** (-0.5)), 'b2': _w((lambda *s: torch.randn(*s, dtype=torch.bfloat16) * 0.05)(D))}
    _B_in = _B_setup()
    return {'A_x': _A_in['x'], 'A_mem0': _A_in['mem0'], 'A_Wq': _A_in['Wq'], 'A_Wk': _A_in['Wk'], 'A_Wv': _A_in['Wv'], 'A_Wo': _A_in['Wo'], 'A_seg_len': _A_in['seg_len'], 'B_x': _B_in['x'], 'B_w1': _B_in['w1'], 'B_b1': _B_in['b1'], 'B_w2': _B_in['w2'], 'B_b2': _B_in['b2']}

def reference(A_x, A_mem0, A_Wq, A_Wk, A_Wv, A_Wo, A_seg_len, B_x, B_w1, B_b1, B_w2, B_b2):

    def _A_ref(x, mem0, Wq, Wk, Wv, Wo, seg_len):
        B, S, Dm = x.shape
        H, Dh = (Wq.shape[1], Wq.shape[2])
        M = mem0.shape[1]
        scale = Dh ** (-0.5)
        n_seg = S // seg_len
        L = M + seg_len
        idx = torch.arange(L)
        mask = (idx[:, None] < M) | (idx[:, None] >= idx[None, :])
        mem = mem0
        outs = []
        for s in range(n_seg):
            xs = x[:, s * seg_len:(s + 1) * seg_len, :].clone()
            h = torch.concatenate([mem, xs], axis=1)
            q = torch.einsum('btd,dhe->bhte', h, Wq)
            k = torch.einsum('btd,dhe->bhte', h, Wk)
            v = torch.einsum('btd,dhe->bhte', h, Wv)
            scores = torch.einsum('bhqe,bhke->bhqk', q, k) * scale
            scores = torch.where(mask[None, None], scores, -1000000000.0)
            p = _softmax(scores, axis=-1)
            o = torch.einsum('bhqk,bhke->bhqe', p, v)
            o = torch.einsum('bhte,hed->btd', o, Wo)
            mem = o[:, :M, :].clone()
            outs.append(o[:, M:, :])
        return torch.concatenate(outs, axis=1)

    def _B_ref(x, w1, b1, w2, b2):
        y = _layernorm(x, axis=-1)
        h = _gelu(torch.einsum('bsd,df->bsf', y, w1) + b1)
        return torch.einsum('bsf,fd->bsd', h, w2) + b2
    x = A_x
    xn = _layernorm(x, axis=-1)
    return x + _A_ref(xn, A_mem0, A_Wq, A_Wk, A_Wv, A_Wo, A_seg_len) + _B_ref(xn, B_w1, B_b1, B_w2, B_b2)
```

```python
import re

REG_RE = re.compile(r'(?<![\w.])([vas])(?:\[(\d+):(\d+)\]|(\d+))(?![\w\[])')

def regs_of(tok):
    out = []
    t = tok.strip()
    neg = t.lstrip('-')
    if neg.startswith('abs(') or neg.startswith('|'):
        pass
    for m in REG_RE.finditer(t):
        c = m.group(1)
        if m.group(2) is not None:
            for n in range(int(m.group(2)), int(m.group(3)) + 1):
                out.append((c, n))
        else:
            out.append((c, int(m.group(4))))
    for sp in ('vcc', 'exec', 'm0', 'scc'):
        if re.search(r'(?<![\w])' + sp + r'(_lo|_hi)?(?![\w])', t):
            out.append(('x', sp))
    return out

def split_ops(s):
    ops, depth, cur = [], 0, ''
    for ch in s:
        if ch in '[(':
            depth += 1
        if ch in '])':
            depth -= 1
        if ch == ',' and depth == 0:
            ops.append(cur.strip()); cur = ''
        else:
            cur += ch
    if cur.strip():
        ops.append(cur.strip())
    return ops

TRANS = ('v_exp_f32', 'v_log_f32', 'v_rcp_f32', 'v_rsq_f32', 'v_sqrt_f32', 'v_sin_f32', 'v_cos_f32', 'v_rcp_iflag_f32')

class Inst:
    __slots__ = ('text', 'op', 'defs', 'uses', 'kind', 'passes', 'cnt', 'cdefs', 'wide_store', 'dpp', 'label', 'raw', 'note', 'sdefs_valu', 'ab', 'creg')
    def __init__(self, text):
        self.text = text
        self.label = None
        self.raw = False
        self.defs = []; self.uses = []; self.kind = 'other'; self.passes = 0
        self.cnt = None; self.wide_store = False; self.dpp = False; self.ab = []; self.creg = []
        t = text.strip()
        if t.endswith(':'):
            self.op = 'label'; self.kind = 'label'; self.label = t[:-1]; return
        if t.startswith('.') or t.startswith(';') or t == '':
            self.op = 'dir'; self.kind = 'dir'; return
        t = t.split(';')[0].strip()
        if t == 'WAIT_LDSW':
            self.op = 'pseudo'; self.kind = 'pseudo'; self.uses = [('w', 'lds')]; return
        if t == 'WAIT_VMST':
            self.op = 'pseudo'; self.kind = 'pseudo'; self.uses = [('w', 'vm')]; return
        parts = t.split(None, 1)
        op = parts[0]; self.op = op
        rest = parts[1] if len(parts) > 1 else ''
        ops = split_ops(rest)
        mods = ''
        if ops:
            last = ops[-1]
            m = re.match(r'^(\S+(?:\([^)]*\))?(?:\[[^\]]*\])?)\s*(.*)$', last)
            toks = last.split()
            if len(toks) > 1 and not last.startswith('hwreg') and not last.startswith('vmcnt') and not last.startswith('lgkmcnt'):
                ops[-1] = toks[0]; mods = ' '.join(toks[1:])
        allmods = mods
        R = [regs_of(o) for o in ops]
        base = re.sub(r'_(e32|e64|dpp|sdwa)$', '', op)
        if op.endswith('_dpp') or 'row_' in allmods or 'quad_perm' in allmods or 'row_' in rest:
            self.dpp = True
        if op.startswith('v_mfma') or op.startswith('v_smfmac'):
            self.kind = 'mfma'
            if '32x32' in op: self.passes = 8
            else: self.passes = 4
            if '_f32' == op[-4:] and ('16x16x4' in op or '32x32x2' in op): self.passes = 8 if '16x16x4' in op else 16
            self.defs = R[0]
            self.ab = R[1] + R[2]
            if op.startswith('v_smfmac'):
                self.uses = R[0] + R[1] + R[2] + R[3]; self.creg = R[0]
            else:
                self.uses = R[1] + R[2] + (R[3] if len(R) > 3 else []); self.creg = R[3] if len(R) > 3 else []
        elif op.startswith('v_'):
            self.kind = 'trans' if base in TRANS else 'valu'
            if base.startswith('v_cmp'):
                self.defs = R[0]; self.uses = sum(R[1:], [])
                if base.startswith('v_cmpx'): self.defs = self.defs + [('x', 'exec')]
            elif base in ('v_readfirstlane_b32', 'v_readlane_b32'):
                self.defs = R[0]; self.uses = sum(R[1:], []); self.kind = 'readlane'
            elif base.startswith('v_permlane') and 'swap' in base:
                self.defs = R[0] + R[1]; self.uses = R[0] + R[1]; self.kind = 'permlane'
            elif base in ('v_add_co_u32', 'v_sub_co_u32', 'v_subrev_co_u32'):
                self.defs = R[0] + R[1]; self.uses = sum(R[2:], [])
            elif base in ('v_addc_co_u32', 'v_subb_co_u32'):
                self.defs = R[0] + R[1]; self.uses = sum(R[2:], [])
            elif base in ('v_fmac_f32', 'v_pk_fmac_f16', 'v_dot2c_f32_bf16', 'v_mac_f32', 'v_writelane_b32'):
                self.defs = R[0]; self.uses = sum(R, [])
            elif base == 'v_cndmask_b32':
                self.defs = R[0]; self.uses = sum(R[1:], [])
                if len(R) < 4: self.uses = self.uses + [('x', 'vcc')]
            elif base == 'v_nop':
                pass
            else:
                self.defs = R[0]; self.uses = sum(R[1:], [])
                if self.dpp and ('bound_ctrl' not in allmods):
                    self.uses = self.uses + R[0]
            if base.startswith('v_accvgpr'):
                self.kind = 'valu'
        elif op.startswith('ds_'):
            self.kind = 'ds'; self.cnt = 'lgkm'
            if op.startswith('ds_read') or op.startswith('ds_bpermute') or op.startswith('ds_permute') or op.startswith('ds_swizzle') or '_rtn' in op:
                self.defs = R[0]; self.uses = sum(R[1:], [])
            else:
                self.uses = sum(R, []); self.defs = [('w', 'lds')]
        elif op.startswith('global_') or op.startswith('buffer_') or op.startswith('flat_'):
            self.kind = 'vmem'; self.cnt = 'vm'
            islds = (' lds' in (' ' + allmods)) or '_lds_' in op
            if op.startswith('buffer_wbl2') or op.startswith('buffer_inv'):
                pass
            elif islds:
                self.uses = sum(R, []) + [('x', 'm0')]
                self.kind = 'vmem_lds'
            elif '_load' in op:
                self.defs = R[0]; self.uses = sum(R[1:], [])
                if 'd16' in op: self.uses = self.uses + R[0]
            elif '_atomic' in op:
                if 'sc0' in allmods:
                    if op.startswith('buffer'):
                        self.defs = R[0]; self.uses = sum(R, [])
                    else:
                        self.defs = R[0]; self.uses = sum(R[1:], [])
                else:
                    self.uses = sum(R, [])
            else:
                self.uses = sum(R, [])
                self.defs = [('w', 'vm')]
                if 'x4' in op or 'x3' in op: self.wide_store = True
                if op.startswith('buffer'): self.creg = R[0]
                else: self.creg = R[1]
        elif op.startswith('s_'):
            self.kind = 'salu'
            if op.startswith('s_load') or op.startswith('s_buffer_load') or op in ('s_memtime', 's_memrealtime'):
                self.kind = 'smem'; self.cnt = 'smem'
                self.defs = R[0]; self.uses = sum(R[1:], [])
            elif op == 's_waitcnt':
                self.kind = 'waitcnt'
            elif op == 's_nop':
                self.kind = 'nop'
            elif op == 's_barrier':
                self.kind = 'barrier'
            elif op.startswith('s_cbranch') or op == 's_branch' or op == 's_endpgm' or op.startswith('s_setpc') or op.startswith('s_swappc'):
                self.kind = 'branch'
                if 'vcc' in op: self.uses = [('x', 'vcc')]
                if 'exec' in op: self.uses = [('x', 'exec')]
                if 'scc' in op: self.uses = [('x', 'scc')]
                if op.startswith('s_setpc'): self.uses = R[0]
            elif op.startswith('s_cmp') or op.startswith('s_bitcmp'):
                self.uses = sum(R, []); self.defs = [('x', 'scc')]
            elif op in ('s_sleep', 's_setprio', 's_sethalt', 's_endpgm', 's_setreg_b32', 's_setreg_imm32_b32', 's_inst_prefetch'):
                self.uses = sum(R, [])
            elif 'saveexec' in op:
                self.defs = R[0] + [('x', 'exec'), ('x', 'scc')]; self.uses = sum(R[1:], []) + [('x', 'exec')]
            else:
                self.defs = R[0] + [('x', 'scc')]; self.uses = sum(R[1:], [])
                if op.startswith('s_cselect') or op in ('s_addc_u32', 's_subb_u32'): self.uses = self.uses + [('x', 'scc')]
                if op in ('s_addk_i32', 's_mulk_i32'): self.uses = self.uses + R[0]
                if op.startswith('s_mov') or op.startswith('s_getreg') or op.startswith('s_cselect') or op.startswith('s_mul') or op == 's_getpc_b64' or op.startswith('s_movk'):
                    self.defs = R[0]
        else:
            raise ValueError('unknown instruction: ' + text)

def states_of(inst):
    if inst.kind == 'nop':
        return int(inst.text.split()[1], 0) + 1
    if inst.kind in ('label', 'dir', 'pseudo'):
        return 0
    return 1

class Prog:
    def __init__(self):
        self.items = []
    def __call__(self, text):
        for line in text.split('\n'):
            l = line.strip()
            if not l: continue
            self.items.append(Inst(l))
    def emit(self, text): self(text)
    def label(self, name): self.items.append(Inst(name + ':'))
    def comment(self, c): self.items.append(Inst('; ' + c))

MAXW = 24

def _overlap(a, b):
    return bool(set(a) & set(b))

def _copy_state(st):
    if st is None: return None
    return dict(hist=[[h[0], h[1]] for h in st['hist']], vm=[set(x) for x in st['vm']], lg=[set(x) for x in st['lg']],
                smem=st['smem'], smemdefs=set(st['smemdefs']))

def _empty_state():
    return dict(hist=[], vm=[], lg=[], smem=False, smemdefs=set())

def _merge(a, b):
    if a is None: return _copy_state(b)
    if b is None: return _copy_state(a)
    r = _empty_state()
    d = {}
    for h in a['hist'] + b['hist']:
        k = id(h[0])
        if k not in d or h[1] < d[k][1]: d[k] = [h[0], h[1]]
    r['hist'] = sorted(d.values(), key=lambda h: -h[1])
    for key in ('vm', 'lg'):
        A, B = a[key], b[key]
        n = max(len(A), len(B)); L = []
        for j in range(n):
            s = set()
            if j < len(A): s |= A[len(A)-1-j]
            if j < len(B): s |= B[len(B)-1-j]
            L.append(s)
        r[key] = L[::-1]
    r['smem'] = a['smem'] or b['smem']; r['smemdefs'] = a['smemdefs'] | b['smemdefs']
    return r

def fix(items, init_state=None, insert=True, snaps=None):
    out = []
    st = _copy_state(init_state) if init_state is not None else _empty_state()
    snaps = dict(snaps) if snaps else {}
    inserted = 0

    def advance(n):
        for h in st['hist']: h[1] += n
        while st['hist'] and st['hist'][0][1] > MAXW: st['hist'].pop(0)

    def need_nops(inst):
        need = 0
        uses = set(inst.uses); defs = set(inst.defs)
        isvalu = inst.kind in ('valu', 'trans', 'permlane', 'readlane')
        for (p, age) in st['hist']:
            pd = set(p.defs); req = 0
            pv = p.kind in ('valu', 'trans', 'permlane', 'readlane')
            if pv:
                vd = {r for r in pd if r[0] in 'va'}
                sd = {r for r in pd if r[0] == 's' or r == ('x', 'vcc')}
                if inst.kind == 'mfma' and (vd & uses): req = max(req, 2)
                if inst.kind == 'permlane' and (vd & uses): req = max(req, 2)
                if inst.dpp and (vd & uses): req = max(req, 2)
                if inst.kind == 'readlane' and (vd & uses): req = max(req, 1)
                if p.kind == 'trans' and isvalu and (vd & uses): req = max(req, 1)
                if p.kind == 'trans' and inst.kind in ('mfma', 'vmem', 'ds') and (vd & uses): req = max(req, 2)
                if sd & uses:
                    if isvalu: req = max(req, 4 if inst.kind == 'readlane' else 2)
                    if inst.kind in ('vmem', 'vmem_lds'): req = max(req, 5)
                    if inst.kind in ('salu', 'smem'): req = max(req, 1)
                if ('x', 'exec') in pd:
                    if inst.kind == 'mfma': req = max(req, 4)
                    if inst.dpp: req = max(req, 5)
                    if inst.kind in ('permlane', 'readlane'): req = max(req, 4)
            if p.kind == 'mfma':
                P = p.passes
                rd = {2: 5, 4: 8, 8: 12, 16: 20}[P]; ov = {2: 4, 4: 6, 8: 10, 16: 18}[P]; war = {2: 1, 4: 3, 8: 7, 16: 15}[P]
                if inst.kind == 'mfma':
                    if pd & set(inst.ab): req = max(req, rd)
                    if inst.op.startswith('v_smfmac') and (pd & (uses - set(inst.creg) - set(inst.ab))): req = max(req, rd)
                    c = set(inst.creg)
                    if pd & c:
                        if c == pd and inst.passes == p.passes: req = max(req, 2 if P == 2 else 0)
                        else: req = max(req, ov)
                    elif pd & defs:
                        req = max(req, ov)
                else:
                    if (pd & uses) or (pd & defs):
                        if inst.kind in ('valu', 'trans', 'permlane', 'readlane', 'ds', 'vmem', 'vmem_lds'): req = max(req, rd)
                    if isvalu and (set(p.creg) & defs): req = max(req, war)
            if p.wide_store and (set(p.creg) & defs):
                req = max(req, 2 if isvalu else 1)
            if p.kind == 'salu' and ('x', 'm0') in pd and inst.kind == 'vmem_lds': req = max(req, 1)
            if req > age: need = max(need, req - age)
        return need

    def apply_wait(wv, wl):
        if wv is not None:
            while len(st['vm']) > wv: st['vm'].pop(0)
        if wl is not None:
            if wl == 0:
                st['lg'] = []; st['smem'] = False; st['smemdefs'] = set()
            elif not st['smem']:
                while len(st['lg']) > wl: st['lg'].pop(0)

    for inst in items:
        if inst.kind == 'dir':
            out.append(inst); continue
        if inst.kind == 'label':
            if inst.label in snaps:
                st = _merge(st, snaps[inst.label])
            if st is None: st = _empty_state()
            out.append(inst); continue
        if st is None:
            st = _empty_state()
        if inst.kind == 'waitcnt':
            t = inst.text
            m = re.search(r'vmcnt\((\d+)\)', t); wv = int(m.group(1)) if m else None
            m = re.search(r'lgkmcnt\((\d+)\)', t); wl = int(m.group(1)) if m else None
            apply_wait(wv, wl)
            out.append(inst); advance(1); st['hist'].append([inst, 0]); continue
        touched = set(inst.uses) | {r for r in inst.defs if r[0] != 'w'}
        wv = None; wl = None
        for i, d in enumerate(st['vm']):
            if d & touched: wv = len(st['vm']) - 1 - i
        for i, d in enumerate(st['lg']):
            if d & touched: wl = len(st['lg']) - 1 - i
        if st['smemdefs'] & touched: wl = 0
        if wl is not None and st['smem']: wl = 0
        if wv is not None or wl is not None:
            s = 's_waitcnt'
            if wv is not None: wv = min(wv, 63); s += ' vmcnt(%d)' % wv
            if wl is not None: wl = min(wl, 15); s += ' lgkmcnt(%d)' % wl
            apply_wait(wv, wl)
            if not insert: raise RuntimeError('missing wait before: ' + inst.text + ' need ' + s)
            w = Inst(s); out.append(w); advance(1); st['hist'].append([w, 0]); inserted += 1
        if inst.kind == 'pseudo': continue
        n = need_nops(inst)
        if n > 0:
            if not insert: raise RuntimeError('missing %d nops before: %s' % (n, inst.text))
            while n > 0:
                k = min(n, 16)
                w = Inst('s_nop %d' % (k - 1)); out.append(w); advance(k); st['hist'].append([w, 0]); n -= k; inserted += 1
        out.append(inst)
        advance(states_of(inst))
        st['hist'].append([inst, 0])
        if inst.cnt == 'vm':
            st['vm'].append(set(inst.defs))
            if len(st['vm']) > 63: st['vm'].pop(0)
        elif inst.cnt == 'lgkm':
            st['lg'].append(set(inst.defs))
            if len(st['lg']) > 15 and not st['smem']: st['lg'].pop(0)
        elif inst.cnt == 'smem':
            st['smem'] = True; st['smemdefs'] |= set(inst.defs); st['lg'].append(set())
        if inst.kind == 'branch':
            parts = inst.text.split(';')[0].split()
            if len(parts) > 1 and inst.op != 's_setpc_b64':
                tgt = parts[1]
                snaps[tgt] = _merge(snaps.get(tgt), st)
            if inst.op in ('s_branch', 's_endpgm', 's_setpc_b64'):
                st = None
    return out, st, inserted, snaps

class Kernel:
    def __init__(self):
        self.out = []
        self.state = _empty_state()
        self.snaps = {}
    def straight(self, prog):
        o, st, _, self.snaps = fix(prog.items, self.state, snaps=self.snaps)
        self.out += o; self.state = st
    def loop(self, prog, maxit=8):
        items = prog.items
        head = items[0].label
        for it in range(maxit):
            o, st, n1, sn = fix(items, self.state, snaps=self.snaps)
            o2, st2, n2, sn2 = fix(o, self.state, snaps=sn)
            if n2 == 0:
                o3, st3, n3, sn3 = fix(o, self.state, snaps=sn2)
                if n3 == 0:
                    self.out += o; self.state = st3; self.snaps = sn3
                    return
                items = o3
            else:
                items = o2
        raise RuntimeError('loop fix did not converge')
    def raw(self, text):
        for l in text.split('\n'):
            self.out.append(Inst('; raw' if not l.strip() else l.strip()) if (l.strip().startswith('.') or l.strip().startswith(';') or l.strip().endswith(':') or not l.strip()) else Inst(l.strip()))
    def reset_state(self):
        self.state = _empty_state()
    def text(self):
        return '\n'.join((i.text if i.kind in ('label',) else '    ' + i.text) for i in self.out) + '\n'
```

```python
from asmlib import *
from common import *

OPT = dict(vm_sc1=True, gsleep=0, km_sc1=True)
L_MF = 0
L_S  = 9216
L_O  = 14336
L_WL = 16384
LDS_TOTAL = 163840

def wreg(i):
    if i < 32: return 'a[%d:%d]' % (8*i, 8*i+7), ('a', 8*i)
    j = i - 32
    return 'v[%d:%d]' % (80+8*j, 80+8*j+7), ('v', 80+8*j)

LDS_BLOCKS = [('k',1,t) for t in range(9)] + [('v',1,t) for t in (1,4,7)] + [('od',3,0),('od',3,1),('od',3,2),('od',3,3),('od',2,2),('od',2,3)]
ALL_BLOCKS = [(m,tile,t) for m in 'qkv' for t in range(9) for tile in (0,1)] + [('oh',0),('oh',1)] + [('od',p,c) for p in range(4) for c in range(4)]
REG_BLOCKS = [b for b in ALL_BLOCKS if b not in LDS_BLOCKS]
assert len(LDS_BLOCKS) == 18 and len(REG_BLOCKS) == 54
REG_OF = {b: wreg(i) for i, b in enumerate(REG_BLOCKS)}
LDS_OF = {b: i for i, b in enumerate(LDS_BLOCKS)}

S_WS = 8; S_SRD2 = 12
S_H = 16; S_W = 17; S_STEP = 18; S_T0 = 19; S_T1 = 20; S_T2 = 21; S_T3 = 22
S_PCUR = 23; S_PPOI = 24; S_PR0 = 25
S_MCUR = 29; S_MNXT = 30; S_MPOI = 31
S_KV = 32; S_KM = 33; S_RED = 34; S_TMO = 35
S_EXN8 = 36
S_C = 38; S_ERR = 39
S_TS = 40
S_DBG = 42
S_KVN = 44; S_STAT = 45
S_PTR = 46
S_OW = 56
S_EXA = 58
S_EXMM = 60
S_PERM = 62; S_PERM2 = 63
S_EXLO = 74

V_L16=1; V_IDX=2; V_PST=3; V_RED=4; V_MST=5; V_G16=6; V_SW=7; V_SR=8; V_SM=9; V_KX=10; V_VX=11; V_WL=12; V_VM=13
V_BSEL=14
V_BRED=16
V_AR=20
V_ST=32
V_QA=48; V_QB=52; V_KA=56; V_KB=60; V_VA=64; V_VB=68
V_KF=72

def vr(a, n=1): return 'v%d' % a if n == 1 else 'v[%d:%d]' % (a, a+n-1)
def qkv_const_row(t, p, b): return 64*t + 32*(p >> 2) + 8*(p & 1) + 4*((p >> 1) & 1) + 2*b
WS = 's[%d:%d]' % (S_WS, S_WS+3)

def lane_setup(k):
    P = Prog()
    n, rg, t0, t1, t2 = 20, 21, 22, 23, 24
    P('v_and_b32 v%d, 15, v0' % n)
    P('v_lshrrev_b32 v%d, 4, v0' % rg)
    P('v_lshlrev_b32 v%d, 4, v0' % V_L16)
    P('v_mov_b32 v%d, 0x44444444' % V_IDX)
    P('v_mov_b32 v%d, 0xeeeeeeee' % t0)
    P('v_cmp_lt_u32 vcc, 7, v%d' % n)
    P('v_cndmask_b32 v%d, v%d, v%d, vcc' % (V_IDX, V_IDX, t0))
    P('v_lshrrev_b32 v25, 3, v%d' % n)
    P('v_and_b32 v26, 7, v%d' % n)
    P('v_lshl_add_u32 v%d, v%d, 3, v26' % (t0, rg))
    P('v_lshlrev_b32 v%d, 4, v%d' % (V_G16, t0))
    P('v_lshrrev_b32 v%d, 1, v%d' % (t0, rg))
    P('v_lshl_add_u32 v%d, v%d, 6, v%d' % (t0, t0, n))
    P('s_lshl_b32 s%d, s%d, 4' % (S_T0, S_W))
    P('v_add_u32 v%d, s%d, v%d' % (t0, S_T0, t0))
    P('v_lshlrev_b32 v%d, 4, v%d' % (t0, t0))
    P('v_and_b32 v%d, 1, v%d' % (t1, rg))
    P('v_lshl_add_u32 v%d, v%d, 3, v%d' % (V_PST, t1, t0))
    P('s_sub_u32 s%d, s%d, 1' % (S_T0, S_W))
    P('s_lshl_b32 s%d, s%d, 5' % (S_T0, S_T0))
    P('s_add_u32 s%d, s%d, s%d' % (S_T0, S_T0, S_H))
    P('s_cmp_lt_u32 s%d, 72' % S_T0)
    P('s_cselect_b32 s%d, 1, 0' % S_RED)
    P('s_cmp_eq_u32 s%d, 0' % S_W)
    P('s_cselect_b32 s%d, 0, s%d' % (S_RED, S_RED))
    P('s_cmp_eq_u32 s%d, 0' % S_RED)
    P('s_cselect_b32 s%d, 0, s%d' % (S_T0, S_T0))
    P('s_lshl_b32 s%d, s%d, 7' % (S_T0, S_T0))
    P('v_lshl_add_u32 v%d, v%d, 1, v25' % (t0, rg))
    P('s_movk_i32 s%d, 9216' % S_T1)
    P('v_mul_lo_u32 v%d, v%d, s%d' % (t0, t0, S_T1))
    P('v_lshl_add_u32 v%d, v26, 4, v%d' % (t0, t0))
    P('v_add_u32 v%d, s%d, v%d' % (V_RED, S_T0, t0))
    P('v_lshlrev_b32 v%d, 4, v%d' % (t0, n))
    P('v_lshl_add_u32 v%d, v%d, 2, v%d' % (t0, rg, t0))
    P('v_add_u32 v%d, s%d, v%d' % (t0, S_T0, t0))
    P('v_mov_b32 v%d, 0x40000000' % t1)
    P('v_cmp_lt_u32 vcc, 7, v%d' % n)
    P('v_cndmask_b32 v%d, v%d, v%d, vcc' % (V_MST, t0, t1))
    P('s_mul_i32 s%d, s%d, 1280' % (S_T0, S_W))
    P('s_add_u32 s%d, s%d, %d' % (S_T0, S_T0, L_S))
    P('v_add_u32 v%d, s%d, v%d' % (V_SW, S_T0, V_G16))
    P('v_lshl_add_u32 v%d, v25, 9, v%d' % (t0, V_G16))
    P('v_add_u32 v%d, %d, v%d' % (V_SR, L_S, t0))
    P('v_and_b32 v%d, 1, v%d' % (t0, rg))
    P('v_lshl_add_u32 v%d, v%d, 3, v26' % (t0, t0))
    P('v_lshlrev_b32 v%d, 4, v%d' % (t0, t0))
    P('s_movk_i32 s%d, 2560' % S_T1)
    P('v_mul_lo_u32 v%d, v25, s%d' % (t1, S_T1))
    P('v_add_u32 v%d, v%d, v%d' % (t0, t0, t1))
    P('v_add_u32 v%d, %d, v%d' % (V_SM, L_S + 1024, t0))
    P('v_lshl_add_u32 v27, v25, 4, v26')
    P('s_lshl_b32 s%d, s%d, 2' % (S_T0, S_W))
    P('v_add_u32 v%d, s%d, v%d' % (t0, S_T0, rg))
    P('v_lshl_add_u32 v%d, v%d, 5, v27' % (t0, t0))
    P('v_lshlrev_b32 v%d, 4, v%d' % (V_KX, t0))
    P('s_lshl_b32 s%d, s%d, 5' % (S_T0, S_W))
    P('v_lshl_add_u32 v%d, v%d, 7, v27' % (t0, rg))
    P('v_add_u32 v%d, s%d, v%d' % (t0, S_T0, t0))
    P('v_lshlrev_b32 v%d, 4, v%d' % (V_VX, t0))
    P('v_lshrrev_b32 v%d, 1, v%d' % (t0, rg))
    P('v_lshl_add_u32 v%d, v%d, 3, v27' % (t0, t0))
    P('v_add_u32 v%d, s%d, v%d' % (t0, S_T0, t0))
    P('v_lshlrev_b32 v%d, 4, v%d' % (t0, t0))
    P('v_and_b32 v%d, 1, v%d' % (t1, rg))
    P('v_lshl_add_u32 v%d, v%d, 3, v%d' % (V_VM, t1, t0))
    P('s_mul_i32 s%d, s%d, 36864' % (S_T0, S_W))
    P('s_add_u32 s%d, s%d, %d' % (S_T0, S_T0, L_WL))
    P('v_add_u32 v%d, s%d, v%d' % (V_WL, S_T0, V_L16))
    P('v_and_b32 v%d, 3, v%d' % (t0, n))
    P('v_lshrrev_b32 v%d, 2, v26' % t1)
    P('v_and_b32 v%d, 1, v%d' % (t2, rg))
    P('v_cmp_eq_u32 s[%d:%d], v%d, v%d' % (S_TS, S_TS+1, t1, t2))
    P('v_and_b32 v%d, 1, v%d' % (t1, t0))
    P('v_lshlrev_b32 v%d, 4, v%d' % (t1, t1))
    P('v_mov_b32 v28, 0x3f80')
    P('v_lshlrev_b32 v28, v%d, v28' % t1)
    P('v_cndmask_b32 v29, 0, v28, s[%d:%d]' % (S_TS, S_TS+1))
    P('v_cmp_gt_u32 vcc, 2, v%d' % t0)
    P('v_cndmask_b32 v%d, 0, v29, vcc' % V_BSEL)
    P('v_cmp_lt_u32 vcc, 1, v%d' % t0)
    P('v_cndmask_b32 v%d, 0, v29, vcc' % (V_BSEL+1))
    P('v_lshrrev_b32 v%d, 1, v%d' % (t1, n))
    for r in range(4):
        P('v_cmp_eq_u32 vcc, %d, v%d' % (r, t1))
        P('v_cndmask_b32 v%d, 0, v28, vcc' % (V_BRED + r))
    P('s_mov_b32 s%d, 0x00ff00ff' % S_EXN8); P('s_mov_b32 s%d, 0x00ff00ff' % (S_EXN8+1))
    P('s_mov_b32 s%d, 0x00ff00ff' % S_EXMM); P('s_mov_b32 s%d, 0' % (S_EXMM+1))
    P('s_mov_b32 s%d, 0x3e0293ee' % S_C)
    P('s_lshl_b32 s%d, s%d, 9' % (S_OW, S_W))
    P('s_add_u32 s%d, s%d, %d' % (S_OW, S_OW, L_O))
    P('s_mov_b32 s%d, 0' % S_ERR)
    P('s_mov_b32 s%d, -1' % S_EXLO); P('s_mov_b32 s%d, 0' % (S_EXLO+1))
    k.straight(P)

def emit_simple_weight_load(k):
    P = Prog()
    P('v_and_b32 v33, 15, v0'); P('v_lshrrev_b32 v34, 4, v0')
    P('v_lshrrev_b32 v35, 1, v34'); P('v_lshlrev_b32 v35, 4, v35'); P('v_and_b32 v36, 1, v34')
    P('v_add_u32 v35, v35, v36'); P('v_lshlrev_b32 v35, 13, v35')
    P('v_lshrrev_b32 v36, 3, v33'); P('v_lshlrev_b32 v36, 4, v36'); P('v_and_b32 v37, 7, v33'); P('v_add_u32 v36, v36, v37')
    P('s_lshl_b32 s%d, s%d, 7' % (S_T0, S_H)); P('s_lshl_b32 s%d, s%d, 5' % (S_T1, S_W)); P('s_add_u32 s%d, s%d, s%d' % (S_T0, S_T0, S_T1))
    P('v_add_u32 v36, s%d, v36' % S_T0); P('v_lshl_add_u32 v38, v36, 1, v35')
    P('v_lshrrev_b32 v35, 1, v34'); P('v_lshlrev_b32 v35, 2, v35'); P('v_and_b32 v36, 1, v34'); P('v_lshl_add_u32 v35, v36, 3, v35')
    P('s_lshl_b32 s%d, s%d, 7' % (S_T0, S_H)); P('v_add_u32 v35, s%d, v35' % S_T0)
    P('s_movk_i32 s%d, 1152' % S_T0); P('v_mul_lo_u32 v35, v35, s%d' % S_T0)
    P('s_lshl_b32 s%d, s%d, 4' % (S_T1, S_W)); P('v_add_u32 v36, s%d, v33' % S_T1); P('v_lshl_add_u32 v39, v36, 1, v35')
    k.straight(P)
    cur = None
    for blk in ALL_BLOCKS:
        P = Prog(); m = blk[0]
        mm = m if m in ('q','k','v') else 'o'
        if cur != mm:
            ptr = {'q': S_PTR, 'k': S_PTR+2, 'v': S_PTR+4, 'o': S_PTR+6}[mm]
            P('s_mov_b32 s%d, s%d' % (S_SRD2, ptr)); P('s_mov_b32 s%d, s%d' % (S_SRD2+1, ptr+1))
            P('s_mov_b32 s%d, 0x%x' % (S_SRD2+2, 576*4096*2)); P('s_mov_b32 s%d, 0x20000' % (S_SRD2+3))
            cur = mm
        for p in range(8):
            for b in range(2):
                if mm != 'o':
                    off = qkv_const_row(blk[2], p, b) * 8192 + 16 * blk[1]; va = 38
                else:
                    if m == 'od': c = blk[2]; T = 1 + 2*blk[1] + (p & 1)
                    else: c = 2*blk[1] + (p & 1); T = 0
                    e = 32*c + 16*(p >> 2) + 2*((p >> 1) & 1) + b
                    off = e * 1152 + 128 * T; va = 39
                P('s_mov_b32 s%d, 0x%x' % (S_T0, off))
                P('buffer_load_ushort v%d, v%d, s[%d:%d], s%d offen' % (40+p+8*b, va, S_SRD2, S_SRD2+3, S_T0))
        P('s_waitcnt vmcnt(0)')
        for p in range(8): P('v_lshl_or_b32 v%d, v%d, 16, v%d' % (40+p, 48+p, 40+p))
        if blk in LDS_OF:
            off = LDS_OF[blk] * 2048
            P('ds_write_b128 v%d, v[40:43] offset:%d' % (V_WL, off))
            P('ds_write_b128 v%d, v[44:47] offset:%d' % (V_WL, off + 1024))
            P('s_waitcnt lgkmcnt(0)')
        else:
            cls, r0 = REG_OF[blk][1]
            for p in range(8):
                if cls == 'a': P('v_accvgpr_write_b32 a%d, v%d' % (r0+p, 40+p))
                else: P('v_mov_b32 v%d, v%d' % (r0+p, 40+p))
        k.straight(P)

def blk_read(P, blk, buf):
    off = LDS_OF[blk] * 2048
    P('ds_read_b128 %s, v%d offset:%d' % (vr(buf, 4), V_WL, off))
    P('ds_read_b128 %s, v%d offset:%d' % (vr(buf+4, 4), V_WL, off + 1024))
def bop(blk, buf): return REG_OF[blk][0] if blk in REG_OF else vr(buf, 8)
def smf(P, acc, a, b): P('v_smfmac_f32_16x16x64_bf16 %s, %s, %s, v%d' % (vr(acc, 4), vr(a, 4), b, V_IDX))
def aread(P, t, dst): P('ds_read_b128 %s, v%d offset:%d' % (vr(dst, 4), V_L16, L_MF + 1024*t))

S_RC = 84
def poll_tail(P, lab, done, errbit):
    P('s_cbranch_vccz %s' % done)
    if OPT.get('rc', 0): P('s_add_u32 s%d, s%d, 1' % (S_RC + (0 if errbit == 1 else 1), S_RC + (0 if errbit == 1 else 1)))
    P('s_sub_u32 s%d, s%d, 1' % (S_TMO, S_TMO))
    P('s_cmp_lg_u32 s%d, 0' % S_TMO)
    P('s_cbranch_scc1 %s' % lab)
    P('s_or_b32 s%d, s%d, %d' % (S_ERR, S_ERR, errbit))
    P.label(done)

TMO = 20000

def initial_m(k):
    P = Prog()
    P('s_mov_b32 s%d, s%d' % (S_SRD2, S_PTR+8)); P('s_mov_b32 s%d, s%d' % (S_SRD2+1, S_PTR+9))
    P('s_mov_b32 s%d, %d' % (S_SRD2+2, 8*576*2)); P('s_mov_b32 s%d, 0x20000' % (S_SRD2+3))
    P('s_mov_b32 s%d, 0x05040100' % S_PERM); P('s_mov_b32 s%d, 0x07060302' % S_PERM2)
    P('s_lshl_b32 s%d, s%d, 6' % (S_T0, S_W))
    P('v_add_u32 v20, s%d, v0' % S_T0)
    for i in range(3):
        P('v_add_u32 v21, %d, v20' % (256*i))
        P('v_and_b32 v22, 7, v21'); P('v_lshrrev_b32 v23, 3, v21')
        P('s_movk_i32 s%d, 1152' % S_T1)
        P('v_mul_lo_u32 v22, v22, s%d' % S_T1)
        P('v_lshl_add_u32 v22, v23, 4, v22')
        P('v_cmp_gt_u32 vcc, 576, v21')
        P('v_mov_b32 v24, 0x40000000')
        P('v_cndmask_b32 v22, v24, v22, vcc')
        P('buffer_load_dwordx4 v[28:31], v22, s[%d:%d], 0 offen' % (S_SRD2, S_SRD2+3))
        P('s_waitcnt vmcnt(0)')
        P('v_perm_b32 v32, v29, v28, s%d' % S_PERM)
        P('v_perm_b32 v33, v31, v30, s%d' % S_PERM)
        P('v_perm_b32 v34, v29, v28, s%d' % S_PERM2)
        P('v_perm_b32 v35, v31, v30, s%d' % S_PERM2)
        P('v_lshlrev_b32 v25, 4, v21')
        P('s_and_saveexec_b64 s[%d:%d], vcc' % (S_TS, S_TS+1))
        P('ds_write_b128 v25, v[32:35] offset:%d' % L_MF)
        P('s_mov_b64 exec, s[%d:%d]' % (S_TS, S_TS+1))
    P('s_waitcnt lgkmcnt(0)')
    k.straight(P)

def poison_all(k):
    P = Prog()
    P('v_mov_b32 v20, -1'); P('v_mov_b32 v21, -1')
    P('s_mul_i32 s%d, s%d, %d' % (S_T0, S_H, P_HEAD))
    for slot in range(2):
        P('s_add_u32 s%d, s%d, 0x%x' % (S_T1, S_T0, WS_P + slot*P_SLOT))
        emit_p_poison(P, S_T1, 20)
    for slot in range(4):
        P('s_mov_b32 s%d, 0x%x' % (S_T1, WS_M + slot*M_SLOT))
        P('s_cmp_eq_u32 s%d, 0' % S_RED)
        P('s_cbranch_scc1 L_poi_skip%d' % slot)
        P('buffer_store_dword v20, v%d, %s, s%d offen' % (V_MST, WS, S_T1))
        P.label('L_poi_skip%d' % slot)
    P('s_waitcnt vmcnt(0)')
    if OPT.get('warm'):
        P('s_mul_i32 s%d, s%d, %d' % (S_T0, S_H, P_HEAD))
        for slot in range(2):
            P('s_add_u32 s%d, s%d, 0x%x' % (S_T1, S_T0, WS_P + slot*P_SLOT))
            for T in (0, 2, 4, 6, 7):
                P('s_add_u32 s%d, s%d, %d' % (S_T2, S_T1, T*1024))
                P('buffer_load_dwordx2 v[22:23], v%d, %s, s%d offen' % (V_PST, WS, S_T2))
        for slot in range(4):
            P('s_mov_b32 s%d, 0x%x' % (S_T1, WS_M + slot*M_SLOT))
            P('buffer_load_dword v22, v%d, %s, s%d offen' % (V_MST, WS, S_T1))
        P('s_waitcnt vmcnt(0)')
    k.straight(P); k.reset_state()

def emit_p_poison(P, sreg, vd):
    P('s_mov_b64 exec, s[%d:%d]' % (S_EXLO, S_EXLO+1))
    P('buffer_store_dwordx2 v[%d:%d], v%d, %s, s%d offen' % (vd, vd+1, V_PST, WS, sreg))
    P('s_mov_b64 exec, -1')
    for pr in range(4):
        Ta = 1 + 2*pr
        emit_pstore(P, vd, sreg, Ta)

def emit_pstore(P, vd, sreg, Ta):
    off = Ta * 1024
    if off < 4096:
        P('buffer_store_dwordx2 v[%d:%d], v%d, %s, s%d offen offset:%d' % (vd, vd+1, V_PST, WS, sreg, off))
    else:
        P('s_add_u32 s%d, s%d, %d' % (S_T3, sreg, off & ~4095))
        P('buffer_store_dwordx2 v[%d:%d], v%d, %s, s%d offen offset:%d' % (vd, vd+1, V_PST, WS, S_T3, off & 4095))

def step_offsets(P):
    s = S_STEP
    P('s_and_b32 s%d, s%d, 1' % (S_T0, s))
    P('s_mul_i32 s%d, s%d, %d' % (S_T1, S_T0, P_SLOT))
    P('s_mul_i32 s%d, s%d, %d' % (S_T2, S_H, P_HEAD))
    P('s_add_u32 s%d, s%d, s%d' % (S_PCUR, S_T1, S_T2))
    P('s_add_u32 s%d, s%d, 0x%x' % (S_PR0, S_T1, WS_P))
    for t in range(1, 4): P('s_add_u32 s%d, s%d, %d' % (S_PR0+t, S_PR0+t-1, 8*P_HEAD))
    P('s_xor_b32 s%d, s%d, 1' % (S_T0, S_T0))
    P('s_mul_i32 s%d, s%d, %d' % (S_T1, S_T0, P_SLOT))
    P('s_add_u32 s%d, s%d, s%d' % (S_PPOI, S_T1, S_T2))
    if WS_P:
        P('s_add_u32 s%d, s%d, 0x%x' % (S_PCUR, S_PCUR, WS_P)); P('s_add_u32 s%d, s%d, 0x%x' % (S_PPOI, S_PPOI, WS_P))
    for (dst, add) in ((S_MNXT, 1), (S_MPOI, 2)):
        P('s_add_u32 s%d, s%d, %d' % (S_T0, s, add))
        P('s_and_b32 s%d, s%d, 3' % (S_T0, S_T0))
        P('s_mul_i32 s%d, s%d, %d' % (S_T0, S_T0, M_SLOT))
        P('s_add_u32 s%d, s%d, 0x%x' % (dst, S_T0, WS_M))
    P('s_lshl_b32 s%d, s%d, 5' % (S_T0, s))
    P('s_add_u32 s%d, s%d, s%d' % (S_T0, S_T0, S_H))
    P('s_lshl_b32 s%d, s%d, 13' % (S_KV, S_T0))
    P('s_add_u32 s%d, s%d, 0x%x' % (S_KV, S_KV, WS_KF))
    P('s_add_u32 s%d, s%d, %d' % (S_KVN, S_KV, 32*8192))
    P('s_lshl_b32 s%d, s%d, 11' % (S_KM, S_T0))
    P('s_lshl_b32 s%d, s%d, 9' % (S_T1, S_W))

S_ST = 76
STAMP_SET = None
def stamp(P, i, on):
    if not on: return
    if STAMP_SET is not None and i not in STAMP_SET: return
    P('s_memtime s[%d:%d]' % (S_TS, S_TS+1))
    P('s_waitcnt lgkmcnt(0)')
    P('s_mov_b32 s%d, s%d' % (S_ST+i, S_TS))

def flush_stamps(P, n):
    P('s_lshl_b32 s%d, s%d, 2' % (S_T0, S_H)); P('s_add_u32 s%d, s%d, s%d' % (S_T0, S_T0, S_W))
    P('s_lshl_b32 s%d, s%d, 6' % (S_T0, S_T0)); P('s_add_u32 s%d, s%d, s%d' % (S_T0, S_T0, S_STEP)); P('s_sub_u32 s%d, s%d, 1' % (S_T0, S_T0))
    P('s_lshl_b32 s%d, s%d, 6' % (S_T0, S_T0)); P('s_add_u32 s%d, s%d, 0x%x' % (S_T0, S_T0, WS_STAT))
    P('s_mov_b64 exec, 1')
    for i in range(n):
        P('v_mov_b32 v47, s%d' % (S_ST+i))
        P('buffer_store_dword v47, off, %s, s%d offset:%d' % (WS, S_T0, 4*i))
    P('s_mov_b64 exec, -1')


S_PPOI4 = 88; S_PCUR4 = 89; S_VV = 90; S_KMW = 91; S_GW = 92; S_BM = 64
V_NEG1 = 0; V_BVAL = 16; V_PT0 = 17; V_VMH = 18; S_VMP = 93
def pk_add(P, d, a, b): P('v_pk_add_f32 %s, %s, %s' % (vr(d,2), vr(a,2), vr(b,2)))
def cvt(P, d, a, b): P('v_cvt_pk_bf16_f32 v%d, v%d, v%d' % (d, a, b))
def mfma16(P, d, a, b, c=None): P('v_mfma_f32_16x16x16_bf16 %s, %s, %s, %s' % (vr(d,4), vr(a,2), vr(b,2), '0' if c is None else vr(c,4)))
def mfma32(P, d, a, b, c=None): P('v_mfma_f32_16x16x32_bf16 %s, %s, %s, %s' % (vr(d,4), vr(a,4), vr(b,4), '0' if c is None else vr(c,4)))
DPP8 = 'row_ror:8 row_mask:0xf bank_mask:0xf'

class Filler:
    def __init__(self): self.q = []
    def add(self, text): self.q.append(text)
    def emit(self, P, n):
        for _ in range(n):
            if self.q: P(self.q.pop(0))
    def drain(self, P): self.emit(P, len(self.q))

def extra_setup(k):
    P = Prog()
    n, rg = 20, 21
    P('v_and_b32 v%d, 15, v0' % n); P('v_lshrrev_b32 v%d, 4, v0' % rg)
    P('v_lshlrev_b32 v22, 4, v%d' % n); P('v_lshl_add_u32 v22, v%d, 2, v22' % rg)
    P('s_lshl_b32 s%d, s%d, 8' % (S_T0, S_W)); P('v_add_u32 v%d, s%d, v22' % (V_PT0, S_T0))
    P('v_and_b32 v22, 1, v%d' % n); P('v_lshlrev_b32 v22, 4, v22'); P('v_mov_b32 v23, 0x3f80'); P('v_lshlrev_b32 v%d, v22, v23' % V_BVAL)
    P('v_lshrrev_b32 v22, 1, v%d' % n)
    for r in range(4): P('v_cmp_eq_u32 s[%d:%d], %d, v22' % (S_BM+2*r, S_BM+2*r+1, r))
    P('s_sub_u32 s%d, s%d, 1' % (S_T0, S_W)); P('s_lshl_b32 s%d, s%d, 5' % (S_T0, S_T0)); P('s_add_u32 s%d, s%d, s%d' % (S_T0, S_T0, S_H))
    P('v_lshlrev_b32 v22, 1, v%d' % n); P('v_and_b32 v22, 7, v22'); P('v_bfe_u32 v23, v%d, 2, 1' % n); P('v_add_u32 v22, v22, v23')
    P('s_cmp_lt_u32 s%d, 8' % S_T0); P('s_cselect_b64 vcc, -1, 0')
    P('v_cndmask_b32 v22, v%d, v22, vcc' % n)
    P('v_lshlrev_b32 v22, 4, v22'); P('v_lshl_add_u32 v22, v%d, 2, v22' % rg)
    P('s_lshl_b32 s%d, s%d, 7' % (S_T0, S_T0)); P('v_add_u32 v22, s%d, v22' % S_T0)
    P('v_mov_b32 v23, 0x40000000')
    P('v_cmp_lt_u32 vcc, 7, v%d' % n); P('v_cndmask_b32 v22, v22, v23, vcc')
    P('s_cmp_eq_u32 s%d, 0' % S_RED); P('s_cselect_b64 vcc, -1, 0')
    P('v_cndmask_b32 v%d, v22, v23, vcc' % V_MST)
    P('s_mul_i32 s%d, s%d, %d' % (S_T2, S_H, P_HEAD))
    P('s_add_u32 s%d, s%d, 0x%x' % (S_PCUR, S_T2, WS_P)); P('s_add_u32 s%d, s%d, 4096' % (S_PCUR4, S_PCUR))
    P('s_add_u32 s%d, s%d, 0x%x' % (S_PPOI, S_T2, WS_P + P_SLOT)); P('s_add_u32 s%d, s%d, 4096' % (S_PPOI4, S_PPOI))
    for t in range(4): P('s_mov_b32 s%d, 0x%x' % (S_PR0+t, WS_P + t*8*P_HEAD))
    P('s_mov_b32 s%d, 0x%x' % (S_MNXT, WS_M + 1*M_SLOT)); P('s_mov_b32 s%d, 0x%x' % (S_MPOI, WS_M + 2*M_SLOT))
    P('s_lshl_b32 s%d, s%d, 13' % (S_KV, S_H)); P('s_add_u32 s%d, s%d, 0x%x' % (S_VV, S_KV, WS_VF)); P('s_add_u32 s%d, s%d, 0x%x' % (S_KV, S_KV, WS_KF))
    P('s_lshl_b32 s%d, s%d, 11' % (S_KM, S_H)); P('s_lshl_b32 s%d, s%d, 9' % (S_T1, S_W))
    P('s_add_u32 s%d, s%d, s%d' % (S_KMW, S_KM, S_T1)); P('s_add_u32 s%d, s%d, 0x%x' % (S_KMW, S_KMW, WS_KM))
    P('s_add_u32 s%d, s%d, 0x%x' % (S_KM, S_KM, WS_VM))
    P('s_lshl_b32 s%d, s%d, 10' % (S_GW, S_W))
    P('s_mov_b32 s%d, 0' % S_STEP)
    P('s_mov_b32 s%d, 0x40000000' % S_VMP)
    P('v_mov_b64 %s, 0' % vr(V_VMH,2))
    P('v_mov_b32 v%d, -1' % V_NEG1)
    k.straight(P)

def pre_step_a(P):
    P('buffer_load_dwordx4 %s, v%d, %s, s%d offen' % (vr(V_KF,4), V_KX, WS, S_KV))
    P('buffer_load_dwordx4 %s, v%d, %s, s%d offen offset:128' % (vr(V_KF+4,4), V_KX, WS, S_KV))
    blk_read(P, ('k',1,0), V_ST)
def pre_step_b(P):
    for r in range(V_QA, V_VB+4, 2): P('v_mov_b64 %s, 0' % vr(r,2))

def main_loop(k, stamps=False):
    P = Prog()
    P.label('L_chain_loop')
    stamp(P, 0, stamps)
    SB = [V_ST, V_ST+8]
    aread(P, 0, V_AR); aread(P, 1, V_AR+4)
    for t in range(8):
        a = V_AR + 4*(t % 3)
        if t + 2 < 9: aread(P, t+2, V_AR + 4*((t+2) % 3))
        smf(P, V_QA, a, bop(('q',0,t), 0))
        blk_read(P, ('k',1,t+1), SB[(t+1) % 2])
        smf(P, V_QB, a, bop(('q',1,t), 0))
        smf(P, V_KA, a, bop(('k',0,t), 0)); smf(P, V_KB, a, bop(('k',1,t), SB[t % 2]))
    a = V_AR + 4*(8 % 3)
    smf(P, V_QA, a, bop(('q',0,8), 0)); smf(P, V_QB, a, bop(('q',1,8), 0))
    aread(P, 0, V_AR); aread(P, 1, V_AR+4)
    smf(P, V_KA, a, bop(('k',0,8), 0)); smf(P, V_KB, a, bop(('k',1,8), SB[0]))
    stamp(P, 1, stamps == 2)
    F = Filler()
    for t in range(9):
        a = V_AR + 4*(t % 3); grp = []
        if t + 2 < 9: grp.append('ds_read_b128 %s, v%d offset:%d' % (vr(V_AR + 4*((t+2) % 3),4), V_L16, L_MF + 1024*(t+2)))
        nb = ('v',1,t+1)
        if nb in LDS_OF:
            off = LDS_OF[nb]*2048
            grp.append('ds_read_b128 %s, v%d offset:%d' % (vr(SB[0],4), V_WL, off))
            grp.append('ds_read_b128 %s, v%d offset:%d' % (vr(SB[0]+4,4), V_WL, off+1024))
        s1 = 'v_smfmac_f32_16x16x64_bf16 %s, %s, %s, v%d' % (vr(V_VA,4), vr(a,4), bop(('v',0,t), 0), V_IDX)
        s2 = 'v_smfmac_f32_16x16x64_bf16 %s, %s, %s, v%d' % (vr(V_VB,4), vr(a,4), bop(('v',1,t), SB[0]), V_IDX)
        F.add('\n'.join(grp + [s1])); F.add(s2)
    G = Filler()
    for T in (0, 2, 4, 6, 7):
        off = T*1024
        if off < 4096: G.add('buffer_store_dwordx2 v[0:1], v%d, %s, s%d offen offset:%d' % (V_PST, WS, S_PPOI, off))
        else: G.add('buffer_store_dwordx2 v[0:1], v%d, %s, s%d offen offset:%d' % (V_PST, WS, S_PPOI4, off - 4096))
    G.add('buffer_store_dword v0, v%d, %s, s%d offen' % (V_MST, WS, S_MPOI))
    DQ = SB[1]
    cvt(P, V_QA, V_QA, V_QA+1); cvt(P, V_QA+1, V_QA+2, V_QA+3); cvt(P, V_QB, V_QB, V_QB+1); cvt(P, V_QB+1, V_QB+2, V_QB+3)
    mfma16(P, DQ, V_QA, V_BSEL); mfma16(P, DQ+4, V_QB, V_BSEL)
    cvt(P, V_KA, V_KA, V_KA+1); cvt(P, V_KA+1, V_KA+2, V_KA+3); cvt(P, V_KB, V_KB, V_KB+1); cvt(P, V_KB+1, V_KB+2, V_KB+3)
    mfma16(P, V_QA, V_KA, V_BSEL); mfma16(P, V_QB, V_KB, V_BSEL)
    G.emit(P, 2)
    for i in range(4): cvt(P, DQ+i, DQ+2*i, DQ+2*i+1)
    qop = DQ
    mfma32(P, V_KA, V_KF, qop); mfma32(P, V_KB, V_KF+4, qop)
    for i in range(4): cvt(P, V_QA+i, V_QA+2*i, V_QA+2*i+1)
    kop = V_QA; MM = DQ + 4
    mfma32(P, MM, kop, qop)
    G.drain(P)
    P('buffer_load_dwordx4 %s, v%d, %s, s%d offen' % (vr(V_KF,4), V_VX, WS, S_VV))
    P('buffer_load_dwordx4 %s, v%d, %s, s%d offen offset:128' % (vr(V_KF+4,4), V_VX, WS, S_VV))
    P('s_mov_b64 exec, s[%d:%d]' % (S_EXN8, S_EXN8+1))
    P('ds_write_b128 v%d, %s' % (V_SW, vr(V_KA,4)))
    P('ds_write_b128 v%d, %s offset:512' % (V_SW, vr(V_KB,4)))
    P('buffer_store_dwordx4 %s, v%d, %s, s%d offen%s' % (vr(kop,4), V_G16, WS, S_KMW, ' sc1' if OPT['km_sc1'] else ''))
    P('s_mov_b64 exec, s[%d:%d]' % (S_EXMM, S_EXMM+1))
    P('ds_write_b128 v%d, %s offset:1024' % (V_SW, vr(MM,4)))
    P('s_mov_b64 exec, -1')
    P('buffer_store_dwordx2 %s, v%d, %s, s%d offen sc1' % (vr(V_VMH,2), V_VM, WS, S_VMP))
    F.emit(P, 6)
    P('WAIT_LDSW')
    stamp(P, 3, stamps)
    P('s_barrier')
    stamp(P, 4, stamps)
    X, M = V_QA, DQ
    for e in range(4): P('ds_read_b128 %s, v%d offset:%d' % (vr(V_QA+4*e,4), V_SR, 1280*e))
    for e in range(2): P('ds_read_b128 %s, v%d offset:%d' % (vr(DQ+4*e,4), V_SM, 1280*e))
    F.drain(P)
    pk_add(P, X, X, X+4); pk_add(P, X+2, X+2, X+6); pk_add(P, X+8, X+8, X+12); pk_add(P, X+10, X+10, X+14)
    pk_add(P, M, M, M+4); pk_add(P, M+2, M+2, M+6)
    pk_add(P, X, X, X+8); pk_add(P, X+2, X+2, X+10)
    for i in range(4): P('v_add_f32_dpp v%d, v%d, v%d %s' % (M+i, M+i, M+i, DPP8))
    mx, t1 = M+4, M+5
    AV = V_QA + 10
    P('v_max3_f32 v%d, v%d, v%d, v%d' % (mx, X, X+1, X+2))
    P('v_max3_f32 v%d, v%d, v%d, v%d' % (mx, mx, X+3, M))
    P('v_max3_f32 v%d, v%d, v%d, v%d' % (mx, mx, M+1, M+2))
    P('v_max_f32 v%d, v%d, v%d' % (mx, mx, M+3))
    cvt(P, AV, V_VA, V_VA+1); cvt(P, AV+1, V_VA+2, V_VA+3)
    P('v_max_f32_dpp v%d, v%d, v%d %s' % (mx, mx, mx, DPP8))
    cvt(P, AV+2, V_VB, V_VB+1)
    P('v_mov_b32 v%d, v%d' % (t1, mx))
    cvt(P, AV+3, V_VB+2, V_VB+3)
    P('v_permlane16_swap_b32 v%d, v%d' % (mx, t1))
    P('v_max_f32 v%d, v%d, v%d' % (mx, mx, t1))
    P('v_mov_b32 v%d, v%d' % (t1, mx))
    P('v_permlane32_swap_b32 v%d, v%d' % (mx, t1))
    P('v_max_f32 v%d, v%d, v%d' % (mx, mx, t1))
    P('v_mul_f32 v%d, s%d, v%d' % (mx, S_C, mx))
    for r in [X+i for i in range(4)] + [M+i for i in range(4)]: P('v_fma_f32 v%d, v%d, s%d, -v%d' % (r, r, S_C, mx))
    for r in [X+i for i in range(4)] + [M+i for i in range(4)]: P('v_exp_f32 v%d, v%d' % (r, r))
    px, pm = V_QA+4, V_QA+8
    cvt(P, px, X, X+1); cvt(P, px+1, X+2, X+3); cvt(P, pm, M, M+1); cvt(P, pm+1, M+2, M+3)
    P('v_mov_b32_dpp v%d, v%d %s' % (px+2, px, DPP8)); P('v_mov_b32_dpp v%d, v%d %s' % (px+3, px+1, DPP8))
    oa, ob = V_AR, V_AR+4
    pk_add(P, X, X, X+2); pk_add(P, M, M, M+2)
    mfma32(P, oa, V_KF, px); mfma32(P, ob, V_KF+4, px)
    mfma16(P, oa, AV, pm, oa); mfma16(P, ob, AV+2, pm, ob)
    sm = M+4
    th = V_AR + 8
    P('v_add_f32 v%d, v%d, v%d' % (X, X, X+1)); P('v_add_f32 v%d, v%d, v%d' % (M, M, M+1))
    P('v_fmamk_f32 v%d, v%d, 0x3e800000, v%d' % (sm, M, X))
    P('v_add_u32 v%d, s%d, v%d' % (M+1, S_OW, V_G16))
    P('v_mov_b64 %s, 0' % vr(th,2))
    P('v_add_f32_dpp v%d, v%d, v%d %s' % (sm, sm, sm, DPP8))
    P('v_mov_b64 %s, 0' % vr(th+2,2))
    P('v_mov_b32 v%d, v%d' % (t1, sm))
    P('v_permlane16_swap_b32 v%d, v%d' % (sm, t1)); P('v_add_f32 v%d, v%d, v%d' % (sm, sm, t1))
    P('v_mov_b32 v%d, v%d' % (t1, sm))
    P('v_permlane32_swap_b32 v%d, v%d' % (sm, t1)); P('v_add_f32 v%d, v%d, v%d' % (sm, sm, t1))
    P('v_rcp_f32 v%d, v%d' % (sm, sm))
    for i in range(0, 8, 2): P('v_pk_mul_f32 %s, %s, %s op_sel_hi:[1,0]' % (vr(oa+i,2), vr(oa+i,2), vr(sm,2)))
    og = V_QA + 12
    for i in range(4): cvt(P, og+i, oa+2*i, oa+2*i+1)
    P('s_mov_b64 exec, s[%d:%d]' % (S_EXN8, S_EXN8+1))
    P('ds_write_b128 v%d, %s' % (M+1, vr(og,4)))
    P('s_mov_b64 exec, -1')
    P('s_cmp_eq_u32 s%d, 63' % S_STEP)
    P('s_cbranch_scc1 L_chain_last')
    lds_seq = [b for b in [('od',p,c) for p in range(4) for c in range(4)] if b in LDS_OF]
    accs = [V_KF, V_KF+4, V_AR, V_AR+4]
    for r in range(V_KF, V_KF+8, 2): P('v_mov_b64 %s, 0' % vr(r,2))
    blk_read(P, lds_seq[0], SB[0]); blk_read(P, lds_seq[1], SB[1])
    P('s_cmp_eq_u32 s%d, 0' % S_W)
    P('s_cbranch_scc0 L_nopf')
    P('v_lshlrev_b32 v%d, 3, v%d' % (V_QA+4, V_L16))
    P('s_add_u32 s%d, s%d, %d' % (S_T0, S_KV, 2*32*8192))
    P('s_mov_b32 m0, %d' % L_S)
    P('s_add_u32 s%d, s%d, %d' % (S_T1, S_VV, 2*32*8192))
    P('buffer_load_dword v%d, %s, s%d offen lds' % (V_QA+4, WS, S_T0))
    P('buffer_load_dword v%d, %s, s%d offen lds' % (V_QA+4, WS, S_T1))
    P.label('L_nopf')
    P('WAIT_LDSW')
    stamp(P, 5, stamps)
    P('s_barrier')
    stamp(P, 6, stamps)
    dual, half = V_QA, V_AR
    for s2 in range(2): P('ds_read_b128 %s, v%d offset:%d' % (vr(half+4*s2,4), V_SR, L_O - L_S + 1024*s2))
    for c in range(4): P('ds_read_b128 %s, v%d offset:%d' % (vr(dual+4*c,4), V_G16, L_O + 512*c))
    smf(P, th, half, bop(('oh',0), 0)); smf(P, th, half+4, bop(('oh',1), 0))
    def pair_store(pr):
        acc = accs[pr]
        cvt(P, acc, acc, acc+1); cvt(P, acc+1, acc+2, acc+3)
        off = (1 + 2*pr)*1024
        if off < 4096: P('buffer_store_dwordx2 %s, v%d, %s, s%d offen offset:%d' % (vr(acc,2), V_PST, WS, S_PCUR, off))
        else: P('buffer_store_dwordx2 %s, v%d, %s, s%d offen offset:%d' % (vr(acc,2), V_PST, WS, S_PCUR4, off - 4096))
    li = 0
    for pr in range(4):
        for c in range(4):
            b = ('od', pr, c)
            if b in LDS_OF:
                buf = SB[li % 2]
                smf(P, accs[pr], dual + 4*c, vr(buf, 8))
                if li + 2 < len(lds_seq): blk_read(P, lds_seq[li+2], buf)
                li += 1
            else:
                smf(P, accs[pr], dual + 4*c, bop(b, 0))
            if pr == 0 and c in (0, 1):
                for r in range(V_AR + 4*c, V_AR + 4*c + 4, 2): P('v_mov_b64 %s, 0' % vr(r,2))
            if pr == 0 and c == 3:
                P('v_permlane32_swap_b32 v%d, v%d' % (th, th+1))
            if pr == 1 and c == 0:
                P('v_permlane32_swap_b32 v%d, v%d' % (th+2, th+3))
            if pr == 1 and c == 1:
                P('v_add_f32 v%d, v%d, v%d' % (th, th, th+1)); P('v_add_f32 v%d, v%d, v%d' % (th+2, th+2, th+3))
            if pr == 1 and c == 2:
                P('v_cvt_pk_bf16_f32 v%d, v%d, v%d' % (th, th, th+2))
                P('buffer_store_dword v%d, v%d, %s, s%d offen' % (th, V_PT0, WS, S_PCUR))
            if pr == 1 and c == 3: pair_store(0)
            if pr == 2 and c == 3: pair_store(1)
            if pr == 3 and c == 3: pair_store(2)
    pair_store(3)
    stamp(P, 7, stamps)
    if OPT.get('ackstamp'):
        P('s_waitcnt vmcnt(0)'); stamp(P, 3, True)
    for i in range(4): P('v_permlane32_swap_b32 v%d, v%d' % (V_VA+i, V_VB+i))
    pk_add(P, V_VA, V_VA, V_VB); pk_add(P, V_VA+2, V_VA+2, V_VB+2)
    cvt(P, V_VMH, V_VA, V_VA+1); cvt(P, V_VMH+1, V_VA+2, V_VA+3)
    P('s_mov_b32 s%d, s%d' % (S_VMP, S_KM))
    P('s_add_u32 s%d, s%d, %d' % (S_KV, S_KV, 32*8192)); P('s_add_u32 s%d, s%d, %d' % (S_VV, S_VV, 32*8192))
    P('s_add_u32 s%d, s%d, %d' % (S_KM, S_KM, 32*2048)); P('s_add_u32 s%d, s%d, %d' % (S_KMW, S_KMW, 32*2048))
    blk_read(P, ('k',1,0), V_ST)
    P('s_cmp_eq_u32 s%d, 0' % S_RED)
    P('s_cbranch_scc1 L_red_done2')
    BR = V_QA
    for r in range(4): P('v_cndmask_b32 v%d, 0, v%d, s[%d:%d]' % (BR+r, V_BVAL, S_BM+2*r, S_BM+2*r+1))
    P('s_mov_b32 s%d, %d' % (S_TMO, TMO))
    RL = [V_AR, V_AR+4, V_AR+8, SB[1]]; D = SB[1]+4; CK = V_QA+4
    P.label('L_red_poll')
    for t in range(4): P('buffer_load_dwordx4 %s, v%d, %s, s%d offen sc1' % (vr(RL[t],4), V_RED, WS, S_PR0+t))
    if OPT.get('ackstamp'):
        P('s_waitcnt vmcnt(0)'); stamp(P, 4, True)
    mfma32(P, D, RL[0], BR)
    P('v_max_u32 v%d, v%d, v%d' % (CK, RL[0], RL[0]+2))
    mfma32(P, D, RL[1], BR, D)
    P('v_max3_u32 v%d, v%d, v%d, v%d' % (CK, CK, RL[1], RL[1]+2))
    mfma32(P, D, RL[2], BR, D)
    P('v_max3_u32 v%d, v%d, v%d, v%d' % (CK, CK, RL[2], RL[2]+2))
    mfma32(P, D, RL[3], BR, D)
    P('v_max3_u32 v%d, v%d, v%d, v%d' % (CK, CK, RL[3], RL[3]+2))
    P('v_cmp_eq_u32 vcc, -1, v%d' % CK)
    poll_tail(P, 'L_red_poll', 'L_red_done', 1)
    if stamps: P('s_sub_u32 s%d, %d, s%d' % (S_ST+1, TMO, S_TMO))
    P('v_permlane32_swap_b32 v%d, v%d' % (D, D+1)); P('v_permlane32_swap_b32 v%d, v%d' % (D+2, D+3))
    P('v_add_f32 v%d, v%d, v%d' % (D, D, D+1)); P('v_add_f32 v%d, v%d, v%d' % (D+2, D+2, D+3))
    P('v_cvt_pk_bf16_f32 v%d, v%d, v%d' % (D, D, D+2))
    P('buffer_store_dword v%d, v%d, %s, s%d offen' % (D, V_MST, WS, S_MNXT))
    P.label('L_red_done2')
    stamp(P, 8, stamps)
    P('buffer_load_dwordx4 %s, v%d, %s, s%d offen' % (vr(V_KF,4), V_KX, WS, S_KV))
    P('buffer_load_dwordx4 %s, v%d, %s, s%d offen offset:128' % (vr(V_KF+4,4), V_KX, WS, S_KV))
    pre_step_b(P)
    P('s_mov_b32 s%d, %d' % (S_TMO, TMO))
    P('s_add_u32 s%d, s%d, s%d' % (S_T0, S_MNXT, S_GW))
    P('s_add_u32 s%d, s%d, 4096' % (S_T2, S_T0))
    P('s_add_u32 s%d, s%d, 8192' % (S_T3, S_MNXT))
    GL = SB[1]
    P('v_add_u32 v%d, s%d, v%d' % (GL, S_GW, V_L16))
    for (x, y) in ((S_PCUR, S_PPOI), (S_PCUR4, S_PPOI4)):
        P('s_mov_b32 s%d, s%d' % (S_T1, x)); P('s_mov_b32 s%d, s%d' % (x, y)); P('s_mov_b32 s%d, s%d' % (y, S_T1))
    P('s_mov_b32 s%d, %d' % (S_T1, P_SLOT))
    P('s_bitcmp1_b32 s%d, 0' % S_STEP)
    P('s_cselect_b32 s%d, 0x%x, s%d' % (S_T1, -P_SLOT & 0xffffffff, S_T1))
    for t in range(4): P('s_add_u32 s%d, s%d, s%d' % (S_PR0+t, S_PR0+t, S_T1))
    P('s_mov_b32 s%d, s%d' % (S_MNXT, S_MPOI))
    P('s_add_u32 s%d, s%d, 3' % (S_T1, S_STEP)); P('s_and_b32 s%d, s%d, 3' % (S_T1, S_T1)); P('s_mul_i32 s%d, s%d, %d' % (S_T1, S_T1, M_SLOT))
    P('s_add_u32 s%d, s%d, 0x%x' % (S_MPOI, S_T1, WS_M))
    P('s_add_u32 s%d, s%d, 1' % (S_STEP, S_STEP))
    CK = SB[1]+1
    if OPT['gsleep']:
        P('s_cmp_eq_u32 s%d, 0' % S_RED); P('s_cbranch_scc0 L_nosleep'); P('s_sleep %d' % OPT['gsleep']); P.label('L_nosleep')
    P('s_cmp_eq_u32 s%d, 0' % S_W)
    P('s_cbranch_scc1 L_gat0')
    P.label('L_gat_poll')
    P('buffer_load_dwordx4 v[20:23], v%d, %s, s%d offen sc1' % (V_L16, WS, S_T0))
    P('buffer_load_dwordx4 v[24:27], v%d, %s, s%d offen sc1' % (V_L16, WS, S_T2))
    P('ds_write_b128 v%d, v[20:23] offset:%d' % (GL, L_MF))
    P('v_max3_u32 v%d, v20, v21, v22' % CK); P('v_max_u32 v%d, v%d, v23' % (CK, CK))
    P('ds_write_b128 v%d, v[24:27] offset:%d' % (GL, L_MF + 4096))
    P('v_max3_u32 v%d, v%d, v24, v25' % (CK, CK)); P('v_max3_u32 v%d, v%d, v26, v27' % (CK, CK))
    P('v_cmp_eq_u32 vcc, -1, v%d' % CK)
    poll_tail(P, 'L_gat_poll', 'L_gat_done', 2)
    P('s_branch L_gat_w')
    P.label('L_gat0')
    P('buffer_load_dwordx4 v[20:23], v%d, %s, s%d offen sc1' % (V_L16, WS, S_T0))
    P('buffer_load_dwordx4 v[24:27], v%d, %s, s%d offen sc1' % (V_L16, WS, S_T2))
    P('buffer_load_dwordx4 v[28:31], v%d, %s, s%d offen sc1' % (V_L16, WS, S_T3))
    P('ds_write_b128 v%d, v[20:23] offset:%d' % (GL, L_MF))
    P('v_max3_u32 v%d, v20, v21, v22' % CK); P('v_max_u32 v%d, v%d, v23' % (CK, CK))
    P('ds_write_b128 v%d, v[24:27] offset:%d' % (GL, L_MF + 4096))
    P('v_max3_u32 v%d, v%d, v24, v25' % (CK, CK)); P('v_max3_u32 v%d, v%d, v26, v27' % (CK, CK))
    P('ds_write_b128 v%d, v[28:31] offset:%d' % (V_L16, L_MF + 8192))
    P('v_max3_u32 v%d, v%d, v28, v29' % (CK, CK)); P('v_max3_u32 v%d, v%d, v30, v31' % (CK, CK))
    P('v_cmp_eq_u32 vcc, -1, v%d' % CK)
    poll_tail(P, 'L_gat0', 'L_gat0_done', 4)
    P.label('L_gat_w')
    if stamps: P('s_sub_u32 s%d, %d, s%d' % (S_ST+2, TMO, S_TMO))
    stamp(P, 9, stamps)
    if stamps: flush_stamps(P, 10)
    P('WAIT_LDSW')
    P('s_barrier')
    P('s_branch L_chain_loop')
    P.label('L_chain_last')
    for i in range(4): P('v_permlane32_swap_b32 v%d, v%d' % (V_VA+i, V_VB+i))
    pk_add(P, V_VA, V_VA, V_VB); pk_add(P, V_VA+2, V_VA+2, V_VB+2)
    cvt(P, V_VA, V_VA, V_VA+1); cvt(P, V_VA+1, V_VA+2, V_VA+3)
    P('buffer_store_dwordx2 %s, v%d, %s, s%d offen sc1' % (vr(V_VA,2), V_VM, WS, S_KM))
    P('s_branch L_chain_done')
    return P

def comm_loop(k, stamps=False):
    P = Prog()
    SB = [V_ST, V_ST+8]
    P.label('L_chain_loop')
    stamp(P, 0, stamps)
    P('s_cmp_eq_u32 s%d, 63' % S_STEP)
    P('s_cbranch_scc1 L_chain_done')
    if OPT.get('poison', 1) and OPT.get('x4', 0):
        P('v_mov_b32 v76, -1'); P('v_mov_b32 v77, -1'); P('v_mov_b32 v78, -1'); P('v_mov_b32 v79, -1')
        P('buffer_store_dword v0, v%d, %s, s%d offen' % (V_PT0, WS, S_PPOI))
        P('buffer_store_dwordx4 v[76:79], v%d, %s, s%d offen offset:1024' % (V_QB, WS, S_PPOI))
        P('buffer_store_dwordx4 v[76:79], v%d, %s, s%d offen offset:1024' % (V_QB, WS, S_PPOI4))
    elif OPT.get('poison', 1):
        for T in (0, 2, 4, 6, 7):
            off = T*1024
            if off < 4096: P('buffer_store_dwordx2 v[0:1], v%d, %s, s%d offen offset:%d' % (V_PST, WS, S_PPOI, off))
            else: P('buffer_store_dwordx2 v[0:1], v%d, %s, s%d offen offset:%d' % (V_PST, WS, S_PPOI4, off - 4096))
    P('buffer_store_dword v0, v%d, %s, s%d offen' % (V_MST, WS, S_MPOI))
    if OPT.get('gap', 0):
        P('s_sleep %d' % OPT['gap'])
    P('s_waitcnt vmcnt(0)')
    P('s_barrier')
    stamp(P, 1, stamps)
    P('v_mov_b32 v72, 0x3c003c00'); P('v_mov_b32 v73, 0x3c003c00'); P('v_mov_b32 v74, 0x3c003c00'); P('v_mov_b32 v75, 0x3c003c00')
    if OPT.get('x4', 0):
        P('buffer_store_dword v72, v%d, %s, s%d offen' % (V_PT0, WS, S_PCUR))
        P('buffer_store_dwordx4 v[72:75], v%d, %s, s%d offen offset:1024' % (V_QB, WS, S_PCUR))
        P('buffer_store_dwordx4 v[72:75], v%d, %s, s%d offen offset:1024' % (V_QB, WS, S_PCUR4))
    else:
        P('buffer_store_dword v72, v%d, %s, s%d offen' % (V_PT0, WS, S_PCUR))
        for pr in range(4):
            off = (1 + 2*pr)*1024
            if off < 4096: P('buffer_store_dwordx2 v[72:73], v%d, %s, s%d offen offset:%d' % (V_PST, WS, S_PCUR, off))
            else: P('buffer_store_dwordx2 v[72:73], v%d, %s, s%d offen offset:%d' % (V_PST, WS, S_PCUR4, off - 4096))
    stamp(P, 7, stamps)
    P('s_cmp_eq_u32 s%d, 0' % S_RED)
    P('s_cbranch_scc1 L_red_done2')
    if OPT.get('rsleep', 0): P('s_sleep %d' % OPT['rsleep'])
    if OPT.get('rnop', 0):
        for _ in range(OPT['rnop']): P('s_nop 7')
    if OPT.get('rack', 0):
        P('s_waitcnt vmcnt(0)'); stamp(P, 2, True)
    BR = V_QA
    for r in range(4): P('v_cndmask_b32 v%d, 0, v%d, s[%d:%d]' % (BR+r, V_BVAL, S_BM+2*r, S_BM+2*r+1))
    P('s_mov_b32 s%d, %d' % (S_TMO, TMO))
    RL = [V_AR, V_AR+4, V_AR+8, SB[1]]; D = SB[1]+4; CK = 60
    P.label('L_red_poll')
    stamp(P, 3, stamps == 2)
    for t in range(4): P('buffer_load_dwordx4 %s, v%d, %s, s%d offen sc1' % (vr(RL[t],4), V_RED, WS, S_PR0+t))
    mfma32(P, D, RL[0], BR)
    P('v_max_u32 v%d, v%d, v%d' % (CK, RL[0], RL[0]+2))
    mfma32(P, D, RL[1], BR, D)
    P('v_max3_u32 v%d, v%d, v%d, v%d' % (CK, CK, RL[1], RL[1]+2))
    mfma32(P, D, RL[2], BR, D)
    P('v_max3_u32 v%d, v%d, v%d, v%d' % (CK, CK, RL[2], RL[2]+2))
    mfma32(P, D, RL[3], BR, D)
    P('v_max3_u32 v%d, v%d, v%d, v%d' % (CK, CK, RL[3], RL[3]+2))
    stamp(P, 4, stamps == 2)
    P('v_cmp_eq_u32 vcc, -1, v%d' % CK)
    poll_tail(P, 'L_red_poll', 'L_red_done', 1)
    if stamps: P('s_sub_u32 s%d, %d, s%d' % (S_ST+5, TMO, S_TMO))
    P('v_permlane32_swap_b32 v%d, v%d' % (D, D+1)); P('v_permlane32_swap_b32 v%d, v%d' % (D+2, D+3))
    P('v_add_f32 v%d, v%d, v%d' % (D, D, D+1)); P('v_add_f32 v%d, v%d, v%d' % (D+2, D+2, D+3))
    P('v_cvt_pk_bf16_f32 v%d, v%d, v%d' % (D, D, D+2))
    P('buffer_store_dword v%d, v%d, %s, s%d offen' % (D, V_MST, WS, S_MNXT))
    P.label('L_red_done2')
    stamp(P, 8, stamps)
    P('s_mov_b32 s%d, %d' % (S_TMO, TMO))
    P('s_add_u32 s%d, s%d, s%d' % (S_T0, S_MNXT, S_GW))
    P('s_add_u32 s%d, s%d, 4096' % (S_T2, S_T0))
    P('s_add_u32 s%d, s%d, 8192' % (S_T3, S_MNXT))
    GL = SB[1]
    P('v_add_u32 v%d, s%d, v%d' % (GL, S_GW, V_L16))
    for (x, y) in ((S_PCUR, S_PPOI), (S_PCUR4, S_PPOI4)):
        P('s_mov_b32 s%d, s%d' % (S_T1, x)); P('s_mov_b32 s%d, s%d' % (x, y)); P('s_mov_b32 s%d, s%d' % (y, S_T1))
    P('s_mov_b32 s%d, %d' % (S_T1, P_SLOT))
    P('s_bitcmp1_b32 s%d, 0' % S_STEP)
    P('s_cselect_b32 s%d, 0x%x, s%d' % (S_T1, -P_SLOT & 0xffffffff, S_T1))
    for t in range(4): P('s_add_u32 s%d, s%d, s%d' % (S_PR0+t, S_PR0+t, S_T1))
    P('s_mov_b32 s%d, s%d' % (S_MNXT, S_MPOI))
    P('s_add_u32 s%d, s%d, 3' % (S_T1, S_STEP)); P('s_and_b32 s%d, s%d, 3' % (S_T1, S_T1)); P('s_mul_i32 s%d, s%d, %d' % (S_T1, S_T1, M_SLOT))
    P('s_add_u32 s%d, s%d, 0x%x' % (S_MPOI, S_T1, WS_M))
    P('s_add_u32 s%d, s%d, 1' % (S_STEP, S_STEP))
    CK = SB[1]+1
    if OPT['gsleep']:
        P('s_cmp_eq_u32 s%d, 0' % S_RED); P('s_cbranch_scc0 L_nosleep'); P('s_sleep %d' % OPT['gsleep']); P.label('L_nosleep')
    if OPT.get('gsleep2', 0): P('s_sleep %d' % OPT['gsleep2'])
    if OPT.get('gnop', 0):
        for _ in range(OPT['gnop']): P('s_nop 7')
    P('s_cmp_eq_u32 s%d, 0' % S_W)
    P('s_cbranch_scc1 L_gat0')
    P.label('L_gat_poll')
    P('buffer_load_dwordx4 v[20:23], v%d, %s, s%d offen sc1' % (V_L16, WS, S_T0))
    P('buffer_load_dwordx4 v[24:27], v%d, %s, s%d offen sc1' % (V_L16, WS, S_T2))
    P('ds_write_b128 v%d, v[20:23] offset:%d' % (GL, L_MF))
    P('v_max3_u32 v%d, v20, v21, v22' % CK); P('v_max_u32 v%d, v%d, v23' % (CK, CK))
    P('ds_write_b128 v%d, v[24:27] offset:%d' % (GL, L_MF + 4096))
    P('v_max3_u32 v%d, v%d, v24, v25' % (CK, CK)); P('v_max3_u32 v%d, v%d, v26, v27' % (CK, CK))
    P('v_cmp_eq_u32 vcc, -1, v%d' % CK)
    poll_tail(P, 'L_gat_poll', 'L_gat_done', 2)
    P('s_branch L_gat_w')
    P.label('L_gat0')
    P('buffer_load_dwordx4 v[20:23], v%d, %s, s%d offen sc1' % (V_L16, WS, S_T0))
    P('buffer_load_dwordx4 v[24:27], v%d, %s, s%d offen sc1' % (V_L16, WS, S_T2))
    P('buffer_load_dwordx4 v[28:31], v%d, %s, s%d offen sc1' % (V_L16, WS, S_T3))
    P('ds_write_b128 v%d, v[20:23] offset:%d' % (GL, L_MF))
    P('v_max3_u32 v%d, v20, v21, v22' % CK); P('v_max_u32 v%d, v%d, v23' % (CK, CK))
    P('ds_write_b128 v%d, v[24:27] offset:%d' % (GL, L_MF + 4096))
    P('v_max3_u32 v%d, v%d, v24, v25' % (CK, CK)); P('v_max3_u32 v%d, v%d, v26, v27' % (CK, CK))
    P('ds_write_b128 v%d, v[28:31] offset:%d' % (V_L16, L_MF + 8192))
    P('v_max3_u32 v%d, v%d, v28, v29' % (CK, CK)); P('v_max3_u32 v%d, v%d, v30, v31' % (CK, CK))
    P('v_cmp_eq_u32 vcc, -1, v%d' % CK)
    poll_tail(P, 'L_gat0', 'L_gat0_done', 4)
    P.label('L_gat_w')
    if stamps: P('s_sub_u32 s%d, %d, s%d' % (S_ST+6, TMO, S_TMO))
    stamp(P, 9, stamps)
    if stamps: flush_stamps(P, 10)
    P('WAIT_LDSW')
    P('s_barrier')
    P('s_branch L_chain_loop')
    return P
```

```python
WS_SIZE = 0x10000000
WS_P    = 0x00000000
WS_M    = 0x00100000
M_SLOT  = 0x2400
WS_FLAG = 0x00200000
WS_STAT = 0x00300000
WS_KF   = 0x01000000
WS_VF   = 0x02000000
WS_QF   = 0x03000000
WS_OF   = 0x04000000
WS_HF   = 0x05000000
WS_XNF  = 0x06400000
WS_YF   = 0x06800000
WS_KM   = 0x06C00000
WS_VM   = 0x07000000
WS_BASE = 0x07400000
KA = dict(x=0, mem0=8, Wq=16, Wk=24, Wv=32, Wo=40, seg=48, Bx=56, w1=64, b1=72, w2=80, b2=88, out=96, dbg=104, ws=112)
P_HEAD = 9216
P_SLOT = 32 * 9216
```

```python
from asmlib import *
from common import *

def vr(a, n=1): return 'v%d' % a if n == 1 else 'v[%d:%d]' % (a, a+n-1)

G_WS = 8
G_WSRD = 12
G_W = 17
G_T0 = 19; G_T1 = 20; G_T2 = 21; G_T3 = 22
G_XOFF = 24
G_WOFF = 25
G_SLOT = 26
G_NSLOT = 27
G_CNT = 28
G_DST = 29; G_DST2 = 30
G_M0B = 31
G_BSRD = 32
G_OSRD = 36
G_C0 = 40; G_C1 = 41
G_TASK = 42; G_TT = 43; G_FG = 44
WSs = 's[%d:%d]' % (G_WS, G_WS+3)

class Gemm:
    def __init__(self, NT, KS, rsg, name):
        self.NT, self.KS, self.rsg, self.name = NT, KS, rsg, name
        self.NF = 32*NT
        self.rsl = self.NF*2
        self.slot = self.rsl*16*KS
        self.NSLOT = 4
        self.NI = self.slot // 4096
        self.ACC = 128
        self.XF = 16
        self.WF = self.XF + 8*KS
        self.AD = self.WF + 16
        self.NA = 4 if NT == 8 else 1
        self.AB = self.AD + 2*self.NA
        self.DO = self.AB + self.NA
        self.NDO = 2 if NT == 8 else 3
        self.L16 = self.DO + self.NDO
        self.TMP = (self.L16 + 2) & ~1
        assert self.TMP + 24 <= 128
    def setup(self, P):
        t = self.TMP
        P('v_lshlrev_b32 v%d, 4, v0' % self.L16)
        P('v_lshrrev_b32 v%d, 5, v0' % t)
        P('v_bfe_u32 v%d, v0, 2, 2' % (t+1))
        P('v_lshl_add_u32 v%d, v%d, 2, v%d' % (t+2, t, t+1))
        P('s_movk_i32 s%d, %d' % (G_T0, self.rsl))
        P('v_mul_lo_u32 v%d, v%d, s%d' % (t+2, t+2, G_T0))
        P('v_bfe_u32 v%d, v0, 4, 1' % (t+3))
        P('v_and_b32 v%d, 3, v0' % (t+4))
        P('v_lshlrev_b32 v%d, 5, v%d' % (t+3, t+3))
        P('v_lshl_add_u32 v%d, v%d, 3, v%d' % (t+3, t+4, t+3))
        P('v_add_u32 v%d, v%d, v%d' % (t+2, t+2, t+3))
        if self.NT == 8:
            for j in range(4):
                P('v_xor_b32 v%d, %d, v%d' % (t+4, j, t+1))
                P('v_lshl_add_u32 v%d, v%d, 6, v%d' % (self.AB+j, t+4, t+2))
            for par in range(2):
                P('v_lshrrev_b32 v%d, 5, v0' % t)
                P('v_add_u32 v%d, %d, v%d' % (t+1, 2*par, t))
                P('v_bfe_u32 v%d, v0, 2, 3' % (t+2))
                P('v_xor_b32 v%d, v%d, v%d' % (t+2, t+2, t+1))
                P('v_and_b32 v%d, 3, v0' % (t+3))
                P('v_lshl_add_u32 v%d, v%d, 2, v%d' % (t+2, t+2, t+3))
                P('v_lshlrev_b32 v%d, 4, v%d' % (t+2, t+2))
                P('s_movk_i32 s%d, %d' % (G_T0, self.rsg))
                P('v_mul_lo_u32 v%d, v%d, s%d' % (t, t, G_T0))
                P('v_add_u32 v%d, v%d, v%d' % (self.DO+par, t, t+2))
            P('s_lshl_b32 s%d, s%d, 12' % (G_M0B, G_W))
        else:
            P('v_mov_b32 v%d, v%d' % (self.AB, t+2))
            cpr = self.rsl // 16
            for i in range(3):
                P('v_add_u32 v%d, %d, v0' % (t, 64*i))
                P('s_mov_b32 s%d, 0x%x' % (G_T0, (1 << 20)//cpr + 1))
                P('v_mul_lo_u32 v%d, v%d, s%d' % (t+1, t, G_T0))
                P('v_lshrrev_b32 v%d, 20, v%d' % (t+1, t+1))
                P('s_movk_i32 s%d, %d' % (G_T0, cpr))
                P('v_mul_lo_u32 v%d, v%d, s%d' % (t+2, t+1, G_T0))
                P('v_sub_u32 v%d, v%d, v%d' % (t+2, t, t+2))
                P('s_movk_i32 s%d, %d' % (G_T0, self.rsg))
                P('v_mul_lo_u32 v%d, v%d, s%d' % (t+1, t+1, G_T0))
                P('v_lshl_add_u32 v%d, v%d, 4, v%d' % (self.DO+i, t+2, t+1))
            P('s_mul_i32 s%d, s%d, %d' % (G_M0B, G_W, 3072))
    def rows_per_wave(self): return 4*self.KS
    def dma(self, P):
        W = 's[%d:%d]' % (G_WSRD, G_WSRD+3)
        P('s_add_u32 s%d, s%d, s%d' % (G_T0, G_SLOT, G_M0B))
        for i in range(self.NI):
            if self.NT == 8:
                P('s_add_u32 m0, s%d, %d' % (G_T0, 1024*i))
                P('s_add_u32 s%d, s%d, %d' % (G_T1, G_WOFF, 2*i*self.rsg))
                P('buffer_load_dwordx4 v%d, %s, s%d offen lds' % (self.DO + (i & 1), W, G_T1))
            else:
                P('s_add_u32 m0, s%d, %d' % (G_T0, 1024*i))
                P('s_nop 0')
                P('buffer_load_dwordx4 v%d, %s, s%d offen lds' % (self.DO + i, W, G_WOFF))
        P('s_add_u32 s%d, s%d, %d' % (G_WOFF, G_WOFF, 16*self.KS*self.rsg))
        P('s_add_u32 s%d, s%d, %d' % (G_SLOT, G_SLOT, self.slot))
        P('s_cmp_eq_u32 s%d, %d' % (G_SLOT, self.NSLOT*self.slot))
        P('s_cselect_b32 s%d, 0, s%d' % (G_SLOT, G_SLOT))
    def xload(self, P, st, ks):
        P('buffer_load_dwordx4 %s, v%d, %s, s%d offen offset:%d' % (vr(self.XF + 4*(st*self.KS + ks), 4), self.L16, WSs, G_XOFF, (ks % 4)*1024))
    def addr_set(self, P, st):
        for j in range(self.NA): P('v_add_u32 v%d, s%d, v%d' % (self.AD + st*self.NA + j, G_NSLOT, self.AB + j))
        P('s_add_u32 s%d, s%d, %d' % (G_NSLOT, G_NSLOT, self.slot))
        P('s_cmp_eq_u32 s%d, %d' % (G_NSLOT, self.NSLOT*self.slot))
        P('s_cselect_b32 s%d, 0, s%d' % (G_NSLOT, G_NSLOT))
    def wread(self, P, st, q):
        ks, ft = divmod(q, self.NT)
        dst = self.WF + 4*(q % 4)
        if self.NT == 8:
            a = self.AD + st*self.NA + (ft & 3); off = ks*16*self.rsl + (ft >> 2)*256
        else:
            a = self.AD + st*self.NA; off = ks*16*self.rsl + ft*64
        P('ds_read_b64_tr_b16 %s, v%d offset:%d' % (vr(dst, 2), a, off))
        P('ds_read_b64_tr_b16 %s, v%d offset:%d' % (vr(dst+2, 2), a, off + 8*self.rsl))
    def mfma(self, P, st, q, swap):
        ks, ft = divmod(q, self.NT)
        acc = vr(self.ACC + 16*ft, 16); w = vr(self.WF + 4*(q % 4), 4); x = vr(self.XF + 4*(st*self.KS + ks), 4)
        if swap: P('v_mfma_f32_32x32x16_bf16 %s, %s, %s, %s' % (acc, x, w, acc))
        else: P('v_mfma_f32_32x32x16_bf16 %s, %s, %s, %s' % (acc, w, x, acc))
    def prologue(self, P):
        P('s_mov_b32 s%d, 0' % G_SLOT); P('s_mov_b32 s%d, 0' % G_NSLOT)
        P('s_barrier')
        self.dma(P)
        for st in range(2):
            for ks in range(self.KS): self.xload(P, st, ks)
            P('s_add_u32 s%d, s%d, %d' % (G_XOFF, G_XOFF, 1024*self.KS))
            self.dma(P)
    def first_reads(self, P):
        n_after = 2*(self.NI + self.KS)
        P('s_waitcnt vmcnt(%d)' % n_after)
        P('s_barrier')
        self.addr_set(P, 0)
        for q in range(3): self.wread(P, 0, q)
    def body(self, swap, label):
        P = Prog()
        P.label(label)
        NQ = self.NT*self.KS
        per = self.NI + self.KS
        for st in range(2):
            for q in range(NQ):
                if q == NQ//2 - 1 or (NQ//2 == 0):
                    pass
                if q == NQ // 2:
                    P('s_waitcnt vmcnt(%d)' % self.vm_after_publish(st))
                    P('s_barrier')
                    self.addr_set(P, 1 - st)
                    self.dma(P)
                nq = q + 3
                if nq < NQ: self.wread(P, st, nq)
                else: self.wread(P, 1 - st, nq - NQ)
                self.mfma(P, st, q, swap)
                ks, ft = divmod(q, self.NT)
                if ft == self.NT - 1:
                    self.xload(P, st, ks)
                    if ks == self.KS - 1: P('s_add_u32 s%d, s%d, %d' % (G_XOFF, G_XOFF, 1024*self.KS))
        P('s_sub_u32 s%d, s%d, 1' % (G_CNT, G_CNT))
        P('s_cmp_lg_u32 s%d, 0' % G_CNT)
        P('s_cbranch_scc1 %s' % label)
        return P
    def vm_after_publish(self, st):
        h = self.KS // 2
        return 3*h + self.NI


def zero_acc(g, P):
    for r in range(g.ACC, g.ACC + 16*g.NT, 2): P('v_mov_b64 %s, 0' % vr(r, 2))

def pack8(P, dst, src):
    for i in range(4): P('v_cvt_pk_bf16_f32 v%d, v%d, v%d' % (dst+i, src+2*i, src+2*i+1))

def epi_kq(g, P):
    t = g.TMP
    for ft in range(8):
        for G in range(2):
            d = t + 4*((2*ft+G) % 4)
            pack8(P, d, g.ACC + 16*ft + 8*G)
            off = (ft >> 2)*8192 + (4*(ft & 3) + 2*G)*512
            P('s_add_u32 s%d, s%d, %d' % (G_T0, G_DST, off & ~4095))
            P('buffer_store_dwordx4 %s, v%d, %s, s%d offen offset:%d%s' % (vr(d,4), g.L16, WSs, G_T0, off & 4095, g.stflag))

def epi_v(g, P):
    t = g.TMP
    va = t + 16
    P('v_lshrrev_b32 v%d, 5, v0' % va); P('v_lshlrev_b32 v%d, 11, v%d' % (va, va))
    P('v_and_b32 v%d, 31, v0' % (va+1)); P('v_lshl_add_u32 v%d, v%d, 4, v%d' % (va, va+1, va))
    for ft in range(8):
        for G in range(2):
            d = t + 4*((2*ft+G) % 4)
            pack8(P, d, g.ACC + 16*ft + 8*G)
            off = (ft >> 2)*8192 + G*4096 + (ft & 3)*512
            P('s_add_u32 s%d, s%d, %d' % (G_T0, G_DST, off & ~4095))
            P('buffer_store_dwordx4 %s, v%d, %s, s%d offen offset:%d%s' % (vr(d,4), va, WSs, G_T0, off & 4095, g.stflag))

def init_bias(g, P):
    t = g.TMP
    B = 's[%d:%d]' % (G_BSRD, G_BSRD+3)
    P('v_lshrrev_b32 v%d, 5, v0' % t); P('v_lshlrev_b32 v%d, 3, v%d' % (t, t))
    for ft in range(g.NT):
        for q in range(4):
            P('buffer_load_dwordx2 %s, v%d, %s, s%d offen offset:%d' % (vr(t+2+2*q, 2), t, B, G_T3, 64*ft + 16*q))
        for q in range(4):
            a = g.ACC + 16*ft + 4*q
            P('v_lshlrev_b32 v%d, 16, v%d' % (a, t+2+2*q)); P('v_and_b32 v%d, 0xffff0000, v%d' % (a+1, t+2+2*q))
            P('v_lshlrev_b32 v%d, 16, v%d' % (a+2, t+3+2*q)); P('v_and_b32 v%d, 0xffff0000, v%d' % (a+3, t+3+2*q))

def gelu(P, x, t):
    P('v_mul_f32 v%d, v%d, v%d' % (t, x, x))
    P('v_fma_f32 v%d, v%d, s%d, v%d' % (t, t, G_C1, t+8))
    P('v_mul_f32 v%d, v%d, v%d' % (t, t, x))
    P('v_exp_f32 v%d, v%d' % (t, t))
    P('v_add_f32 v%d, 1.0, v%d' % (t, t))
    P('v_rcp_f32 v%d, v%d' % (t, t))
    P('v_mul_f32 v%d, v%d, v%d' % (x, x, t))

def epi_h(g, P):
    t = g.TMP
    c0 = t + 20
    P('v_mov_b32 v%d, s%d' % (c0, G_C0))
    for ft in range(g.NT):
        for base in range(0, 16, 4):
            xs = [g.ACC + 16*ft + base + i for i in range(4)]
            ts = [t + 16 + i for i in range(4)]
            for i in range(4): P('v_mul_f32 v%d, v%d, v%d' % (ts[i], xs[i], xs[i]))
            for i in range(4): P('v_fma_f32 v%d, v%d, s%d, v%d' % (ts[i], ts[i], G_C1, c0))
            for i in range(4): P('v_mul_f32 v%d, v%d, v%d' % (ts[i], ts[i], xs[i]))
            for i in range(4): P('v_exp_f32 v%d, v%d' % (ts[i], ts[i]))
            for i in range(4): P('v_add_f32 v%d, 1.0, v%d' % (ts[i], ts[i]))
            for i in range(4): P('v_rcp_f32 v%d, v%d' % (ts[i], ts[i]))
            for i in range(4): P('v_mul_f32 v%d, v%d, v%d' % (xs[i], xs[i], ts[i]))
        for G in range(2):
            d = t + 4*((2*ft+G) % 4)
            pack8(P, d, g.ACC + 16*ft + 8*G)
            off = (2*ft+G)*1024
            P('s_add_u32 s%d, s%d, %d' % (G_T0, G_DST, off & ~4095))
            P('buffer_store_dwordx4 %s, v%d, %s, s%d offen offset:%d%s' % (vr(d,4), g.L16, WSs, G_T0, off & 4095, g.stflag))
```

```python
import sys
from asmlib import *
from common import *
import chain as C

def header(launches):
    h = ''
    for l in launches: h += l + '\n'
    h += '.amdgcn_target "amdgcn-amd-amdhsa--gfx950"\n.text\n'
    return h

def kdesc(name, vgpr=512, sgpr=100, accum=256):
    return ('.section .rodata,"a"\n.p2align 6\n.amdhsa_kernel %s\n  .amdhsa_next_free_vgpr %d\n  .amdhsa_next_free_sgpr %d\n'
            '  .amdhsa_accum_offset %d\n  .amdhsa_group_segment_fixed_size 0\n  .amdhsa_kernarg_size 120\n  .amdhsa_user_sgpr_count 2\n'
            '  .amdhsa_user_sgpr_kernarg_segment_ptr 1\n  .amdhsa_system_sgpr_workgroup_id_x 1\n.end_amdhsa_kernel\n.text\n') % (name, vgpr, sgpr, accum)

def gen(stamps=True, name='chain_kernel'):
    k = Kernel()
    P = Prog()
    P('s_cmp_ge_u32 s2, 256'); P('s_cbranch_scc1 L_end')
    P('s_load_dwordx2 s[%d:%d], s[0:1], %d' % (C.S_DBG, C.S_DBG+1, KA['dbg']))
    P('s_load_dwordx2 s[8:9], s[0:1], %d' % KA['ws'])
    P('s_load_dwordx8 s[%d:%d], s[0:1], %d' % (64, 71, KA['mem0']))
    P('s_load_dwordx2 s[%d:%d], s[0:1], %d' % (72, 73, KA['Wo']))
    P('s_getreg_b32 s4, hwreg(HW_REG_XCC_ID, 0, 4)')
    P('v_lshrrev_b32 v1, 6, v0')
    P('v_and_b32 v0, 63, v0')
    P('v_readfirstlane_b32 s%d, v1' % C.S_W)
    P('s_waitcnt lgkmcnt(0)')
    P('s_mov_b32 s10, 0x%x' % WS_SIZE); P('s_mov_b32 s11, 0x20000')
    P('s_mov_b32 s%d, s66' % (C.S_PTR)); P('s_mov_b32 s%d, s67' % (C.S_PTR+1))
    P('s_mov_b32 s%d, s68' % (C.S_PTR+2)); P('s_mov_b32 s%d, s69' % (C.S_PTR+3))
    P('s_mov_b32 s%d, s70' % (C.S_PTR+4)); P('s_mov_b32 s%d, s71' % (C.S_PTR+5))
    P('s_mov_b32 s%d, s72' % (C.S_PTR+6)); P('s_mov_b32 s%d, s73' % (C.S_PTR+7))
    P('s_mov_b32 s%d, s64' % (C.S_PTR+8)); P('s_mov_b32 s%d, s65' % (C.S_PTR+9))
    P('s_cmp_eq_u32 s%d, 0' % C.S_W)
    P('s_cbranch_scc0 L_noticket')
    P('s_lshl_b32 s5, s4, 2')
    P('v_mov_b32 v2, s5'); P('v_mov_b32 v3, 1')
    P('s_mov_b64 exec, 1')
    P('global_atomic_add v4, v2, v3, s[%d:%d] sc0' % (C.S_DBG, C.S_DBG+1))
    P('s_waitcnt vmcnt(0)')
    P('v_mov_b32 v5, 0')
    P('ds_write_b32 v5, v4')
    P('s_waitcnt lgkmcnt(0)')
    P('s_mov_b64 exec, -1')
    P.label('L_noticket')
    P('s_barrier')
    P('v_mov_b32 v5, 0')
    P('ds_read_b32 v4, v5')
    P('s_waitcnt lgkmcnt(0)')
    P('v_readfirstlane_b32 s%d, v4' % C.S_H)
    P('s_barrier')
    P('s_cmp_eq_u32 s4, 0'); P('s_cbranch_scc0 L_end')
    P('s_cmp_lt_u32 s%d, 32' % C.S_H); P('s_cbranch_scc0 L_end')
    k.straight(P)
    C.lane_setup(k)
    if not C.OPT.get('comm'): C.emit_simple_weight_load(k)
    C.poison_all(k)
    C.initial_m(k)
    C.extra_setup(k)
    Pp = Prog()
    C.pre_step_a(Pp); C.pre_step_b(Pp)
    if C.OPT.get('comm'):
        Pp('v_lshrrev_b32 v53, 4, v1'); Pp('v_and_b32 v54, 15, v53'); Pp('v_lshrrev_b32 v53, 4, v53')
        Pp('v_lshl_add_u32 v53, v53, 6, v54'); Pp('s_lshl_b32 s19, s17, 4'); Pp('v_add_u32 v53, s19, v53'); Pp('v_lshlrev_b32 v52, 4, v53')
    k.straight(Pp)
    P = Prog()
    P('s_waitcnt vmcnt(0) lgkmcnt(0)')
    P('s_barrier')
    P('s_cmp_eq_u32 s%d, 0' % C.S_W); P('s_cbranch_scc0 L_cb_wait')
    P('v_mov_b32 v20, 64'); P('v_mov_b32 v21, 1')
    P('s_mov_b64 exec, 1')
    P('global_atomic_add v20, v21, s[%d:%d]' % (C.S_DBG, C.S_DBG+1))
    P('s_mov_b32 s%d, 200000' % C.S_TMO)
    P.label('L_cb_poll')
    P('v_mov_b32 v20, 64')
    P('global_load_dword v22, v20, s[%d:%d] sc1' % (C.S_DBG, C.S_DBG+1))
    P('s_waitcnt vmcnt(0)')
    P('v_readfirstlane_b32 s%d, v22' % C.S_T0)
    P('s_cmp_ge_u32 s%d, 32' % C.S_T0)
    P('s_cbranch_scc1 L_cb_ok')
    P('s_sub_u32 s%d, s%d, 1' % (C.S_TMO, C.S_TMO)); P('s_cmp_lg_u32 s%d, 0' % C.S_TMO); P('s_cbranch_scc1 L_cb_poll')
    P('s_or_b32 s%d, s%d, 8' % (C.S_ERR, C.S_ERR))
    P.label('L_cb_ok')
    P('s_mov_b64 exec, -1')
    P.label('L_cb_wait')
    P('s_barrier')
    k.straight(P)
    P = Prog()
    P('s_mov_b32 s84, 0'); P('s_mov_b32 s85, 0')
    P('s_memtime s[94:95]'); P('s_memrealtime s[96:97]'); P('s_waitcnt lgkmcnt(0)')
    k.straight(P)
    k.loop((C.comm_loop if C.OPT.get('comm') else C.main_loop)(k, stamps=stamps))
    P = Prog()
    P.label('L_chain_done')
    P('s_waitcnt vmcnt(0) lgkmcnt(0)')
    P('s_memtime s[98:99]'); P('s_memrealtime s[40:41]'); P('s_waitcnt lgkmcnt(0)')
    P('s_sub_u32 s98, s98, s94'); P('s_sub_u32 s40, s40, s96')
    P('v_mov_b32 v20, s98'); P('v_mov_b32 v21, s40'); P('v_mov_b32 v22, 160')
    P('global_store_dwordx2 v22, v[20:21], s[%d:%d]' % (C.S_DBG, C.S_DBG+1))
    P('s_mov_b64 exec, 1')
    P('v_mov_b32 v22, 176'); P('v_mov_b32 v20, s84'); P('global_atomic_add v22, v20, s[%d:%d]' % (C.S_DBG, C.S_DBG+1))
    P('v_mov_b32 v23, 180'); P('v_mov_b32 v21, s85'); P('global_atomic_add v23, v21, s[%d:%d]' % (C.S_DBG, C.S_DBG+1))
    P('s_mov_b64 exec, -1')
    P('s_waitcnt vmcnt(0)')
    P('s_cmp_eq_u32 s%d, 0' % C.S_ERR); P('s_cbranch_scc1 L_end')
    P('v_mov_b32 v20, 128'); P('v_mov_b32 v21, s%d' % C.S_ERR)
    P('global_atomic_or v20, v21, s[%d:%d]' % (C.S_DBG, C.S_DBG+1))
    P('s_waitcnt vmcnt(0)')
    P.label('L_end')
    P('s_endpgm')
    k.straight(P)
    txt = header(['; @launch grid=(256,1,1) block=(256,1,1) lds=%d' % C.LDS_TOTAL])
    txt += '.globl %s\n.p2align 8\n.type %s,@function\n%s:\n' % (name, name, name)
    txt += k.text() + kdesc(name)
    return txt

if __name__ == '__main__':
    if len(sys.argv) > 2: C.STAMP_SET = set(int(x) for x in sys.argv[2].split(','))
    for a in sys.argv[3:]:
        kk, vv = a.split('='); C.OPT[kk] = int(vv)
    open('chain_test.s', 'w').write(gen(stamps=int(sys.argv[1]) if len(sys.argv) > 1 else 1))
    print('written')
```

```python
import sys
from asmlib import *
from common import *
import workers as W
from gen_chain_test import header, kdesc

def kern(name, fn, **kw):
    k = Kernel()
    end = 'L_end_' + name
    fn(k, end, **kw)
    P = Prog(); P.label(end); P('s_endpgm'); k.straight(P)
    return '.globl %s\n.p2align 8\n.type %s,@function\n%s:\n' % (name, name, name) + k.text() + kdesc(name)

if __name__ == '__main__':
    txt = header(['; @launch kernel=ln_kernel grid=(64,1,1) block=(256,1,1) lds=0',
                  '; @launch kernel=gemma_kernel grid=(256,1,1) block=(256,1,1) lds=65536',
                  '; @launch kernel=attn_kernel grid=(256,1,1) block=(256,1,1) lds=0',
                  '; @launch kernel=final_kernel grid=(96,1,1) block=(256,1,1) lds=65536'])
    txt += kern('ln_kernel', W.ln_kernel) + kern('gemma_kernel', W.gemma_kernel) + kern('attn_kernel', W.attn_kernel) + kern('final_kernel', W.final_kernel)
    open('workers_test.s', 'w').write(txt)
    print('ok')
```

```python
from asmlib import *
from common import *
import gemm as Gm
from gemm import *

def srd(P, s, lo, hi, size):
    P('s_mov_b32 s%d, s%d' % (s, lo)); P('s_mov_b32 s%d, s%d' % (s+1, hi))
    P('s_mov_b32 s%d, 0x%x' % (s+2, size)); P('s_mov_b32 s%d, 0x20000' % (s+3))

def load_ptrs(P, names, sbase):
    for i, n in enumerate(names): P('s_load_dwordx2 s[%d:%d], s[0:1], %d' % (sbase+2*i, sbase+2*i+1, KA[n]))

def std_entry(P, nwg, endlabel):
    P('s_cmp_ge_u32 s2, %d' % nwg); P('s_cbranch_scc1 %s' % endlabel)
    P('s_load_dwordx2 s[8:9], s[0:1], %d' % KA['ws'])
    P('v_lshrrev_b32 v1, 6, v0'); P('v_and_b32 v0, 63, v0')
    P('s_nop 0')
    P('v_readfirstlane_b32 s%d, v1' % G_W)
    P('s_mov_b32 s10, 0x%x' % WS_SIZE); P('s_mov_b32 s11, 0x20000')

def ln_rows(P, sRow0):
    X = 's[%d:%d]' % (G_BSRD, G_BSRD+3)
    D = 20
    F = 60
    P('v_lshrrev_b32 v2, 3, v0'); P('v_and_b32 v3, 7, v0')
    P('v_add_u32 v2, s%d, v2' % sRow0)
    P('s_movk_i32 s%d, 1152' % G_T0); P('v_mul_lo_u32 v4, v2, s%d' % G_T0)
    P('v_lshl_add_u32 v4, v3, 4, v4')
    for i in range(9): P('buffer_load_dwordx4 %s, v4, %s, 0 offen offset:%d' % (vr(D+4*i,4), X, 128*i))
    for i in range(36):
        P('v_lshlrev_b32 v%d, 16, v%d' % (F+2*i, D+i)); P('v_and_b32 v%d, 0xffff0000, v%d' % (F+2*i+1, D+i))
    def rsum(dst, srcs_first):
        pass
    def xlane_sum(r, t):
        for sh in (1, 2, 4):
            if sh == 1: P('v_add_f32_dpp v%d, v%d, v%d quad_perm:[1,0,3,2] row_mask:0xf bank_mask:0xf' % (r, r, r))
            elif sh == 2: P('v_add_f32_dpp v%d, v%d, v%d quad_perm:[2,3,0,1] row_mask:0xf bank_mask:0xf' % (r, r, r))
            else: P('v_add_f32_dpp v%d, v%d, v%d row_half_mirror row_mask:0xf bank_mask:0xf' % (r, r, r))
    def rbf(r, t):
        P('v_cvt_pk_bf16_f32 v%d, v%d, v%d' % (r, r, r)); P('v_lshlrev_b32 v%d, 16, v%d' % (r, r))
    def layernorm():
        P('v_add_f32 v5, v%d, v%d' % (F, F+1))
        for i in range(2, 72): P('v_add_f32 v5, v5, v%d' % (F+i))
        xlane_sum(5, 6)
        P('v_mul_f32 v5, s%d, v5' % G_T1)
        P('v_sub_f32 v6, v%d, v5' % F); P('v_mul_f32 v7, v6, v6')
        for i in range(1, 72):
            P('v_sub_f32 v6, v%d, v5' % (F+i)); P('v_fmac_f32 v7, v6, v6')
        xlane_sum(7, 6)
        P('v_mul_f32 v7, s%d, v7' % G_T1)
        rbf(5, 6); rbf(7, 6)
        P('v_add_f32 v7, s%d, v7' % G_T2); rbf(7, 6)
        P('v_sqrt_f32 v7, v7'); P('s_nop 0'); rbf(7, 6)
        P('v_rcp_f32 v8, v7')
        for i in range(72):
            r = F + i
            P('v_sub_f32 v%d, v%d, v5' % (r, r))
        for i in range(0, 72, 2):
            r = F + i
            P('v_cvt_pk_bf16_f32 v6, v%d, v%d' % (r, r+1))
            P('v_lshlrev_b32 v%d, 16, v6' % r); P('v_and_b32 v%d, 0xffff0000, v6' % (r+1))
        for i in range(72):
            r = F + i
            P('v_mul_f32 v6, v%d, v8' % r)
            P('v_fma_f32 v9, -v6, v7, v%d' % r)
            P('v_fma_f32 v%d, v9, v8, v6' % r)
        for i in range(0, 72, 2):
            r = F + i
            P('v_cvt_pk_bf16_f32 v%d, v%d, v%d' % (D + i//2, r, r+1))
    def store(region):
        for i in range(9):
            d = D + 4*i
            P('v_cndmask_b32 v10, v%d, v%d, s[%d:%d]' % (d+2, d, G_T0+31, G_T0+32))
            P('v_cndmask_b32 v11, v%d, v%d, s[%d:%d]' % (d+3, d+1, G_T0+31, G_T0+32))
            P('v_mov_b32_dpp v12, v10 quad_perm:[1,0,3,2] row_mask:0xf bank_mask:0xf')
            P('v_mov_b32_dpp v13, v11 quad_perm:[1,0,3,2] row_mask:0xf bank_mask:0xf')
            P('v_cndmask_b32 v14, v%d, v12, s[%d:%d]' % (d, G_T0+31, G_T0+32))
            P('v_cndmask_b32 v15, v%d, v13, s[%d:%d]' % (d+1, G_T0+31, G_T0+32))
            P('v_cndmask_b32 v16, v12, v%d, s[%d:%d]' % (d+2, G_T0+31, G_T0+32))
            P('v_cndmask_b32 v17, v13, v%d, s[%d:%d]' % (d+3, G_T0+31, G_T0+32))
            P('s_add_u32 s%d, s%d, %d' % (G_T3, G_DST, region + i*4096))
            P('buffer_store_dwordx4 v[14:17], v18, %s, s%d offen' % (WSs, G_T3))
    P('s_mov_b32 s%d, 0x3ae38e39' % G_T1)
    P('s_mov_b32 s%d, 0x3727c5ac' % G_T2)
    P('v_and_b32 v10, 1, v3'); P('v_cmp_eq_u32 s[%d:%d], 1, v10' % (G_T0+31, G_T0+32))
    P('v_lshrrev_b32 v18, 1, v3'); P('v_lshlrev_b32 v18, 10, v18'); P('v_lshl_add_u32 v18, v10, 9, v18')
    P('v_and_b32 v11, 31, v2'); P('v_lshl_add_u32 v18, v11, 4, v18')
    P('s_lshr_b32 s%d, s%d, 5' % (G_DST, sRow0)); P('s_mul_i32 s%d, s%d, 36864' % (G_DST, G_DST))
    layernorm()
    store(WS_XNF)
    for i in range(36):
        P('v_lshlrev_b32 v%d, 16, v%d' % (F+2*i, D+i)); P('v_and_b32 v%d, 0xffff0000, v%d' % (F+2*i+1, D+i))
    layernorm()
    store(WS_YF)

def ln_kernel(k, end):
    P = Prog()
    std_entry(P, 64, end)
    load_ptrs(P, ['x'], 44)
    P('s_waitcnt lgkmcnt(0)')
    srd(P, G_BSRD, 44, 45, 2048*1152)
    P('s_lshl_b32 s46, s2, 5'); P('s_lshl_b32 s47, s%d, 3' % G_W); P('s_add_u32 s46, s46, s47')
    ln_rows(P, 46)
    P('s_waitcnt vmcnt(0)')
    k.straight(P)

def gemma_kernel(k, end, nwg=256):
    gk = Gemm(8, 2, 8192, 'qkv'); gh = Gemm(8, 2, 9216, 'h')
    gk.stflag = ''; gh.stflag = ''
    P = Prog()
    std_entry(P, nwg, end)
    load_ptrs(P, ['Wk', 'Wv', 'Wq', 'w1', 'b1'], 48)
    P('s_waitcnt lgkmcnt(0)')
    srd(P, G_BSRD, 56, 57, 4608*2)
    P('s_mov_b32 s%d, 0xc0135761' % G_C0)
    P('s_mov_b32 s%d, 0xbdd2d3e7' % G_C1)
    P('s_mov_b32 s%d, s2' % G_TASK)
    k.straight(P)
    P = Prog()
    P.label('L_ga_task')
    P('s_cmp_ge_u32 s%d, %d' % (G_TASK, 16*66)); P('s_cbranch_scc1 %s' % end)
    P('s_and_b32 s%d, s%d, 15' % (G_TT, G_TASK)); P('s_lshr_b32 s%d, s%d, 4' % (G_FG, G_TASK))
    P('s_lshl_b32 s45, s%d, 2' % G_TT); P('s_add_u32 s45, s45, s%d' % G_W)
    P('s_cmp_ge_u32 s%d, 48' % G_FG); P('s_cbranch_scc1 L_ga_h')
    gk.setup(P)
    P('s_lshr_b32 s46, s%d, 4' % G_FG); P('s_and_b32 s47, s%d, 15' % G_FG)
    P('s_mov_b32 s12, s48'); P('s_mov_b32 s13, s49')
    P('s_cmp_eq_u32 s46, 1'); P('s_cselect_b32 s12, s50, s12'); P('s_cselect_b32 s13, s51, s13')
    P('s_cmp_eq_u32 s46, 2'); P('s_cselect_b32 s12, s52, s12'); P('s_cselect_b32 s13, s53, s13')
    P('s_mov_b32 s14, 0x%x' % (576*8192)); P('s_mov_b32 s15, 0x20000')
    P('s_lshl_b32 s%d, s47, 9' % G_WOFF)
    P('s_mul_i32 s%d, s%d, %d' % (G_T0, G_W, 8*8192)); P('s_add_u32 s%d, s%d, s%d' % (G_WOFF, G_WOFF, G_T0))
    P('s_mul_i32 s%d, s45, 36864' % G_XOFF); P('s_add_u32 s%d, s%d, 0x%x' % (G_XOFF, G_XOFF, WS_XNF))
    P('s_lshl_b32 s%d, s45, 5' % G_DST); P('s_lshl_b32 s%d, s47, 1' % G_T0); P('s_add_u32 s%d, s%d, s%d' % (G_DST, G_DST, G_T0))
    P('s_lshl_b32 s%d, s%d, 13' % (G_DST, G_DST)); P('s_lshl_b32 s%d, s46, 24' % G_T0)
    P('s_add_u32 s%d, s%d, s%d' % (G_DST, G_DST, G_T0)); P('s_add_u32 s%d, s%d, 0x%x' % (G_DST, G_DST, WS_KF))
    gk.prologue(P); zero_acc(gk, P); gk.first_reads(P)
    P('s_mov_b32 s%d, 9' % G_CNT)
    P('s_cmp_eq_u32 s46, 1'); P('s_cbranch_scc1 L_ga_v')
    k.straight(P)
    k.loop(gk.body(False, 'L_ga_kq_loop'))
    P = Prog(); P('s_waitcnt vmcnt(0)'); epi_kq(gk, P); P('s_branch L_ga_next'); P.label('L_ga_v'); k.straight(P)
    k.loop(gk.body(True, 'L_ga_v_loop'))
    P = Prog(); P('s_waitcnt vmcnt(0)'); epi_v(gk, P); P('s_branch L_ga_next')
    P.label('L_ga_h')
    gh.setup(P)
    P('s_sub_u32 s47, s%d, 48' % G_FG)
    srd(P, G_WSRD, 54, 55, 576*9216)
    P('s_lshl_b32 s%d, s47, 9' % G_WOFF)
    P('s_mov_b32 s%d, s%d' % (G_T3, G_WOFF))
    P('s_mul_i32 s%d, s%d, %d' % (G_T0, G_W, 8*9216)); P('s_add_u32 s%d, s%d, s%d' % (G_WOFF, G_WOFF, G_T0))
    P('s_mul_i32 s%d, s45, 36864' % G_XOFF); P('s_add_u32 s%d, s%d, 0x%x' % (G_XOFF, G_XOFF, WS_YF))
    P('s_mul_i32 s%d, s45, %d' % (G_DST, 288*1024)); P('s_lshl_b32 s%d, s47, 14' % G_T0)
    P('s_add_u32 s%d, s%d, s%d' % (G_DST, G_DST, G_T0)); P('s_add_u32 s%d, s%d, 0x%x' % (G_DST, G_DST, WS_HF))
    init_bias(gh, P)
    gh.prologue(P); gh.first_reads(P)
    P('s_mov_b32 s%d, 9' % G_CNT)
    k.straight(P)
    k.loop(gh.body(False, 'L_ga_h_loop'))
    P = Prog(); P('s_waitcnt vmcnt(0)'); epi_h(gh, P)
    P.label('L_ga_next')
    P('s_add_u32 s%d, s%d, %d' % (G_TASK, G_TASK, nwg))
    P('s_branch L_ga_task')
    k.straight(P)

A_C = 40
A_MASK = 44
A_BASE = 76; A_S = 77; A_H = 78; A_T = 79
def attn_setup(P):
    P('v_lshlrev_b32 v1, 4, v0')
    P('v_and_b32 v5, 31, v0'); P('v_lshrrev_b32 v6, 5, v0')
    P('v_lshlrev_b32 v2, 7, v6'); P('v_lshl_add_u32 v2, v5, 4, v2')
    P('v_mov_b32 v7, 0x40000000'); P('v_cmp_gt_u32 vcc, 8, v5'); P('v_cndmask_b32 v2, v7, v2, vcc')
    P('v_lshlrev_b32 v3, 11, v6'); P('v_lshl_add_u32 v3, v5, 4, v3')
    P('v_lshlrev_b32 v4, 3, v6'); P('v_lshl_add_u32 v4, v5, 4, v4')
    P('v_lshlrev_b32 v7, 2, v6'); P('v_sub_u32 v7, v5, v7')
    for r in range(16):
        P('v_cmp_le_i32 s[%d:%d], %d, v7' % (A_MASK+2*r, A_MASK+2*r+1, 8*(r >> 2) + (r & 3)))
    P('s_mov_b32 s%d, 0x3e0293ee' % A_C)

def attn_task(P, stflag='', ldflag=''):
    Q, K, KM, V, VMR = 16, 48, 80, 48, 80
    SX, SM, O = 112, 128, 144
    P('s_lshl_b32 s%d, s%d, 5' % (A_BASE, A_S)); P('s_add_u32 s%d, s%d, s%d' % (A_BASE, A_BASE, A_H))
    P('s_lshl_b32 s%d, s%d, 13' % (A_T, A_BASE))
    for (reg, region) in ((Q, WS_QF), (K, WS_KF)):
        P('s_add_u32 s%d, s%d, 0x%x' % (G_T0, A_T, region)); P('s_add_u32 s%d, s%d, 4096' % (G_T1, G_T0))
        for ks in range(8):
            P('buffer_load_dwordx4 %s, v1, %s, s%d offen offset:%d' % (vr(reg+4*ks,4), WSs, G_T0 if ks < 4 else G_T1, (ks % 4)*1024))
    P('s_lshl_b32 s%d, s%d, 11' % (G_T2, A_BASE))
    P('s_add_u32 s%d, s%d, 0x%x' % (G_T0, G_T2, WS_KM))
    for ks in range(8): P('buffer_load_dwordx4 %s, v2, %s, s%d offen offset:%d%s' % (vr(KM+4*ks,4), WSs, G_T0, ks*256, ldflag))
    for ks in range(8):
        P('v_mfma_f32_32x32x16_bf16 %s, %s, %s, %s' % (vr(SX,16), vr(K+4*ks,4), vr(Q+4*ks,4), '0' if ks == 0 else vr(SX,16)))
    for ks in range(8):
        P('v_mfma_f32_32x32x16_bf16 %s, %s, %s, %s' % (vr(SM,16), vr(KM+4*ks,4), vr(Q+4*ks,4), '0' if ks == 0 else vr(SM,16)))
    P('s_add_u32 s%d, s%d, 0x%x' % (G_T0, A_T, WS_VF)); P('s_add_u32 s%d, s%d, 4096' % (G_T1, G_T0))
    for dt in range(4):
        for G in range(2):
            P('buffer_load_dwordx4 %s, v3, %s, s%d offen offset:%d' % (vr(V+4*(2*dt+G),4), WSs, G_T0 if G == 0 else G_T1, dt*512))
    P('s_add_u32 s%d, s%d, 0x%x' % (G_T0, G_T2, WS_VM))
    for dt in range(4):
        P('buffer_load_dwordx2 %s, v4, %s, s%d offen offset:%d%s' % (vr(VMR+4*dt,2), WSs, G_T0, dt*512, ldflag))
        P('v_mov_b64 %s, 0' % vr(VMR+4*dt+2,2))
    P('v_mov_b32 v8, 0xff800000')
    for r in range(16): P('v_cndmask_b32 v%d, v8, v%d, s[%d:%d]' % (SX+r, SX+r, A_MASK+2*r, A_MASK+2*r+1))
    vals = [SX+r for r in range(16)] + [SM+r for r in range(4)]
    P('v_max3_f32 v9, v%d, v%d, v%d' % tuple(vals[0:3]))
    for i in range(3, 19, 2): P('v_max3_f32 v9, v9, v%d, v%d' % (vals[i], vals[i+1]))
    P('v_max_f32 v9, v9, v%d' % vals[19])
    P('v_mov_b32 v10, v9'); P('v_permlane32_swap_b32 v9, v10'); P('v_max_f32 v9, v9, v10')
    P('v_mul_f32 v9, s%d, v9' % A_C)
    for r in vals: P('v_fma_f32 v%d, v%d, s%d, -v9' % (r, r, A_C))
    for r in vals: P('v_exp_f32 v%d, v%d' % (r, r))
    P('v_add_f32 v10, v%d, v%d' % (vals[0], vals[1]))
    for r in vals[2:]: P('v_add_f32 v10, v10, v%d' % r)
    P('v_mov_b32 v11, v10'); P('v_permlane32_swap_b32 v10, v11'); P('v_add_f32 v10, v10, v11')
    P('v_rcp_f32 v10, v10')
    PX, PM = 16, 24
    for G in range(2): pack8(P, PX+4*G, SX+8*G)
    P('v_cvt_pk_bf16_f32 v%d, v%d, v%d' % (PM, SM, SM+1)); P('v_cvt_pk_bf16_f32 v%d, v%d, v%d' % (PM+1, SM+2, SM+3))
    P('v_mov_b64 %s, 0' % vr(PM+2,2))
    for dt in range(4):
        o = vr(O+16*dt,16)
        P('v_mfma_f32_32x32x16_bf16 %s, %s, %s, 0' % (o, vr(V+8*dt,4), vr(PX,4)))
        P('v_mfma_f32_32x32x16_bf16 %s, %s, %s, %s' % (o, vr(V+8*dt+4,4), vr(PX+4,4), o))
        P('v_mfma_f32_32x32x16_bf16 %s, %s, %s, %s' % (o, vr(VMR+4*dt,4), vr(PM,4), o))
    P('s_lshl_b32 s%d, s%d, 18' % (G_T0, A_S)); P('s_lshl_b32 s%d, s%d, 13' % (G_T1, A_H))
    P('s_add_u32 s%d, s%d, s%d' % (G_T0, G_T0, G_T1)); P('s_add_u32 s%d, s%d, 0x%x' % (G_T0, G_T0, WS_OF))
    P('s_add_u32 s%d, s%d, 4096' % (G_T1, G_T0))
    for dt in range(4):
        for i in range(16): P('v_mul_f32 v%d, v%d, v10' % (O+16*dt+i, O+16*dt+i))
        for G in range(2):
            d = 32 + 4*((2*dt+G) % 4)
            pack8(P, d, O+16*dt+8*G)
            j = 2*dt+G
            P('buffer_store_dwordx4 %s, v1, %s, s%d offen offset:%d%s' % (vr(d,4), WSs, G_T0 if j < 4 else G_T1, (j % 4)*1024, stflag))

def attn_kernel(k, end, nwg=256):
    P = Prog()
    std_entry(P, nwg, end)
    P('s_waitcnt lgkmcnt(0)')
    attn_setup(P)
    P('s_lshl_b32 s%d, s2, 2' % G_TASK); P('s_add_u32 s%d, s%d, s%d' % (G_TASK, G_TASK, G_W))
    k.straight(P)
    P = Prog()
    P.label('L_at_task')
    P('s_lshr_b32 s%d, s%d, 5' % (A_S, G_TASK)); P('s_and_b32 s%d, s%d, 31' % (A_H, G_TASK))
    attn_task(P)
    P('s_add_u32 s%d, s%d, %d' % (G_TASK, G_TASK, nwg*4))
    P('s_cmp_lt_u32 s%d, 2048' % G_TASK)
    P('s_cbranch_scc1 L_at_task')
    k.loop(P)
    P = Prog(); P('s_waitcnt vmcnt(0)'); k.straight(P)

def epi_final(g, P, XS, OS, BS):
    t = g.TMP
    P('v_and_b32 v%d, 31, v0' % t); P('s_lshl_b32 s%d, s45, 5' % G_T0); P('v_add_u32 v%d, s%d, v%d' % (t, G_T0, t))
    P('s_movk_i32 s%d, 1152' % G_T0); P('v_mul_lo_u32 v%d, v%d, s%d' % (t, t, G_T0))
    P('v_lshrrev_b32 v%d, 5, v0' % (t+1)); P('v_lshlrev_b32 v%d, 4, v%d' % (t+1, t+1))
    P('v_add_u32 v%d, v%d, v%d' % (t, t, t+1))
    for ft in range(g.NT):
        for qp in range(2):
            a = g.ACC + 16*ft + 8*qp
            off = ft*64 + qp*32
            P('buffer_load_dwordx4 %s, v%d, %s, s%d offen offset:%d' % (vr(t+2,4), t, XS, G_DST, off))
            P('buffer_load_dwordx4 %s, v%d, %s, s%d offen offset:%d' % (vr(t+6,4), t+1, BS, G_DST, off))
            for i in range(4): P('v_permlane32_swap_b32 v%d, v%d' % (a+i, a+4+i))
            for i in range(4):
                for src in (t+2+i, t+6+i):
                    P('v_lshlrev_b32 v%d, 16, v%d' % (t+10, src)); P('v_add_f32 v%d, v%d, v%d' % (a+2*i, a+2*i, t+10))
                    P('v_and_b32 v%d, 0xffff0000, v%d' % (t+11, src)); P('v_add_f32 v%d, v%d, v%d' % (a+2*i+1, a+2*i+1, t+11))
            pack8(P, t+12, a)
            P('buffer_store_dwordx4 %s, v%d, %s, s%d offen offset:%d' % (vr(t+12,4), t, OS, G_DST, off))

def final_kernel(k, end, nwg=96):
    g = Gemm(3, 4, 1152, 'fin'); g.stflag = ''
    P = Prog()
    std_entry(P, nwg, end)
    load_ptrs(P, ['w2', 'Wo', 'x', 'b2', 'out'], 48)
    P('s_waitcnt lgkmcnt(0)')
    srd(P, G_BSRD, 52, 53, 2048*1152); srd(P, G_OSRD, 56, 57, 2048*1152); srd(P, 60, 54, 55, 1152)
    g.setup(P)
    P('s_and_b32 s%d, s2, 15' % G_TT); P('s_lshr_b32 s%d, s2, 4' % G_FG)
    P('s_lshl_b32 s45, s%d, 2' % G_TT); P('s_add_u32 s45, s45, s%d' % G_W)
    P('s_mul_i32 s%d, s%d, 192' % (G_DST, G_FG))
    zero_acc(g, P)
    k.straight(P)
    for part, (ptr, krows, region, ksteps) in enumerate(((48, 4608, WS_HF, 288), (50, 4096, WS_OF, 256))):
        P = Prog()
        srd(P, G_WSRD, ptr, ptr+1, krows*1152)
        P('s_mul_i32 s%d, s%d, %d' % (G_WOFF, G_W, 16*1152)); P('s_add_u32 s%d, s%d, s%d' % (G_WOFF, G_WOFF, G_DST))
        P('s_mul_i32 s%d, s45, %d' % (G_XOFF, ksteps*1024)); P('s_add_u32 s%d, s%d, 0x%x' % (G_XOFF, G_XOFF, region))
        P('s_waitcnt vmcnt(0) lgkmcnt(0)')
        g.prologue(P); g.first_reads(P)
        P('s_mov_b32 s%d, %d' % (G_CNT, ksteps // 8))
        k.straight(P)
        k.loop(g.body(False, 'L_fin_loop%d' % part))
    P = Prog()
    P('s_waitcnt vmcnt(0) lgkmcnt(0)')
    epi_final(g, P, 's[%d:%d]' % (G_BSRD, G_BSRD+3), 's[%d:%d]' % (G_OSRD, G_OSRD+3), 's[60:63]')
    P('s_waitcnt vmcnt(0)')
    k.straight(P)
```

```python
import sys
from asmlib import *
from common import *
import workers as W
import chain as C
import gen_chain_test as GC
from gen_chain_test import header, kdesc
from gen_workers_test import kern

HDR = open('parallel_sum__memory_aug_recurrent_mem_tr__mixer_channel_mlp__prompt.s.ref').read().split('; Override launch')[0]

def main(outpath):
    chain_txt = GC.gen(stamps=0, name='chain_kernel')
    body = chain_txt[chain_txt.index('.globl chain_kernel'):]
    body = body.replace('L_end', 'L_end_chain')
    txt = HDR + header(['; @launch kernel=ln_kernel grid=(64,1,1) block=(256,1,1) lds=0',
                  '; @launch kernel=gemma_kernel grid=(256,1,1) block=(256,1,1) lds=65536',
                  '; @launch kernel=chain_kernel grid=(256,1,1) block=(256,1,1) lds=163840',
                  '; @launch kernel=attn_kernel grid=(256,1,1) block=(256,1,1) lds=0',
                  '; @launch kernel=final_kernel grid=(96,1,1) block=(256,1,1) lds=65536'])
    txt += kern('ln_kernel', W.ln_kernel) + kern('gemma_kernel', W.gemma_kernel) + body + kern('attn_kernel', W.attn_kernel) + kern('final_kernel', W.final_kernel)
    open(outpath, 'w').write(txt)
    print('written', outpath, len(txt))
if __name__ == '__main__':
    main(sys.argv[1] if len(sys.argv) > 1 else 'parallel_sum__memory_aug_recurrent_mem_tr__mixer_channel_mlp__prompt.s')
```

```python
import re

REG_RE = re.compile(r'(?<![\w.])([vas])(?:\[(\d+):(\d+)\]|(\d+))(?![\w\[])')

def regs_of(tok):
    out = []
    t = tok.strip()
    neg = t.lstrip('-')
    if neg.startswith('abs(') or neg.startswith('|'):
        pass
    for m in REG_RE.finditer(t):
        c = m.group(1)
        if m.group(2) is not None:
            for n in range(int(m.group(2)), int(m.group(3)) + 1):
                out.append((c, n))
        else:
            out.append((c, int(m.group(4))))
    for sp in ('vcc', 'exec', 'm0', 'scc'):
        if re.search(r'(?<![\w])' + sp + r'(_lo|_hi)?(?![\w])', t):
            out.append(('x', sp))
    return out

def split_ops(s):
    ops, depth, cur = [], 0, ''
    for ch in s:
        if ch in '[(':
            depth += 1
        if ch in '])':
            depth -= 1
        if ch == ',' and depth == 0:
            ops.append(cur.strip()); cur = ''
        else:
            cur += ch
    if cur.strip():
        ops.append(cur.strip())
    return ops

TRANS = ('v_exp_f32', 'v_log_f32', 'v_rcp_f32', 'v_rsq_f32', 'v_sqrt_f32', 'v_sin_f32', 'v_cos_f32', 'v_rcp_iflag_f32')

class Inst:
    __slots__ = ('text', 'op', 'defs', 'uses', 'kind', 'passes', 'cnt', 'cdefs', 'wide_store', 'dpp', 'label', 'raw', 'note', 'sdefs_valu', 'ab', 'creg')
    def __init__(self, text):
        self.text = text
        self.label = None
        self.raw = False
        self.defs = []; self.uses = []; self.kind = 'other'; self.passes = 0
        self.cnt = None; self.wide_store = False; self.dpp = False; self.ab = []; self.creg = []
        t = text.strip()
        if t.endswith(':'):
            self.op = 'label'; self.kind = 'label'; self.label = t[:-1]; return
        if t.startswith('.') or t.startswith(';') or t == '':
            self.op = 'dir'; self.kind = 'dir'; return
        spec = '@spec' in t
        t = t.split(';')[0].strip()
        if t == 'WAIT_SPEC':
            self.op = 'pseudo'; self.kind = 'pseudo'; self.uses = [('w', 'spec')]; return
        if t == 'WAIT_LDSW':
            self.op = 'pseudo'; self.kind = 'pseudo'; self.uses = [('w', 'lds')]; return
        if t == 'WAIT_VMST':
            self.op = 'pseudo'; self.kind = 'pseudo'; self.uses = [('w', 'vm')]; return
        parts = t.split(None, 1)
        op = parts[0]; self.op = op
        rest = parts[1] if len(parts) > 1 else ''
        ops = split_ops(rest)
        mods = ''
        if ops:
            last = ops[-1]
            m = re.match(r'^(\S+(?:\([^)]*\))?(?:\[[^\]]*\])?)\s*(.*)$', last)
            toks = last.split()
            if len(toks) > 1 and not last.startswith('hwreg') and not last.startswith('vmcnt') and not last.startswith('lgkmcnt'):
                ops[-1] = toks[0]; mods = ' '.join(toks[1:])
        allmods = mods
        R = [regs_of(o) for o in ops]
        base = re.sub(r'_(e32|e64|dpp|sdwa)$', '', op)
        if op.endswith('_dpp') or 'row_' in allmods or 'quad_perm' in allmods or 'row_' in rest:
            self.dpp = True
        if op.startswith('v_mfma') or op.startswith('v_smfmac'):
            self.kind = 'mfma'
            if '32x32' in op: self.passes = 8
            else: self.passes = 4
            if '_f32' == op[-4:] and ('16x16x4' in op or '32x32x2' in op): self.passes = 8 if '16x16x4' in op else 16
            self.defs = R[0]
            self.ab = R[1] + R[2]
            if op.startswith('v_smfmac'):
                self.uses = R[0] + R[1] + R[2] + R[3]; self.creg = R[0]
            else:
                self.uses = R[1] + R[2] + (R[3] if len(R) > 3 else []); self.creg = R[3] if len(R) > 3 else []
        elif op.startswith('v_'):
            self.kind = 'trans' if base in TRANS else 'valu'
            if base.startswith('v_cmp'):
                self.defs = R[0]; self.uses = sum(R[1:], [])
                if base.startswith('v_cmpx'): self.defs = self.defs + [('x', 'exec')]
            elif base in ('v_readfirstlane_b32', 'v_readlane_b32'):
                self.defs = R[0]; self.uses = sum(R[1:], []); self.kind = 'readlane'
            elif base.startswith('v_permlane') and 'swap' in base:
                self.defs = R[0] + R[1]; self.uses = R[0] + R[1]; self.kind = 'permlane'
            elif base in ('v_add_co_u32', 'v_sub_co_u32', 'v_subrev_co_u32'):
                self.defs = R[0] + R[1]; self.uses = sum(R[2:], [])
            elif base in ('v_addc_co_u32', 'v_subb_co_u32'):
                self.defs = R[0] + R[1]; self.uses = sum(R[2:], [])
            elif base in ('v_fmac_f32', 'v_pk_fmac_f16', 'v_dot2c_f32_bf16', 'v_mac_f32', 'v_writelane_b32'):
                self.defs = R[0]; self.uses = sum(R, [])
            elif base == 'v_cndmask_b32':
                self.defs = R[0]; self.uses = sum(R[1:], [])
                if len(R) < 4: self.uses = self.uses + [('x', 'vcc')]
            elif base == 'v_nop':
                pass
            else:
                self.defs = R[0]; self.uses = sum(R[1:], [])
                if self.dpp and ('bound_ctrl' not in allmods):
                    self.uses = self.uses + R[0]
            if base.startswith('v_accvgpr'):
                self.kind = 'valu'
        elif op.startswith('ds_'):
            self.kind = 'ds'; self.cnt = 'lgkm'
            if op.startswith('ds_read') or op.startswith('ds_bpermute') or op.startswith('ds_permute') or op.startswith('ds_swizzle') or '_rtn' in op:
                self.defs = R[0]; self.uses = sum(R[1:], [])
            else:
                self.uses = sum(R, []); self.defs = [('w', 'lds')]
        elif op.startswith('global_') or op.startswith('buffer_') or op.startswith('flat_'):
            self.kind = 'vmem'; self.cnt = 'vm'
            islds = (' lds' in (' ' + allmods)) or '_lds_' in op
            if op.startswith('buffer_wbl2') or op.startswith('buffer_inv'):
                pass
            elif islds:
                self.uses = sum(R, []) + [('x', 'm0')]
                self.kind = 'vmem_lds'
            elif '_load' in op:
                self.defs = R[0]; self.uses = sum(R[1:], [])
                if 'd16' in op: self.uses = self.uses + R[0]
                if spec: self.defs = [('w', 'spec')]
            elif '_atomic' in op:
                if 'sc0' in allmods:
                    if op.startswith('buffer'):
                        self.defs = R[0]; self.uses = sum(R, [])
                    else:
                        self.defs = R[0]; self.uses = sum(R[1:], [])
                else:
                    self.uses = sum(R, [])
            else:
                self.uses = sum(R, [])
                self.defs = [('w', 'vm')]
                if 'x4' in op or 'x3' in op: self.wide_store = True
                if op.startswith('buffer'): self.creg = R[0]
                else: self.creg = R[1]
        elif op.startswith('s_'):
            self.kind = 'salu'
            if op.startswith('s_load') or op.startswith('s_buffer_load') or op in ('s_memtime', 's_memrealtime'):
                self.kind = 'smem'; self.cnt = 'smem'
                self.defs = R[0]; self.uses = sum(R[1:], [])
            elif op == 's_waitcnt':
                self.kind = 'waitcnt'
            elif op == 's_nop':
                self.kind = 'nop'
            elif op == 's_barrier':
                self.kind = 'barrier'
            elif op.startswith('s_cbranch') or op == 's_branch' or op == 's_endpgm' or op.startswith('s_setpc') or op.startswith('s_swappc'):
                self.kind = 'branch'
                if 'vcc' in op: self.uses = [('x', 'vcc')]
                if 'exec' in op: self.uses = [('x', 'exec')]
                if 'scc' in op: self.uses = [('x', 'scc')]
                if op.startswith('s_setpc'): self.uses = R[0]
            elif op.startswith('s_cmp') or op.startswith('s_bitcmp'):
                self.uses = sum(R, []); self.defs = [('x', 'scc')]
            elif op in ('s_sleep', 's_setprio', 's_sethalt', 's_endpgm', 's_setreg_b32', 's_setreg_imm32_b32', 's_inst_prefetch'):
                self.uses = sum(R, [])
            elif 'saveexec' in op:
                self.defs = R[0] + [('x', 'exec'), ('x', 'scc')]; self.uses = sum(R[1:], []) + [('x', 'exec')]
            else:
                self.defs = R[0] + [('x', 'scc')]; self.uses = sum(R[1:], [])
                if op.startswith('s_cselect') or op in ('s_addc_u32', 's_subb_u32'): self.uses = self.uses + [('x', 'scc')]
                if op in ('s_addk_i32', 's_mulk_i32'): self.uses = self.uses + R[0]
                if op.startswith('s_mov') or op.startswith('s_getreg') or op.startswith('s_cselect') or op.startswith('s_mul') or op == 's_getpc_b64' or op.startswith('s_movk'):
                    self.defs = R[0]
        else:
            raise ValueError('unknown instruction: ' + text)

def states_of(inst):
    if inst.kind == 'nop':
        return int(inst.text.split()[1], 0) + 1
    if inst.kind in ('label', 'dir', 'pseudo'):
        return 0
    return 1

class Prog:
    def __init__(self):
        self.items = []
    def __call__(self, text):
        for line in text.split('\n'):
            l = line.strip()
            if not l: continue
            self.items.append(Inst(l))
    def emit(self, text): self(text)
    def label(self, name): self.items.append(Inst(name + ':'))
    def comment(self, c): self.items.append(Inst('; ' + c))

MAXW = 24

def _overlap(a, b):
    return bool(set(a) & set(b))

def _copy_state(st):
    if st is None: return None
    return dict(hist=[[h[0], h[1]] for h in st['hist']], vm=[set(x) for x in st['vm']], lg=[set(x) for x in st['lg']],
                smem=st['smem'], smemdefs=set(st['smemdefs']))

def _empty_state():
    return dict(hist=[], vm=[], lg=[], smem=False, smemdefs=set())

def _merge(a, b):
    if a is None: return _copy_state(b)
    if b is None: return _copy_state(a)
    r = _empty_state()
    d = {}
    for h in a['hist'] + b['hist']:
        k = id(h[0])
        if k not in d or h[1] < d[k][1]: d[k] = [h[0], h[1]]
    r['hist'] = sorted(d.values(), key=lambda h: -h[1])
    for key in ('vm', 'lg'):
        A, B = a[key], b[key]
        n = max(len(A), len(B)); L = []
        for j in range(n):
            s = set()
            if j < len(A): s |= A[len(A)-1-j]
            if j < len(B): s |= B[len(B)-1-j]
            L.append(s)
        r[key] = L[::-1]
    r['smem'] = a['smem'] or b['smem']; r['smemdefs'] = a['smemdefs'] | b['smemdefs']
    return r

def fix(items, init_state=None, insert=True, snaps=None):
    out = []
    st = _copy_state(init_state) if init_state is not None else _empty_state()
    snaps = dict(snaps) if snaps else {}
    inserted = 0

    def advance(n):
        for h in st['hist']: h[1] += n
        while st['hist'] and st['hist'][0][1] > MAXW: st['hist'].pop(0)

    def need_nops(inst):
        need = 0
        uses = set(inst.uses); defs = set(inst.defs)
        isvalu = inst.kind in ('valu', 'trans', 'permlane', 'readlane')
        for (p, age) in st['hist']:
            pd = set(p.defs); req = 0
            pv = p.kind in ('valu', 'trans', 'permlane', 'readlane')
            if pv:
                vd = {r for r in pd if r[0] in 'va'}
                sd = {r for r in pd if r[0] == 's' or r == ('x', 'vcc')}
                if inst.kind == 'mfma' and (vd & uses): req = max(req, 2)
                if inst.kind == 'permlane' and (vd & uses): req = max(req, 2)
                if inst.dpp and (vd & uses): req = max(req, 2)
                if inst.kind == 'readlane' and (vd & uses): req = max(req, 1)
                if p.kind == 'trans' and isvalu and (vd & uses): req = max(req, 1)
                if p.kind == 'trans' and inst.kind in ('mfma', 'vmem', 'ds') and (vd & uses): req = max(req, 2)
                if sd & uses:
                    if isvalu: req = max(req, 4 if inst.kind == 'readlane' else 2)
                    if inst.kind in ('vmem', 'vmem_lds'): req = max(req, 5)
                    if inst.kind in ('salu', 'smem'): req = max(req, 1)
                if ('x', 'exec') in pd:
                    if inst.kind == 'mfma': req = max(req, 4)
                    if inst.dpp: req = max(req, 5)
                    if inst.kind in ('permlane', 'readlane'): req = max(req, 4)
            if p.kind == 'mfma':
                P = p.passes
                rd = {2: 5, 4: 8, 8: 12, 16: 20}[P]; ov = {2: 4, 4: 6, 8: 10, 16: 18}[P]; war = {2: 1, 4: 3, 8: 7, 16: 15}[P]
                if inst.kind == 'mfma':
                    if pd & set(inst.ab): req = max(req, rd)
                    if inst.op.startswith('v_smfmac') and (pd & (uses - set(inst.creg) - set(inst.ab))): req = max(req, rd)
                    c = set(inst.creg)
                    if pd & c:
                        if c == pd and inst.passes == p.passes: req = max(req, 2 if P == 2 else 0)
                        else: req = max(req, ov)
                    elif pd & defs:
                        req = max(req, ov)
                else:
                    if (pd & uses) or (pd & defs):
                        if inst.kind in ('valu', 'trans', 'permlane', 'readlane', 'ds', 'vmem', 'vmem_lds'): req = max(req, rd)
                    if isvalu and (set(p.creg) & defs): req = max(req, war)
            if p.wide_store and (set(p.creg) & defs):
                req = max(req, 2 if isvalu else 1)
            if p.kind == 'salu' and ('x', 'm0') in pd and inst.kind == 'vmem_lds': req = max(req, 1)
            if req > age: need = max(need, req - age)
        return need

    def apply_wait(wv, wl):
        if wv is not None:
            while len(st['vm']) > wv: st['vm'].pop(0)
        if wl is not None:
            if wl == 0:
                st['lg'] = []; st['smem'] = False; st['smemdefs'] = set()
            elif not st['smem']:
                while len(st['lg']) > wl: st['lg'].pop(0)

    for inst in items:
        if inst.kind == 'dir':
            out.append(inst); continue
        if inst.kind == 'label':
            if inst.label in snaps:
                st = _merge(st, snaps[inst.label])
            if st is None: st = _empty_state()
            out.append(inst); continue
        if st is None:
            st = _empty_state()
        if inst.kind == 'waitcnt':
            t = inst.text
            m = re.search(r'vmcnt\((\d+)\)', t); wv = int(m.group(1)) if m else None
            m = re.search(r'lgkmcnt\((\d+)\)', t); wl = int(m.group(1)) if m else None
            apply_wait(wv, wl)
            out.append(inst); advance(1); st['hist'].append([inst, 0]); continue
        touched = set(inst.uses) | {r for r in inst.defs if r[0] != 'w'}
        wv = None; wl = None
        for i, d in enumerate(st['vm']):
            if d & touched: wv = len(st['vm']) - 1 - i
        for i, d in enumerate(st['lg']):
            if d & touched: wl = len(st['lg']) - 1 - i
        if st['smemdefs'] & touched: wl = 0
        if wl is not None and st['smem']: wl = 0
        if wv is not None or wl is not None:
            s = 's_waitcnt'
            if wv is not None: wv = min(wv, 63); s += ' vmcnt(%d)' % wv
            if wl is not None: wl = min(wl, 15); s += ' lgkmcnt(%d)' % wl
            apply_wait(wv, wl)
            if not insert: raise RuntimeError('missing wait before: ' + inst.text + ' need ' + s)
            w = Inst(s); out.append(w); advance(1); st['hist'].append([w, 0]); inserted += 1
        if inst.kind == 'pseudo': continue
        n = need_nops(inst)
        if n > 0:
            if not insert: raise RuntimeError('missing %d nops before: %s' % (n, inst.text))
            while n > 0:
                k = min(n, 16)
                w = Inst('s_nop %d' % (k - 1)); out.append(w); advance(k); st['hist'].append([w, 0]); n -= k; inserted += 1
        out.append(inst)
        advance(states_of(inst))
        st['hist'].append([inst, 0])
        if inst.cnt == 'vm':
            st['vm'].append(set(inst.defs))
            if len(st['vm']) > 63: st['vm'].pop(0)
        elif inst.cnt == 'lgkm':
            st['lg'].append(set(inst.defs))
            if len(st['lg']) > 15 and not st['smem']: st['lg'].pop(0)
        elif inst.cnt == 'smem':
            st['smem'] = True; st['smemdefs'] |= set(inst.defs); st['lg'].append(set())
        if inst.kind == 'branch':
            parts = inst.text.split(';')[0].split()
            if len(parts) > 1 and inst.op != 's_setpc_b64':
                tgt = parts[1]
                snaps[tgt] = _merge(snaps.get(tgt), st)
            if inst.op in ('s_branch', 's_endpgm', 's_setpc_b64'):
                st = None
    return out, st, inserted, snaps

class Kernel:
    def __init__(self):
        self.out = []
        self.state = _empty_state()
        self.snaps = {}
    def straight(self, prog):
        o, st, _, self.snaps = fix(prog.items, self.state, snaps=self.snaps)
        self.out += o; self.state = st
    def loop(self, prog, maxit=8):
        items = prog.items
        head = [i.label for i in items if i.label][0]
        for it in range(maxit):
            o, st, n1, sn = fix(items, self.state, snaps=self.snaps)
            o2, st2, n2, sn2 = fix(o, self.state, snaps=sn)
            if n2 == 0:
                o3, st3, n3, sn3 = fix(o, self.state, snaps=sn2)
                if n3 == 0:
                    self.out += o; self.state = st3; self.snaps = sn3
                    return
                items = o3
            else:
                items = o2
        raise RuntimeError('loop fix did not converge')
    def raw(self, text):
        for l in text.split('\n'):
            self.out.append(Inst('; raw' if not l.strip() else l.strip()) if (l.strip().startswith('.') or l.strip().startswith(';') or l.strip().endswith(':') or not l.strip()) else Inst(l.strip()))
    def reset_state(self):
        self.state = _empty_state()
    def text(self):
        return '\n'.join((i.text if i.kind in ('label',) else '    ' + i.text) for i in self.out) + '\n'
```

```python
from asmlib import *
from common import *

OPT = dict(stamps=0, gdel=6, gdel0=14, rc=0, pf=0, kxtop=1)

L_MF = 0; L_S = 9216; L_O = 14336; L_WL = 16384; LDS_TOTAL = 163840

def wreg(i):
    if i < 32: return 'a[%d:%d]' % (8*i, 8*i+7), ('a', 8*i)
    j = i - 32
    return 'v[%d:%d]' % (80+8*j, 80+8*j+7), ('v', 80+8*j)
LDS_CHUNKS = [('k',0), ('k',2), ('k',4), ('k',6), ('k',8), ('v',2), ('v',6)]
LDS_BLOCKS = [(m, tile, t) for (m, t) in LDS_CHUNKS for tile in (0, 1)] + [('od', p, 3) for p in range(4)]
ALL_BLOCKS = [(m,tile,t) for m in 'qkv' for t in range(9) for tile in (0,1)] + [('oh',0),('oh',1)] + [('od',p,c) for p in range(4) for c in range(4)]
REG_BLOCKS = [b for b in ALL_BLOCKS if b not in LDS_BLOCKS]
assert len(LDS_BLOCKS) == 18 and len(REG_BLOCKS) == 54
REG_OF = {b: wreg(i) for i, b in enumerate(REG_BLOCKS)}
LDS_OF = {b: i for i, b in enumerate(LDS_BLOCKS)}

S_WS = 8; S_SRD2 = 12
S_H = 16; S_W = 17; S_STEP = 18; S_T0 = 19; S_T1 = 20; S_T2 = 21; S_T3 = 22
S_PCUR = 23; S_PCUR4 = 24; S_PR0 = 25
S_MNXT = 30; S_MPOI = 31
S_KV = 32; S_KM = 33; S_RED = 34; S_TMO = 35
S_EXN8 = 36; S_C = 38; S_ERR = 39; S_TS = 40; S_DBG = 42
S_TAG = 44; S_RDEL = 45
S_PTR = 46
S_OW = 56; S_GW = 57; S_EXMM = 60; S_PERM = 62; S_PERM2 = 63
S_BM = 64
S_VV = 72; S_KMW = 73; S_VMP = 74; S_KVRDY = 75
S_ST = 76
S_RC = 84
S_PROG = 86
S_G0 = 87; S_G1 = 88; S_G2 = 89; S_MPN = 29

V_NEG1=0; V_L16=1; V_IDX=2; V_PST=3; V_RED=4; V_MST=5; V_G16=6; V_SW=7; V_SR=8; V_SM=9; V_KX=10; V_VX=11; V_WL=12; V_VM=13
V_BSEL=14; V_BVAL=16; V_PT0=17; V_VMH=18
V_AR=20; V_ST=32
V_QA=48; V_QB=52; V_KA=56; V_KB=60; V_VA=64; V_VB=68; V_KF=72

def vr(a, n=1): return 'v%d' % a if n == 1 else 'v[%d:%d]' % (a, a+n-1)
WS = 's[%d:%d]' % (S_WS, S_WS+3)
DPP8 = 'row_ror:8 row_mask:0xf bank_mask:0xf'
OOB = 0x40000000
TMO = 20000
def pk_add(P, d, a, b): P('v_pk_add_f32 %s, %s, %s' % (vr(d,2), vr(a,2), vr(b,2)))
def cvt(P, d, a, b): P('v_cvt_pk_bf16_f32 v%d, v%d, v%d' % (d, a, b))
def mfma16(P, d, a, b, c=None): P('v_mfma_f32_16x16x16_bf16 %s, %s, %s, %s' % (vr(d,4), vr(a,2), vr(b,2), '0' if c is None else vr(c,4)))
def mfma32(P, d, a, b, c=None): P('v_mfma_f32_16x16x32_bf16 %s, %s, %s, %s' % (vr(d,4), vr(a,4), vr(b,4), '0' if c is None else vr(c,4)))
def smf_s(acc, a, b): return 'v_smfmac_f32_16x16x64_bf16 %s, %s, %s, v%d' % (vr(acc, 4), vr(a, 4), b, V_IDX)
def smf(P, acc, a, b): P(smf_s(acc, a, b))
def aread_s(t, dst): return 'ds_read_b128 %s, v%d offset:%d' % (vr(dst, 4), V_L16, L_MF + 1024*t)
def blk_s(blk, buf):
    off = LDS_OF[blk]*2048
    return 'ds_read_b128 %s, v%d offset:%d\nds_read_b128 %s, v%d offset:%d' % (vr(buf,4), V_WL, off, vr(buf+4,4), V_WL, off+1024)

def load_weights(k):
    P = Prog()
    n, gb = 2, 3
    DA0, DA1, TA0, TA1, TB0, TB1, OD, OH, OL = 4, 5, 6, 7, 8, 9, 10, 11, 12
    t0, t1, t2, t3 = 14, 15, 16, 17
    P('v_and_b32 v%d, 15, v0' % n); P('v_lshrrev_b32 v%d, 4, v0' % gb)
    P('v_and_b32 v%d, 1, v%d' % (t0, gb)); P('v_lshrrev_b32 v%d, 1, v%d' % (t1, gb)); P('v_lshl_add_u32 v%d, v%d, 2, v%d' % (t0, t1, t0))
    for var, dst in ((0, DA0), (1, DA1)):
        P('v_xor_b32 v%d, v%d, v%d' % (t1, n, t0))
        if var: P('v_xor_b32 v%d, 8, v%d' % (t1, t1))
        P('v_lshlrev_b32 v%d, 4, v%d' % (t1, t1))
        P('v_lshl_add_u32 v%d, v%d, 13, v%d' % (dst, gb, t1))
    P('v_bfe_u32 v%d, v0, 3, 1' % t0)
    P('v_bfe_u32 v%d, v0, 2, 1' % t1)
    P('v_and_b32 v%d, 1, v%d' % (t2, gb))
    P('v_lshlrev_b32 v%d, 3, v%d' % (t3, t0)); P('v_lshl_add_u32 v%d, v%d, 1, v%d' % (t3, t1, t3)); P('v_add_u32 v%d, v%d, v%d' % (t3, t3, t2))
    P('v_lshlrev_b32 v%d, 8, v%d' % (t3, t3))
    P('v_lshlrev_b32 v%d, 3, v%d' % (t0, t0)); P('v_lshl_add_u32 v%d, v%d, 2, v%d' % (t0, t1, t0)); P('v_add_u32 v%d, v%d, v%d' % (t0, t0, t2))
    P('v_bfe_u32 v%d, v0, 1, 1' % t1); P('v_lshlrev_b32 v%d, 1, v%d' % (t1, t1))
    P('s_lshl_b32 s%d, s%d, 2' % (S_T0, S_W)); P('v_add_u32 v%d, s%d, v%d' % (t1, S_T0, t1))
    P('v_lshrrev_b32 v%d, 1, v%d' % (t2, gb)); P('s_mov_b32 s%d, 36864' % S_T0); P('v_mul_lo_u32 v%d, v%d, s%d' % (t2, t2, S_T0))
    P('v_add_u32 v%d, v%d, v%d' % (t3, t3, t2))
    P('v_and_b32 v%d, 1, v0' % t2); P('v_lshl_add_u32 v%d, v%d, 3, v%d' % (t3, t2, t3))
    P('v_add_u32 v%d, %d, v%d' % (t3, L_WL, t3))
    for tile, (d0, d1) in ((0, (TA0, TA1)), (1, (TB0, TB1))):
        P('v_xor_b32 v%d, v%d, v%d' % (t2, t1, t0))
        if tile: P('v_xor_b32 v%d, 1, v%d' % (t2, t2))
        P('v_lshl_add_u32 v%d, v%d, 4, v%d' % (d0, t2, t3))
        P('v_add_u32 v%d, 73728, v%d' % (d1, d0))
    P('v_lshrrev_b32 v%d, 1, v%d' % (t0, gb)); P('v_lshlrev_b32 v%d, 2, v%d' % (t0, t0))
    P('v_bfe_u32 v%d, v0, 2, 1' % t1); P('v_add_u32 v%d, v%d, v%d' % (t0, t0, t1))
    P('v_and_b32 v%d, 1, v%d' % (t1, gb)); P('v_lshl_add_u32 v%d, v%d, 3, v%d' % (t0, t1, t0))
    P('s_movk_i32 s%d, 1152' % S_T0); P('v_mul_lo_u32 v%d, v%d, s%d' % (t0, t0, S_T0))
    P('v_and_b32 v%d, 3, v0' % t1); P('v_lshl_add_u32 v%d, v%d, 3, v%d' % (t0, t1, t0))
    P('s_lshl_b32 s%d, s%d, 5' % (S_T0, S_W)); P('s_add_u32 s%d, s%d, %d' % (S_T0, S_T0, L_WL)); P('v_add_u32 v%d, s%d, v%d' % (t0, S_T0, t0))
    P('v_bfe_u32 v%d, v0, 3, 1' % t1)
    P('v_lshl_add_u32 v%d, v%d, 7, v%d' % (OD, t1, t0))
    P('s_mov_b32 s%d, 36864' % S_T0); P('v_mul_lo_u32 v%d, v%d, s%d' % (t1, t1, S_T0)); P('v_add_u32 v%d, v%d, v%d' % (OH, t1, t0))
    P('v_lshlrev_b32 v%d, 4, v0' % OL)
    WL = 13
    P('s_mul_i32 s%d, s%d, 36864' % (S_G0, S_W)); P('s_add_u32 s%d, s%d, %d' % (S_G0, S_G0, L_WL)); P('v_add_u32 v%d, s%d, v%d' % (WL, S_G0, OL))
    SR = 's[%d:%d]' % (S_SRD2, S_SRD2+3)
    def set_srd(ptr, size):
        P('s_mov_b32 s%d, s%d' % (S_SRD2, ptr)); P('s_mov_b32 s%d, s%d' % (S_SRD2+1, ptr+1))
        P('s_mov_b32 s%d, 0x%x' % (S_SRD2+2, size)); P('s_mov_b32 s%d, 0x20000' % (S_SRD2+3))
    set_srd(S_PTR+6, 4096*576*2)
    P('s_mul_i32 s%d, s%d, %d' % (S_T0, S_H, 147456)); P('s_mul_i32 s%d, s%d, 36864' % (S_T1, S_W)); P('s_add_u32 s%d, s%d, s%d' % (S_T0, S_T0, S_T1))
    P('s_mov_b32 m0, s%d' % S_G0)
    for j in range(36):
        P('buffer_load_dwordx4 v%d, %s, s%d offen lds' % (OL, SR, S_T0))
        if j < 35: P('s_add_u32 m0, m0, 1024'); P('s_add_u32 s%d, s%d, 1024' % (S_T0, S_T0))
    P('s_waitcnt vmcnt(0)'); P('s_barrier')
    def dst_regs(blk):
        cls, r0 = REG_OF[blk][1]; return cls, r0
    def tr(dstcls, r0, addr, off): P('ds_read_b64_tr_b16 %s[%d:%d], v%d offset:%d' % (dstcls, r0, r0+1, addr, off))
    TC = 20
    for pr in range(4):
        for c in range(4):
            blk = ('od', pr, c); Ta = 1 + 2*pr
            if blk in REG_OF: cls, r0 = dst_regs(blk)
            else: cls, r0 = 'v', TC + 8*pr
            for q in range(4):
                Pq, p1 = q >> 1, q & 1
                off = (16*Pq + 2*p1)*1152 + 128*Ta
                if c == 0: tr(cls, r0+2*q, OD, off)
                else:
                    if q == 0: P('v_add_u32 v%d, %d, v%d' % (t0, c*36864, OD))
                    tr(cls, r0+2*q, t0, off)
    for s2 in range(2):
        cls, r0 = dst_regs(('oh', s2))
        P('v_add_u32 v%d, %d, v%d' % (t0, 2*s2*36864, OH))
        for q in range(4): tr(cls, r0+2*q, t0, (16*(q >> 1) + 2*(q & 1))*1152)
    P('s_waitcnt lgkmcnt(0)'); P('s_barrier')
    for pr in range(4):
        off = LDS_OF[('od', pr, 3)]*2048
        P('ds_write_b128 v%d, %s offset:%d' % (WL, vr(TC+8*pr,4), off)); P('ds_write_b128 v%d, %s offset:%d' % (WL, vr(TC+8*pr+4,4), off+1024))
    k.straight(P)
    reg_chunks = [(m, t) for m in 'qkv' for t in range(9) if (m, t) not in LDS_CHUNKS]
    order = reg_chunks + LDS_CHUNKS
    NS = 7
    slot_of = {}
    for j, ch in enumerate(reg_chunks): slot_of[ch] = j % NS
    for i, ch in enumerate(LDS_CHUNKS): slot_of[ch] = i
    last_use = {}
    for j, ch in enumerate(reg_chunks): last_use[slot_of[ch]] = j
    lds_sorted = sorted(LDS_CHUNKS, key=lambda ch: last_use[slot_of[ch]])
    order = reg_chunks + lds_sorted
    cur_m = [None]
    def issue(P, ch):
        m, t = ch
        if cur_m[0] != m:
            ptr = {'q': S_PTR, 'k': S_PTR+2, 'v': S_PTR+4}[m]
            P('s_mov_b32 s%d, s%d' % (S_SRD2, ptr)); P('s_mov_b32 s%d, s%d' % (S_SRD2+1, ptr+1))
            P('s_mov_b32 s%d, 0x%x' % (S_SRD2+2, 576*8192)); P('s_mov_b32 s%d, 0x20000' % (S_SRD2+3))
            cur_m[0] = m
        for jj in range(4):
            P('s_add_u32 m0, s%d, %d' % (S_G0, slot_of[ch]*4096 + jj*1024))
            P('s_add_u32 s%d, s%d, %d' % (S_T0, S_G1, (64*t + 4*jj)*8192))
            P('buffer_load_dwordx4 v%d, %s, s%d offen lds' % (DA0 if jj < 2 else DA1, SR, S_T0))
    P = Prog()
    P('s_lshl_b32 s%d, s%d, 8' % (S_G1, S_H)); P('s_mul_i32 s%d, s%d, %d' % (S_T0, S_W, 16*8192)); P('s_add_u32 s%d, s%d, s%d' % (S_G1, S_G1, S_T0))
    issued = 0
    def can_issue(j, consumed):
        ch = order[j]; s = slot_of[ch]
        prev = [i for i in range(j) if slot_of[order[i]] == s]
        return (not prev) or prev[-1] < consumed
    while issued < len(order) and can_issue(issued, 0) and issued < NS:
        issue(P, order[issued]); issued += 1
    TB = 20
    for j, ch in enumerate(order):
        m, t = ch
        P('s_waitcnt vmcnt(%d) lgkmcnt(0)' % (4*(issued - j - 1)))
        P('s_barrier')
        while issued < len(order) and can_issue(issued, j):
            issue(P, order[issued]); issued += 1
        so = slot_of[ch]*4096
        for tile, (a0, a1) in ((0, (TA0, TA1)), (1, (TB0, TB1))):
            blk = (m, tile, t)
            if blk in REG_OF: cls, r0 = dst_regs(blk)
            else: cls, r0 = 'v', TB + 8*tile
            for q in range(4): tr(cls, r0+2*q, a0 if q < 2 else a1, so + (q & 1)*1024)
        if ch in LDS_CHUNKS:
            P('s_waitcnt lgkmcnt(0)'); P('s_barrier')
            for tile in range(2):
                off = LDS_OF[(m, tile, t)]*2048
                P('ds_write_b128 v%d, %s offset:%d' % (WL, vr(TB+8*tile,4), off)); P('ds_write_b128 v%d, %s offset:%d' % (WL, vr(TB+8*tile+4,4), off+1024))
    P('s_waitcnt lgkmcnt(0)'); P('s_barrier')
    k.straight(P); k.reset_state()

def lane_setup(k):
    P = Prog()
    n, rg, t0, t1, t2, nh, n7, dt = 20, 21, 22, 23, 24, 25, 26, 27
    P('v_and_b32 v%d, 15, v0' % n); P('v_lshrrev_b32 v%d, 4, v0' % rg); P('v_lshlrev_b32 v%d, 4, v0' % V_L16)
    P('v_mov_b32 v%d, 0x44444444' % V_IDX); P('v_mov_b32 v%d, 0xeeeeeeee' % t0)
    P('v_cmp_lt_u32 vcc, 7, v%d' % n); P('v_cndmask_b32 v%d, v%d, v%d, vcc' % (V_IDX, V_IDX, t0))
    P('v_lshrrev_b32 v%d, 3, v%d' % (nh, n)); P('v_and_b32 v%d, 7, v%d' % (n7, n))
    P('v_lshl_add_u32 v%d, v%d, 3, v%d' % (t0, rg, n7)); P('v_lshlrev_b32 v%d, 4, v%d' % (V_G16, t0))
    P('v_lshrrev_b32 v%d, 1, v%d' % (t0, rg)); P('v_lshl_add_u32 v%d, v%d, 6, v%d' % (t0, t0, n))
    P('s_lshl_b32 s%d, s%d, 4' % (S_T0, S_W)); P('v_add_u32 v%d, s%d, v%d' % (t0, S_T0, t0)); P('v_lshlrev_b32 v%d, 4, v%d' % (t0, t0))
    P('v_and_b32 v%d, 1, v%d' % (t1, rg)); P('v_lshl_add_u32 v%d, v%d, 3, v%d' % (V_PST, t1, t0))
    if OPT.get('quad', 1):
        P('v_and_b32 v%d, 1, v%d' % (t0, rg)); P('v_lshlrev_b32 v%d, 1, v%d' % (t0, t0)); P('v_lshrrev_b32 v%d, 1, v%d' % (t1, rg)); P('v_add_u32 v%d, v%d, v%d' % (t0, t0, t1))
        P('v_lshl_add_u32 v%d, v%d, 6, v%d' % (t0, t0, n)); P('s_lshl_b32 s%d, s%d, 4' % (S_T0, S_W)); P('v_add_u32 v%d, s%d, v%d' % (t0, S_T0, t0))
        P('v_lshlrev_b32 v%d, 4, v%d' % (V_PST, t0))
    P('v_lshlrev_b32 v%d, 4, v%d' % (t0, n)); P('v_lshl_add_u32 v%d, v%d, 2, v%d' % (t0, rg, t0))
    P('s_lshl_b32 s%d, s%d, 8' % (S_T0, S_W)); P('v_add_u32 v%d, s%d, v%d' % (V_PT0, S_T0, t0))
    P('s_sub_u32 s%d, s%d, 1' % (S_T0, S_W)); P('s_lshl_b32 s%d, s%d, 5' % (S_T0, S_T0)); P('s_add_u32 s%d, s%d, s%d' % (S_T0, S_T0, S_H))
    P('s_cmp_lt_u32 s%d, 72' % S_T0); P('s_cselect_b32 s%d, 1, 0' % S_RED)
    P('s_cmp_eq_u32 s%d, 0' % S_W); P('s_cselect_b32 s%d, 0, s%d' % (S_RED, S_RED))
    P('s_cmp_eq_u32 s%d, 0' % S_RED); P('s_cselect_b32 s%d, 0, s%d' % (S_T0, S_T0))
    P('s_lshr_b32 s%d, s%d, 3' % (S_T1, S_T0))
    P('s_mul_i32 s%d, s%d, %d' % (S_RDEL, S_T1, OPT.get('rslope', 1))); P('s_add_u32 s%d, s%d, %d' % (S_RDEL, S_RDEL, OPT.get('rbase', 1)))
    P('s_lshl_b32 s%d, s%d, 7' % (S_T2, S_T0))
    P('v_lshl_add_u32 v%d, v%d, 1, v%d' % (t0, rg, nh)); P('s_movk_i32 s%d, 9216' % S_T1); P('v_mul_lo_u32 v%d, v%d, s%d' % (t0, t0, S_T1))
    P('v_lshl_add_u32 v%d, v%d, 4, v%d' % (t0, n7, t0)); P('v_add_u32 v%d, s%d, v%d' % (V_RED, S_T2, t0))
    P('v_lshlrev_b32 v%d, 1, v%d' % (t0, n)); P('v_and_b32 v%d, 7, v%d' % (t0, t0)); P('v_bfe_u32 v%d, v%d, 2, 1' % (t1, n)); P('v_add_u32 v%d, v%d, v%d' % (t0, t0, t1))
    P('s_cmp_lt_u32 s%d, 8' % S_T0); P('s_cselect_b64 vcc, -1, 0'); P('v_cndmask_b32 v%d, v%d, v%d, vcc' % (t0, n, t0))
    P('v_lshlrev_b32 v%d, 4, v%d' % (t0, t0)); P('v_lshl_add_u32 v%d, v%d, 2, v%d' % (t0, rg, t0)); P('v_add_u32 v%d, s%d, v%d' % (t0, S_T2, t0))
    P('v_mov_b32 v%d, 0x%x' % (t1, OOB)); P('v_cmp_lt_u32 vcc, 7, v%d' % n); P('v_cndmask_b32 v%d, v%d, v%d, vcc' % (t0, t0, t1))
    P('s_cmp_eq_u32 s%d, 0' % S_RED); P('s_cselect_b64 vcc, -1, 0'); P('v_cndmask_b32 v%d, v%d, v%d, vcc' % (V_MST, t0, t1))
    P('s_mul_i32 s%d, s%d, 1280' % (S_T0, S_W)); P('s_add_u32 s%d, s%d, %d' % (S_T0, S_T0, L_S)); P('v_add_u32 v%d, s%d, v%d' % (V_SW, S_T0, V_G16))
    P('v_lshl_add_u32 v%d, v%d, 9, v%d' % (t0, nh, V_G16)); P('v_add_u32 v%d, %d, v%d' % (V_SR, L_S, t0))
    P('v_and_b32 v%d, 1, v%d' % (t0, rg)); P('v_lshl_add_u32 v%d, v%d, 3, v%d' % (t0, t0, n7)); P('v_lshlrev_b32 v%d, 4, v%d' % (t0, t0))
    P('s_movk_i32 s%d, 2560' % S_T1); P('v_mul_lo_u32 v%d, v%d, s%d' % (t1, nh, S_T1)); P('v_add_u32 v%d, v%d, v%d' % (t0, t0, t1))
    P('v_add_u32 v%d, %d, v%d' % (V_SM, L_S + 1024, t0))
    P('v_lshl_add_u32 v%d, v%d, 4, v%d' % (dt, nh, n7))
    P('s_lshl_b32 s%d, s%d, 2' % (S_T0, S_W)); P('v_add_u32 v%d, s%d, v%d' % (t0, S_T0, rg)); P('v_lshl_add_u32 v%d, v%d, 5, v%d' % (t0, t0, dt)); P('v_lshlrev_b32 v%d, 4, v%d' % (V_KX, t0))
    P('s_lshl_b32 s%d, s%d, 5' % (S_T0, S_W)); P('v_lshl_add_u32 v%d, v%d, 7, v%d' % (t0, rg, dt)); P('v_add_u32 v%d, s%d, v%d' % (t0, S_T0, t0)); P('v_lshlrev_b32 v%d, 4, v%d' % (V_VX, t0))
    P('v_lshrrev_b32 v%d, 1, v%d' % (t0, rg)); P('v_lshl_add_u32 v%d, v%d, 3, v%d' % (t0, t0, dt)); P('v_add_u32 v%d, s%d, v%d' % (t0, S_T0, t0)); P('v_lshlrev_b32 v%d, 4, v%d' % (t0, t0))
    P('v_and_b32 v%d, 1, v%d' % (t1, rg)); P('v_lshl_add_u32 v%d, v%d, 3, v%d' % (V_VM, t1, t0))
    P('s_mul_i32 s%d, s%d, 36864' % (S_T0, S_W)); P('s_add_u32 s%d, s%d, %d' % (S_T0, S_T0, L_WL)); P('v_add_u32 v%d, s%d, v%d' % (V_WL, S_T0, V_L16))
    P('v_and_b32 v%d, 3, v%d' % (t0, n)); P('v_lshrrev_b32 v%d, 2, v%d' % (t1, n7)); P('v_and_b32 v%d, 1, v%d' % (t2, rg))
    P('v_cmp_eq_u32 s[%d:%d], v%d, v%d' % (S_TS, S_TS+1, t1, t2))
    P('v_and_b32 v%d, 1, v%d' % (t1, t0)); P('v_lshlrev_b32 v%d, 4, v%d' % (t1, t1)); P('v_mov_b32 v28, 0x3f80'); P('v_lshlrev_b32 v%d, v%d, v28' % (V_BVAL, t1))
    P('v_cndmask_b32 v29, 0, v%d, s[%d:%d]' % (V_BVAL, S_TS, S_TS+1))
    P('v_cmp_gt_u32 vcc, 2, v%d' % t0); P('v_cndmask_b32 v%d, 0, v29, vcc' % V_BSEL)
    P('v_cmp_lt_u32 vcc, 1, v%d' % t0); P('v_cndmask_b32 v%d, 0, v29, vcc' % (V_BSEL+1))
    P('v_lshrrev_b32 v%d, 1, v%d' % (t1, n))
    for r in range(4): P('v_cmp_eq_u32 s[%d:%d], %d, v%d' % (S_BM+2*r, S_BM+2*r+1, r, t1))
    P('s_mov_b32 s%d, 0x00ff00ff' % S_EXN8); P('s_mov_b32 s%d, 0x00ff00ff' % (S_EXN8+1))
    P('s_mov_b32 s%d, 0x00ff00ff' % S_EXMM); P('s_mov_b32 s%d, 0' % (S_EXMM+1))
    P('s_mov_b32 s%d, 0x3e0293ee' % S_C)
    P('s_lshl_b32 s%d, s%d, 9' % (S_OW, S_W)); P('s_add_u32 s%d, s%d, %d' % (S_OW, S_OW, L_O))
    P('s_lshl_b32 s%d, s%d, 10' % (S_GW, S_W))
    P('s_mov_b32 s%d, 0' % S_ERR)
    P('s_mul_i32 s%d, s%d, %d' % (S_PCUR, S_H, P_HEAD)); P('s_add_u32 s%d, s%d, 0x%x' % (S_PCUR, S_PCUR, WS_P)); P('s_add_u32 s%d, s%d, 4096' % (S_PCUR4, S_PCUR))
    for t in range(4): P('s_mov_b32 s%d, 0x%x' % (S_PR0+t, WS_P + t*8*P_HEAD))
    P('s_mov_b32 s%d, 0x%x' % (S_MNXT, WS_M + 1*M_SLOT)); P('s_mov_b32 s%d, 0x%x' % (S_MPOI, WS_M + 2*M_SLOT))
    P('s_lshl_b32 s%d, s%d, 13' % (S_KV, S_H)); P('s_add_u32 s%d, s%d, 0x%x' % (S_VV, S_KV, WS_VF)); P('s_add_u32 s%d, s%d, 0x%x' % (S_KV, S_KV, WS_KF))
    P('s_lshl_b32 s%d, s%d, 11' % (S_KM, S_H)); P('s_lshl_b32 s%d, s%d, 9' % (S_T1, S_W))
    P('s_add_u32 s%d, s%d, s%d' % (S_KMW, S_KM, S_T1)); P('s_add_u32 s%d, s%d, 0x%x' % (S_KMW, S_KMW, WS_KM))
    P('s_add_u32 s%d, s%d, 0x%x' % (S_KM, S_KM, WS_VM))
    P('s_mov_b32 s%d, 0' % S_STEP); P('s_mov_b32 s%d, 0' % S_TAG)
    P('s_mov_b32 s%d, 0x%x' % (S_VMP, OOB)); P('v_mov_b64 %s, 0' % vr(V_VMH,2))
    P('s_mov_b32 s%d, 0' % S_RC); P('s_mov_b32 s%d, 0' % (S_RC+1))
    k.straight(P)

def initial_m(k):
    P = Prog()
    P('s_mov_b32 s%d, s%d' % (S_SRD2, S_PTR+8)); P('s_mov_b32 s%d, s%d' % (S_SRD2+1, S_PTR+9))
    P('s_mov_b32 s%d, %d' % (S_SRD2+2, 8*576*2)); P('s_mov_b32 s%d, 0x20000' % (S_SRD2+3))
    P('s_mov_b32 s%d, 0x05040100' % S_PERM); P('s_mov_b32 s%d, 0x07060302' % S_PERM2)
    P('s_lshl_b32 s%d, s%d, 6' % (S_T0, S_W)); P('v_add_u32 v20, s%d, v0' % S_T0)
    for i in range(3):
        P('v_add_u32 v21, %d, v20' % (256*i)); P('v_and_b32 v22, 7, v21'); P('v_lshrrev_b32 v23, 3, v21')
        P('s_movk_i32 s%d, 1152' % S_T1); P('v_mul_lo_u32 v22, v22, s%d' % S_T1); P('v_lshl_add_u32 v22, v23, 4, v22')
        P('v_cmp_gt_u32 vcc, 576, v21'); P('v_mov_b32 v24, 0x%x' % OOB); P('v_cndmask_b32 v22, v24, v22, vcc')
        P('buffer_load_dwordx4 v[28:31], v22, s[%d:%d], 0 offen' % (S_SRD2, S_SRD2+3))
        P('v_perm_b32 v32, v29, v28, s%d' % S_PERM); P('v_perm_b32 v33, v31, v30, s%d' % S_PERM)
        P('v_perm_b32 v34, v29, v28, s%d' % S_PERM2); P('v_perm_b32 v35, v31, v30, s%d' % S_PERM2)
        P('v_lshlrev_b32 v25, 4, v21')
        P('s_and_saveexec_b64 s[%d:%d], vcc' % (S_TS, S_TS+1))
        P('ds_write_b128 v25, v[32:35] offset:%d' % L_MF)
        P('s_mov_b64 exec, s[%d:%d]' % (S_TS, S_TS+1))
    P('s_waitcnt lgkmcnt(0)')
    k.straight(P)

def poison_init(k, st=''):
    P = Prog()
    P('v_mov_b32 v20, -1'); P('v_mov_b32 v21, -1'); P('v_mov_b32 v22, -1'); P('v_mov_b32 v23, -1')
    if OPT.get('quad', 1):
        P('buffer_store_dword v20, v%d, %s, s%d offen%s' % (V_PT0, WS, S_PCUR, st))
        P('buffer_store_dwordx4 v[20:23], v%d, %s, s%d offen offset:1024%s' % (V_PST, WS, S_PCUR, st))
        P('buffer_store_dwordx4 v[20:23], v%d, %s, s%d offen offset:1024%s' % (V_PST, WS, S_PCUR4, st))
    else:
      for T in (0, 2, 4, 6, 7):
        off = T*1024
        P('buffer_store_dwordx2 v[20:21], v%d, %s, s%d offen offset:%d%s' % (V_PST, WS, S_PCUR if off < 4096 else S_PCUR4, off & 4095, st))
    for slot in range(4):
        P('s_mov_b32 s%d, 0x%x' % (S_T1, WS_M + slot*M_SLOT))
        P('buffer_store_dword v20, v%d, %s, s%d offen%s' % (V_MST, WS, S_T1, st))
    P('s_waitcnt vmcnt(0)')
    P('v_mov_b32 v%d, -1' % V_NEG1)
    k.straight(P); k.reset_state()

STAMP_SET = None
def stamp(P, i):
    if not OPT['stamps']: return
    if STAMP_SET is not None and i not in STAMP_SET: return
    P('s_memtime s[%d:%d]' % (S_TS, S_TS+1)); P('s_waitcnt lgkmcnt(0)'); P('s_mov_b32 s%d, s%d' % (S_ST+i, S_TS))
def flush_stamps(P, n=8):
    if not OPT['stamps']: return
    P('s_lshl_b32 s%d, s%d, 2' % (S_T0, S_H)); P('s_add_u32 s%d, s%d, s%d' % (S_T0, S_T0, S_W))
    P('s_lshl_b32 s%d, s%d, 6' % (S_T0, S_T0)); P('s_add_u32 s%d, s%d, s%d' % (S_T0, S_T0, S_STEP)); P('s_sub_u32 s%d, s%d, 1' % (S_T0, S_T0))
    P('s_lshl_b32 s%d, s%d, 6' % (S_T0, S_T0)); P('s_add_u32 s%d, s%d, 0x%x' % (S_T0, S_T0, WS_STAT))
    P('s_mov_b64 exec, 1')
    for i in range(n):
        P('v_mov_b32 v21, s%d' % (S_ST+i)); P('buffer_store_dword v21, off, %s, s%d offset:%d' % (WS, S_T0, 4*i))
    P('s_mov_b64 exec, -1')

def poll_tail(P, lab, done, errbit, rc):
    P('s_cbranch_vccz %s' % done)
    if OPT['rc']: P('s_add_u32 s%d, s%d, 1' % (S_RC+rc, S_RC+rc))
    P('s_sub_u32 s%d, s%d, 1' % (S_TMO, S_TMO)); P('s_cmp_lg_u32 s%d, 0' % S_TMO); P('s_cbranch_scc1 %s' % lab)
    P('s_or_b32 s%d, s%d, %d' % (S_ERR, S_ERR, errbit))
    P.label(done)

def delay(P, sreg, label):
    P('s_cmp_eq_u32 s%d, 0' % sreg)
    P('s_cbranch_scc1 %s_x' % label)
    P('s_mov_b32 s%d, s%d' % (S_T3, sreg))
    P.label(label)
    P('s_sub_u32 s%d, s%d, 1' % (S_T3, S_T3)); P('s_cmp_gt_i32 s%d, 0' % S_T3); P('s_cbranch_scc1 %s' % label)
    P.label(label + '_x')

def kx_loads(P):
    P('buffer_load_dwordx4 %s, v%d, %s, s%d offen%s' % (vr(V_KF,4), V_KX, WS, S_KV, OPT.get('kvf', '')))
    P('buffer_load_dwordx4 %s, v%d, %s, s%d offen offset:128%s' % (vr(V_KF+4,4), V_KX, WS, S_KV, OPT.get('kvf', '')))
def prefetch(P, lab, tmp, kvwait):
    P('s_cmp_eq_u32 s%d, 0' % S_W)
    P('s_cbranch_scc0 %s' % lab)
    P('v_lshlrev_b32 v%d, 3, v%d' % (tmp, V_L16))
    P('s_add_u32 s%d, s%d, %d' % (S_T0, S_KV, OPT.get('pfd', 1)*32*8192)); P('s_mov_b32 m0, %d' % L_S); P('s_add_u32 s%d, s%d, %d' % (S_T1, S_VV, OPT.get('pfd', 1)*32*8192))
    if kvwait: P('s_cmp_eq_u32 s%d, 0' % S_KVRDY); P('s_cbranch_scc1 %s' % lab)
    P('buffer_load_dword v%d, %s, s%d offen%s lds' % (tmp, WS, S_T0, OPT.get('pff', ''))); P('buffer_load_dword v%d, %s, s%d offen%s lds' % (tmp, WS, S_T1, OPT.get('pff', '')))
    P.label(lab)
def pre_step(P):
    if not OPT.get('kxtop'): kx_loads(P)
    for r in range(V_QA, V_VB+4, 2): P('v_mov_b64 %s, 0' % vr(r,2))
    P(blk_s(('k',0,0), V_ST)); P(blk_s(('k',1,0), V_ST+8))

class Filler:
    def __init__(self): self.q = []
    def add(self, t): self.q.append(t)
    def emit(self, P, n):
        for _ in range(n):
            if self.q: P(self.q.pop(0))
    def drain(self, P): self.emit(P, len(self.q))

def bop(blk, buf): return REG_OF[blk][0] if blk in REG_OF else vr(buf, 8)

def main_loop(k, st='', kvwait=None, publish=None):
    P = Prog()
    SB = [V_ST, V_ST+8]
    P.label('L_chain_loop')
    stamp(P, 0)
    P(aread_s(0, V_AR)); P(aread_s(1, V_AR+4))
    if OPT.get('kxtop'): kx_loads(P)
    for t in range(9):
        a = V_AR + 4*(t % 3)
        if t + 2 < 9: P(aread_s(t+2, V_AR + 4*((t+2) % 3)))
        if t < 8:
            smf(P, V_QA, a, bop(('q',0,t), 0))
            if t == 6: P('WAIT_SPEC'); P('v_mov_b64 %s, 0' % vr(V_VB,2))
            smf(P, V_QB, a, bop(('q',1,t), 0))
            if t == 6: P('v_mov_b64 %s, 0' % vr(V_VB+2,2))
            if t % 2 == 1: P(blk_s(('k',0,t+1), SB[0]))
            smf(P, V_KA, a, bop(('k',0,t), SB[0]))
            if t % 2 == 1: P(blk_s(('k',1,t+1), SB[1]))
            smf(P, V_KB, a, bop(('k',1,t), SB[1]))
    a = V_AR + 4*(8 % 3)
    smf(P, V_QA, a, bop(('q',0,8), 0)); smf(P, V_QB, a, bop(('q',1,8), 0))
    vorder = [2, 6, 0, 1, 3, 4, 5, 7, 8]
    ring = [V_AR, V_AR+4, V_AR+8]
    P(aread_s(vorder[0], ring[0])); P(aread_s(vorder[1], ring[1]))
    smf(P, V_KA, a, bop(('k',0,8), SB[0])); P(blk_s(('v',0,2), SB[0]))
    smf(P, V_KB, a, bop(('k',1,8), SB[1])); P(blk_s(('v',1,2), SB[1]))
    stamp(P, 1)
    F = Filler()
    for i, t in enumerate(vorder):
        ar = ring[i % 3] if i != 2 else ring[2]
        g1 = []; g2 = []
        if i + 2 < 9: g1.append(aread_s(vorder[i+2], ring[(i+2) % 3]))
        s1 = smf_s(V_VA, ar, bop(('v',0,t), SB[0])); s2 = smf_s(V_VB, ar, bop(('v',1,t), SB[1]))
        if t == 2:
            F.add('\n'.join([s1, blk_s(('v',0,6), SB[0])])); F.add('\n'.join([s2, blk_s(('v',1,6), SB[1])] + g1))
        else:
            F.add('\n'.join([s1] + g1)); F.add(s2)
    cvt(P, V_QA, V_QA, V_QA+1); cvt(P, V_QA+1, V_QA+2, V_QA+3); cvt(P, V_QB, V_QB, V_QB+1); cvt(P, V_QB+1, V_QB+2, V_QB+3)
    mfma16(P, V_QA, V_QA, V_BSEL); mfma16(P, V_QB, V_QB, V_BSEL)
    cvt(P, V_KA, V_KA, V_KA+1); cvt(P, V_KA+1, V_KA+2, V_KA+3); cvt(P, V_KB, V_KB, V_KB+1); cvt(P, V_KB+1, V_KB+2, V_KB+3)
    mfma16(P, V_KA, V_KA, V_BSEL); mfma16(P, V_KB, V_KB, V_BSEL)
    for i in range(4): cvt(P, V_QA+i, V_QA+2*i, V_QA+2*i+1)
    qop = V_QA; kop = V_KA
    X0, X1, MM = V_QB, V_KF+4, V_KB
    mfma32(P, X0, V_KF, qop); mfma32(P, X1, V_KF+4, qop)
    for i in range(4): cvt(P, V_KA+i, V_KA+2*i, V_KA+2*i+1)
    F.emit(P, 1)
    mfma32(P, MM, kop, qop)
    F.emit(P, 1)
    P('s_mov_b64 exec, s[%d:%d]' % (S_EXN8, S_EXN8+1))
    P('ds_write_b128 v%d, %s' % (V_SW, vr(X0,4)))
    P('ds_write_b128 v%d, %s offset:512' % (V_SW, vr(X1,4)))
    P('buffer_store_dwordx4 %s, v%d, %s, s%d offen sc1' % (vr(kop,4), V_G16, WS, S_KMW))
    P('s_mov_b64 exec, s[%d:%d]' % (S_EXMM, S_EXMM+1))
    P('ds_write_b128 v%d, %s offset:1024' % (V_SW, vr(MM,4)))
    P('s_mov_b64 exec, -1')
    F.emit(P, 2)
    P('buffer_load_dwordx4 %s, v%d, %s, s%d offen%s' % (vr(V_KF,4), V_VX, WS, S_VV, OPT.get('kvf', '')))
    P('buffer_load_dwordx4 %s, v%d, %s, s%d offen offset:128%s' % (vr(V_KF+4,4), V_VX, WS, S_VV, OPT.get('kvf', '')))
    F.emit(P, 2)
    P('buffer_store_dwordx2 %s, v%d, %s, s%d offen sc1' % (vr(V_VMH,2), V_VM, WS, S_VMP))
    if publish: publish(P)
    P('WAIT_LDSW')
    stamp(P, 2)
    P('s_barrier')
    X, M = V_QA, SB[1]
    for e in range(4): P('ds_read_b128 %s, v%d offset:%d' % (vr(V_QA+4*e,4), V_SR, 1280*e))
    F.emit(P, 2)
    for e in range(2): P('ds_read_b128 %s, v%d offset:%d' % (vr(M+4*e,4), V_SM, 1280*e))
    F.emit(P, 5)
    pk_add(P, X, X, X+4); pk_add(P, X+2, X+2, X+6); F.emit(P, 1)
    pk_add(P, X+8, X+8, X+12); pk_add(P, X+10, X+10, X+14); F.emit(P, 1)
    pk_add(P, M, M, M+4); pk_add(P, M+2, M+2, M+6); F.emit(P, 1)
    pk_add(P, X, X, X+8); pk_add(P, X+2, X+2, X+10); F.drain(P)
    for i in range(4): P('v_add_f32_dpp v%d, v%d, v%d %s' % (M+i, M+i, M+i, DPP8))
    mx, t1 = M+4, M+5
    P('v_max3_f32 v%d, v%d, v%d, v%d' % (mx, X, X+1, X+2)); P('v_max3_f32 v%d, v%d, v%d, v%d' % (mx, mx, X+3, M))
    P('v_max3_f32 v%d, v%d, v%d, v%d' % (mx, mx, M+1, M+2)); P('v_max_f32 v%d, v%d, v%d' % (mx, mx, M+3))
    AV = V_QA + 10
    P('v_mov_b32 v%d, 0x3f803f80' % (V_QA+14)); P('v_mov_b32 v%d, 0x3f803f80' % (V_QA+15))
    P('v_max_f32_dpp v%d, v%d, v%d %s' % (mx, mx, mx, DPP8))
    P('v_mov_b32 v%d, 0x3f003f00' % (M+6))
    P('v_mov_b32 v%d, v%d' % (t1, mx))
    P('v_mov_b32 v%d, 0x3f003f00' % (M+7))
    cvt(P, AV, V_VA, V_VA+1)
    P('v_permlane16_swap_b32 v%d, v%d' % (mx, t1))
    P('v_max_f32 v%d, v%d, v%d' % (mx, mx, t1))
    P('v_mov_b32 v%d, v%d' % (t1, mx))
    cvt(P, AV+1, V_VA+2, V_VA+3); cvt(P, AV+2, V_VB, V_VB+1)
    P('v_permlane32_swap_b32 v%d, v%d' % (mx, t1))
    P('v_max_f32 v%d, v%d, v%d' % (mx, mx, t1))
    P('v_mul_f32 v%d, s%d, v%d' % (mx, S_C, mx))
    vals = [X+i for i in range(4)] + [M+i for i in range(4)]
    for r in vals: P('v_fma_f32 v%d, v%d, s%d, -v%d' % (r, r, S_C, mx))
    for r in vals: P('v_exp_f32 v%d, v%d' % (r, r))
    px, pm = V_QA+4, V_QA+8
    cvt(P, px, X, X+1); cvt(P, px+1, X+2, X+3); cvt(P, pm, M, M+1); cvt(P, pm+1, M+2, M+3)
    P('v_mov_b32_dpp v%d, v%d %s' % (px+2, px, DPP8)); P('v_mov_b32_dpp v%d, v%d %s' % (px+3, px+1, DPP8))
    cvt(P, AV+3, V_VB+2, V_VB+3)
    oa, ob, sm = V_AR, V_AR+4, V_AR+8
    ONES, HALF = V_QA+14, M+6
    mfma16(P, sm, HALF, pm); mfma16(P, sm, ONES, px, sm); mfma16(P, sm, ONES, px+2, sm)
    mfma32(P, oa, V_KF, px); mfma32(P, ob, V_KF+4, px)
    mfma16(P, oa, AV, pm, oa); mfma16(P, ob, AV+2, pm, ob)
    ow = M
    P('v_add_u32 v%d, s%d, v%d' % (ow, S_OW, V_G16))
    P('v_rcp_f32 v%d, v%d' % (sm, sm))
    lds_o = [('od', p, 3) for p in range(4)]
    P(blk_s(lds_o[0], SB[0]))
    for i in range(0, 8, 2): P('v_pk_mul_f32 %s, %s, %s op_sel_hi:[1,0]' % (vr(oa+i,2), vr(oa+i,2), vr(sm,2)))
    og = V_QA + 12
    for i in range(4): cvt(P, og+i, oa+2*i, oa+2*i+1)
    P('s_mov_b64 exec, s[%d:%d]' % (S_EXN8, S_EXN8+1))
    P('ds_write_b128 v%d, %s' % (ow, vr(og,4)))
    P('s_mov_b64 exec, -1')
    P('s_cmp_eq_u32 s%d, 63' % S_STEP)
    P('s_cbranch_scc1 L_chain_last')
    th = V_AR + 8
    accs = [V_KF, V_KF+4, V_AR, V_AR+4]
    for r in list(range(V_KF, V_KF+8, 2)) + [th, th+2]: P('v_mov_b64 %s, 0' % vr(r,2))
    P(blk_s(lds_o[1], SB[1]))
    if OPT.get('pf', 1) == 2: prefetch(P, 'L_nopf', V_QA+4, kvwait)
    P('WAIT_LDSW')
    stamp(P, 3)
    P('s_barrier')
    dual, half = V_QA, V_AR
    for s2 in range(2): P('ds_read_b128 %s, v%d offset:%d' % (vr(half+4*s2,4), V_SR, L_O - L_S + 1024*s2))
    for c in range(4): P('ds_read_b128 %s, v%d offset:%d' % (vr(dual+4*c,4), V_G16, L_O + 512*c))
    smf(P, th, half, bop(('oh',0), 0)); smf(P, th, half+4, bop(('oh',1), 0))
    def tagst(reg): P('v_bfi_b32 v%d, 1, s%d, v%d' % (reg, S_TAG, reg))
    def pair_store(pr):
        acc = accs[pr]
        cvt(P, acc, acc, acc+1); cvt(P, acc+1, acc+2, acc+3); tagst(acc)
        off = (1 + 2*pr)*1024
        P('buffer_store_dwordx2 %s, v%d, %s, s%d offen offset:%d%s' % (vr(acc,2), V_PST, WS, S_PCUR if off < 4096 else S_PCUR4, off & 4095, st))
    def quad_a(q):
        A, B = accs[2*q], accs[2*q+1]
        cvt(P, A, A, A+1); cvt(P, A+1, A+2, A+3); cvt(P, A+2, B, B+1); cvt(P, A+3, B+2, B+3)
    def quad_b(q):
        A = accs[2*q]
        tagst(A); tagst(A+2)
        P('v_permlane16_swap_b32 v%d, v%d' % (A, A+2)); P('v_permlane16_swap_b32 v%d, v%d' % (A+1, A+3))
        P('buffer_store_dwordx4 %s, v%d, %s, s%d offen offset:1024%s' % (vr(A,4), V_PST, WS, S_PCUR if q == 0 else S_PCUR4, st))
    def quad_a1():
        A = accs[2]
        cvt(P, A, A, A+1); cvt(P, A+1, A+2, A+3); tagst(A)
    def quad_b1():
        A, B = accs[2], accs[3]
        cvt(P, A+2, B, B+1); cvt(P, A+3, B+2, B+3); tagst(A+2)
        P('v_permlane16_swap_b32 v%d, v%d' % (A, A+2)); P('v_permlane16_swap_b32 v%d, v%d' % (A+1, A+3))
        P('buffer_store_dwordx4 %s, v%d, %s, s%d offen offset:1024%s' % (vr(A,4), V_PST, WS, S_PCUR4, st))
    for pr in range(4):
        for c in range(4):
            b = ('od', pr, c)
            smf(P, accs[pr], dual + 4*c, bop(b, SB[pr % 2]))
            if c == 3 and pr + 2 < 4: P(blk_s(lds_o[pr+2], SB[pr % 2]))
            if pr == 0 and c in (0, 1):
                for r in range(V_AR + 4*c, V_AR + 4*c + 4, 2): P('v_mov_b64 %s, 0' % vr(r,2))
            if pr == 0 and c == 2: P('v_permlane32_swap_b32 v%d, v%d' % (th, th+1))
            if pr == 0 and c == 3: P('v_permlane32_swap_b32 v%d, v%d' % (th+2, th+3))
            if pr == 1 and c == 0:
                P('v_add_f32 v%d, v%d, v%d' % (th, th, th+1)); P('v_add_f32 v%d, v%d, v%d' % (th+2, th+2, th+3))
            if pr == 1 and c == 1:
                cvt(P, th, th, th+2); tagst(th)
                P('buffer_store_dword v%d, v%d, %s, s%d offen%s' % (th, V_PT0, WS, S_PCUR, st))
            if not OPT.get('quad', 1):
                if c == 2 and pr >= 1: pair_store(pr-1)
            else:
                if pr == 2 and c == 1: quad_a(0)
                if pr == 2 and c == 2: quad_b(0)
                if pr == 3 and c == 2: quad_a1()
    if OPT.get('quad', 1): quad_b1()
    else: pair_store(3)
    stamp(P, 4)
    def idle_a(P):
        for i in range(4): P('v_permlane32_swap_b32 v%d, v%d' % (V_VA+i, V_VB+i))
        pk_add(P, V_VA, V_VA, V_VB); pk_add(P, V_VA+2, V_VA+2, V_VB+2)
        cvt(P, V_VMH, V_VA, V_VA+1); cvt(P, V_VMH+1, V_VA+2, V_VA+3)
        P('s_mov_b32 s%d, s%d' % (S_VMP, S_KM))
        if not OPT.get('nokv'):
            P('s_add_u32 s%d, s%d, %d' % (S_KV, S_KV, 32*8192)); P('s_add_u32 s%d, s%d, %d' % (S_VV, S_VV, 32*8192))
        P('s_add_u32 s%d, s%d, %d' % (S_KM, S_KM, 32*2048)); P('s_add_u32 s%d, s%d, %d' % (S_KMW, S_KMW, 32*2048))
        P('s_add_u32 s%d, s%d, s%d' % (S_G0, S_MNXT, S_GW)); P('s_add_u32 s%d, s%d, 4096' % (S_G1, S_G0)); P('s_add_u32 s%d, s%d, 8192' % (S_G2, S_MNXT))
        P('s_add_u32 s%d, s%d, 3' % (S_T1, S_STEP)); P('s_and_b32 s%d, s%d, 3' % (S_T1, S_T1)); P('s_mul_i32 s%d, s%d, %d' % (S_T1, S_T1, M_SLOT))
        P('s_add_u32 s%d, s%d, 0x%x' % (S_MPN, S_T1, WS_M))
        P('s_add_u32 s%d, s%d, 1' % (S_STEP, S_STEP))
    BR = V_QA; CK = V_QA+4
    RL = [V_AR, V_AR+4, V_AR+8, SB[1]]; D = SB[1]+4
    def red_loads(P):
        for t in range(4): P('buffer_load_dwordx4 %s, v%d, %s, s%d offen sc1 ;@spec' % (vr(RL[t],4), V_RED, WS, S_PR0+t))
    def red_check(P, par):
        if par == 0:
            P('v_or3_b32 v%d, v%d, v%d, v%d' % (CK, RL[0], RL[0]+2, RL[1])); P('v_or3_b32 v%d, v%d, v%d, v%d' % (CK+1, RL[1]+2, RL[2], RL[2]+2))
            P('v_or3_b32 v%d, v%d, v%d, v%d' % (CK, CK, RL[3], RL[3]+2)); P('v_or_b32 v%d, v%d, v%d' % (CK, CK, CK+1))
        else:
            P('v_and_b32 v%d, v%d, v%d' % (CK, RL[0], RL[0]+2)); P('v_and_b32 v%d, v%d, v%d' % (CK+1, RL[1], RL[1]+2))
            P('v_and_b32 v%d, v%d, v%d' % (CK+2, RL[2], RL[2]+2)); P('v_and_b32 v%d, v%d, v%d' % (CK+3, RL[3], RL[3]+2))
            P('v_and_b32 v%d, v%d, v%d' % (CK, CK, CK+1)); P('v_and_b32 v%d, v%d, v%d' % (CK+2, CK+2, CK+3)); P('v_and_b32 v%d, v%d, v%d' % (CK, CK, CK+2))
        P('v_and_b32 v%d, 1, v%d' % (CK, CK))
        P('v_cmp_ne_u32 vcc, s%d, v%d' % (S_TAG, CK))
    P('s_cmp_eq_u32 s%d, 0' % S_RED)
    P('s_cbranch_scc1 L_nored')
    P('buffer_store_dword v%d, v%d, %s, s%d offen%s' % (V_NEG1, V_MST, WS, S_MPOI, st))
    delay(P, S_RDEL, 'L_rdel')
    stamp(P, 7)
    red_loads(P)
    for r in range(4): P('v_cndmask_b32 v%d, 0, v%d, s[%d:%d]' % (BR+r, V_BVAL, S_BM+2*r, S_BM+2*r+1))
    idle_a(P)
    red_loads(P)
    P('s_mov_b32 s%d, %d' % (S_TMO, TMO))
    P('s_cmp_eq_u32 s%d, 0' % S_TAG); P('s_cbranch_scc0 L_red_poll1')
    for par in range(2):
        P.label('L_red_poll%d' % par)
        P('s_waitcnt vmcnt(4)')
        red_check(P, par)
        P('s_cbranch_vccz L_red_done')
        if OPT['rc']: P('s_add_u32 s%d, s%d, 1' % (S_RC, S_RC))
        red_loads(P)
        P('s_sub_u32 s%d, s%d, 1' % (S_TMO, S_TMO)); P('s_cmp_lg_u32 s%d, 0' % S_TMO); P('s_cbranch_scc1 L_red_poll%d' % par)
        P('s_or_b32 s%d, s%d, 1' % (S_ERR, S_ERR))
        P('s_branch L_red_done')
    P.label('L_red_done')
    mfma32(P, D, RL[0], BR)
    for t in range(1, 4): mfma32(P, D, RL[t], BR, D)
    P('v_permlane32_swap_b32 v%d, v%d' % (D, D+1)); P('v_permlane32_swap_b32 v%d, v%d' % (D+2, D+3))
    P('v_add_f32 v%d, v%d, v%d' % (D, D, D+1)); P('v_add_f32 v%d, v%d, v%d' % (D+2, D+2, D+3))
    cvt(P, D, D, D+2)
    P('buffer_store_dword v%d, v%d, %s, s%d offen%s' % (D, V_MST, WS, S_MNXT, st))
    P('s_mov_b32 s%d, %d' % (S_T2, OPT['gdel']))
    P('s_branch L_red_done2')
    P.label('L_nored')
    idle_a(P)
    P('s_mov_b32 s%d, %d' % (S_T2, OPT['gdel0']))
    P.label('L_red_done2')
    stamp(P, 5)
    if kvwait: kvwait(P)
    GL = V_QA + 8; CK = V_QA + 9
    P('v_add_u32 v%d, s%d, v%d' % (GL, S_GW, V_L16))
    delay(P, S_T2, 'L_gdel')
    def gat_loads(P, w0):
        P('buffer_load_dwordx4 v[72:75], v%d, %s, s%d offen sc1 ;@spec' % (V_L16, WS, S_G0))
        P('buffer_load_dwordx4 v[76:79], v%d, %s, s%d offen sc1 ;@spec' % (V_L16, WS, S_G1))
        if w0: P('buffer_load_dwordx4 v[68:71], v%d, %s, s%d offen sc1 ;@spec' % (V_L16, WS, S_G2))
    def gat_check(P, w0):
        P('v_max3_u32 v%d, v72, v73, v74' % CK); P('v_max3_u32 v%d, v75, v76, v77' % (CK+1))
        P('v_max3_u32 v%d, v%d, v78, v79' % (CK, CK))
        if w0:
            P('v_max3_u32 v%d, v%d, v68, v69' % (CK+1, CK+1)); P('v_max3_u32 v%d, v%d, v70, v71' % (CK, CK))
        P('v_max_u32 v%d, v%d, v%d' % (CK, CK, CK+1))
        P('v_cmp_eq_u32 vcc, -1, v%d' % CK)
    def idle_b(P):
        P('s_xor_b32 s%d, s%d, 1' % (S_TAG, S_TAG))
        P('s_mov_b32 s%d, s%d' % (S_MNXT, S_MPOI)); P('s_mov_b32 s%d, s%d' % (S_MPOI, S_MPN))
        P('s_mov_b32 s%d, %d' % (S_TMO, TMO))
        for r in (V_QA, V_QA+2, V_QA+4, V_QA+6, V_QA+12, V_QA+14, V_VA, V_VA+2): P('v_mov_b64 %s, 0' % vr(r,2))
        P(blk_s(('k',0,0), V_ST))
    P('s_cmp_eq_u32 s%d, 0' % S_W)
    P('s_cbranch_scc1 L_gat0')
    for w0, pfx in ((False, 'L_gat'), (True, 'L_gat0')):
        n = 3 if w0 else 2
        if w0: P.label('L_gat0')
        gat_loads(P, w0)
        idle_b(P)
        gat_loads(P, w0)
        P.label(pfx + '_poll')
        P('s_waitcnt vmcnt(%d)' % n)
        gat_check(P, w0)
        P('s_cbranch_vccz %s_ok' % pfx)
        if OPT['rc']: P('s_add_u32 s%d, s%d, 1' % (S_RC+1, S_RC+1))
        gat_loads(P, w0)
        P('s_sub_u32 s%d, s%d, 1' % (S_TMO, S_TMO)); P('s_cmp_lg_u32 s%d, 0' % S_TMO); P('s_cbranch_scc1 %s_poll' % pfx)
        P('s_or_b32 s%d, s%d, 2' % (S_ERR, S_ERR))
        P.label(pfx + '_ok')
        P('ds_write_b128 v%d, v[72:75] offset:%d' % (GL, L_MF))
        P('ds_write_b128 v%d, v[76:79] offset:%d' % (GL, L_MF + 4096))
        if w0: P('ds_write_b128 v%d, v[68:71] offset:%d' % (V_L16, L_MF + 8192))
        P(blk_s(('k',1,0), V_ST+8))
        P('v_mov_b64 %s, 0' % vr(V_QA+8,2)); P('v_mov_b64 %s, 0' % vr(V_QA+10,2))
        if not w0: P('s_branch L_gat_w')
    P.label('L_gat_w')
    stamp(P, 6)
    flush_stamps(P)
    P('WAIT_LDSW')
    P('s_barrier')
    P('s_branch L_chain_loop')
    P.label('L_chain_last')
    for i in range(4): P('v_permlane32_swap_b32 v%d, v%d' % (V_VA+i, V_VB+i))
    pk_add(P, V_VA, V_VA, V_VB); pk_add(P, V_VA+2, V_VA+2, V_VB+2)
    cvt(P, V_VA, V_VA, V_VA+1); cvt(P, V_VA+1, V_VA+2, V_VA+3)
    P('buffer_store_dwordx2 %s, v%d, %s, s%d offen sc1' % (vr(V_VA,2), V_VM, WS, S_KM))
    P('s_branch L_chain_done')
    return P
```

```python
from asmlib import *
from common import *

def vr(a, n=1): return 'v%d' % a if n == 1 else 'v[%d:%d]' % (a, a+n-1)

G_WS = 8; G_WSRD = 12; G_W = 17
G_T0 = 19; G_T1 = 20; G_T2 = 21; G_T3 = 22
G_XOFF = 24; G_WOFF = 25; G_SLOT = 26; G_NSLOT = 27; G_CNT = 28
G_DST = 29; G_XGS = 30
G_M0B = 31
G_BSRD = 32; G_OSRD = 36
G_C0 = 40; G_C1 = 41
G_XOF2 = 23
WSs = 's[%d:%d]' % (G_WS, G_WS+3)
OOB = 0x40000000

class Gemm:
    def __init__(self, TG, NT, rsg, name, stflag=' sc1'):
        self.TG, self.NT, self.rsg, self.name, self.stflag = TG, NT, rsg, name, stflag
        self.KS = 2
        self.rsl = NT*64
        self.slot = self.rsl*32
        self.NSLOT = 4
        self.swz = (NT == 4)
        self.cpr = self.rsl // 16
        self.nchunk = self.slot // 16 // 4
        self.NI = (self.nchunk + 63) // 64
        self.ACC = 256 - TG*NT*16
        self.XF = 16
        self.WF = self.XF + 2*self.KS*TG*4
        self.AD = self.WF + 16
        self.NA = 4 if self.swz else 1
        self.AB = self.AD + 2*self.NA
        self.DO = self.AB + self.NA
        self.L16 = self.DO + self.NI
        self.TMP = (self.L16 + 2) & ~1
        assert self.TMP + 24 <= self.ACC, (self.TMP, self.ACC)
    def setup(self, P):
        t = self.TMP
        P('v_lshlrev_b32 v%d, 4, v0' % self.L16)
        P('v_lshrrev_b32 v%d, 5, v0' % t); P('v_bfe_u32 v%d, v0, 2, 2' % (t+1))
        P('v_lshl_add_u32 v%d, v%d, 2, v%d' % (t+2, t, t+1))
        P('s_movk_i32 s%d, %d' % (G_T0, self.rsl)); P('v_mul_lo_u32 v%d, v%d, s%d' % (t+2, t+2, G_T0))
        P('v_bfe_u32 v%d, v0, 4, 1' % (t+3)); P('v_and_b32 v%d, 3, v0' % (t+4))
        P('v_lshlrev_b32 v%d, 5, v%d' % (t+3, t+3)); P('v_lshl_add_u32 v%d, v%d, 3, v%d' % (t+3, t+4, t+3))
        P('v_add_u32 v%d, v%d, v%d' % (t+2, t+2, t+3))
        if self.swz:
            for j in range(4):
                P('v_xor_b32 v%d, %d, v%d' % (t+4, j, t+1)); P('v_lshl_add_u32 v%d, v%d, 6, v%d' % (self.AB+j, t+4, t+2))
        else:
            P('v_mov_b32 v%d, v%d' % (self.AB, t+2))
        for i in range(self.NI):
            P('v_add_u32 v%d, %d, v0' % (t, 64*i))
            P('s_mov_b32 s%d, 0x%x' % (G_T0, (1 << 20)//self.cpr + 1))
            P('v_mul_lo_u32 v%d, v%d, s%d' % (t+1, t, G_T0)); P('v_lshrrev_b32 v%d, 20, v%d' % (t+1, t+1))
            P('s_movk_i32 s%d, %d' % (G_T0, self.cpr)); P('v_mul_lo_u32 v%d, v%d, s%d' % (t+2, t+1, G_T0))
            P('v_sub_u32 v%d, v%d, v%d' % (t+2, t, t+2))
            if self.swz:
                P('v_and_b32 v%d, 3, v%d' % (t+3, t+1)); P('v_lshrrev_b32 v%d, 2, v%d' % (t+4, t+2))
                P('v_xor_b32 v%d, v%d, v%d' % (t+4, t+4, t+3)); P('v_and_b32 v%d, 3, v%d' % (t+2, t+2))
                P('v_lshl_add_u32 v%d, v%d, 2, v%d' % (t+2, t+4, t+2))
            P('s_movk_i32 s%d, %d' % (G_T0, self.rsg)); P('v_mul_lo_u32 v%d, v%d, s%d' % (t+1, t+1, G_T0))
            P('v_lshl_add_u32 v%d, v%d, 4, v%d' % (self.DO+i, t+2, t+1))
            if 64*(i+1) > self.nchunk:
                P('v_mov_b32 v%d, 0x%x' % (t+3, OOB)); P('v_cmp_gt_u32 vcc, %d, v%d' % (self.nchunk, t))
                P('v_cndmask_b32 v%d, v%d, v%d, vcc' % (self.DO+i, t+3, self.DO+i))
        P('s_mul_i32 s%d, s%d, %d' % (G_M0B, G_W, self.nchunk*16))
    def dma(self, P):
        W = 's[%d:%d]' % (G_WSRD, G_WSRD+3)
        for i in range(self.NI):
            if i == 0: P('s_add_u32 m0, s%d, s%d' % (G_SLOT, G_M0B))
            else: P('s_add_u32 m0, m0, 1024')
            part = 64*(i+1) > self.nchunk
            if part:
                assert self.nchunk - 64*i == 32
                P('s_mov_b32 exec_hi, 0')
            else: P('s_nop 0')
            P('buffer_load_dwordx4 v%d, %s, s%d offen lds' % (self.DO + i, W, G_WOFF))
            if part: P('s_mov_b32 exec_hi, -1')
        P('s_add_u32 s%d, s%d, %d' % (G_WOFF, G_WOFF, 32*self.rsg))
        P('s_add_u32 s%d, s%d, %d' % (G_SLOT, G_SLOT, self.slot))
        P('s_cmp_eq_u32 s%d, %d' % (G_SLOT, self.NSLOT*self.slot))
        P('s_cselect_b32 s%d, 0, s%d' % (G_SLOT, G_SLOT))
    def xreg(self, st, ks, g): return self.XF + 4*((st*self.KS + ks)*self.TG + g)
    def xload(self, P, st, ks):
        for g in range(self.TG):
            P('buffer_load_dwordx4 %s, v%d, %s, s%d offen offset:%d' % (vr(self.xreg(st, ks, g), 4), self.L16, WSs, G_XOFF if g == 0 else G_XOF2, ks*1024))
    def xadv(self, P):
        P('s_add_u32 s%d, s%d, %d' % (G_XOFF, G_XOFF, 1024*self.KS))
        if self.TG > 1: P('s_add_u32 s%d, s%d, %d' % (G_XOF2, G_XOF2, 1024*self.KS))
    def addr_set(self, P, st):
        for j in range(self.NA): P('v_add_u32 v%d, s%d, v%d' % (self.AD + st*self.NA + j, G_NSLOT, self.AB + j))
        P('s_add_u32 s%d, s%d, %d' % (G_NSLOT, G_NSLOT, self.slot))
        P('s_cmp_eq_u32 s%d, %d' % (G_NSLOT, self.NSLOT*self.slot))
        P('s_cselect_b32 s%d, 0, s%d' % (G_NSLOT, G_NSLOT))
    def wread(self, P, st, q):
        ks, ft = divmod(q, self.NT)
        dst = self.WF + 4*(q % 4)
        if self.swz: a = self.AD + st*self.NA + ft; off = ks*16*self.rsl
        else: a = self.AD + st*self.NA; off = ks*16*self.rsl + ft*64
        P('ds_read_b64_tr_b16 %s, v%d offset:%d' % (vr(dst, 2), a, off))
        P('ds_read_b64_tr_b16 %s, v%d offset:%d' % (vr(dst+2, 2), a, off + 8*self.rsl))
    def acc(self, g, ft): return self.ACC + 16*(g*self.NT + ft)
    def mfma(self, P, st, q, swap):
        ks, ft = divmod(q, self.NT)
        w = vr(self.WF + 4*(q % 4), 4)
        for g in range(self.TG):
            a = vr(self.acc(g, ft), 16); x = vr(self.xreg(st, ks, g), 4)
            if swap: P('v_mfma_f32_32x32x16_bf16 %s, %s, %s, %s' % (a, x, w, a))
            else: P('v_mfma_f32_32x32x16_bf16 %s, %s, %s, %s' % (a, w, x, a))
    def prologue(self, P):
        if self.TG > 1: P('s_add_u32 s%d, s%d, s%d' % (G_XOF2, G_XOFF, G_XGS))
        P('s_mov_b32 s%d, 0' % G_SLOT); P('s_mov_b32 s%d, 0' % G_NSLOT)
        P('s_barrier')
        self.dma(P)
        for st in range(2):
            for ks in range(self.KS): self.xload(P, st, ks)
            self.xadv(P)
            self.dma(P)
    def first_reads(self, P):
        P('s_waitcnt vmcnt(%d)' % (2*(self.NI + self.KS*self.TG)))
        P('s_barrier')
        self.addr_set(P, 0)
        for q in range(3): self.wread(P, 0, q)
    def body(self, swap, label):
        assert (self.NT*self.KS*2) % 4 == 0
        P = Prog()
        P.label(label)
        NQ = self.NT*self.KS
        gq = 0
        P('s_cmp_eq_u32 s%d, 1' % G_CNT)
        P('s_cselect_b32 s%d, 0x%x, s%d' % (G_XOFF, OOB, G_XOFF))
        if self.TG > 1: P('s_cselect_b32 s%d, 0x%x, s%d' % (G_XOF2, OOB, G_XOF2))
        for st in range(2):
            for q in range(NQ):
                if q == NQ // 2:
                    P('s_waitcnt vmcnt(%d)' % (3*self.TG*(self.KS // 2) + self.NI))
                    P('s_barrier')
                    self.addr_set(P, 1 - st)
                    self.dma(P)
                nq = q + 3
                qq = lambda x: x + st*NQ
                ks, ft = divmod(nq % NQ, self.NT)
                self._wread_ring(P, st if nq < NQ else 1 - st, nq % NQ, (st*NQ + nq) % 4)
                self._mfma_ring(P, st, q, (st*NQ + q) % 4, swap)
                ks, ft = divmod(q, self.NT)
                if ft == self.NT - 1:
                    self.xload(P, st, ks)
                    if ks == self.KS - 1: self.xadv(P)
        P('s_sub_u32 s%d, s%d, 1' % (G_CNT, G_CNT))
        P('s_cmp_lg_u32 s%d, 0' % G_CNT)
        P('s_cbranch_scc1 %s' % label)
        return P
    def _wread_ring(self, P, st, q, ring):
        ks, ft = divmod(q, self.NT)
        dst = self.WF + 4*ring
        if self.swz: a = self.AD + st*self.NA + ft; off = ks*16*self.rsl
        else: a = self.AD + st*self.NA; off = ks*16*self.rsl + ft*64
        P('ds_read_b64_tr_b16 %s, v%d offset:%d' % (vr(dst, 2), a, off))
        P('ds_read_b64_tr_b16 %s, v%d offset:%d' % (vr(dst+2, 2), a, off + 8*self.rsl))
    def _mfma_ring(self, P, st, q, ring, swap):
        ks, ft = divmod(q, self.NT)
        w = vr(self.WF + 4*ring, 4)
        for g in range(self.TG):
            a = vr(self.acc(g, ft), 16); x = vr(self.xreg(st, ks, g), 4)
            if swap: P('v_mfma_f32_32x32x16_bf16 %s, %s, %s, %s' % (a, x, w, a))
            else: P('v_mfma_f32_32x32x16_bf16 %s, %s, %s, %s' % (a, w, x, a))

def zero_acc(g, P):
    for r in range(g.ACC, 256, 2): P('v_mov_b64 %s, 0' % vr(r, 2))
def pack8(P, dst, src):
    for i in range(4): P('v_cvt_pk_bf16_f32 v%d, v%d, v%d' % (dst+i, src+2*i, src+2*i+1))

def epi_kq(g, P):
    t = g.TMP; n = 0
    for tg in range(g.TG):
        for ft in range(4):
            for G in range(2):
                d = t + 4*(n % 4); n += 1
                pack8(P, d, g.acc(tg, ft) + 8*G)
                off = tg*32*8192 + (4*ft + 2*G)*512
                P('s_add_u32 s%d, s%d, %d' % (G_T0, G_DST, off & ~4095))
                P('buffer_store_dwordx4 %s, v%d, %s, s%d offen offset:%d%s' % (vr(d,4), g.L16, WSs, G_T0, off & 4095, g.stflag))
def epi_v(g, P):
    t = g.TMP; va = t + 16; n = 0
    P('v_lshrrev_b32 v%d, 5, v0' % va); P('v_lshlrev_b32 v%d, 11, v%d' % (va, va))
    P('v_and_b32 v%d, 31, v0' % (va+1)); P('v_lshl_add_u32 v%d, v%d, 4, v%d' % (va, va+1, va))
    for tg in range(g.TG):
        for ft in range(4):
            for G in range(2):
                d = t + 4*(n % 4); n += 1
                pack8(P, d, g.acc(tg, ft) + 8*G)
                off = tg*32*8192 + G*4096 + ft*512
                P('s_add_u32 s%d, s%d, %d' % (G_T0, G_DST, off & ~4095))
                P('buffer_store_dwordx4 %s, v%d, %s, s%d offen offset:%d%s' % (vr(d,4), va, WSs, G_T0, off & 4095, g.stflag))
def init_bias(g, P):
    t = g.TMP
    B = 's[%d:%d]' % (G_BSRD, G_BSRD+3)
    P('v_lshrrev_b32 v%d, 5, v0' % t); P('v_lshlrev_b32 v%d, 3, v%d' % (t, t))
    for ft in range(g.NT):
        for q in range(4): P('buffer_load_dwordx2 %s, v%d, %s, s%d offen offset:%d' % (vr(t+2+2*q, 2), t, B, G_T3, 64*ft + 16*q))
        for q in range(4):
            for tg in range(g.TG):
                a = g.acc(tg, ft) + 4*q
                P('v_lshlrev_b32 v%d, 16, v%d' % (a, t+2+2*q)); P('v_and_b32 v%d, 0xffff0000, v%d' % (a+1, t+2+2*q))
                P('v_lshlrev_b32 v%d, 16, v%d' % (a+2, t+3+2*q)); P('v_and_b32 v%d, 0xffff0000, v%d' % (a+3, t+3+2*q))
def epi_h(g, P):
    t = g.TMP; c0 = t + 20; n = 0
    P('v_mov_b32 v%d, s%d' % (c0, G_C0))
    for tg in range(g.TG):
        for ft in range(g.NT):
            A = g.acc(tg, ft)
            for base in range(0, 16, 4):
                xs = [A + base + i for i in range(4)]; ts = [t + 16 + i for i in range(4)]
                for i in (0, 2): P('v_pk_mul_f32 %s, %s, %s' % (vr(ts[i],2), vr(xs[i],2), vr(xs[i],2)))
                for i in range(4): P('v_fma_f32 v%d, v%d, s%d, v%d' % (ts[i], ts[i], G_C1, c0))
                for i in (0, 2): P('v_pk_mul_f32 %s, %s, %s' % (vr(ts[i],2), vr(ts[i],2), vr(xs[i],2)))
                for i in range(4): P('v_exp_f32 v%d, v%d' % (ts[i], ts[i]))
                for i in range(4): P('v_add_f32 v%d, 1.0, v%d' % (ts[i], ts[i]))
                for i in range(4): P('v_rcp_f32 v%d, v%d' % (ts[i], ts[i]))
                for i in (0, 2): P('v_pk_mul_f32 %s, %s, %s' % (vr(xs[i],2), vr(xs[i],2), vr(ts[i],2)))
            for G in range(2):
                d = t + 4*(n % 4); n += 1
                pack8(P, d, A + 8*G)
                off = tg*288*1024 + (2*ft+G)*1024
                P('s_add_u32 s%d, s%d, %d' % (G_T0, G_DST, off & ~4095))
                P('buffer_store_dwordx4 %s, v%d, %s, s%d offen offset:%d%s' % (vr(d,4), g.L16, WSs, G_T0, off & 4095, g.stflag))
def epi_base(g, P):
    for tg in range(g.TG):
        for ft in range(g.NT):
            off = tg*18*4096 + ft*4096
            P('s_add_u32 s%d, s%d, %d' % (G_T0, G_DST, off))
            for q in range(4):
                P('buffer_store_dwordx4 %s, v%d, %s, s%d offen offset:%d%s' % (vr(g.acc(tg, ft) + 4*q, 4), g.L16, WSs, G_T0, q*1024, g.stflag))
```

```python
from asmlib import *
from common import *
import gemm as Gm
from gemm import *

def srd(P, s, lo, hi, size):
    P('s_mov_b32 s%d, s%d' % (s, lo)); P('s_mov_b32 s%d, s%d' % (s+1, hi))
    P('s_mov_b32 s%d, 0x%x' % (s+2, size)); P('s_mov_b32 s%d, 0x20000' % (s+3))

def load_ptrs(P, names, sbase):
    for i, n in enumerate(names): P('s_load_dwordx2 s[%d:%d], s[0:1], %d' % (sbase+2*i, sbase+2*i+1, KA[n]))

def std_entry(P, nwg, endlabel):
    P('s_cmp_ge_u32 s2, %d' % nwg); P('s_cbranch_scc1 %s' % endlabel)
    P('s_load_dwordx2 s[8:9], s[0:1], %d' % KA['ws'])
    P('v_lshrrev_b32 v1, 6, v0'); P('v_and_b32 v0, 63, v0')
    P('s_nop 0')
    P('v_readfirstlane_b32 s%d, v1' % G_W)
    P('s_mov_b32 s10, 0x%x' % WS_SIZE); P('s_mov_b32 s11, 0x20000')

def ln_rows(P, sRow0, stflag=''):
    X = 's[%d:%d]' % (G_BSRD, G_BSRD+3)
    D = 20
    F = 60
    P('v_lshrrev_b32 v2, 3, v0'); P('v_and_b32 v3, 7, v0')
    P('v_add_u32 v2, s%d, v2' % sRow0)
    P('s_movk_i32 s%d, 1152' % G_T0); P('v_mul_lo_u32 v4, v2, s%d' % G_T0)
    P('v_lshl_add_u32 v4, v3, 4, v4')
    for i in range(9): P('buffer_load_dwordx4 %s, v4, %s, 0 offen offset:%d' % (vr(D+4*i,4), X, 128*i))
    for i in range(36):
        P('v_lshlrev_b32 v%d, 16, v%d' % (F+2*i, D+i)); P('v_and_b32 v%d, 0xffff0000, v%d' % (F+2*i+1, D+i))
    def rsum(dst, srcs_first):
        pass
    def xlane_sum(r, t):
        for sh in (1, 2, 4):
            if sh == 1: P('v_add_f32_dpp v%d, v%d, v%d quad_perm:[1,0,3,2] row_mask:0xf bank_mask:0xf' % (r, r, r))
            elif sh == 2: P('v_add_f32_dpp v%d, v%d, v%d quad_perm:[2,3,0,1] row_mask:0xf bank_mask:0xf' % (r, r, r))
            else: P('v_add_f32_dpp v%d, v%d, v%d row_half_mirror row_mask:0xf bank_mask:0xf' % (r, r, r))
    def rbf(r, t):
        P('v_cvt_pk_bf16_f32 v%d, v%d, v%d' % (r, r, r)); P('v_lshlrev_b32 v%d, 16, v%d' % (r, r))
    def layernorm():
        P('v_add_f32 v5, v%d, v%d' % (F, F+1))
        for i in range(2, 72): P('v_add_f32 v5, v5, v%d' % (F+i))
        xlane_sum(5, 6)
        P('v_mul_f32 v5, s%d, v5' % G_T1)
        P('v_sub_f32 v6, v%d, v5' % F); P('v_mul_f32 v7, v6, v6')
        for i in range(1, 72):
            P('v_sub_f32 v6, v%d, v5' % (F+i)); P('v_fmac_f32 v7, v6, v6')
        xlane_sum(7, 6)
        P('v_mul_f32 v7, s%d, v7' % G_T1)
        rbf(5, 6); rbf(7, 6)
        P('v_add_f32 v7, s%d, v7' % G_T2); rbf(7, 6)
        P('v_sqrt_f32 v7, v7'); P('s_nop 0'); rbf(7, 6)
        P('v_rcp_f32 v8, v7')
        for i in range(72):
            r = F + i
            P('v_sub_f32 v%d, v%d, v5' % (r, r))
        for i in range(0, 72, 2):
            r = F + i
            P('v_cvt_pk_bf16_f32 v6, v%d, v%d' % (r, r+1))
            P('v_lshlrev_b32 v%d, 16, v6' % r); P('v_and_b32 v%d, 0xffff0000, v6' % (r+1))
        for i in range(72):
            r = F + i
            P('v_mul_f32 v6, v%d, v8' % r)
            P('v_fma_f32 v9, -v6, v7, v%d' % r)
            P('v_fma_f32 v%d, v9, v8, v6' % r)
        for i in range(0, 72, 2):
            r = F + i
            P('v_cvt_pk_bf16_f32 v%d, v%d, v%d' % (D + i//2, r, r+1))
    def store(region):
        for i in range(9):
            d = D + 4*i
            P('v_cndmask_b32 v10, v%d, v%d, s[%d:%d]' % (d+2, d, 84, 85))
            P('v_cndmask_b32 v11, v%d, v%d, s[%d:%d]' % (d+3, d+1, 84, 85))
            P('v_mov_b32_dpp v12, v10 quad_perm:[1,0,3,2] row_mask:0xf bank_mask:0xf')
            P('v_mov_b32_dpp v13, v11 quad_perm:[1,0,3,2] row_mask:0xf bank_mask:0xf')
            P('v_cndmask_b32 v14, v%d, v12, s[%d:%d]' % (d, 84, 85))
            P('v_cndmask_b32 v15, v%d, v13, s[%d:%d]' % (d+1, 84, 85))
            P('v_cndmask_b32 v16, v12, v%d, s[%d:%d]' % (d+2, 84, 85))
            P('v_cndmask_b32 v17, v13, v%d, s[%d:%d]' % (d+3, 84, 85))
            P('s_add_u32 s%d, s%d, %d' % (G_T3, G_DST, region + i*4096))
            P('buffer_store_dwordx4 v[14:17], v18, %s, s%d offen%s' % (WSs, G_T3, stflag))
    P('s_mov_b32 s%d, 0x3ae38e39' % G_T1)
    P('s_mov_b32 s%d, 0x3727c5ac' % G_T2)
    P('v_and_b32 v10, 1, v3'); P('v_cmp_eq_u32 s[%d:%d], 1, v10' % (84, 85))
    P('v_lshrrev_b32 v18, 1, v3'); P('v_lshlrev_b32 v18, 10, v18'); P('v_lshl_add_u32 v18, v10, 9, v18')
    P('v_and_b32 v11, 31, v2'); P('v_lshl_add_u32 v18, v11, 4, v18')
    P('s_lshr_b32 s%d, s%d, 5' % (G_DST, sRow0)); P('s_mul_i32 s%d, s%d, 36864' % (G_DST, G_DST))
    layernorm()
    store(WS_XNF)
    for i in range(36):
        P('v_lshlrev_b32 v%d, 16, v%d' % (F+2*i, D+i)); P('v_and_b32 v%d, 0xffff0000, v%d' % (F+2*i+1, D+i))
    layernorm()
    store(WS_YF)

def ln_kernel(k, end):
    P = Prog()
    std_entry(P, 64, end)
    load_ptrs(P, ['x'], 44)
    P('s_waitcnt lgkmcnt(0)')
    srd(P, G_BSRD, 44, 45, 2048*1152)
    P('s_lshl_b32 s46, s2, 5'); P('s_lshl_b32 s47, s%d, 3' % G_W); P('s_add_u32 s46, s46, s47')
    ln_rows(P, 46)
    P('s_waitcnt vmcnt(0)')
    k.straight(P)

MAPX = True
DIAG = False
def gemma_kernel(k, end, nwg=256):
    gk = Gemm(8, 2, 8192, 'qkv'); gh = Gemm(8, 2, 9216, 'h')
    gk.stflag = ''; gh.stflag = ''
    P = Prog()
    std_entry(P, nwg, end)
    load_ptrs(P, ['Wk', 'Wv', 'Wq', 'w1', 'b1'], 48)
    P('s_waitcnt lgkmcnt(0)')
    srd(P, G_BSRD, 56, 57, 4608*2)
    P('s_mov_b32 s%d, 0xc0135761' % G_C0)
    P('s_mov_b32 s%d, 0xbdd2d3e7' % G_C1)
    P('s_mov_b32 s%d, s2' % G_TASK)
    k.straight(P)
    P = Prog()
    P.label('L_ga_task')
    P('s_cmp_ge_u32 s%d, %d' % (G_TASK, 256*5 if MAPX else 16*66)); P('s_cbranch_scc1 %s' % end)
    if MAPX:
        P('s_and_b32 s46, s%d, 255' % G_TASK); P('s_lshr_b32 s47, s%d, 8' % G_TASK)
        P('s_lshr_b32 s%d, s46, 3' % G_TT); P('s_lshr_b32 s%d, s%d, 4' % (G_FG, G_TT)); P('s_and_b32 s%d, s%d, 15' % (G_TT, G_TT))
        P('s_lshl_b32 s%d, s%d, 3' % (G_FG, G_FG)); P('s_and_b32 s46, s46, 7'); P('s_add_u32 s%d, s%d, s46' % (G_FG, G_FG))
        P('s_lshl_b32 s47, s47, 4'); P('s_add_u32 s%d, s%d, s47' % (G_FG, G_FG))
        P('s_cmp_ge_u32 s%d, 66' % G_FG); P('s_cbranch_scc1 L_ga_next')
    else:
        P('s_and_b32 s%d, s%d, 15' % (G_TT, G_TASK)); P('s_lshr_b32 s%d, s%d, 4' % (G_FG, G_TASK))
    P('s_lshl_b32 s45, s%d, 2' % G_TT); P('s_add_u32 s45, s45, s%d' % G_W)
    P('s_cmp_ge_u32 s%d, 48' % G_FG); P('s_cbranch_scc1 L_ga_h')
    gk.setup(P)
    P('s_lshr_b32 s46, s%d, 4' % G_FG); P('s_and_b32 s47, s%d, 15' % G_FG)
    P('s_mov_b32 s12, s48'); P('s_mov_b32 s13, s49')
    P('s_cmp_eq_u32 s46, 1'); P('s_cselect_b32 s12, s50, s12'); P('s_cselect_b32 s13, s51, s13')
    P('s_cmp_eq_u32 s46, 2'); P('s_cselect_b32 s12, s52, s12'); P('s_cselect_b32 s13, s53, s13')
    P('s_mov_b32 s14, 0x%x' % (576*8192)); P('s_mov_b32 s15, 0x20000')
    P('s_lshl_b32 s%d, s47, 9' % G_WOFF)
    P('s_mul_i32 s%d, s%d, %d' % (G_T0, G_W, 8*8192)); P('s_add_u32 s%d, s%d, s%d' % (G_WOFF, G_WOFF, G_T0))
    P('s_mul_i32 s%d, s45, 36864' % G_XOFF); P('s_add_u32 s%d, s%d, 0x%x' % (G_XOFF, G_XOFF, WS_XNF))
    P('s_lshl_b32 s%d, s45, 5' % G_DST); P('s_lshl_b32 s%d, s47, 1' % G_T0); P('s_add_u32 s%d, s%d, s%d' % (G_DST, G_DST, G_T0))
    P('s_lshl_b32 s%d, s%d, 13' % (G_DST, G_DST)); P('s_lshl_b32 s%d, s46, 24' % G_T0)
    P('s_add_u32 s%d, s%d, s%d' % (G_DST, G_DST, G_T0)); P('s_add_u32 s%d, s%d, 0x%x' % (G_DST, G_DST, WS_KF))
    if DIAG: P('s_memtime s[64:65]')
    gk.prologue(P); zero_acc(gk, P); gk.first_reads(P)
    P('s_mov_b32 s%d, 9' % G_CNT)
    if DIAG: P('s_memtime s[66:67]'); P('s_waitcnt lgkmcnt(0)')
    P('s_cmp_eq_u32 s46, 1'); P('s_cbranch_scc1 L_ga_v')
    k.straight(P)
    k.loop(gk.body(False, 'L_ga_kq_loop'))
    P = Prog()
    if DIAG: P('s_memtime s[68:69]')
    P('s_waitcnt vmcnt(0)'); epi_kq(gk, P)
    if DIAG:
        P('s_memtime s[70:71]'); P('s_waitcnt lgkmcnt(0)')
        P('s_sub_u32 s66, s66, s64'); P('s_sub_u32 s68, s68, s64'); P('s_sub_u32 s70, s70, s64')
        P('s_lshl_b32 s72, s%d, 4' % G_TASK); P('s_add_u32 s72, s72, 0x%x' % WS_STAT)
        P('v_mov_b32 v2, s66'); P('v_mov_b32 v3, s68'); P('v_mov_b32 v4, s70'); P('v_mov_b32 v5, s64')
        P('buffer_store_dwordx4 v[2:5], off, %s, s72' % WSs)
    P('s_branch L_ga_next'); P.label('L_ga_v'); k.straight(P)
    k.loop(gk.body(True, 'L_ga_v_loop'))
    P = Prog(); P('s_waitcnt vmcnt(0)'); epi_v(gk, P); P('s_branch L_ga_next')
    P.label('L_ga_h')
    gh.setup(P)
    P('s_sub_u32 s47, s%d, 48' % G_FG)
    srd(P, G_WSRD, 54, 55, 576*9216)
    P('s_lshl_b32 s%d, s47, 9' % G_WOFF)
    P('s_mov_b32 s%d, s%d' % (G_T3, G_WOFF))
    P('s_mul_i32 s%d, s%d, %d' % (G_T0, G_W, 8*9216)); P('s_add_u32 s%d, s%d, s%d' % (G_WOFF, G_WOFF, G_T0))
    P('s_mul_i32 s%d, s45, 36864' % G_XOFF); P('s_add_u32 s%d, s%d, 0x%x' % (G_XOFF, G_XOFF, WS_YF))
    P('s_mul_i32 s%d, s45, %d' % (G_DST, 288*1024)); P('s_lshl_b32 s%d, s47, 14' % G_T0)
    P('s_add_u32 s%d, s%d, s%d' % (G_DST, G_DST, G_T0)); P('s_add_u32 s%d, s%d, 0x%x' % (G_DST, G_DST, WS_HF))
    init_bias(gh, P)
    gh.prologue(P); gh.first_reads(P)
    P('s_mov_b32 s%d, 9' % G_CNT)
    k.straight(P)
    k.loop(gh.body(False, 'L_ga_h_loop'))
    P = Prog(); P('s_waitcnt vmcnt(0)'); epi_h(gh, P)
    P.label('L_ga_next')
    P('s_add_u32 s%d, s%d, %d' % (G_TASK, G_TASK, nwg))
    P('s_branch L_ga_task')
    k.straight(P)

A_C = 40
A_MASK = 44
A_BASE = 76; A_S = 77; A_H = 78; A_T = 79
def attn_setup(P):
    P('v_lshlrev_b32 v1, 4, v0')
    P('v_and_b32 v5, 31, v0'); P('v_lshrrev_b32 v6, 5, v0')
    P('v_lshlrev_b32 v2, 7, v6'); P('v_lshl_add_u32 v2, v5, 4, v2')
    P('v_mov_b32 v7, 0x40000000'); P('v_cmp_gt_u32 vcc, 8, v5'); P('v_cndmask_b32 v2, v7, v2, vcc')
    P('v_lshlrev_b32 v3, 11, v6'); P('v_lshl_add_u32 v3, v5, 4, v3')
    P('v_lshlrev_b32 v4, 3, v6'); P('v_lshl_add_u32 v4, v5, 4, v4')
    P('v_lshlrev_b32 v7, 2, v6'); P('v_sub_u32 v7, v5, v7')
    for r in range(16):
        P('v_cmp_le_i32 s[%d:%d], %d, v7' % (A_MASK+2*r, A_MASK+2*r+1, 8*(r >> 2) + (r & 3)))
    P('s_mov_b32 s%d, 0x3e0293ee' % A_C)

def attn_task(P, stflag='', ldflag='', wait_mem=None):
    Q, K, KM, V, VMR = 16, 48, 80, 48, 208
    SX, SM, O = 112, 128, 144
    P('s_lshl_b32 s%d, s%d, 5' % (A_BASE, A_S)); P('s_add_u32 s%d, s%d, s%d' % (A_BASE, A_BASE, A_H))
    P('s_lshl_b32 s%d, s%d, 13' % (A_T, A_BASE))
    for (reg, region) in ((Q, WS_QF), (K, WS_KF)):
        P('s_add_u32 s%d, s%d, 0x%x' % (G_T0, A_T, region)); P('s_add_u32 s%d, s%d, 4096' % (G_T1, G_T0))
        for ks in range(8):
            P('buffer_load_dwordx4 %s, v1, %s, s%d offen offset:%d' % (vr(reg+4*ks,4), WSs, G_T0 if ks < 4 else G_T1, (ks % 4)*1024))
    for ks in range(8):
        P('v_mfma_f32_32x32x16_bf16 %s, %s, %s, %s' % (vr(SX,16), vr(K+4*ks,4), vr(Q+4*ks,4), '0' if ks == 0 else vr(SX,16)))
    P('s_add_u32 s%d, s%d, 0x%x' % (G_T0, A_T, WS_VF)); P('s_add_u32 s%d, s%d, 4096' % (G_T1, G_T0))
    for dt in range(4):
        for G in range(2):
            P('buffer_load_dwordx4 %s, v3, %s, s%d offen offset:%d' % (vr(V+4*(2*dt+G),4), WSs, G_T0 if G == 0 else G_T1, dt*512))
    if wait_mem: wait_mem(P)
    P('s_lshl_b32 s%d, s%d, 11' % (G_T2, A_BASE))
    P('s_add_u32 s%d, s%d, 0x%x' % (G_T0, G_T2, WS_KM))
    for ks in range(8): P('buffer_load_dwordx4 %s, v2, %s, s%d offen offset:%d%s' % (vr(KM+4*ks,4), WSs, G_T0, ks*256, ldflag))
    P('s_add_u32 s%d, s%d, 0x%x' % (G_T0, G_T2, WS_VM))
    for dt in range(4):
        P('buffer_load_dwordx2 %s, v4, %s, s%d offen offset:%d%s' % (vr(VMR+4*dt,2), WSs, G_T0, dt*512, ldflag))
        P('v_mov_b64 %s, 0' % vr(VMR+4*dt+2,2))
    for ks in range(8):
        P('v_mfma_f32_32x32x16_bf16 %s, %s, %s, %s' % (vr(SM,16), vr(KM+4*ks,4), vr(Q+4*ks,4), '0' if ks == 0 else vr(SM,16)))
    P('v_mov_b32 v8, 0xff800000')
    for r in range(16): P('v_cndmask_b32 v%d, v8, v%d, s[%d:%d]' % (SX+r, SX+r, A_MASK+2*r, A_MASK+2*r+1))
    vals = [SX+r for r in range(16)] + [SM+r for r in range(4)]
    P('v_max3_f32 v9, v%d, v%d, v%d' % tuple(vals[0:3]))
    for i in range(3, 19, 2): P('v_max3_f32 v9, v9, v%d, v%d' % (vals[i], vals[i+1]))
    P('v_max_f32 v9, v9, v%d' % vals[19])
    P('v_mov_b32 v10, v9'); P('v_permlane32_swap_b32 v9, v10'); P('v_max_f32 v9, v9, v10')
    P('v_mul_f32 v9, s%d, v9' % A_C)
    for r in vals: P('v_fma_f32 v%d, v%d, s%d, -v9' % (r, r, A_C))
    for r in vals: P('v_exp_f32 v%d, v%d' % (r, r))
    P('v_add_f32 v10, v%d, v%d' % (vals[0], vals[1]))
    for r in vals[2:]: P('v_add_f32 v10, v10, v%d' % r)
    P('v_mov_b32 v11, v10'); P('v_permlane32_swap_b32 v10, v11'); P('v_add_f32 v10, v10, v11')
    P('v_rcp_f32 v10, v10')
    PX, PM = 16, 24
    for G in range(2): pack8(P, PX+4*G, SX+8*G)
    P('v_cvt_pk_bf16_f32 v%d, v%d, v%d' % (PM, SM, SM+1)); P('v_cvt_pk_bf16_f32 v%d, v%d, v%d' % (PM+1, SM+2, SM+3))
    P('v_mov_b64 %s, 0' % vr(PM+2,2))
    for dt in range(4):
        o = vr(O+16*dt,16)
        P('v_mfma_f32_32x32x16_bf16 %s, %s, %s, 0' % (o, vr(V+8*dt,4), vr(PX,4)))
        P('v_mfma_f32_32x32x16_bf16 %s, %s, %s, %s' % (o, vr(V+8*dt+4,4), vr(PX+4,4), o))
        P('v_mfma_f32_32x32x16_bf16 %s, %s, %s, %s' % (o, vr(VMR+4*dt,4), vr(PM,4), o))
    P('s_lshl_b32 s%d, s%d, 18' % (G_T0, A_S)); P('s_lshl_b32 s%d, s%d, 13' % (G_T1, A_H))
    P('s_add_u32 s%d, s%d, s%d' % (G_T0, G_T0, G_T1)); P('s_add_u32 s%d, s%d, 0x%x' % (G_T0, G_T0, WS_OF))
    P('s_add_u32 s%d, s%d, 4096' % (G_T1, G_T0))
    for dt in range(4):
        for i in range(16): P('v_mul_f32 v%d, v%d, v10' % (O+16*dt+i, O+16*dt+i))
        for G in range(2):
            d = 32 + 4*((2*dt+G) % 4)
            pack8(P, d, O+16*dt+8*G)
            j = 2*dt+G
            P('buffer_store_dwordx4 %s, v1, %s, s%d offen offset:%d%s' % (vr(d,4), WSs, G_T0 if j < 4 else G_T1, (j % 4)*1024, stflag))

def attn_kernel(k, end, nwg=256):
    P = Prog()
    std_entry(P, nwg, end)
    P('s_waitcnt lgkmcnt(0)')
    attn_setup(P)
    P('s_lshl_b32 s%d, s2, 2' % G_TASK); P('s_add_u32 s%d, s%d, s%d' % (G_TASK, G_TASK, G_W))
    k.straight(P)
    P = Prog()
    P.label('L_at_task')
    P('s_lshr_b32 s%d, s%d, 5' % (A_S, G_TASK)); P('s_and_b32 s%d, s%d, 31' % (A_H, G_TASK))
    attn_task(P)
    P('s_add_u32 s%d, s%d, %d' % (G_TASK, G_TASK, nwg*4))
    P('s_cmp_lt_u32 s%d, 2048' % G_TASK)
    P('s_cbranch_scc1 L_at_task')
    k.loop(P)
    P = Prog(); P('s_waitcnt vmcnt(0)'); k.straight(P)

def epi_final(g, P, XS, OS, BS):
    t = g.TMP
    P('v_and_b32 v%d, 31, v0' % t); P('s_lshl_b32 s%d, s45, 5' % G_T0); P('v_add_u32 v%d, s%d, v%d' % (t, G_T0, t))
    P('s_movk_i32 s%d, 1152' % G_T0); P('v_mul_lo_u32 v%d, v%d, s%d' % (t, t, G_T0))
    P('v_lshrrev_b32 v%d, 5, v0' % (t+1)); P('v_lshlrev_b32 v%d, 4, v%d' % (t+1, t+1))
    P('v_add_u32 v%d, v%d, v%d' % (t, t, t+1))
    for ft in range(g.NT):
        for qp in range(2):
            a = g.ACC + 16*ft + 8*qp
            off = ft*64 + qp*32
            P('buffer_load_dwordx4 %s, v%d, %s, s%d offen offset:%d' % (vr(t+2,4), t, XS, G_DST, off))
            P('buffer_load_dwordx4 %s, v%d, %s, s%d offen offset:%d' % (vr(t+6,4), t+1, BS, G_DST, off))
            for i in range(4): P('v_permlane32_swap_b32 v%d, v%d' % (a+i, a+4+i))
            for i in range(4):
                for src in (t+2+i, t+6+i):
                    P('v_lshlrev_b32 v%d, 16, v%d' % (t+10, src)); P('v_add_f32 v%d, v%d, v%d' % (a+2*i, a+2*i, t+10))
                    P('v_and_b32 v%d, 0xffff0000, v%d' % (t+11, src)); P('v_add_f32 v%d, v%d, v%d' % (a+2*i+1, a+2*i+1, t+11))
            pack8(P, t+12, a)
            P('buffer_store_dwordx4 %s, v%d, %s, s%d offen offset:%d' % (vr(t+12,4), t, OS, G_DST, off))

def final_kernel(k, end, nwg=96):
    g = Gemm(3, 4, 1152, 'fin'); g.stflag = ''
    P = Prog()
    std_entry(P, nwg, end)
    load_ptrs(P, ['w2', 'Wo', 'x', 'b2', 'out'], 48)
    P('s_waitcnt lgkmcnt(0)')
    srd(P, G_BSRD, 52, 53, 2048*1152); srd(P, G_OSRD, 56, 57, 2048*1152); srd(P, 60, 54, 55, 1152)
    g.setup(P)
    P('s_and_b32 s%d, s2, 15' % G_TT); P('s_lshr_b32 s%d, s2, 4' % G_FG)
    P('s_lshl_b32 s45, s%d, 2' % G_TT); P('s_add_u32 s45, s45, s%d' % G_W)
    P('s_mul_i32 s%d, s%d, 192' % (G_DST, G_FG))
    zero_acc(g, P)
    k.straight(P)
    for part, (ptr, krows, region, ksteps) in enumerate(((48, 4608, WS_HF, 288), (50, 4096, WS_OF, 256))):
        P = Prog()
        srd(P, G_WSRD, ptr, ptr+1, krows*1152)
        P('s_mul_i32 s%d, s%d, %d' % (G_WOFF, G_W, 16*1152)); P('s_add_u32 s%d, s%d, s%d' % (G_WOFF, G_WOFF, G_DST))
        P('s_mul_i32 s%d, s45, %d' % (G_XOFF, ksteps*1024)); P('s_add_u32 s%d, s%d, 0x%x' % (G_XOFF, G_XOFF, region))
        P('s_waitcnt vmcnt(0) lgkmcnt(0)')
        g.prologue(P); g.first_reads(P)
        P('s_mov_b32 s%d, %d' % (G_CNT, ksteps // 8))
        k.straight(P)
        k.loop(g.body(False, 'L_fin_loop%d' % part))
    P = Prog()
    P('s_waitcnt vmcnt(0) lgkmcnt(0)')
    epi_final(g, P, 's[%d:%d]' % (G_BSRD, G_BSRD+3), 's[%d:%d]' % (G_OSRD, G_OSRD+3), 's[60:63]')
    P('s_waitcnt vmcnt(0)')
    k.straight(P)
```

```python
from asmlib import *
from common import *
from gemm2 import *
import workers as W1
from workers import srd, load_ptrs, std_entry

DIAG = False
S_TT = 43; S_FG = 44; S_SEG = 45; G_TASK = 42
P_WK, P_WV, P_WQ, P_W1, P_B1, P_W2 = 48, 50, 52, 54, 56, 58
gA = Gemm(2, 4, 8192, 'qkv'); gH = Gemm(2, 4, 9216, 'h'); gM = Gemm(2, 3, 1152, 'm2')

def seg_of_wave(P):
    P('s_lshl_b32 s%d, s%d, 3' % (S_SEG, S_TT)); P('s_lshl_b32 s%d, s%d, 1' % (G_T0, G_W)); P('s_add_u32 s%d, s%d, s%d' % (S_SEG, S_SEG, G_T0))

def task_kvq(k, pfx, nxt):
    g = gA
    P = Prog()
    seg_of_wave(P)
    g.setup(P)
    P('s_lshr_b32 s46, s%d, 5' % S_FG); P('s_and_b32 s47, s%d, 31' % S_FG)
    P('s_mov_b32 s12, s%d' % P_WK); P('s_mov_b32 s13, s%d' % (P_WK+1))
    P('s_cmp_eq_u32 s46, 1'); P('s_cselect_b32 s12, s%d, s12' % P_WV); P('s_cselect_b32 s13, s%d, s13' % (P_WV+1))
    P('s_cmp_eq_u32 s46, 2'); P('s_cselect_b32 s12, s%d, s12' % P_WQ); P('s_cselect_b32 s13, s%d, s13' % (P_WQ+1))
    P('s_mov_b32 s14, 0x%x' % (576*8192)); P('s_mov_b32 s15, 0x20000')
    P('s_lshl_b32 s%d, s47, 8' % G_WOFF)
    P('s_mul_i32 s%d, s%d, %d' % (G_T0, G_W, 8*8192)); P('s_add_u32 s%d, s%d, s%d' % (G_WOFF, G_WOFF, G_T0))
    P('s_mul_i32 s%d, s%d, 36864' % (G_XOFF, S_SEG)); P('s_add_u32 s%d, s%d, 0x%x' % (G_XOFF, G_XOFF, WS_XNF))
    P('s_mov_b32 s%d, 36864' % G_XGS)
    P('s_lshl_b32 s%d, s%d, 5' % (G_DST, S_SEG)); P('s_add_u32 s%d, s%d, s47' % (G_DST, G_DST))
    P('s_lshl_b32 s%d, s%d, 13' % (G_DST, G_DST)); P('s_lshl_b32 s%d, s46, 24' % G_T0)
    P('s_add_u32 s%d, s%d, s%d' % (G_DST, G_DST, G_T0)); P('s_add_u32 s%d, s%d, 0x%x' % (G_DST, G_DST, WS_KF))
    if DIAG: P('s_memtime s[64:65]'); P('s_memrealtime s[74:75]')
    g.prologue(P); zero_acc(g, P); g.first_reads(P)
    P('s_mov_b32 s%d, 9' % G_CNT)
    if DIAG: P('s_memtime s[66:67]'); P('s_waitcnt lgkmcnt(0)')
    P('s_cmp_eq_u32 s46, 1'); P('s_cbranch_scc1 %s_v' % pfx)
    k.straight(P)
    k.loop(g.body(False, pfx + '_kq_loop'))
    P = Prog()
    if DIAG: P('s_memtime s[68:69]')
    epi_kq(g, P)
    if DIAG:
        P('s_memtime s[70:71]'); P('s_memrealtime s[76:77]'); P('s_waitcnt lgkmcnt(0)')
        P('s_sub_u32 s66, s66, s64'); P('s_sub_u32 s68, s68, s64'); P('s_sub_u32 s70, s70, s64'); P('s_sub_u32 s76, s76, s74')
        P('s_lshl_b32 s72, s%d, 4' % G_TASK); P('s_add_u32 s72, s72, 0x%x' % WS_STAT)
        P('v_mov_b32 v2, s66'); P('v_mov_b32 v3, s68'); P('v_mov_b32 v4, s70'); P('v_mov_b32 v5, s76')
        P('buffer_store_dwordx4 v[2:5], off, %s, s72' % WSs)
    P('s_branch %s' % nxt); P.label(pfx + '_v'); k.straight(P)
    k.loop(g.body(True, pfx + '_v_loop'))
    P = Prog(); epi_v(g, P); P('s_branch %s' % nxt); k.straight(P)

def task_h(k, pfx, nxt):
    g = gH
    P = Prog()
    seg_of_wave(P)
    g.setup(P)
    srd(P, G_WSRD, P_W1, P_W1+1, 576*9216)
    srd(P, G_BSRD, P_B1, P_B1+1, 4608*2)
    P('s_lshl_b32 s%d, s%d, 8' % (G_WOFF, S_FG))
    P('s_mov_b32 s%d, s%d' % (G_T3, G_WOFF))
    P('s_mul_i32 s%d, s%d, %d' % (G_T0, G_W, 8*9216)); P('s_add_u32 s%d, s%d, s%d' % (G_WOFF, G_WOFF, G_T0))
    P('s_mul_i32 s%d, s%d, 36864' % (G_XOFF, S_SEG)); P('s_add_u32 s%d, s%d, 0x%x' % (G_XOFF, G_XOFF, WS_YF))
    P('s_mov_b32 s%d, 36864' % G_XGS)
    P('s_mul_i32 s%d, s%d, %d' % (G_DST, S_SEG, 288*1024)); P('s_lshl_b32 s%d, s%d, 13' % (G_T0, S_FG))
    P('s_add_u32 s%d, s%d, s%d' % (G_DST, G_DST, G_T0)); P('s_add_u32 s%d, s%d, 0x%x' % (G_DST, G_DST, WS_HF))
    g.prologue(P)
    init_bias(g, P)
    g.first_reads_after_bias = True
    P('s_waitcnt vmcnt(0)')
    P('s_barrier'); g.addr_set(P, 0)
    for q in range(3): g.wread(P, 0, q)
    P('s_mov_b32 s%d, 9' % G_CNT)
    k.straight(P)
    k.loop(g.body(False, pfx + '_h_loop'))
    P = Prog(); epi_h(g, P); P('s_branch %s' % nxt); k.straight(P)

def task_m2(k, pfx, nxt):
    g = gM
    P = Prog()
    seg_of_wave(P)
    g.setup(P)
    srd(P, G_WSRD, P_W2, P_W2+1, 4608*1152)
    P('s_mul_i32 s46, s%d, 43' % S_FG); P('s_lshr_b32 s46, s46, 8')
    P('s_mul_i32 s47, s46, 6'); P('s_sub_u32 s47, s%d, s47' % S_FG)
    P('s_mul_i32 s%d, s46, %d' % (G_WOFF, 1152*1152)); P('s_mul_i32 s%d, s47, 192' % G_T0); P('s_add_u32 s%d, s%d, s%d' % (G_WOFF, G_WOFF, G_T0))
    P('s_mul_i32 s%d, s%d, %d' % (G_T0, G_W, 8*1152)); P('s_add_u32 s%d, s%d, s%d' % (G_WOFF, G_WOFF, G_T0))
    P('s_mul_i32 s%d, s%d, %d' % (G_XOFF, S_SEG, 288*1024)); P('s_mul_i32 s%d, s46, %d' % (G_T0, 72*1024))
    P('s_add_u32 s%d, s%d, s%d' % (G_XOFF, G_XOFF, G_T0)); P('s_add_u32 s%d, s%d, 0x%x' % (G_XOFF, G_XOFF, WS_HF))
    P('s_mov_b32 s%d, %d' % (G_XGS, 288*1024))
    P('s_lshl_b32 s%d, s46, 6' % G_DST); P('s_add_u32 s%d, s%d, s%d' % (G_DST, G_DST, S_SEG)); P('s_mul_i32 s%d, s%d, 18' % (G_DST, G_DST))
    P('s_mul_i32 s%d, s47, 3' % G_T0); P('s_add_u32 s%d, s%d, s%d' % (G_DST, G_DST, G_T0)); P('s_lshl_b32 s%d, s%d, 12' % (G_DST, G_DST))
    P('s_add_u32 s%d, s%d, 0x%x' % (G_DST, G_DST, WS_BASE))
    g.prologue(P); zero_acc(g, P); g.first_reads(P)
    P('s_mov_b32 s%d, 18' % G_CNT)
    k.straight(P)
    k.loop(g.body(False, pfx + '_m2_loop'))
    P = Prog(); epi_base(g, P); P('s_branch %s' % nxt); k.straight(P)

def common_entry(P, nwg, end):
    std_entry(P, nwg, end)
    load_ptrs(P, ['Wk', 'Wv', 'Wq', 'w1', 'b1', 'w2'], 48)
    P('s_waitcnt lgkmcnt(0)')
    P('s_mov_b32 s%d, 0xc0135761' % G_C0); P('s_mov_b32 s%d, 0xbdd2d3e7' % G_C1)

def gemma2_kernel(k, end, nwg=256):
    P = Prog(); common_entry(P, nwg, end); P('s_mov_b32 s%d, s2' % G_TASK); k.straight(P)
    P = Prog()
    P.label('L_g2_task')
    P('s_cmp_ge_u32 s%d, %d' % (G_TASK, 256*5)); P('s_cbranch_scc1 %s' % end)
    P('s_and_b32 s46, s%d, 255' % G_TASK); P('s_lshr_b32 s47, s%d, 8' % G_TASK)
    P('s_lshr_b32 s%d, s46, 3' % S_TT); P('s_lshr_b32 s%d, s%d, 3' % (S_FG, S_TT)); P('s_and_b32 s%d, s%d, 7' % (S_TT, S_TT))
    P('s_lshl_b32 s%d, s%d, 3' % (S_FG, S_FG)); P('s_and_b32 s46, s46, 7'); P('s_add_u32 s%d, s%d, s46' % (S_FG, S_FG))
    P('s_lshl_b32 s47, s47, 5'); P('s_add_u32 s%d, s%d, s47' % (S_FG, S_FG))
    P('s_cmp_ge_u32 s%d, 132' % S_FG); P('s_cbranch_scc1 L_g2_next')
    P('s_cmp_ge_u32 s%d, 96' % S_FG); P('s_cbranch_scc1 L_g2_h')
    k.straight(P)
    task_kvq(k, 'L_g2', 'L_g2_next')
    P = Prog(); P.label('L_g2_h'); P('s_sub_u32 s%d, s%d, 96' % (S_FG, S_FG)); k.straight(P)
    task_h(k, 'L_g2', 'L_g2_next')
    P = Prog(); P.label('L_g2_next'); P('s_add_u32 s%d, s%d, %d' % (G_TASK, G_TASK, nwg)); P('s_branch L_g2_task'); k.straight(P)

def m2_kernel(k, end, nwg=192):
    P = Prog(); common_entry(P, nwg, end)
    P('s_and_b32 s%d, s2, 7' % S_TT); P('s_lshr_b32 s%d, s2, 3' % S_FG)
    k.straight(P)
    task_m2(k, 'L_m2', end)
```

```python
import sys
from asmlib import *
from common import *
import chain2 as C
import workers as W1
import workers2 as W2
import gemm2 as G2
from gemm2 import vr, WSs, G_W, G_T0, G_T1, G_T2, G_T3, G_BSRD, G_OSRD, G_DST
from workers import srd
from gen_chain_test import header, kdesc

F_QUEUE = 0; F_LN = 128*1; F_KV = 128*9; F_Q = 128*17; F_H = 128*25; F_M2 = 128*33; F_PROG = 128*41; F_O = 128*73
F_ZERO = 20480
FL = WS_FLAG
BIGTMO = 400000
S_X = 4; S_TK = 5; S_G = 6; S_RANK = 7
S_DBG = 42
OPT = dict(force_abnormal=0)
_uid = [0]
def uid(p):
    _uid[0] += 1; return '%s_%d' % (p, _uid[0])

def poll_ge(P, soff, target, vtmp=2, stmp=G_T0, scnt=G_T1, tgt_is_sgpr=False, x4min=False, sleep=4):
    L = uid('L_pg'); D = L + '_d'
    P('s_mov_b32 s%d, %d' % (scnt, BIGTMO))
    P.label(L)
    if x4min:
        P('buffer_load_dwordx4 %s, off, %s, s%d sc1' % (vr(vtmp,4), WSs, soff))
        P('s_waitcnt vmcnt(0)')
        P('v_min_u32 v%d, v%d, v%d' % (vtmp, vtmp, vtmp+1)); P('v_min_u32 v%d, v%d, v%d' % (vtmp+2, vtmp+2, vtmp+3)); P('v_min_u32 v%d, v%d, v%d' % (vtmp, vtmp, vtmp+2))
    else:
        P('buffer_load_dword v%d, off, %s, s%d sc1' % (vtmp, WSs, soff))
        P('s_waitcnt vmcnt(0)')
    P('s_nop 0')
    P('v_readfirstlane_b32 s%d, v%d' % (stmp, vtmp))
    P('s_cmp_ge_u32 s%d, %s' % (stmp, ('s%d' % target) if tgt_is_sgpr else str(target)))
    P('s_cbranch_scc1 %s' % D)
    if sleep: P('s_sleep %d' % sleep)
    P('s_sub_u32 s%d, s%d, 1' % (scnt, scnt)); P('s_cmp_lg_u32 s%d, 0' % scnt); P('s_cbranch_scc1 %s' % L)
    P.label(D)

def signal(P, soff, vtmp=2):
    L = uid('L_sig')
    P('s_waitcnt vmcnt(0)'); P('s_barrier')
    P('s_cmp_eq_u32 s%d, 0' % G_W); P('s_cbranch_scc0 %s' % L)
    P('v_mov_b32 v%d, 1' % vtmp); P('s_mov_b64 exec, 1')
    P('buffer_atomic_add v%d, off, %s, s%d' % (vtmp, WSs, soff))
    P('s_mov_b64 exec, -1')
    P.label(L)

def bootstrap(k):
    P = Prog()
    P('s_cmp_ge_u32 s2, 256'); P('s_cbranch_scc1 L_end')
    P('s_load_dwordx2 s[%d:%d], s[0:1], %d' % (S_DBG, S_DBG+1, KA['dbg']))
    P('s_load_dwordx2 s[8:9], s[0:1], %d' % KA['ws'])
    P('s_getreg_b32 s%d, hwreg(HW_REG_XCC_ID, 0, 4)' % S_X)
    P('v_lshrrev_b32 v1, 6, v0'); P('v_and_b32 v0, 63, v0'); P('s_nop 0')
    P('v_readfirstlane_b32 s%d, v1' % G_W)
    P('s_waitcnt lgkmcnt(0)')
    P('s_mov_b32 s10, 0x%x' % WS_SIZE); P('s_mov_b32 s11, 0x20000')
    P('s_cmp_eq_u32 s%d, 0' % G_W); P('s_cbranch_scc0 L_bs1')
    P('s_lshl_b32 s5, s%d, 2' % S_X); P('s_add_u32 s5, s5, 64')
    P('v_mov_b32 v2, s5'); P('v_mov_b32 v3, 1'); P('v_mov_b32 v6, 36')
    P('s_mov_b64 exec, 1')
    P('global_atomic_add v4, v2, v3, s[%d:%d] sc0' % (S_DBG, S_DBG+1))
    P('global_atomic_add v5, v6, v3, s[%d:%d] sc0' % (S_DBG, S_DBG+1))
    P('s_waitcnt vmcnt(0)'); P('v_mov_b32 v2, 0'); P('ds_write_b64 v2, v[4:5]'); P('s_waitcnt lgkmcnt(0)')
    P('s_mov_b64 exec, -1')
    P.label('L_bs1')
    P('s_barrier'); P('v_mov_b32 v2, 0'); P('ds_read_b64 v[4:5], v2'); P('s_waitcnt lgkmcnt(0)')
    P('v_readfirstlane_b32 s%d, v4' % S_TK); P('v_readfirstlane_b32 s%d, v5' % S_G)
    P('s_barrier')
    P('s_cmp_eq_u32 s%d, 0' % S_G); P('s_cbranch_scc0 L_bs2')
    P('s_lshl_b32 s12, s%d, 6' % G_W); P('v_add_u32 v2, s12, v0'); P('v_lshlrev_b32 v2, 4, v2')
    P('v_mov_b64 v[4:5], 0'); P('v_mov_b64 v[6:7], 0')
    for i in range(F_ZERO // 4096):
        P('s_mov_b32 s12, 0x%x' % (FL + i*4096)); P('buffer_store_dwordx4 v[4:7], v2, %s, s12 offen sc1' % WSs)
    P('s_waitcnt vmcnt(0)'); P('s_barrier')
    P.label('L_bs2')
    P('s_cmp_eq_u32 s%d, 0' % G_W); P('s_cbranch_scc0 L_bs3')
    P('v_mov_b32 v2, 32'); P('v_mov_b32 v3, 1'); P('s_mov_b64 exec, 1')
    P('global_atomic_add v2, v3, s[%d:%d]' % (S_DBG, S_DBG+1))
    P('s_mov_b64 exec, -1')
    P.label('L_bs3')
    P('s_cmp_eq_u32 s%d, 0' % S_X); P('s_cbranch_scc0 L_decide')
    P('s_cmp_lt_u32 s%d, 32' % S_TK); P('s_cbranch_scc0 L_decide')
    P('s_mov_b32 s%d, s%d' % (C.S_H, S_TK))
    P('s_branch L_chain_fast')
    k.straight(P)

def decision(P, sres):
    L = uid('L_dec')
    P('s_mov_b32 s13, %d' % BIGTMO)
    P.label(L)
    P('v_mov_b32 v2, 32'); P('global_load_dword v3, v2, s[%d:%d] sc1' % (S_DBG, S_DBG+1)); P('s_waitcnt vmcnt(0)')
    P('v_readfirstlane_b32 s12, v3'); P('s_cmp_ge_u32 s12, 256'); P('s_cbranch_scc1 %s_d' % L)
    P('s_sleep 1'); P('s_sub_u32 s13, s13, 1'); P('s_cmp_lg_u32 s13, 0'); P('s_cbranch_scc1 %s' % L)
    P.label(L + '_d')
    P('v_and_b32 v2, 7, v0'); P('v_lshlrev_b32 v2, 2, v2'); P('global_load_dword v3, v2, s[%d:%d] offset:64 sc1' % (S_DBG, S_DBG+1)); P('s_waitcnt vmcnt(0)')
    P('v_cmp_ne_u32 vcc, 32, v3'); P('s_nop 1')
    P('s_cmp_eq_u64 vcc, 0'); P('s_cselect_b32 s%d, 1, 0' % sres)
    if OPT['force_abnormal']: P('s_mov_b32 s%d, 0' % sres)

def chain_ptrs(P):
    for i, n in enumerate(('Wq', 'Wk', 'Wv', 'Wo', 'mem0')): P('s_load_dwordx2 s[%d:%d], s[0:1], %d' % (C.S_PTR+2*i, C.S_PTR+2*i+1, KA[n]))
    P('s_waitcnt lgkmcnt(0)')

def chain_role(k, fast):
    st = '' if fast else ' sc1'
    sfx = 'f' if fast else 's'
    P = Prog(); P.label('L_chain_fast' if fast else 'L_chain_slow'); chain_ptrs(P); k.straight(P)
    C.load_weights(k)
    if fast:
        P = Prog(); decision(P, 14); P('s_cmp_eq_u32 s14, 1'); P('s_cbranch_scc0 L_abnormal'); k.straight(P)
    C.lane_setup(k)
    C.initial_m(k)
    C.poison_init(k, st)
    P = Prog()
    P('s_lshl_b32 s%d, s%d, 7' % (C.S_PROG, C.S_H)); P('s_lshl_b32 s%d, s%d, 2' % (C.S_T0, C.S_W)); P('s_add_u32 s%d, s%d, s%d' % (C.S_PROG, C.S_PROG, C.S_T0))
    P('s_add_u32 s%d, s%d, 0x%x' % (C.S_PROG, C.S_PROG, FL + F_PROG))
    C.pre_step(P)
    P('s_waitcnt vmcnt(0) lgkmcnt(0)'); P('s_barrier')
    L = 'L_cb_%s' % sfx
    P('s_cmp_eq_u32 s%d, 0' % C.S_W); P('s_cbranch_scc0 %s_wait' % L)
    P('v_mov_b32 v20, 40'); P('v_mov_b32 v21, 1'); P('s_mov_b64 exec, 1')
    P('global_atomic_add v20, v21, s[%d:%d]' % (S_DBG, S_DBG+1))
    P('s_mov_b64 exec, -1')
    P('s_mov_b32 s%d, %d' % (C.S_TMO, BIGTMO))
    P.label(L + '_poll')
    P('v_mov_b32 v20, 40'); P('global_load_dword v22, v20, s[%d:%d] sc1' % (S_DBG, S_DBG+1)); P('s_waitcnt vmcnt(0)')
    P('v_readfirstlane_b32 s%d, v22' % C.S_T0); P('s_cmp_ge_u32 s%d, 32' % C.S_T0); P('s_cbranch_scc1 %s_ok' % L)
    P('s_sub_u32 s%d, s%d, 1' % (C.S_TMO, C.S_TMO)); P('s_cmp_lg_u32 s%d, 0' % C.S_TMO); P('s_cbranch_scc1 %s_poll' % L)
    P.label(L + '_ok')
    P('s_mov_b32 s%d, 0x%x' % (C.S_T2, FL + F_KV))
    poll_ge(P, C.S_T2, 64, vtmp=22, stmp=C.S_T0, scnt=C.S_TMO, sleep=2)
    P.label(L + '_wait')
    P('s_barrier')
    k.straight(P)
    def kvwait(P):
        Lx = uid('L_kvw')
        P('s_and_b32 s%d, s%d, 7' % (C.S_T0, C.S_STEP)); P('s_or_b32 s%d, s%d, s%d' % (C.S_T0, C.S_T0, C.S_W))
        P('s_cmp_eq_u32 s%d, 0' % C.S_T0); P('s_cbranch_scc0 %s' % Lx)
        P('s_lshl_b32 s%d, s%d, 4' % (C.S_T3, C.S_STEP)); P('s_add_u32 s%d, s%d, 0x%x' % (C.S_T3, C.S_T3, FL + F_KV))
        poll_ge(P, C.S_T3, 64, vtmp=22, stmp=C.S_T0, scnt=C.S_TMO, sleep=0)
        P.label(Lx)
    def publish(P):
        P('s_sub_u32 s%d, s%d, 1' % (C.S_T0, C.S_STEP)); P('s_max_i32 s%d, s%d, 0' % (C.S_T0, C.S_T0))
        P('v_mov_b32 v%d, s%d' % (C.V_VMH, C.S_T0))
        P('buffer_store_dword v%d, off, %s, s%d sc1' % (C.V_VMH, C.WS, C.S_PROG))
    body = C.main_loop(k, st=st, kvwait=kvwait, publish=publish)
    txt = [i.text for i in body.items]
    B = Prog()
    for t in txt:
        t2 = t
        for lab in ('L_chain_loop', 'L_red', 'L_rdel', 'L_nored', 'L_gat', 'L_gdel', 'L_chain_last', 'L_chain_done', 'L_nopf'):
            t2 = t2.replace(lab, lab + sfx) if lab in t2 else t2
        B(t2)
    k.loop(B)
    P = Prog()
    P.label('L_chain_done' + sfx)
    P('s_waitcnt vmcnt(0)')
    P('v_mov_b32 v20, 64'); P('buffer_store_dword v20, off, %s, s%d sc1' % (C.WS, C.S_PROG))
    P('s_cmp_eq_u32 s%d, 0' % C.S_ERR); P('s_cbranch_scc1 L_cd_%s' % sfx)
    P('v_mov_b32 v20, 48'); P('v_mov_b32 v21, s%d' % C.S_ERR); P('global_atomic_or v20, v21, s[%d:%d]' % (S_DBG, S_DBG+1))
    P.label('L_cd_%s' % sfx)
    P('s_waitcnt vmcnt(0)')
    P('s_branch L_end')
    k.straight(P); k.reset_state()

def worker_dispatch(k):
    P = Prog()
    P.label('L_decide')
    decision(P, 14)
    P('s_cmp_eq_u32 s14, 1'); P('s_cbranch_scc0 L_abnormal')
    P('s_sub_u32 s%d, s%d, 1' % (S_RANK, S_X)); P('s_lshl_b32 s%d, s%d, 5' % (S_RANK, S_RANK)); P('s_add_u32 s%d, s%d, s%d' % (S_RANK, S_RANK, S_TK))
    P('s_branch L_worker')
    P.label('L_abnormal')
    P('s_waitcnt vmcnt(0) lgkmcnt(0)'); P('s_barrier')
    P('s_cmp_lt_u32 s%d, 32' % S_G); P('s_cbranch_scc0 L_abn2')
    P('s_mov_b32 s%d, s%d' % (C.S_H, S_G)); P('s_branch L_chain_slow')
    P.label('L_abn2')
    P('s_sub_u32 s%d, s%d, 32' % (S_RANK, S_G))
    P.label('L_worker')
    W1.load_ptrs(P, ['Wk', 'Wv', 'Wq', 'w1', 'b1', 'w2'], 48)
    W1.load_ptrs(P, ['x', 'b2', 'out', 'Wo'], 64)
    P('s_waitcnt lgkmcnt(0)')
    P('s_mov_b32 s%d, 0xc0135761' % G2.G_C0); P('s_mov_b32 s%d, 0xbdd2d3e7' % G2.G_C1)
    P('s_sub_u32 s46, s%d, 96' % S_RANK); P('s_cmp_lt_u32 s46, 64'); P('s_cbranch_scc0 L_noln')
    srd(P, G_BSRD, 64, 65, 2048*1152)
    P('s_lshl_b32 s47, s46, 5'); P('s_lshl_b32 s45, s%d, 3' % G_W); P('s_add_u32 s47, s47, s45')
    W1.ln_rows(P, 47, ' sc1')
    P('s_lshr_b32 s46, s46, 3'); P('s_lshl_b32 s46, s46, 7'); P('s_add_u32 s46, s46, 0x%x' % (FL + F_LN))
    signal(P, 46)
    P.label('L_noln')
    P('s_cmp_lt_u32 s%d, 18' % S_RANK); P('s_cbranch_scc1 L_w6a')
    P('s_sub_u32 s46, s%d, 32' % S_RANK); P('s_cmp_lt_u32 s46, 18'); P('s_cbranch_scc1 L_w6b')
    P('s_sub_u32 s46, s%d, 64' % S_RANK); P('s_cmp_lt_u32 s46, 16'); P('s_cbranch_scc1 L_w5')
    P('s_branch L_gemm')
    k.straight(P); k.reset_state()

def gemm_role(k):
    QI = 60; QN = 61
    P = Prog()
    P.label('L_gemm')
    def pull(dst_v):
        P('s_mov_b32 s62, 0x%x' % (FL + F_QUEUE))
        P('v_mov_b32 v%d, 1' % dst_v); P('s_mov_b64 exec, 1')
        P('buffer_atomic_add v%d, off, %s, s62 sc0' % (dst_v, WSs))
        P('s_mov_b64 exec, -1')
    P.label('L_gm_next')
    P('s_waitcnt vmcnt(0) lgkmcnt(0)'); P('s_barrier')
    P('s_cmp_eq_u32 s%d, 0' % G_W); P('s_cbranch_scc0 L_gm_b')
    pull(2)
    P('s_waitcnt vmcnt(0)'); P('v_mov_b32 v3, 0x%x' % 65536); P('s_mov_b64 exec, 1'); P('ds_write_b32 v3, v2'); P('s_waitcnt lgkmcnt(0)'); P('s_mov_b64 exec, -1')
    P.label('L_gm_b')
    P('s_barrier'); P('v_mov_b32 v3, 0x%x' % 65536); P('ds_read_b32 v2, v3'); P('s_waitcnt lgkmcnt(0)')
    P('v_readfirstlane_b32 s%d, v2' % QI)
    TT, FG = W2.S_TT, W2.S_FG
    P('s_cmp_ge_u32 s%d, %d' % (QI, 264 + 6*156 + 48)); P('s_cbranch_scc1 L_end_drain')
    P('s_cmp_lt_u32 s%d, 264' % QI); P('s_cbranch_scc0 L_gm_d2')
    P('s_cmp_ge_u32 s%d, 132' % QI); P('s_cselect_b32 s%d, 1, 0' % TT); P('s_mul_i32 s46, s%d, 132' % TT); P('s_sub_u32 s%d, s%d, s46' % (FG, QI))
    P('s_branch L_gm_kvqh')
    P.label('L_gm_d2')
    P('s_sub_u32 s46, s%d, 264' % QI)
    P('s_cmp_ge_u32 s46, %d' % (6*156)); P('s_cbranch_scc1 L_gm_d3')
    P('s_mul_i32 s47, s46, 26887'); P('s_lshr_b32 s47, s47, 22')
    P('s_mul_i32 s45, s47, 156'); P('s_sub_u32 s45, s46, s45')
    P('s_cmp_lt_u32 s45, 24'); P('s_cbranch_scc0 L_gm_d2b')
    P('s_mov_b32 s%d, s47' % TT); P('s_mov_b32 s%d, s45' % FG); P('s_branch L_gm_m2')
    P.label('L_gm_d2b')
    P('s_add_u32 s%d, s47, 2' % TT); P('s_sub_u32 s%d, s45, 24' % FG); P('s_branch L_gm_kvqh')
    P.label('L_gm_d3')
    P('s_sub_u32 s46, s46, %d' % (6*156)); P('s_cmp_ge_u32 s46, 24'); P('s_cselect_b32 s47, 1, 0'); P('s_add_u32 s%d, s47, 6' % TT)
    P('s_mul_i32 s47, s47, 24'); P('s_sub_u32 s%d, s46, s47' % FG)
    P.label('L_gm_m2')
    P('s_lshl_b32 s63, s%d, 7' % TT); P('s_add_u32 s46, s63, 0x%x' % (FL + F_H))
    poll_ge(P, 46, 36)
    P('s_add_u32 s63, s63, 0x%x' % (FL + F_M2))
    P('s_branch L_gm_run_m2')
    P.label('L_gm_kvqh')
    P('s_lshl_b32 s63, s%d, 7' % TT); P('s_add_u32 s46, s63, 0x%x' % (FL + F_LN))
    poll_ge(P, 46, 8)
    P('s_cmp_ge_u32 s%d, 96' % FG); P('s_cbranch_scc1 L_gm_h')
    P('s_cmp_ge_u32 s%d, 64' % FG); P('s_cselect_b32 s46, %d, %d' % (F_Q, F_Q)) if False else None
    P('s_mov_b32 s46, 0x%x' % (FL + F_KV)); P('s_cmp_ge_u32 s%d, 64' % FG); P('s_cselect_b32 s46, 0x%x, s46' % (FL + F_Q))
    P('s_add_u32 s63, s63, s46')
    k.straight(P)
    W2.task_kvq(k, 'L_gk', 'L_gm_sig')
    P = Prog(); P.label('L_gm_h'); P('s_sub_u32 s%d, s%d, 96' % (FG, FG)); P('s_add_u32 s63, s63, 0x%x' % (FL + F_H)); k.straight(P)
    W2.task_h(k, 'L_gh', 'L_gm_sig')
    P = Prog(); P.label('L_gm_run_m2'); k.straight(P)
    W2.task_m2(k, 'L_g2m', 'L_gm_sig')
    P = Prog(); P.label('L_gm_sig'); signal(P, 63); P('s_branch L_gm_next')
    P.label('L_end_drain'); P('s_waitcnt vmcnt(0)'); P('s_branch L_end')
    k.straight(P); k.reset_state()

def w5_role(k):
    P = Prog()
    P.label('L_w5')
    P('s_lshl_b32 s47, s46, 2'); P('s_add_u32 s47, s47, s%d' % G_W); P('s_and_b32 s%d, s47, 31' % W1.A_H); P('s_lshr_b32 s%d, s46, 3' % W1.A_S)
    W1.attn_setup(P)
    P('s_lshl_b32 s80, s%d, 7' % W1.A_H); P('s_add_u32 s80, s80, 0x%x' % (FL + F_PROG))
    k.straight(P)
    P = Prog()
    P.label('L_w5_loop')
    P('s_and_b32 s81, s%d, 6' % W1.A_S); P('s_cmp_eq_u32 s81, 0'); P('s_cbranch_scc0 L_w5_go')
    P('s_lshr_b32 s81, s%d, 3' % W1.A_S); P('s_lshl_b32 s81, s81, 7')
    P('s_add_u32 s82, s81, 0x%x' % (FL + F_KV)); poll_ge(P, 82, 64, vtmp=8)
    P('s_add_u32 s82, s81, 0x%x' % (FL + F_Q)); poll_ge(P, 82, 32, vtmp=8)
    P.label('L_w5_go')
    def wait_mem(P):
        P('s_add_u32 s83, s%d, 1' % W1.A_S)
        poll_ge(P, 80, 83, vtmp=8, tgt_is_sgpr=True, x4min=True, sleep=2)
    W1.attn_task(P, stflag=' sc1', wait_mem=wait_mem)
    P('s_waitcnt vmcnt(0)')
    P('s_lshl_b32 s81, s%d, 7' % W1.A_S); P('s_add_u32 s81, s81, 0x%x' % (FL + F_O))
    P('v_mov_b32 v8, 1'); P('s_mov_b64 exec, 1'); P('buffer_atomic_add v8, off, %s, s81' % WSs); P('s_mov_b64 exec, -1')
    P('s_add_u32 s%d, s%d, 2' % (W1.A_S, W1.A_S)); P('s_cmp_lt_u32 s%d, 64' % W1.A_S); P('s_cbranch_scc1 L_w5_loop')
    k.loop(P)
    P = Prog(); P('s_waitcnt vmcnt(0)'); P('s_branch L_end'); k.straight(P); k.reset_state()

def w6_role(k):
    S_CT, S_SEG, S_PAR = 44, 45, 46
    P = Prog()
    P.label('L_w6a'); P('s_mov_b32 s%d, s%d' % (S_CT, S_RANK)); P('s_mov_b32 s%d, 0' % S_SEG); P('s_branch L_w6')
    P.label('L_w6b'); P('s_mov_b32 s%d, s46' % S_CT); P('s_mov_b32 s%d, 1' % S_SEG)
    P.label('L_w6')
    srd(P, 12, 70, 71, 4096*1152); srd(P, G_BSRD, 64, 65, 2048*1152); srd(P, G_OSRD, 68, 69, 2048*1152); srd(P, 76, 66, 67, 1152)
    L16, TRA, DMO = 1, 2, 3
    P('v_lshlrev_b32 v%d, 4, v0' % L16)
    P('v_lshrrev_b32 v4, 2, v0'); P('s_movk_i32 s%d, 1152' % G_T0); P('v_mul_lo_u32 v4, v4, s%d' % G_T0); P('v_and_b32 v5, 3, v0'); P('v_lshl_add_u32 v%d, v5, 4, v4' % DMO)
    P('v_lshrrev_b32 v4, 5, v0'); P('v_bfe_u32 v5, v0, 2, 2'); P('v_lshl_add_u32 v4, v4, 2, v5'); P('v_lshlrev_b32 v4, 6, v4')
    P('v_bfe_u32 v5, v0, 4, 1'); P('v_lshl_add_u32 v4, v5, 5, v4'); P('v_and_b32 v5, 3, v0'); P('v_lshl_add_u32 v4, v5, 3, v4')
    P('s_lshl_b32 s47, s%d, 15' % G_W); P('v_add_u32 v%d, s47, v4' % TRA)
    P('s_mul_i32 s48, s%d, %d' % (G_W, 1024*1152)); P('s_lshl_b32 s49, s%d, 6' % S_CT); P('s_add_u32 s48, s48, s49')
    for rnd in range(2):
        P('s_mov_b32 m0, s47')
        for j in range(32):
            P('buffer_load_dwordx4 v%d, s[12:15], s48 offen lds' % DMO)
            P('s_add_u32 m0, m0, 1024'); P('s_add_u32 s48, s48, %d' % (16*1152))
        P('s_waitcnt vmcnt(0)')
        for f in range(32):
            a = 4*(32*rnd + f)
            P('ds_read_b64_tr_b16 a[%d:%d], v%d offset:%d' % (a, a+1, TRA, f*1024)); P('ds_read_b64_tr_b16 a[%d:%d], v%d offset:%d' % (a+2, a+3, TRA, f*1024 + 512))
        P('s_waitcnt lgkmcnt(0)')
    P('v_and_b32 v4, 31, v0'); P('s_movk_i32 s%d, 1152' % G_T0); P('v_mul_lo_u32 v4, v4, s%d' % G_T0)
    P('v_lshrrev_b32 v5, 5, v0'); P('v_lshlrev_b32 v5, 4, v5'); P('v_add_u32 v4, v4, v5')
    P('s_barrier')
    k.straight(P)
    XA, XB, ACC, T = 16, 80, 144, 160
    P = Prog()
    P.label('L_w6_loop')
    P('s_lshr_b32 s50, s%d, 3' % S_SEG); P('s_lshl_b32 s50, s50, 7'); P('s_add_u32 s50, s50, 0x%x' % (FL + F_M2))
    poll_ge(P, 50, 24, vtmp=8)
    P('s_lshl_b32 s51, s%d, 6' % G_W); P('s_add_u32 s51, s51, s%d' % S_SEG); P('s_mul_i32 s51, s51, 18'); P('s_add_u32 s51, s51, s%d' % S_CT)
    P('s_lshl_b32 s51, s51, 12'); P('s_add_u32 s51, s51, 0x%x' % WS_BASE)
    for q in range(4): P('buffer_load_dwordx4 %s, v%d, %s, s51 offen offset:%d' % (vr(ACC+4*q,4), L16, WSs, q*1024))
    P('s_lshl_b32 s50, s%d, 7' % S_SEG); P('s_add_u32 s50, s50, 0x%x' % (FL + F_O))
    poll_ge(P, 50, 32, vtmp=8, sleep=2)
    P('s_lshl_b32 s52, s%d, 18' % S_SEG); P('s_lshl_b32 s53, s%d, 16' % G_W); P('s_add_u32 s52, s52, s53'); P('s_add_u32 s52, s52, 0x%x' % WS_OF)
    def xbatch(reg, b):
        for i in range(16):
            if i % 4 == 0: P('s_add_u32 s53, s52, %d' % ((16*b + i)*1024))
            P('buffer_load_dwordx4 %s, v%d, %s, s53 offen offset:%d' % (vr(reg+4*i,4), L16, WSs, (i % 4)*1024))
    def mbatch(reg, b):
        for i in range(16):
            f = 16*b + i
            P('v_mfma_f32_32x32x16_bf16 %s, a[%d:%d], %s, %s' % (vr(ACC,16), 4*f, 4*f+3, vr(reg+4*i,4), vr(ACC,16)))
    xbatch(XA, 0); xbatch(XB, 1); mbatch(XA, 0); xbatch(XA, 2); mbatch(XB, 1); xbatch(XB, 3); mbatch(XA, 2); mbatch(XB, 3)
    P('s_cmp_eq_u32 s%d, 0' % G_W); P('s_cbranch_scc1 L_w6_r0')
    P('s_lshl_b32 s53, s%d, 12' % G_W); P('v_add_u32 v8, s53, v%d' % L16)
    for q in range(4): P('ds_write_b128 v8, %s offset:%d' % (vr(ACC+4*q,4), q*1024))
    P('s_waitcnt lgkmcnt(0)'); P('s_barrier'); P('s_barrier')
    P('s_branch L_w6_next')
    P.label('L_w6_r0')
    P('s_mul_i32 s53, s%d, %d' % (S_SEG, 32*1152)); P('s_lshl_b32 s54, s%d, 6' % S_CT); P('s_add_u32 s53, s53, s54')
    for qp in range(2):
        P('buffer_load_dwordx4 %s, v4, s[%d:%d], s53 offen offset:%d' % (vr(T+8*qp,4), G_BSRD, G_BSRD+3, 32*qp))
        P('buffer_load_dwordx4 %s, v5, s[76:79], s54 offen offset:%d' % (vr(T+8*qp+4,4), 32*qp))
    P('s_barrier')
    for wv in range(1, 4):
        for q in range(4): P('ds_read_b128 %s, v%d offset:%d' % (vr(T+16+4*q,4), L16, wv*4096 + q*1024))
        for i in range(0, 16, 2): P('v_pk_add_f32 %s, %s, %s' % (vr(ACC+i,2), vr(ACC+i,2), vr(T+16+i,2)))
    P('s_waitcnt lgkmcnt(0)'); P('s_barrier')
    for qp in range(2):
        a = ACC + 8*qp
        for i in range(4): P('v_permlane32_swap_b32 v%d, v%d' % (a+i, a+4+i))
        for i in range(4):
            for src in (T+8*qp+i, T+8*qp+4+i):
                P('v_lshlrev_b32 v8, 16, v%d' % src); P('v_add_f32 v%d, v%d, v8' % (a+2*i, a+2*i))
                P('v_and_b32 v9, 0xffff0000, v%d' % src); P('v_add_f32 v%d, v%d, v9' % (a+2*i+1, a+2*i+1))
        G2.pack8(P, T+32, a)
        P('buffer_store_dwordx4 %s, v4, s[%d:%d], s53 offen offset:%d' % (vr(T+32,4), G_OSRD, G_OSRD+3, 32*qp))
    P.label('L_w6_next')
    P('s_add_u32 s%d, s%d, 2' % (S_SEG, S_SEG)); P('s_cmp_lt_u32 s%d, 64' % S_SEG); P('s_cbranch_scc1 L_w6_loop')
    k.loop(P)
    P = Prog(); P('s_waitcnt vmcnt(0)'); P('s_branch L_end'); k.straight(P); k.reset_state()

def gen(name):
    k = Kernel()
    bootstrap(k)
    worker_dispatch(k)
    gemm_role(k)
    w5_role(k)
    w6_role(k)
    chain_role(k, True)
    chain_role(k, False)
    P = Prog(); P.label('L_end'); P('s_endpgm'); k.straight(P)
    return '.globl %s\n.p2align 8\n.type %s,@function\n%s:\n' % (name, name, name) + k.text() + kdesc(name)

HDR = open('parallel_sum__memory_aug_recurrent_mem_tr__mixer_channel_mlp__prompt.s.ref').read().split('; Override launch')[0]
NAME = 'parallel_sum__memory_aug_recurrent_mem_tr__mixer_channel_mlp__prompt_kernel'
if __name__ == '__main__':
    out = sys.argv[1]
    for a in sys.argv[2:]:
        kk, vv = a.split('=')
        if kk.startswith('c.'): C.OPT[kk[2:]] = int(vv)
        else: OPT[kk] = int(vv)
    txt = HDR + header(['; @launch grid=(256,1,1) block=(256,1,1) lds=163840']) + gen(NAME)
    open(out, 'w').write(txt)
    print('written', out, len(txt))
```

```python
from asmlib import *
from common import *

OPT = dict(stamps=0, gdel=6, gdel0=14, rc=0, pf=0, kxtop=1)

L_MF = 0; L_S = 9216; L_O = 14336; L_WL = 16384; LDS_TOTAL = 163840

def wreg(i):
    if i < 32: return 'a[%d:%d]' % (8*i, 8*i+7), ('a', 8*i)
    j = i - 32
    return 'v[%d:%d]' % (80+8*j, 80+8*j+7), ('v', 80+8*j)
LDS_CHUNKS = [('k',0), ('k',2), ('k',4), ('k',6), ('k',8), ('v',2), ('v',6)]
LDS_BLOCKS = [(m, tile, t) for (m, t) in LDS_CHUNKS for tile in (0, 1)] + [('od', p, 3) for p in range(4)]
ALL_BLOCKS = [(m,tile,t) for m in 'qkv' for t in range(9) for tile in (0,1)] + [('oh',0),('oh',1)] + [('od',p,c) for p in range(4) for c in range(4)]
REG_BLOCKS = [b for b in ALL_BLOCKS if b not in LDS_BLOCKS]
assert len(LDS_BLOCKS) == 18 and len(REG_BLOCKS) == 54
REG_OF = {b: wreg(i) for i, b in enumerate(REG_BLOCKS)}
LDS_OF = {b: i for i, b in enumerate(LDS_BLOCKS)}

S_WS = 8; S_SRD2 = 12
S_H = 16; S_W = 17; S_STEP = 18; S_T0 = 19; S_T1 = 20; S_T2 = 21; S_T3 = 22
S_PCUR = 23; S_PCUR4 = 24; S_PR0 = 25
S_MNXT = 30; S_MPOI = 31
S_KV = 32; S_KM = 33; S_RED = 34; S_TMO = 35
S_EXN8 = 36; S_C = 38; S_ERR = 39; S_TS = 40; S_DBG = 42
S_TAG = 44; S_RDEL = 45
S_PTR = 46
S_OW = 56; S_GW = 57; S_EXMM = 60; S_PERM = 62; S_PERM2 = 63
S_BM = 64
S_VV = 72; S_KMW = 73; S_VMP = 74; S_KVRDY = 75
S_ST = 76
S_RC = 84
S_PROG = 86
S_G0 = 87; S_G1 = 88; S_G2 = 89; S_MPN = 29

V_NEG1=0; V_L16=1; V_IDX=2; V_PST=3; V_RED=4; V_MST=5; V_G16=6; V_SW=7; V_SR=8; V_SM=9; V_KX=10; V_VX=11; V_WL=12; V_VM=13
V_BSEL=14; V_BVAL=16; V_PT0=17; V_VMH=18
V_AR=20; V_ST=32
V_QA=48; V_QB=52; V_KA=56; V_KB=60; V_VA=64; V_VB=68; V_KF=72

def vr(a, n=1): return 'v%d' % a if n == 1 else 'v[%d:%d]' % (a, a+n-1)
WS = 's[%d:%d]' % (S_WS, S_WS+3)
DPP8 = 'row_ror:8 row_mask:0xf bank_mask:0xf'
OOB = 0x40000000
TMO = 20000
def pk_add(P, d, a, b): P('v_pk_add_f32 %s, %s, %s' % (vr(d,2), vr(a,2), vr(b,2)))
def cvt(P, d, a, b): P('v_cvt_pk_bf16_f32 v%d, v%d, v%d' % (d, a, b))
def mfma16(P, d, a, b, c=None): P('v_mfma_f32_16x16x16_bf16 %s, %s, %s, %s' % (vr(d,4), vr(a,2), vr(b,2), '0' if c is None else vr(c,4)))
def mfma32(P, d, a, b, c=None): P('v_mfma_f32_16x16x32_bf16 %s, %s, %s, %s' % (vr(d,4), vr(a,4), vr(b,4), '0' if c is None else vr(c,4)))
def smf_s(acc, a, b): return 'v_smfmac_f32_16x16x64_bf16 %s, %s, %s, v%d' % (vr(acc, 4), vr(a, 4), b, V_IDX)
def smf(P, acc, a, b): P(smf_s(acc, a, b))
def aread_s(t, dst): return 'ds_read_b128 %s, v%d offset:%d' % (vr(dst, 4), V_L16, L_MF + 1024*t)
def blk_s(blk, buf):
    off = LDS_OF[blk]*2048
    return 'ds_read_b128 %s, v%d offset:%d\nds_read_b128 %s, v%d offset:%d' % (vr(buf,4), V_WL, off, vr(buf+4,4), V_WL, off+1024)

def load_weights(k, hook=None):
    P = Prog()
    n, gb = 2, 3
    DA0, DA1, TA0, TA1, TB0, TB1, OD, OH, OL = 4, 5, 6, 7, 8, 9, 10, 11, 12
    t0, t1, t2, t3 = 14, 15, 16, 17
    P('v_and_b32 v%d, 15, v0' % n); P('v_lshrrev_b32 v%d, 4, v0' % gb)
    P('v_and_b32 v%d, 1, v%d' % (t0, gb)); P('v_lshrrev_b32 v%d, 1, v%d' % (t1, gb)); P('v_lshl_add_u32 v%d, v%d, 2, v%d' % (t0, t1, t0))
    for var, dst in ((0, DA0), (1, DA1)):
        P('v_xor_b32 v%d, v%d, v%d' % (t1, n, t0))
        if var: P('v_xor_b32 v%d, 8, v%d' % (t1, t1))
        P('v_lshlrev_b32 v%d, 4, v%d' % (t1, t1))
        P('v_lshl_add_u32 v%d, v%d, 13, v%d' % (dst, gb, t1))
    P('v_bfe_u32 v%d, v0, 3, 1' % t0)
    P('v_bfe_u32 v%d, v0, 2, 1' % t1)
    P('v_and_b32 v%d, 1, v%d' % (t2, gb))
    P('v_lshlrev_b32 v%d, 3, v%d' % (t3, t0)); P('v_lshl_add_u32 v%d, v%d, 1, v%d' % (t3, t1, t3)); P('v_add_u32 v%d, v%d, v%d' % (t3, t3, t2))
    P('v_lshlrev_b32 v%d, 8, v%d' % (t3, t3))
    P('v_lshlrev_b32 v%d, 3, v%d' % (t0, t0)); P('v_lshl_add_u32 v%d, v%d, 2, v%d' % (t0, t1, t0)); P('v_add_u32 v%d, v%d, v%d' % (t0, t0, t2))
    P('v_bfe_u32 v%d, v0, 1, 1' % t1); P('v_lshlrev_b32 v%d, 1, v%d' % (t1, t1))
    P('s_lshl_b32 s%d, s%d, 2' % (S_T0, S_W)); P('v_add_u32 v%d, s%d, v%d' % (t1, S_T0, t1))
    P('v_lshrrev_b32 v%d, 1, v%d' % (t2, gb)); P('s_mov_b32 s%d, 36864' % S_T0); P('v_mul_lo_u32 v%d, v%d, s%d' % (t2, t2, S_T0))
    P('v_add_u32 v%d, v%d, v%d' % (t3, t3, t2))
    P('v_and_b32 v%d, 1, v0' % t2); P('v_lshl_add_u32 v%d, v%d, 3, v%d' % (t3, t2, t3))
    P('v_add_u32 v%d, %d, v%d' % (t3, L_WL, t3))
    for tile, (d0, d1) in ((0, (TA0, TA1)), (1, (TB0, TB1))):
        P('v_xor_b32 v%d, v%d, v%d' % (t2, t1, t0))
        if tile: P('v_xor_b32 v%d, 1, v%d' % (t2, t2))
        P('v_lshl_add_u32 v%d, v%d, 4, v%d' % (d0, t2, t3))
        P('v_add_u32 v%d, 73728, v%d' % (d1, d0))
    P('v_lshrrev_b32 v%d, 1, v%d' % (t0, gb)); P('v_lshlrev_b32 v%d, 2, v%d' % (t0, t0))
    P('v_bfe_u32 v%d, v0, 2, 1' % t1); P('v_add_u32 v%d, v%d, v%d' % (t0, t0, t1))
    P('v_and_b32 v%d, 1, v%d' % (t1, gb)); P('v_lshl_add_u32 v%d, v%d, 3, v%d' % (t0, t1, t0))
    P('s_movk_i32 s%d, 1152' % S_T0); P('v_mul_lo_u32 v%d, v%d, s%d' % (t0, t0, S_T0))
    P('v_and_b32 v%d, 3, v0' % t1); P('v_lshl_add_u32 v%d, v%d, 3, v%d' % (t0, t1, t0))
    P('s_lshl_b32 s%d, s%d, 5' % (S_T0, S_W)); P('s_add_u32 s%d, s%d, %d' % (S_T0, S_T0, L_WL)); P('v_add_u32 v%d, s%d, v%d' % (t0, S_T0, t0))
    P('v_bfe_u32 v%d, v0, 3, 1' % t1)
    P('v_lshl_add_u32 v%d, v%d, 7, v%d' % (OD, t1, t0))
    P('s_mov_b32 s%d, 36864' % S_T0); P('v_mul_lo_u32 v%d, v%d, s%d' % (t1, t1, S_T0)); P('v_add_u32 v%d, v%d, v%d' % (OH, t1, t0))
    P('v_lshlrev_b32 v%d, 4, v0' % OL)
    WL = 13
    P('s_mul_i32 s%d, s%d, 36864' % (S_G0, S_W)); P('s_add_u32 s%d, s%d, %d' % (S_G0, S_G0, L_WL)); P('v_add_u32 v%d, s%d, v%d' % (WL, S_G0, OL))
    SR = 's[%d:%d]' % (S_SRD2, S_SRD2+3)
    def set_srd(ptr, size):
        P('s_mov_b32 s%d, s%d' % (S_SRD2, ptr)); P('s_mov_b32 s%d, s%d' % (S_SRD2+1, ptr+1))
        P('s_mov_b32 s%d, 0x%x' % (S_SRD2+2, size)); P('s_mov_b32 s%d, 0x20000' % (S_SRD2+3))
    set_srd(S_PTR+6, 4096*576*2)
    P('s_mul_i32 s%d, s%d, %d' % (S_T0, S_H, 147456)); P('s_mul_i32 s%d, s%d, 36864' % (S_T1, S_W)); P('s_add_u32 s%d, s%d, s%d' % (S_T0, S_T0, S_T1))
    P('s_mov_b32 m0, s%d' % S_G0)
    for j in range(36):
        P('buffer_load_dwordx4 v%d, %s, s%d offen lds' % (OL, SR, S_T0))
        if j < 35: P('s_add_u32 m0, m0, 1024'); P('s_add_u32 s%d, s%d, 1024' % (S_T0, S_T0))
    if hook: hook(P)
    P('s_waitcnt vmcnt(0) lgkmcnt(0)'); P('s_barrier')
    if hook: hook(P, True)
    def dst_regs(blk):
        cls, r0 = REG_OF[blk][1]; return cls, r0
    def tr(dstcls, r0, addr, off): P('ds_read_b64_tr_b16 %s[%d:%d], v%d offset:%d' % (dstcls, r0, r0+1, addr, off))
    TC = 20
    for pr in range(4):
        for c in range(4):
            blk = ('od', pr, c); Ta = 1 + 2*pr
            if blk in REG_OF: cls, r0 = dst_regs(blk)
            else: cls, r0 = 'v', TC + 8*pr
            for q in range(4):
                Pq, p1 = q >> 1, q & 1
                off = (16*Pq + 2*p1)*1152 + 128*Ta
                if c == 0: tr(cls, r0+2*q, OD, off)
                else:
                    if q == 0: P('v_add_u32 v%d, %d, v%d' % (t0, c*36864, OD))
                    tr(cls, r0+2*q, t0, off)
    for s2 in range(2):
        cls, r0 = dst_regs(('oh', s2))
        P('v_add_u32 v%d, %d, v%d' % (t0, 2*s2*36864, OH))
        for q in range(4): tr(cls, r0+2*q, t0, (16*(q >> 1) + 2*(q & 1))*1152)
    P('s_waitcnt lgkmcnt(0)'); P('s_barrier')
    for pr in range(4):
        off = LDS_OF[('od', pr, 3)]*2048
        P('ds_write_b128 v%d, %s offset:%d' % (WL, vr(TC+8*pr,4), off)); P('ds_write_b128 v%d, %s offset:%d' % (WL, vr(TC+8*pr+4,4), off+1024))
    k.straight(P)
    reg_chunks = [(m, t) for m in 'qkv' for t in range(9) if (m, t) not in LDS_CHUNKS]
    order = reg_chunks + LDS_CHUNKS
    NS = 7
    slot_of = {}
    for j, ch in enumerate(reg_chunks): slot_of[ch] = j % NS
    for i, ch in enumerate(LDS_CHUNKS): slot_of[ch] = i
    last_use = {}
    for j, ch in enumerate(reg_chunks): last_use[slot_of[ch]] = j
    lds_sorted = sorted(LDS_CHUNKS, key=lambda ch: last_use[slot_of[ch]])
    order = reg_chunks + lds_sorted
    cur_m = [None]
    def issue(P, ch):
        m, t = ch
        if cur_m[0] != m:
            ptr = {'q': S_PTR, 'k': S_PTR+2, 'v': S_PTR+4}[m]
            P('s_mov_b32 s%d, s%d' % (S_SRD2, ptr)); P('s_mov_b32 s%d, s%d' % (S_SRD2+1, ptr+1))
            P('s_mov_b32 s%d, 0x%x' % (S_SRD2+2, 576*8192)); P('s_mov_b32 s%d, 0x20000' % (S_SRD2+3))
            cur_m[0] = m
        for jj in range(4):
            P('s_add_u32 m0, s%d, %d' % (S_G0, slot_of[ch]*4096 + jj*1024))
            P('s_add_u32 s%d, s%d, %d' % (S_T0, S_G1, (64*t + 4*jj)*8192))
            P('buffer_load_dwordx4 v%d, %s, s%d offen lds' % (DA0 if jj < 2 else DA1, SR, S_T0))
    P = Prog()
    P('s_lshl_b32 s%d, s%d, 8' % (S_G1, S_H)); P('s_mul_i32 s%d, s%d, %d' % (S_T0, S_W, 16*8192)); P('s_add_u32 s%d, s%d, s%d' % (S_G1, S_G1, S_T0))
    issued = 0
    def can_issue(j, consumed):
        ch = order[j]; s = slot_of[ch]
        prev = [i for i in range(j) if slot_of[order[i]] == s]
        return (not prev) or prev[-1] < consumed
    while issued < len(order) and can_issue(issued, 0) and issued < NS:
        issue(P, order[issued]); issued += 1
    TB = 20
    for j, ch in enumerate(order):
        m, t = ch
        P('s_waitcnt vmcnt(%d) lgkmcnt(0)' % (4*(issued - j - 1)))
        P('s_barrier')
        while issued < len(order) and can_issue(issued, j):
            issue(P, order[issued]); issued += 1
        so = slot_of[ch]*4096
        for tile, (a0, a1) in ((0, (TA0, TA1)), (1, (TB0, TB1))):
            blk = (m, tile, t)
            if blk in REG_OF: cls, r0 = dst_regs(blk)
            else: cls, r0 = 'v', TB + 8*tile
            for q in range(4): tr(cls, r0+2*q, a0 if q < 2 else a1, so + (q & 1)*1024)
        if ch in LDS_CHUNKS:
            P('s_waitcnt lgkmcnt(0)'); P('s_barrier')
            for tile in range(2):
                off = LDS_OF[(m, tile, t)]*2048
                P('ds_write_b128 v%d, %s offset:%d' % (WL, vr(TB+8*tile,4), off)); P('ds_write_b128 v%d, %s offset:%d' % (WL, vr(TB+8*tile+4,4), off+1024))
    P('s_waitcnt lgkmcnt(0)'); P('s_barrier')
    k.straight(P); k.reset_state()

def lane_setup(k):
    P = Prog()
    n, rg, t0, t1, t2, nh, n7, dt = 20, 21, 22, 23, 24, 25, 26, 27
    P('v_and_b32 v%d, 15, v0' % n); P('v_lshrrev_b32 v%d, 4, v0' % rg); P('v_lshlrev_b32 v%d, 4, v0' % V_L16)
    P('v_mov_b32 v%d, 0x44444444' % V_IDX); P('v_mov_b32 v%d, 0xeeeeeeee' % t0)
    P('v_cmp_lt_u32 vcc, 7, v%d' % n); P('v_cndmask_b32 v%d, v%d, v%d, vcc' % (V_IDX, V_IDX, t0))
    P('v_lshrrev_b32 v%d, 3, v%d' % (nh, n)); P('v_and_b32 v%d, 7, v%d' % (n7, n))
    P('v_lshl_add_u32 v%d, v%d, 3, v%d' % (t0, rg, n7)); P('v_lshlrev_b32 v%d, 4, v%d' % (V_G16, t0))
    P('v_lshrrev_b32 v%d, 1, v%d' % (t0, rg)); P('v_lshl_add_u32 v%d, v%d, 6, v%d' % (t0, t0, n))
    P('s_lshl_b32 s%d, s%d, 4' % (S_T0, S_W)); P('v_add_u32 v%d, s%d, v%d' % (t0, S_T0, t0)); P('v_lshlrev_b32 v%d, 4, v%d' % (t0, t0))
    P('v_and_b32 v%d, 1, v%d' % (t1, rg)); P('v_lshl_add_u32 v%d, v%d, 3, v%d' % (V_PST, t1, t0))
    if OPT.get('quad', 1):
        P('v_and_b32 v%d, 1, v%d' % (t0, rg)); P('v_lshlrev_b32 v%d, 1, v%d' % (t0, t0)); P('v_lshrrev_b32 v%d, 1, v%d' % (t1, rg)); P('v_add_u32 v%d, v%d, v%d' % (t0, t0, t1))
        P('v_lshl_add_u32 v%d, v%d, 6, v%d' % (t0, t0, n)); P('s_lshl_b32 s%d, s%d, 4' % (S_T0, S_W)); P('v_add_u32 v%d, s%d, v%d' % (t0, S_T0, t0))
        P('v_lshlrev_b32 v%d, 4, v%d' % (V_PST, t0))
    P('v_lshlrev_b32 v%d, 4, v%d' % (t0, n)); P('v_lshl_add_u32 v%d, v%d, 2, v%d' % (t0, rg, t0))
    P('s_lshl_b32 s%d, s%d, 8' % (S_T0, S_W)); P('v_add_u32 v%d, s%d, v%d' % (V_PT0, S_T0, t0))
    P('s_sub_u32 s%d, s%d, 1' % (S_T0, S_W)); P('s_lshl_b32 s%d, s%d, 5' % (S_T0, S_T0)); P('s_add_u32 s%d, s%d, s%d' % (S_T0, S_T0, S_H))
    P('s_cmp_lt_u32 s%d, 72' % S_T0); P('s_cselect_b32 s%d, 1, 0' % S_RED)
    P('s_cmp_eq_u32 s%d, 0' % S_W); P('s_cselect_b32 s%d, 0, s%d' % (S_RED, S_RED))
    P('s_cmp_eq_u32 s%d, 0' % S_RED); P('s_cselect_b32 s%d, 0, s%d' % (S_T0, S_T0))
    P('s_lshr_b32 s%d, s%d, 3' % (S_T1, S_T0))
    tab = OPT.get('rtab')
    if tab:
        P('s_mov_b32 s%d, %d' % (S_RDEL, tab[0]))
        for T in range(1, 9):
            P('s_cmp_eq_u32 s%d, %d' % (S_T1, T)); P('s_cselect_b32 s%d, %d, s%d' % (S_RDEL, tab[T], S_RDEL))
    else:
        P('s_mul_i32 s%d, s%d, %d' % (S_RDEL, S_T1, OPT.get('rslope', 1))); P('s_add_u32 s%d, s%d, %d' % (S_RDEL, S_RDEL, OPT.get('rbase', 1)))
    P('s_lshl_b32 s%d, s%d, 7' % (S_T2, S_T0))
    P('v_lshl_add_u32 v%d, v%d, 1, v%d' % (t0, rg, nh)); P('s_movk_i32 s%d, 9216' % S_T1); P('v_mul_lo_u32 v%d, v%d, s%d' % (t0, t0, S_T1))
    P('v_lshl_add_u32 v%d, v%d, 4, v%d' % (t0, n7, t0)); P('v_add_u32 v%d, s%d, v%d' % (V_RED, S_T2, t0))
    P('v_lshlrev_b32 v%d, 1, v%d' % (t0, n)); P('v_and_b32 v%d, 7, v%d' % (t0, t0)); P('v_bfe_u32 v%d, v%d, 2, 1' % (t1, n)); P('v_add_u32 v%d, v%d, v%d' % (t0, t0, t1))
    P('s_cmp_lt_u32 s%d, 8' % S_T0); P('s_cselect_b64 vcc, -1, 0'); P('v_cndmask_b32 v%d, v%d, v%d, vcc' % (t0, n, t0))
    P('v_lshlrev_b32 v%d, 4, v%d' % (t0, t0)); P('v_lshl_add_u32 v%d, v%d, 2, v%d' % (t0, rg, t0)); P('v_add_u32 v%d, s%d, v%d' % (t0, S_T2, t0))
    P('v_mov_b32 v%d, 0x%x' % (t1, OOB)); P('v_cmp_lt_u32 vcc, 7, v%d' % n); P('v_cndmask_b32 v%d, v%d, v%d, vcc' % (t0, t0, t1))
    P('s_cmp_eq_u32 s%d, 0' % S_RED); P('s_cselect_b64 vcc, -1, 0'); P('v_cndmask_b32 v%d, v%d, v%d, vcc' % (V_MST, t0, t1))
    P('s_mul_i32 s%d, s%d, 1280' % (S_T0, S_W)); P('s_add_u32 s%d, s%d, %d' % (S_T0, S_T0, L_S)); P('v_add_u32 v%d, s%d, v%d' % (V_SW, S_T0, V_G16))
    P('v_lshl_add_u32 v%d, v%d, 9, v%d' % (t0, nh, V_G16)); P('v_add_u32 v%d, %d, v%d' % (V_SR, L_S, t0))
    P('v_and_b32 v%d, 1, v%d' % (t0, rg)); P('v_lshl_add_u32 v%d, v%d, 3, v%d' % (t0, t0, n7)); P('v_lshlrev_b32 v%d, 4, v%d' % (t0, t0))
    P('s_movk_i32 s%d, 2560' % S_T1); P('v_mul_lo_u32 v%d, v%d, s%d' % (t1, nh, S_T1)); P('v_add_u32 v%d, v%d, v%d' % (t0, t0, t1))
    P('v_add_u32 v%d, %d, v%d' % (V_SM, L_S + 1024, t0))
    P('v_lshl_add_u32 v%d, v%d, 4, v%d' % (dt, nh, n7))
    P('s_lshl_b32 s%d, s%d, 2' % (S_T0, S_W)); P('v_add_u32 v%d, s%d, v%d' % (t0, S_T0, rg)); P('v_lshl_add_u32 v%d, v%d, 5, v%d' % (t0, t0, dt)); P('v_lshlrev_b32 v%d, 4, v%d' % (V_KX, t0))
    P('s_lshl_b32 s%d, s%d, 5' % (S_T0, S_W)); P('v_lshl_add_u32 v%d, v%d, 7, v%d' % (t0, rg, dt)); P('v_add_u32 v%d, s%d, v%d' % (t0, S_T0, t0)); P('v_lshlrev_b32 v%d, 4, v%d' % (V_VX, t0))
    P('v_lshrrev_b32 v%d, 1, v%d' % (t0, rg)); P('v_lshl_add_u32 v%d, v%d, 3, v%d' % (t0, t0, dt)); P('v_add_u32 v%d, s%d, v%d' % (t0, S_T0, t0)); P('v_lshlrev_b32 v%d, 4, v%d' % (t0, t0))
    P('v_and_b32 v%d, 1, v%d' % (t1, rg)); P('v_lshl_add_u32 v%d, v%d, 3, v%d' % (V_VM, t1, t0))
    P('s_mul_i32 s%d, s%d, 36864' % (S_T0, S_W)); P('s_add_u32 s%d, s%d, %d' % (S_T0, S_T0, L_WL)); P('v_add_u32 v%d, s%d, v%d' % (V_WL, S_T0, V_L16))
    P('v_and_b32 v%d, 3, v%d' % (t0, n)); P('v_lshrrev_b32 v%d, 2, v%d' % (t1, n7)); P('v_and_b32 v%d, 1, v%d' % (t2, rg))
    P('v_cmp_eq_u32 s[%d:%d], v%d, v%d' % (S_TS, S_TS+1, t1, t2))
    P('v_and_b32 v%d, 1, v%d' % (t1, t0)); P('v_lshlrev_b32 v%d, 4, v%d' % (t1, t1)); P('v_mov_b32 v28, 0x3f80'); P('v_lshlrev_b32 v%d, v%d, v28' % (V_BVAL, t1))
    P('v_cndmask_b32 v29, 0, v%d, s[%d:%d]' % (V_BVAL, S_TS, S_TS+1))
    P('v_cmp_gt_u32 vcc, 2, v%d' % t0); P('v_cndmask_b32 v%d, 0, v29, vcc' % V_BSEL)
    P('v_cmp_lt_u32 vcc, 1, v%d' % t0); P('v_cndmask_b32 v%d, 0, v29, vcc' % (V_BSEL+1))
    P('v_lshrrev_b32 v%d, 1, v%d' % (t1, n))
    for r in range(4): P('v_cmp_eq_u32 s[%d:%d], %d, v%d' % (S_BM+2*r, S_BM+2*r+1, r, t1))
    P('s_mov_b32 s%d, 0x00ff00ff' % S_EXN8); P('s_mov_b32 s%d, 0x00ff00ff' % (S_EXN8+1))
    P('s_mov_b32 s%d, 0x00ff00ff' % S_EXMM); P('s_mov_b32 s%d, 0' % (S_EXMM+1))
    P('s_mov_b32 s%d, 0x3e0293ee' % S_C)
    P('s_lshl_b32 s%d, s%d, 9' % (S_OW, S_W)); P('s_add_u32 s%d, s%d, %d' % (S_OW, S_OW, L_O))
    P('s_lshl_b32 s%d, s%d, 10' % (S_GW, S_W))
    P('s_mov_b32 s%d, 0' % S_ERR)
    P('s_mul_i32 s%d, s%d, %d' % (S_PCUR, S_H, P_HEAD)); P('s_add_u32 s%d, s%d, 0x%x' % (S_PCUR, S_PCUR, WS_P)); P('s_add_u32 s%d, s%d, 4096' % (S_PCUR4, S_PCUR))
    for t in range(4): P('s_mov_b32 s%d, 0x%x' % (S_PR0+t, WS_P + t*8*P_HEAD))
    P('s_mov_b32 s%d, 0x%x' % (S_MNXT, WS_M + 1*M_SLOT)); P('s_mov_b32 s%d, 0x%x' % (S_MPOI, WS_M + 2*M_SLOT))
    P('s_lshl_b32 s%d, s%d, 13' % (S_KV, S_H)); P('s_add_u32 s%d, s%d, 0x%x' % (S_VV, S_KV, WS_VF)); P('s_add_u32 s%d, s%d, 0x%x' % (S_KV, S_KV, WS_KF))
    P('s_lshl_b32 s%d, s%d, 11' % (S_KM, S_H)); P('s_lshl_b32 s%d, s%d, 9' % (S_T1, S_W))
    P('s_add_u32 s%d, s%d, s%d' % (S_KMW, S_KM, S_T1)); P('s_add_u32 s%d, s%d, 0x%x' % (S_KMW, S_KMW, WS_KM))
    P('s_add_u32 s%d, s%d, 0x%x' % (S_KM, S_KM, WS_VM))
    P('s_mov_b32 s%d, 0' % S_STEP); P('s_mov_b32 s%d, 0' % S_TAG)
    P('s_mov_b32 s%d, 0x%x' % (S_VMP, OOB)); P('v_mov_b64 %s, 0' % vr(V_VMH,2))
    P('s_mov_b32 s%d, 0' % S_RC); P('s_mov_b32 s%d, 0' % (S_RC+1))
    k.straight(P)

def initial_m(k):
    P = Prog()
    P('s_mov_b32 s%d, s%d' % (S_SRD2, S_PTR+8)); P('s_mov_b32 s%d, s%d' % (S_SRD2+1, S_PTR+9))
    P('s_mov_b32 s%d, %d' % (S_SRD2+2, 8*576*2)); P('s_mov_b32 s%d, 0x20000' % (S_SRD2+3))
    P('s_mov_b32 s%d, 0x05040100' % S_PERM); P('s_mov_b32 s%d, 0x07060302' % S_PERM2)
    P('s_lshl_b32 s%d, s%d, 6' % (S_T0, S_W)); P('v_add_u32 v20, s%d, v0' % S_T0)
    for i in range(3):
        P('v_add_u32 v21, %d, v20' % (256*i)); P('v_and_b32 v22, 7, v21'); P('v_lshrrev_b32 v23, 3, v21')
        P('s_movk_i32 s%d, 1152' % S_T1); P('v_mul_lo_u32 v22, v22, s%d' % S_T1); P('v_lshl_add_u32 v22, v23, 4, v22')
        P('v_cmp_gt_u32 vcc, 576, v21'); P('v_mov_b32 v24, 0x%x' % OOB); P('v_cndmask_b32 v22, v24, v22, vcc')
        P('buffer_load_dwordx4 v[28:31], v22, s[%d:%d], 0 offen' % (S_SRD2, S_SRD2+3))
        P('v_perm_b32 v32, v29, v28, s%d' % S_PERM); P('v_perm_b32 v33, v31, v30, s%d' % S_PERM)
        P('v_perm_b32 v34, v29, v28, s%d' % S_PERM2); P('v_perm_b32 v35, v31, v30, s%d' % S_PERM2)
        P('v_lshlrev_b32 v25, 4, v21')
        P('s_and_saveexec_b64 s[%d:%d], vcc' % (S_TS, S_TS+1))
        P('ds_write_b128 v25, v[32:35] offset:%d' % L_MF)
        P('s_mov_b64 exec, s[%d:%d]' % (S_TS, S_TS+1))
    P('s_waitcnt lgkmcnt(0)')
    k.straight(P)

def poison_init(k, st=''):
    P = Prog()
    P('v_mov_b32 v20, -1'); P('v_mov_b32 v21, -1'); P('v_mov_b32 v22, -1'); P('v_mov_b32 v23, -1')
    if OPT.get('quad', 1):
        P('buffer_store_dword v20, v%d, %s, s%d offen%s' % (V_PT0, WS, S_PCUR, st))
        P('buffer_store_dwordx4 v[20:23], v%d, %s, s%d offen offset:1024%s' % (V_PST, WS, S_PCUR, st))
        P('buffer_store_dwordx4 v[20:23], v%d, %s, s%d offen offset:1024%s' % (V_PST, WS, S_PCUR4, st))
    else:
      for T in (0, 2, 4, 6, 7):
        off = T*1024
        P('buffer_store_dwordx2 v[20:21], v%d, %s, s%d offen offset:%d%s' % (V_PST, WS, S_PCUR if off < 4096 else S_PCUR4, off & 4095, st))
    for slot in range(4):
        P('s_mov_b32 s%d, 0x%x' % (S_T1, WS_M + slot*M_SLOT))
        P('buffer_store_dword v20, v%d, %s, s%d offen%s' % (V_MST, WS, S_T1, st))
    P('s_waitcnt vmcnt(0)')
    P('v_mov_b32 v%d, -1' % V_NEG1)
    k.straight(P); k.reset_state()

STAMP_SET = None
def stamp(P, i):
    if not OPT['stamps']: return
    if STAMP_SET is not None and i not in STAMP_SET: return
    P('s_memtime s[%d:%d]' % (S_TS, S_TS+1)); P('s_waitcnt lgkmcnt(0)'); P('s_mov_b32 s%d, s%d' % (S_ST+i, S_TS))
def flush_stamps(P, n=8):
    if not OPT['stamps']: return
    P('s_lshl_b32 s%d, s%d, 2' % (S_T0, S_H)); P('s_add_u32 s%d, s%d, s%d' % (S_T0, S_T0, S_W))
    P('s_lshl_b32 s%d, s%d, 6' % (S_T0, S_T0)); P('s_add_u32 s%d, s%d, s%d' % (S_T0, S_T0, S_STEP)); P('s_sub_u32 s%d, s%d, 1' % (S_T0, S_T0))
    P('s_lshl_b32 s%d, s%d, 6' % (S_T0, S_T0)); P('s_add_u32 s%d, s%d, 0x%x' % (S_T0, S_T0, WS_STAT))
    P('s_mov_b64 exec, 1')
    for i in range(n):
        P('v_mov_b32 v21, s%d' % (S_ST+i)); P('buffer_store_dword v21, off, %s, s%d offset:%d' % (WS, S_T0, 4*i))
    P('s_mov_b64 exec, -1')

def poll_tail(P, lab, done, errbit, rc):
    P('s_cbranch_vccz %s' % done)
    if OPT['rc']: P('s_add_u32 s%d, s%d, 1' % (S_RC+rc, S_RC+rc))
    P('s_sub_u32 s%d, s%d, 1' % (S_TMO, S_TMO)); P('s_cmp_lg_u32 s%d, 0' % S_TMO); P('s_cbranch_scc1 %s' % lab)
    P('s_or_b32 s%d, s%d, %d' % (S_ERR, S_ERR, errbit))
    P.label(done)

def delay(P, sreg, label):
    P('s_cmp_eq_u32 s%d, 0' % sreg)
    P('s_cbranch_scc1 %s_x' % label)
    P('s_mov_b32 s%d, s%d' % (S_T3, sreg))
    P.label(label)
    P('s_sub_u32 s%d, s%d, 1' % (S_T3, S_T3)); P('s_cmp_gt_i32 s%d, 0' % S_T3); P('s_cbranch_scc1 %s' % label)
    P.label(label + '_x')

def kx_loads(P):
    P('buffer_load_dwordx4 %s, v%d, %s, s%d offen%s' % (vr(V_KF,4), V_KX, WS, S_KV, OPT.get('kvf', '')))
    P('buffer_load_dwordx4 %s, v%d, %s, s%d offen offset:128%s' % (vr(V_KF+4,4), V_KX, WS, S_KV, OPT.get('kvf', '')))
def prefetch(P, lab, tmp, kvwait):
    P('s_cmp_eq_u32 s%d, 0' % S_W)
    P('s_cbranch_scc0 %s' % lab)
    P('v_lshlrev_b32 v%d, 3, v%d' % (tmp, V_L16))
    P('s_add_u32 s%d, s%d, %d' % (S_T0, S_KV, OPT.get('pfd', 1)*32*8192)); P('s_mov_b32 m0, %d' % L_S); P('s_add_u32 s%d, s%d, %d' % (S_T1, S_VV, OPT.get('pfd', 1)*32*8192))
    if kvwait: P('s_cmp_eq_u32 s%d, 0' % S_KVRDY); P('s_cbranch_scc1 %s' % lab)
    P('buffer_load_dword v%d, %s, s%d offen%s lds' % (tmp, WS, S_T0, OPT.get('pff', ''))); P('buffer_load_dword v%d, %s, s%d offen%s lds' % (tmp, WS, S_T1, OPT.get('pff', '')))
    P.label(lab)
def pre_step(P):
    if not OPT.get('kxtop'): kx_loads(P)
    for r in range(V_QA, V_VB+4, 2): P('v_mov_b64 %s, 0' % vr(r,2))
    P(blk_s(('k',0,0), V_ST)); P(blk_s(('k',1,0), V_ST+8))

class Filler:
    def __init__(self): self.q = []
    def add(self, t): self.q.append(t)
    def emit(self, P, n):
        for _ in range(n):
            if self.q: P(self.q.pop(0))
    def drain(self, P): self.emit(P, len(self.q))

def bop(blk, buf): return REG_OF[blk][0] if blk in REG_OF else vr(buf, 8)

def main_loop(k, st='', kvwait=None, publish=None):
    P = Prog()
    SB = [V_ST, V_ST+8]
    P.label('L_chain_loop')
    stamp(P, 0)
    P(aread_s(0, V_AR)); P(aread_s(1, V_AR+4))
    if OPT.get('kxtop'): kx_loads(P)
    for t in range(9):
        a = V_AR + 4*(t % 3)
        if t + 2 < 9: P(aread_s(t+2, V_AR + 4*((t+2) % 3)))
        if t < 8:
            smf(P, V_QA, a, bop(('q',0,t), 0))
            if t == 6: P('WAIT_SPEC'); P('v_mov_b64 %s, 0' % vr(V_VB,2))
            smf(P, V_QB, a, bop(('q',1,t), 0))
            if t == 6: P('v_mov_b64 %s, 0' % vr(V_VB+2,2))
            if t % 2 == 1: P(blk_s(('k',0,t+1), SB[0]))
            smf(P, V_KA, a, bop(('k',0,t), SB[0]))
            if t % 2 == 1: P(blk_s(('k',1,t+1), SB[1]))
            smf(P, V_KB, a, bop(('k',1,t), SB[1]))
    a = V_AR + 4*(8 % 3)
    smf(P, V_QA, a, bop(('q',0,8), 0)); smf(P, V_QB, a, bop(('q',1,8), 0))
    vorder = [2, 6, 0, 1, 3, 4, 5, 7, 8]
    ring = [V_AR, V_AR+4, V_AR+8]
    P(aread_s(vorder[0], ring[0])); P(aread_s(vorder[1], ring[1]))
    smf(P, V_KA, a, bop(('k',0,8), SB[0])); P(blk_s(('v',0,2), SB[0]))
    smf(P, V_KB, a, bop(('k',1,8), SB[1])); P(blk_s(('v',1,2), SB[1]))
    stamp(P, 1)
    F = Filler()
    for i, t in enumerate(vorder):
        ar = ring[i % 3] if i != 2 else ring[2]
        g1 = []; g2 = []
        if i + 2 < 9: g1.append(aread_s(vorder[i+2], ring[(i+2) % 3]))
        s1 = smf_s(V_VA, ar, bop(('v',0,t), SB[0])); s2 = smf_s(V_VB, ar, bop(('v',1,t), SB[1]))
        if t == 2:
            F.add('\n'.join([s1, blk_s(('v',0,6), SB[0])])); F.add('\n'.join([s2, blk_s(('v',1,6), SB[1])] + g1))
        else:
            F.add('\n'.join([s1] + g1)); F.add(s2)
    cvt(P, V_QA, V_QA, V_QA+1); cvt(P, V_QA+1, V_QA+2, V_QA+3); cvt(P, V_QB, V_QB, V_QB+1); cvt(P, V_QB+1, V_QB+2, V_QB+3)
    mfma16(P, V_QA, V_QA, V_BSEL); mfma16(P, V_QB, V_QB, V_BSEL)
    cvt(P, V_KA, V_KA, V_KA+1); cvt(P, V_KA+1, V_KA+2, V_KA+3); cvt(P, V_KB, V_KB, V_KB+1); cvt(P, V_KB+1, V_KB+2, V_KB+3)
    mfma16(P, V_KA, V_KA, V_BSEL); mfma16(P, V_KB, V_KB, V_BSEL)
    for i in range(4): cvt(P, V_QA+i, V_QA+2*i, V_QA+2*i+1)
    qop = V_QA; kop = V_KA
    X0, X1, MM = V_QB, V_KF+4, V_KB
    mfma32(P, X0, V_KF, qop); mfma32(P, X1, V_KF+4, qop)
    for i in range(4): cvt(P, V_KA+i, V_KA+2*i, V_KA+2*i+1)
    F.emit(P, 1)
    mfma32(P, MM, kop, qop)
    F.emit(P, 1)
    P('s_mov_b64 exec, s[%d:%d]' % (S_EXN8, S_EXN8+1))
    P('ds_write_b128 v%d, %s' % (V_SW, vr(X0,4)))
    P('ds_write_b128 v%d, %s offset:512' % (V_SW, vr(X1,4)))
    P('buffer_store_dwordx4 %s, v%d, %s, s%d offen sc1' % (vr(kop,4), V_G16, WS, S_KMW))
    P('s_mov_b64 exec, s[%d:%d]' % (S_EXMM, S_EXMM+1))
    P('ds_write_b128 v%d, %s offset:1024' % (V_SW, vr(MM,4)))
    P('s_mov_b64 exec, -1')
    F.emit(P, 2)
    P('buffer_load_dwordx4 %s, v%d, %s, s%d offen%s' % (vr(V_KF,4), V_VX, WS, S_VV, OPT.get('kvf', '')))
    P('buffer_load_dwordx4 %s, v%d, %s, s%d offen offset:128%s' % (vr(V_KF+4,4), V_VX, WS, S_VV, OPT.get('kvf', '')))
    F.emit(P, 2)
    P('buffer_store_dwordx2 %s, v%d, %s, s%d offen sc1' % (vr(V_VMH,2), V_VM, WS, S_VMP))
    if publish: publish(P)
    P('WAIT_LDSW')
    stamp(P, 2)
    P('s_barrier')
    X, M = V_QA, SB[1]
    for e in range(4): P('ds_read_b128 %s, v%d offset:%d' % (vr(V_QA+4*e,4), V_SR, 1280*e))
    F.emit(P, 2)
    for e in range(2): P('ds_read_b128 %s, v%d offset:%d' % (vr(M+4*e,4), V_SM, 1280*e))
    F.emit(P, 5)
    pk_add(P, X, X, X+4); pk_add(P, X+2, X+2, X+6); F.emit(P, 1)
    pk_add(P, X+8, X+8, X+12); pk_add(P, X+10, X+10, X+14); F.emit(P, 1)
    pk_add(P, M, M, M+4); pk_add(P, M+2, M+2, M+6); F.emit(P, 1)
    pk_add(P, X, X, X+8); pk_add(P, X+2, X+2, X+10); F.drain(P)
    for i in range(4): P('v_add_f32_dpp v%d, v%d, v%d %s' % (M+i, M+i, M+i, DPP8))
    mx, t1 = M+4, M+5
    P('v_max3_f32 v%d, v%d, v%d, v%d' % (mx, X, X+1, X+2)); P('v_max3_f32 v%d, v%d, v%d, v%d' % (mx, mx, X+3, M))
    P('v_max3_f32 v%d, v%d, v%d, v%d' % (mx, mx, M+1, M+2)); P('v_max_f32 v%d, v%d, v%d' % (mx, mx, M+3))
    AV = V_QA + 10
    P('v_mov_b32 v%d, 0x3f803f80' % (V_QA+14)); P('v_mov_b32 v%d, 0x3f803f80' % (V_QA+15))
    P('v_max_f32_dpp v%d, v%d, v%d %s' % (mx, mx, mx, DPP8))
    P('v_mov_b32 v%d, 0x3f003f00' % (M+6))
    P('v_mov_b32 v%d, v%d' % (t1, mx))
    P('v_mov_b32 v%d, 0x3f003f00' % (M+7))
    cvt(P, AV, V_VA, V_VA+1)
    P('v_permlane16_swap_b32 v%d, v%d' % (mx, t1))
    P('v_max_f32 v%d, v%d, v%d' % (mx, mx, t1))
    P('v_mov_b32 v%d, v%d' % (t1, mx))
    cvt(P, AV+1, V_VA+2, V_VA+3); cvt(P, AV+2, V_VB, V_VB+1)
    P('v_permlane32_swap_b32 v%d, v%d' % (mx, t1))
    P('v_max_f32 v%d, v%d, v%d' % (mx, mx, t1))
    P('v_mul_f32 v%d, s%d, v%d' % (mx, S_C, mx))
    vals = [X+i for i in range(4)] + [M+i for i in range(4)]
    for r in vals: P('v_fma_f32 v%d, v%d, s%d, -v%d' % (r, r, S_C, mx))
    for r in vals: P('v_exp_f32 v%d, v%d' % (r, r))
    px, pm = V_QA+4, V_QA+8
    cvt(P, px, X, X+1); cvt(P, px+1, X+2, X+3); cvt(P, pm, M, M+1); cvt(P, pm+1, M+2, M+3)
    P('v_mov_b32_dpp v%d, v%d %s' % (px+2, px, DPP8)); P('v_mov_b32_dpp v%d, v%d %s' % (px+3, px+1, DPP8))
    cvt(P, AV+3, V_VB+2, V_VB+3)
    oa, ob, sm = V_AR, V_AR+4, V_AR+8
    ONES, HALF = V_QA+14, M+6
    mfma16(P, sm, HALF, pm); mfma16(P, sm, ONES, px, sm); mfma16(P, sm, ONES, px+2, sm)
    mfma32(P, oa, V_KF, px); mfma32(P, ob, V_KF+4, px)
    mfma16(P, oa, AV, pm, oa); mfma16(P, ob, AV+2, pm, ob)
    ow = M
    P('v_add_u32 v%d, s%d, v%d' % (ow, S_OW, V_G16))
    P('v_rcp_f32 v%d, v%d' % (sm, sm))
    lds_o = [('od', p, 3) for p in range(4)]
    P(blk_s(lds_o[0], SB[0]))
    for i in range(0, 8, 2): P('v_pk_mul_f32 %s, %s, %s op_sel_hi:[1,0]' % (vr(oa+i,2), vr(oa+i,2), vr(sm,2)))
    og = V_QA + 12
    for i in range(4): cvt(P, og+i, oa+2*i, oa+2*i+1)
    P('s_mov_b64 exec, s[%d:%d]' % (S_EXN8, S_EXN8+1))
    P('ds_write_b128 v%d, %s' % (ow, vr(og,4)))
    P('s_mov_b64 exec, -1')
    P('s_cmp_eq_u32 s%d, 63' % S_STEP)
    P('s_cbranch_scc1 L_chain_last')
    th = V_AR + 8
    accs = [V_KF, V_KF+4, V_AR, V_AR+4]
    for r in list(range(V_KF, V_KF+8, 2)) + [th, th+2]: P('v_mov_b64 %s, 0' % vr(r,2))
    P(blk_s(lds_o[1], SB[1]))
    if OPT.get('pf', 1) == 2: prefetch(P, 'L_nopf', V_QA+4, kvwait)
    P('WAIT_LDSW')
    stamp(P, 3)
    P('s_barrier')
    dual, half = V_QA, V_AR
    for s2 in range(2): P('ds_read_b128 %s, v%d offset:%d' % (vr(half+4*s2,4), V_SR, L_O - L_S + 1024*s2))
    for c in range(4): P('ds_read_b128 %s, v%d offset:%d' % (vr(dual+4*c,4), V_G16, L_O + 512*c))
    smf(P, th, half, bop(('oh',0), 0)); smf(P, th, half+4, bop(('oh',1), 0))
    def tagst(reg): P('v_bfi_b32 v%d, 1, s%d, v%d' % (reg, S_TAG, reg))
    def pair_store(pr):
        acc = accs[pr]
        cvt(P, acc, acc, acc+1); cvt(P, acc+1, acc+2, acc+3); tagst(acc)
        off = (1 + 2*pr)*1024
        P('buffer_store_dwordx2 %s, v%d, %s, s%d offen offset:%d%s' % (vr(acc,2), V_PST, WS, S_PCUR if off < 4096 else S_PCUR4, off & 4095, st))
    def quad_a(q):
        A, B = accs[2*q], accs[2*q+1]
        cvt(P, A, A, A+1); cvt(P, A+1, A+2, A+3); cvt(P, A+2, B, B+1); cvt(P, A+3, B+2, B+3)
    def quad_b(q):
        A = accs[2*q]
        tagst(A); tagst(A+2)
        P('v_permlane16_swap_b32 v%d, v%d' % (A, A+2)); P('v_permlane16_swap_b32 v%d, v%d' % (A+1, A+3))
        P('buffer_store_dwordx4 %s, v%d, %s, s%d offen offset:1024%s' % (vr(A,4), V_PST, WS, S_PCUR if q == 0 else S_PCUR4, st))
    def quad_a1():
        A = accs[2]
        cvt(P, A, A, A+1); cvt(P, A+1, A+2, A+3); tagst(A)
    def quad_b1():
        A, B = accs[2], accs[3]
        cvt(P, A+2, B, B+1); cvt(P, A+3, B+2, B+3); tagst(A+2)
        P('v_permlane16_swap_b32 v%d, v%d' % (A, A+2)); P('v_permlane16_swap_b32 v%d, v%d' % (A+1, A+3))
        P('buffer_store_dwordx4 %s, v%d, %s, s%d offen offset:1024%s' % (vr(A,4), V_PST, WS, S_PCUR4, st))
    for pr in range(4):
        for c in range(4):
            b = ('od', pr, c)
            smf(P, accs[pr], dual + 4*c, bop(b, SB[pr % 2]))
            if c == 3 and pr + 2 < 4: P(blk_s(lds_o[pr+2], SB[pr % 2]))
            if pr == 0 and c in (0, 1):
                for r in range(V_AR + 4*c, V_AR + 4*c + 4, 2): P('v_mov_b64 %s, 0' % vr(r,2))
            if pr == 0 and c == 2: P('v_permlane32_swap_b32 v%d, v%d' % (th, th+1))
            if pr == 0 and c == 3: P('v_permlane32_swap_b32 v%d, v%d' % (th+2, th+3))
            if pr == 1 and c == 0:
                P('v_add_f32 v%d, v%d, v%d' % (th, th, th+1)); P('v_add_f32 v%d, v%d, v%d' % (th+2, th+2, th+3))
            if pr == 1 and c == 1:
                cvt(P, th, th, th+2); tagst(th)
                P('buffer_store_dword v%d, v%d, %s, s%d offen%s' % (th, V_PT0, WS, S_PCUR, st))
            if not OPT.get('quad', 1):
                if c == 2 and pr >= 1: pair_store(pr-1)
            else:
                if pr == 2 and c == 1: quad_a(0)
                if pr == 2 and c == 2: quad_b(0)
                if pr == 3 and c == 2: quad_a1()
    if OPT.get('quad', 1): quad_b1()
    else: pair_store(3)
    stamp(P, 4)
    def idle_a(P):
        for i in range(4): P('v_permlane32_swap_b32 v%d, v%d' % (V_VA+i, V_VB+i))
        pk_add(P, V_VA, V_VA, V_VB); pk_add(P, V_VA+2, V_VA+2, V_VB+2)
        cvt(P, V_VMH, V_VA, V_VA+1); cvt(P, V_VMH+1, V_VA+2, V_VA+3)
        P('s_mov_b32 s%d, s%d' % (S_VMP, S_KM))
        if not OPT.get('nokv'):
            P('s_add_u32 s%d, s%d, %d' % (S_KV, S_KV, 32*8192)); P('s_add_u32 s%d, s%d, %d' % (S_VV, S_VV, 32*8192))
        P('s_add_u32 s%d, s%d, %d' % (S_KM, S_KM, 32*2048)); P('s_add_u32 s%d, s%d, %d' % (S_KMW, S_KMW, 32*2048))
        P('s_add_u32 s%d, s%d, s%d' % (S_G0, S_MNXT, S_GW)); P('s_add_u32 s%d, s%d, 4096' % (S_G1, S_G0)); P('s_add_u32 s%d, s%d, 8192' % (S_G2, S_MNXT))
        P('s_add_u32 s%d, s%d, 3' % (S_T1, S_STEP)); P('s_and_b32 s%d, s%d, 3' % (S_T1, S_T1)); P('s_mul_i32 s%d, s%d, %d' % (S_T1, S_T1, M_SLOT))
        P('s_add_u32 s%d, s%d, 0x%x' % (S_MPN, S_T1, WS_M))
        P('s_add_u32 s%d, s%d, 1' % (S_STEP, S_STEP))
    BR = V_QA; CK = V_QA+4
    RL = [V_AR, V_AR+4, V_AR+8, SB[1]]; D = SB[1]+4
    def red_loads(P):
        for t in range(4): P('buffer_load_dwordx4 %s, v%d, %s, s%d offen sc1 ;@spec' % (vr(RL[t],4), V_RED, WS, S_PR0+t))
    def red_check(P, par):
        if par == 0:
            P('v_or3_b32 v%d, v%d, v%d, v%d' % (CK, RL[0], RL[0]+2, RL[1])); P('v_or3_b32 v%d, v%d, v%d, v%d' % (CK+1, RL[1]+2, RL[2], RL[2]+2))
            P('v_or3_b32 v%d, v%d, v%d, v%d' % (CK, CK, RL[3], RL[3]+2)); P('v_or_b32 v%d, v%d, v%d' % (CK, CK, CK+1))
        else:
            P('v_and_b32 v%d, v%d, v%d' % (CK, RL[0], RL[0]+2)); P('v_and_b32 v%d, v%d, v%d' % (CK+1, RL[1], RL[1]+2))
            P('v_and_b32 v%d, v%d, v%d' % (CK+2, RL[2], RL[2]+2)); P('v_and_b32 v%d, v%d, v%d' % (CK+3, RL[3], RL[3]+2))
            P('v_and_b32 v%d, v%d, v%d' % (CK, CK, CK+1)); P('v_and_b32 v%d, v%d, v%d' % (CK+2, CK+2, CK+3)); P('v_and_b32 v%d, v%d, v%d' % (CK, CK, CK+2))
        P('v_and_b32 v%d, 1, v%d' % (CK, CK))
        P('v_cmp_ne_u32 vcc, s%d, v%d' % (S_TAG, CK))
    P('s_cmp_eq_u32 s%d, 0' % S_RED)
    P('s_cbranch_scc1 L_nored')
    P('buffer_store_dword v%d, v%d, %s, s%d offen%s' % (V_NEG1, V_MST, WS, S_MPOI, st))
    if OPT.get('canary'):
        P('s_memtime s[90:91]')
        P('s_cmp_eq_u32 s%d, 0' % S_TAG); P('s_cbranch_scc0 L_can1')
        for par in range(2):
            P.label('L_can%d' % par)
            for t in range(4): P('buffer_load_dword v%d, v%d, %s, s%d offen offset:8 sc1' % (V_AR+t, V_RED, WS, S_PR0+t))
            P('s_waitcnt vmcnt(0)')
            if par == 0: P('v_or3_b32 v24, v20, v21, v22'); P('v_or_b32 v24, v24, v23')
            else: P('v_and_b32 v24, v20, v21'); P('v_and_b32 v25, v22, v23'); P('v_and_b32 v24, v24, v25')
            P('v_and_b32 v24, 1, v24'); P('v_cmp_ne_u32 vcc, s%d, v24' % S_TAG)
            P('s_cbranch_vccnz L_can%d' % par)
            P('s_branch L_can_done')
        P.label('L_can_done')
        P('s_memtime s[92:93]'); P('s_waitcnt lgkmcnt(0)'); P('s_sub_u32 s%d, s92, s90' % (S_ST+3))
    delay(P, S_RDEL, 'L_rdel')
    stamp(P, 7)
    red_loads(P)
    for r in range(4): P('v_cndmask_b32 v%d, 0, v%d, s[%d:%d]' % (BR+r, V_BVAL, S_BM+2*r, S_BM+2*r+1))
    idle_a(P)
    RD = OPT.get('rdepth', 2)
    if RD == 2: red_loads(P)
    P('s_mov_b32 s%d, %d' % (S_TMO, TMO))
    P('s_cmp_eq_u32 s%d, 0' % S_TAG); P('s_cbranch_scc0 L_red_poll1')
    for par in range(2):
        P.label('L_red_poll%d' % par)
        P('s_waitcnt vmcnt(%d)' % (4 if RD == 2 else 0))
        red_check(P, par)
        P('s_cbranch_vccz L_red_done')
        if OPT['rc']: P('s_add_u32 s%d, s%d, 1' % (S_RC, S_RC))
        red_loads(P)
        P('s_sub_u32 s%d, s%d, 1' % (S_TMO, S_TMO)); P('s_cmp_lg_u32 s%d, 0' % S_TMO); P('s_cbranch_scc1 L_red_poll%d' % par)
        P('s_or_b32 s%d, s%d, 1' % (S_ERR, S_ERR))
        P('s_branch L_red_done')
    P.label('L_red_done')
    mfma32(P, D, RL[0], BR)
    for t in range(1, 4): mfma32(P, D, RL[t], BR, D)
    P('v_permlane32_swap_b32 v%d, v%d' % (D, D+1)); P('v_permlane32_swap_b32 v%d, v%d' % (D+2, D+3))
    P('v_add_f32 v%d, v%d, v%d' % (D, D, D+1)); P('v_add_f32 v%d, v%d, v%d' % (D+2, D+2, D+3))
    cvt(P, D, D, D+2)
    P('buffer_store_dword v%d, v%d, %s, s%d offen%s' % (D, V_MST, WS, S_MNXT, st))
    P('s_mov_b32 s%d, %d' % (S_T2, OPT['gdel']))
    P('s_branch L_red_done2')
    P.label('L_nored')
    idle_a(P)
    P('s_mov_b32 s%d, %d' % (S_T2, OPT['gdel0']))
    P.label('L_red_done2')
    stamp(P, 5)
    if kvwait: kvwait(P)
    GL = V_QA + 8; CK = V_QA + 9
    P('v_add_u32 v%d, s%d, v%d' % (GL, S_GW, V_L16))
    delay(P, S_T2, 'L_gdel')
    def gat_loads(P, w0):
        P('buffer_load_dwordx4 v[72:75], v%d, %s, s%d offen sc1 ;@spec' % (V_L16, WS, S_G0))
        P('buffer_load_dwordx4 v[76:79], v%d, %s, s%d offen sc1 ;@spec' % (V_L16, WS, S_G1))
        if w0: P('buffer_load_dwordx4 v[68:71], v%d, %s, s%d offen sc1 ;@spec' % (V_L16, WS, S_G2))
    def gat_check(P, w0):
        P('v_max3_u32 v%d, v72, v73, v74' % CK); P('v_max3_u32 v%d, v75, v76, v77' % (CK+1))
        P('v_max3_u32 v%d, v%d, v78, v79' % (CK, CK))
        if w0:
            P('v_max3_u32 v%d, v%d, v68, v69' % (CK+1, CK+1)); P('v_max3_u32 v%d, v%d, v70, v71' % (CK, CK))
        P('v_max_u32 v%d, v%d, v%d' % (CK, CK, CK+1))
        P('v_cmp_eq_u32 vcc, -1, v%d' % CK)
    def idle_b(P):
        P('s_xor_b32 s%d, s%d, 1' % (S_TAG, S_TAG))
        P('s_mov_b32 s%d, s%d' % (S_MNXT, S_MPOI)); P('s_mov_b32 s%d, s%d' % (S_MPOI, S_MPN))
        P('s_mov_b32 s%d, %d' % (S_TMO, TMO))
        for r in (V_QA, V_QA+2, V_QA+4, V_QA+6, V_QA+12, V_QA+14, V_VA, V_VA+2): P('v_mov_b64 %s, 0' % vr(r,2))
        P(blk_s(('k',0,0), V_ST))
    P('s_cmp_eq_u32 s%d, 0' % S_W)
    P('s_cbranch_scc1 L_gat0')
    for w0, pfx in ((False, 'L_gat'), (True, 'L_gat0')):
        n = 3 if w0 else 2
        if w0: P.label('L_gat0')
        gat_loads(P, w0)
        idle_b(P)
        GD = OPT.get('gdepth', 2)
        if GD == 2: gat_loads(P, w0)
        P.label(pfx + '_poll')
        P('s_waitcnt vmcnt(%d)' % (n if GD == 2 else 0))
        gat_check(P, w0)
        P('s_cbranch_vccz %s_ok' % pfx)
        if OPT['rc']: P('s_add_u32 s%d, s%d, 1' % (S_RC+1, S_RC+1))
        gat_loads(P, w0)
        P('s_sub_u32 s%d, s%d, 1' % (S_TMO, S_TMO)); P('s_cmp_lg_u32 s%d, 0' % S_TMO); P('s_cbranch_scc1 %s_poll' % pfx)
        P('s_or_b32 s%d, s%d, 2' % (S_ERR, S_ERR))
        P.label(pfx + '_ok')
        P('ds_write_b128 v%d, v[72:75] offset:%d' % (GL, L_MF))
        P('ds_write_b128 v%d, v[76:79] offset:%d' % (GL, L_MF + 4096))
        if w0: P('ds_write_b128 v%d, v[68:71] offset:%d' % (V_L16, L_MF + 8192))
        P(blk_s(('k',1,0), V_ST+8))
        P('v_mov_b64 %s, 0' % vr(V_QA+8,2)); P('v_mov_b64 %s, 0' % vr(V_QA+10,2))
        if not w0: P('s_branch L_gat_w')
    P.label('L_gat_w')
    stamp(P, 6)
    flush_stamps(P)
    P('WAIT_LDSW')
    P('s_barrier')
    P('s_branch L_chain_loop')
    P.label('L_chain_last')
    for i in range(4): P('v_permlane32_swap_b32 v%d, v%d' % (V_VA+i, V_VB+i))
    pk_add(P, V_VA, V_VA, V_VB); pk_add(P, V_VA+2, V_VA+2, V_VB+2)
    cvt(P, V_VA, V_VA, V_VA+1); cvt(P, V_VA+1, V_VA+2, V_VA+3)
    P('buffer_store_dwordx2 %s, v%d, %s, s%d offen sc1' % (vr(V_VA,2), V_VM, WS, S_KM))
    P('s_branch L_chain_done')
    return P


def early_init(st, cb_off):
    def hook(P, second=False):
        if not second:
            P('s_mov_b32 s64, s%d' % (S_PTR+8)); P('s_mov_b32 s65, s%d' % (S_PTR+9)); P('s_mov_b32 s66, %d' % (8*576*2)); P('s_mov_b32 s67, 0x20000')
            P('s_lshl_b32 s%d, s%d, 6' % (S_T0, S_W)); P('v_add_u32 v60, s%d, v0' % S_T0)
            for i in range(3):
                P('v_add_u32 v61, %d, v60' % (256*i)); P('v_and_b32 v62, 7, v61'); P('v_lshrrev_b32 v63, 3, v61')
                P('s_movk_i32 s%d, 1152' % S_T1); P('v_mul_lo_u32 v62, v62, s%d' % S_T1); P('v_lshl_add_u32 v62, v63, 4, v62')
                P('v_cmp_gt_u32 vcc, 576, v61'); P('v_mov_b32 v63, 0x%x' % OOB); P('v_cndmask_b32 v62, v63, v62, vcc')
                P('buffer_load_dwordx4 %s, v62, s[64:67], 0 offen' % vr(64+4*i,4))
            P('v_mov_b32 v76, -1'); P('v_mov_b32 v77, -1'); P('v_mov_b32 v78, -1'); P('v_mov_b32 v79, -1')
            P('s_mul_i32 s%d, s%d, %d' % (S_T0, S_H, P_HEAD)); P('s_add_u32 s%d, s%d, 0x%x' % (S_T0, S_T0, WS_P))
            P('v_lshlrev_b32 v61, 4, v60')
            for i in range(3):
                if i == 2:
                    P('v_mov_b32 v63, 0x%x' % OOB); P('v_cmp_gt_u32 vcc, 64, v60'); P('v_cndmask_b32 v61, v63, v61, vcc')
                P('s_add_u32 s%d, s%d, %d' % (S_T1, S_T0, 4096*i)); P('buffer_store_dwordx4 v[76:79], v61, %s, s%d offen%s' % (WS, S_T1, st))
            P('s_sub_u32 s%d, s%d, 1' % (S_T0, S_W)); P('s_lshl_b32 s%d, s%d, 5' % (S_T0, S_T0)); P('s_add_u32 s%d, s%d, s%d' % (S_T0, S_T0, S_H))
            P('s_cmp_lt_u32 s%d, 72' % S_T0); P('s_cselect_b32 s%d, 1, 0' % S_T1); P('s_cmp_eq_u32 s%d, 0' % S_W); P('s_cselect_b32 s%d, 0, s%d' % (S_T1, S_T1))
            P('s_lshl_b32 s%d, s%d, 7' % (S_T0, S_T0))
            P('v_lshlrev_b32 v61, 2, v0'); P('v_mov_b32 v63, 0x%x' % OOB); P('v_cmp_gt_u32 vcc, 32, v0'); P('v_cndmask_b32 v61, v63, v61, vcc')
            P('s_cmp_eq_u32 s%d, 0' % S_T1); P('s_cselect_b64 vcc, -1, 0'); P('v_cndmask_b32 v61, v61, v63, vcc')
            for slot in range(4):
                P('s_add_u32 s%d, s%d, 0x%x' % (S_T1, S_T0, WS_M + slot*M_SLOT)); P('buffer_store_dword v76, v61, %s, s%d offen%s' % (WS, S_T1, st))
        else:
            P('s_mov_b32 s%d, 0x05040100' % S_PERM); P('s_mov_b32 s%d, 0x07060302' % S_PERM2)
            for i in range(3):
                d = 64 + 4*i
                P('v_perm_b32 v76, v%d, v%d, s%d' % (d+1, d, S_PERM)); P('v_perm_b32 v77, v%d, v%d, s%d' % (d+3, d+2, S_PERM))
                P('v_perm_b32 v78, v%d, v%d, s%d' % (d+1, d, S_PERM2)); P('v_perm_b32 v79, v%d, v%d, s%d' % (d+3, d+2, S_PERM2))
                P('v_add_u32 v61, %d, v60' % (256*i)); P('v_cmp_gt_u32 vcc, 576, v61'); P('v_lshlrev_b32 v61, 4, v61')
                P('s_and_saveexec_b64 s[%d:%d], vcc' % (S_TS, S_TS+1))
                P('ds_write_b128 v61, v[76:79] offset:%d' % L_MF)
                P('s_mov_b64 exec, s[%d:%d]' % (S_TS, S_TS+1))
            if cb_off is not None:
                P('s_cmp_eq_u32 s%d, 0' % S_W); P('s_cbranch_scc0 L_ei_%s' % ('s' if st else 'f'))
                P('s_mov_b32 s%d, 0x%x' % (S_T1, cb_off)); P('v_mov_b32 v61, 1'); P('s_mov_b64 exec, 1')
                P('buffer_atomic_add v61, off, %s, s%d' % (WS, S_T1)); P('s_mov_b64 exec, -1')
                P.label('L_ei_%s' % ('s' if st else 'f'))
    return hook
```

```python
from asmlib import *
from common import *
import gemm as Gm
from gemm import *

def srd(P, s, lo, hi, size):
    P('s_mov_b32 s%d, s%d' % (s, lo)); P('s_mov_b32 s%d, s%d' % (s+1, hi))
    P('s_mov_b32 s%d, 0x%x' % (s+2, size)); P('s_mov_b32 s%d, 0x20000' % (s+3))

def load_ptrs(P, names, sbase):
    for i, n in enumerate(names): P('s_load_dwordx2 s[%d:%d], s[0:1], %d' % (sbase+2*i, sbase+2*i+1, KA[n]))

def std_entry(P, nwg, endlabel):
    P('s_cmp_ge_u32 s2, %d' % nwg); P('s_cbranch_scc1 %s' % endlabel)
    P('s_load_dwordx2 s[8:9], s[0:1], %d' % KA['ws'])
    P('v_lshrrev_b32 v1, 6, v0'); P('v_and_b32 v0, 63, v0')
    P('s_nop 0')
    P('v_readfirstlane_b32 s%d, v1' % G_W)
    P('s_mov_b32 s10, 0x%x' % WS_SIZE); P('s_mov_b32 s11, 0x20000')

def ln_rows(P, sRow0, stflag=''):
    X = 's[%d:%d]' % (G_BSRD, G_BSRD+3)
    D = 20
    F = 60
    P('v_lshrrev_b32 v2, 3, v0'); P('v_and_b32 v3, 7, v0')
    P('v_add_u32 v2, s%d, v2' % sRow0)
    P('s_movk_i32 s%d, 1152' % G_T0); P('v_mul_lo_u32 v4, v2, s%d' % G_T0)
    P('v_lshl_add_u32 v4, v3, 4, v4')
    for i in range(9): P('buffer_load_dwordx4 %s, v4, %s, 0 offen offset:%d' % (vr(D+4*i,4), X, 128*i))
    for i in range(36):
        P('v_lshlrev_b32 v%d, 16, v%d' % (F+2*i, D+i)); P('v_and_b32 v%d, 0xffff0000, v%d' % (F+2*i+1, D+i))
    def rsum(dst, srcs_first):
        pass
    def xlane_sum(r, t):
        for sh in (1, 2, 4):
            if sh == 1: P('v_add_f32_dpp v%d, v%d, v%d quad_perm:[1,0,3,2] row_mask:0xf bank_mask:0xf' % (r, r, r))
            elif sh == 2: P('v_add_f32_dpp v%d, v%d, v%d quad_perm:[2,3,0,1] row_mask:0xf bank_mask:0xf' % (r, r, r))
            else: P('v_add_f32_dpp v%d, v%d, v%d row_half_mirror row_mask:0xf bank_mask:0xf' % (r, r, r))
    def rbf(r, t):
        P('v_cvt_pk_bf16_f32 v%d, v%d, v%d' % (r, r, r)); P('v_lshlrev_b32 v%d, 16, v%d' % (r, r))
    def layernorm():
        P('v_add_f32 v5, v%d, v%d' % (F, F+1))
        for i in range(2, 72): P('v_add_f32 v5, v5, v%d' % (F+i))
        xlane_sum(5, 6)
        P('v_mul_f32 v5, s%d, v5' % G_T1)
        P('v_sub_f32 v6, v%d, v5' % F); P('v_mul_f32 v7, v6, v6')
        for i in range(1, 72):
            P('v_sub_f32 v6, v%d, v5' % (F+i)); P('v_fmac_f32 v7, v6, v6')
        xlane_sum(7, 6)
        P('v_mul_f32 v7, s%d, v7' % G_T1)
        rbf(5, 6); rbf(7, 6)
        P('v_add_f32 v7, s%d, v7' % G_T2); rbf(7, 6)
        P('v_sqrt_f32 v7, v7'); P('s_nop 0'); rbf(7, 6)
        P('v_rcp_f32 v8, v7')
        for i in range(72):
            r = F + i
            P('v_sub_f32 v%d, v%d, v5' % (r, r))
        for i in range(0, 72, 2):
            r = F + i
            P('v_cvt_pk_bf16_f32 v6, v%d, v%d' % (r, r+1))
            P('v_lshlrev_b32 v%d, 16, v6' % r); P('v_and_b32 v%d, 0xffff0000, v6' % (r+1))
        for i in range(72):
            r = F + i
            P('v_mul_f32 v6, v%d, v8' % r)
            P('v_fma_f32 v9, -v6, v7, v%d' % r)
            P('v_fma_f32 v%d, v9, v8, v6' % r)
        for i in range(0, 72, 2):
            r = F + i
            P('v_cvt_pk_bf16_f32 v%d, v%d, v%d' % (D + i//2, r, r+1))
    def store(region):
        for i in range(9):
            d = D + 4*i
            P('v_cndmask_b32 v10, v%d, v%d, s[%d:%d]' % (d+2, d, 84, 85))
            P('v_cndmask_b32 v11, v%d, v%d, s[%d:%d]' % (d+3, d+1, 84, 85))
            P('v_mov_b32_dpp v12, v10 quad_perm:[1,0,3,2] row_mask:0xf bank_mask:0xf')
            P('v_mov_b32_dpp v13, v11 quad_perm:[1,0,3,2] row_mask:0xf bank_mask:0xf')
            P('v_cndmask_b32 v14, v%d, v12, s[%d:%d]' % (d, 84, 85))
            P('v_cndmask_b32 v15, v%d, v13, s[%d:%d]' % (d+1, 84, 85))
            P('v_cndmask_b32 v16, v12, v%d, s[%d:%d]' % (d+2, 84, 85))
            P('v_cndmask_b32 v17, v13, v%d, s[%d:%d]' % (d+3, 84, 85))
            P('s_add_u32 s%d, s%d, %d' % (G_T3, G_DST, region + i*4096))
            P('buffer_store_dwordx4 v[14:17], v18, %s, s%d offen%s' % (WSs, G_T3, stflag))
    P('s_mov_b32 s%d, 0x3ae38e39' % G_T1)
    P('s_mov_b32 s%d, 0x3727c5ac' % G_T2)
    P('v_and_b32 v10, 1, v3'); P('v_cmp_eq_u32 s[%d:%d], 1, v10' % (84, 85))
    P('v_lshrrev_b32 v18, 1, v3'); P('v_lshlrev_b32 v18, 10, v18'); P('v_lshl_add_u32 v18, v10, 9, v18')
    P('v_and_b32 v11, 31, v2'); P('v_lshl_add_u32 v18, v11, 4, v18')
    P('s_lshr_b32 s%d, s%d, 5' % (G_DST, sRow0)); P('s_mul_i32 s%d, s%d, 36864' % (G_DST, G_DST))
    layernorm()
    store(WS_XNF)
    for i in range(36):
        P('v_lshlrev_b32 v%d, 16, v%d' % (F+2*i, D+i)); P('v_and_b32 v%d, 0xffff0000, v%d' % (F+2*i+1, D+i))
    layernorm()
    store(WS_YF)

def ln_kernel(k, end):
    P = Prog()
    std_entry(P, 64, end)
    load_ptrs(P, ['x'], 44)
    P('s_waitcnt lgkmcnt(0)')
    srd(P, G_BSRD, 44, 45, 2048*1152)
    P('s_lshl_b32 s46, s2, 5'); P('s_lshl_b32 s47, s%d, 3' % G_W); P('s_add_u32 s46, s46, s47')
    ln_rows(P, 46)
    P('s_waitcnt vmcnt(0)')
    k.straight(P)

MAPX = True
DIAG = False
def gemma_kernel(k, end, nwg=256):
    gk = Gemm(8, 2, 8192, 'qkv'); gh = Gemm(8, 2, 9216, 'h')
    gk.stflag = ''; gh.stflag = ''
    P = Prog()
    std_entry(P, nwg, end)
    load_ptrs(P, ['Wk', 'Wv', 'Wq', 'w1', 'b1'], 48)
    P('s_waitcnt lgkmcnt(0)')
    srd(P, G_BSRD, 56, 57, 4608*2)
    P('s_mov_b32 s%d, 0xc0135761' % G_C0)
    P('s_mov_b32 s%d, 0xbdd2d3e7' % G_C1)
    P('s_mov_b32 s%d, s2' % G_TASK)
    k.straight(P)
    P = Prog()
    P.label('L_ga_task')
    P('s_cmp_ge_u32 s%d, %d' % (G_TASK, 256*5 if MAPX else 16*66)); P('s_cbranch_scc1 %s' % end)
    if MAPX:
        P('s_and_b32 s46, s%d, 255' % G_TASK); P('s_lshr_b32 s47, s%d, 8' % G_TASK)
        P('s_lshr_b32 s%d, s46, 3' % G_TT); P('s_lshr_b32 s%d, s%d, 4' % (G_FG, G_TT)); P('s_and_b32 s%d, s%d, 15' % (G_TT, G_TT))
        P('s_lshl_b32 s%d, s%d, 3' % (G_FG, G_FG)); P('s_and_b32 s46, s46, 7'); P('s_add_u32 s%d, s%d, s46' % (G_FG, G_FG))
        P('s_lshl_b32 s47, s47, 4'); P('s_add_u32 s%d, s%d, s47' % (G_FG, G_FG))
        P('s_cmp_ge_u32 s%d, 66' % G_FG); P('s_cbranch_scc1 L_ga_next')
    else:
        P('s_and_b32 s%d, s%d, 15' % (G_TT, G_TASK)); P('s_lshr_b32 s%d, s%d, 4' % (G_FG, G_TASK))
    P('s_lshl_b32 s45, s%d, 2' % G_TT); P('s_add_u32 s45, s45, s%d' % G_W)
    P('s_cmp_ge_u32 s%d, 48' % G_FG); P('s_cbranch_scc1 L_ga_h')
    gk.setup(P)
    P('s_lshr_b32 s46, s%d, 4' % G_FG); P('s_and_b32 s47, s%d, 15' % G_FG)
    P('s_mov_b32 s12, s48'); P('s_mov_b32 s13, s49')
    P('s_cmp_eq_u32 s46, 1'); P('s_cselect_b32 s12, s50, s12'); P('s_cselect_b32 s13, s51, s13')
    P('s_cmp_eq_u32 s46, 2'); P('s_cselect_b32 s12, s52, s12'); P('s_cselect_b32 s13, s53, s13')
    P('s_mov_b32 s14, 0x%x' % (576*8192)); P('s_mov_b32 s15, 0x20000')
    P('s_lshl_b32 s%d, s47, 9' % G_WOFF)
    P('s_mul_i32 s%d, s%d, %d' % (G_T0, G_W, 8*8192)); P('s_add_u32 s%d, s%d, s%d' % (G_WOFF, G_WOFF, G_T0))
    P('s_mul_i32 s%d, s45, 36864' % G_XOFF); P('s_add_u32 s%d, s%d, 0x%x' % (G_XOFF, G_XOFF, WS_XNF))
    P('s_lshl_b32 s%d, s45, 5' % G_DST); P('s_lshl_b32 s%d, s47, 1' % G_T0); P('s_add_u32 s%d, s%d, s%d' % (G_DST, G_DST, G_T0))
    P('s_lshl_b32 s%d, s%d, 13' % (G_DST, G_DST)); P('s_lshl_b32 s%d, s46, 24' % G_T0)
    P('s_add_u32 s%d, s%d, s%d' % (G_DST, G_DST, G_T0)); P('s_add_u32 s%d, s%d, 0x%x' % (G_DST, G_DST, WS_KF))
    if DIAG: P('s_memtime s[64:65]')
    gk.prologue(P); zero_acc(gk, P); gk.first_reads(P)
    P('s_mov_b32 s%d, 9' % G_CNT)
    if DIAG: P('s_memtime s[66:67]'); P('s_waitcnt lgkmcnt(0)')
    P('s_cmp_eq_u32 s46, 1'); P('s_cbranch_scc1 L_ga_v')
    k.straight(P)
    k.loop(gk.body(False, 'L_ga_kq_loop'))
    P = Prog()
    if DIAG: P('s_memtime s[68:69]')
    P('s_waitcnt vmcnt(0)'); epi_kq(gk, P)
    if DIAG:
        P('s_memtime s[70:71]'); P('s_waitcnt lgkmcnt(0)')
        P('s_sub_u32 s66, s66, s64'); P('s_sub_u32 s68, s68, s64'); P('s_sub_u32 s70, s70, s64')
        P('s_lshl_b32 s72, s%d, 4' % G_TASK); P('s_add_u32 s72, s72, 0x%x' % WS_STAT)
        P('v_mov_b32 v2, s66'); P('v_mov_b32 v3, s68'); P('v_mov_b32 v4, s70'); P('v_mov_b32 v5, s64')
        P('buffer_store_dwordx4 v[2:5], off, %s, s72' % WSs)
    P('s_branch L_ga_next'); P.label('L_ga_v'); k.straight(P)
    k.loop(gk.body(True, 'L_ga_v_loop'))
    P = Prog(); P('s_waitcnt vmcnt(0)'); epi_v(gk, P); P('s_branch L_ga_next')
    P.label('L_ga_h')
    gh.setup(P)
    P('s_sub_u32 s47, s%d, 48' % G_FG)
    srd(P, G_WSRD, 54, 55, 576*9216)
    P('s_lshl_b32 s%d, s47, 9' % G_WOFF)
    P('s_mov_b32 s%d, s%d' % (G_T3, G_WOFF))
    P('s_mul_i32 s%d, s%d, %d' % (G_T0, G_W, 8*9216)); P('s_add_u32 s%d, s%d, s%d' % (G_WOFF, G_WOFF, G_T0))
    P('s_mul_i32 s%d, s45, 36864' % G_XOFF); P('s_add_u32 s%d, s%d, 0x%x' % (G_XOFF, G_XOFF, WS_YF))
    P('s_mul_i32 s%d, s45, %d' % (G_DST, 288*1024)); P('s_lshl_b32 s%d, s47, 14' % G_T0)
    P('s_add_u32 s%d, s%d, s%d' % (G_DST, G_DST, G_T0)); P('s_add_u32 s%d, s%d, 0x%x' % (G_DST, G_DST, WS_HF))
    init_bias(gh, P)
    gh.prologue(P); gh.first_reads(P)
    P('s_mov_b32 s%d, 9' % G_CNT)
    k.straight(P)
    k.loop(gh.body(False, 'L_ga_h_loop'))
    P = Prog(); P('s_waitcnt vmcnt(0)'); epi_h(gh, P)
    P.label('L_ga_next')
    P('s_add_u32 s%d, s%d, %d' % (G_TASK, G_TASK, nwg))
    P('s_branch L_ga_task')
    k.straight(P)

A_C = 40
A_MASK = 44
A_BASE = 76; A_S = 77; A_H = 78; A_T = 79
def attn_setup(P):
    P('v_lshlrev_b32 v1, 4, v0')
    P('v_and_b32 v5, 31, v0'); P('v_lshrrev_b32 v6, 5, v0')
    P('v_lshlrev_b32 v2, 7, v6'); P('v_lshl_add_u32 v2, v5, 4, v2')
    P('v_mov_b32 v7, 0x40000000'); P('v_cmp_gt_u32 vcc, 8, v5'); P('v_cndmask_b32 v2, v7, v2, vcc')
    P('v_lshlrev_b32 v3, 11, v6'); P('v_lshl_add_u32 v3, v5, 4, v3')
    P('v_lshlrev_b32 v4, 3, v6'); P('v_lshl_add_u32 v4, v5, 4, v4')
    P('v_lshlrev_b32 v7, 2, v6'); P('v_sub_u32 v7, v5, v7')
    for r in range(16):
        P('v_cmp_le_i32 s[%d:%d], %d, v7' % (A_MASK+2*r, A_MASK+2*r+1, 8*(r >> 2) + (r & 3)))
    P('s_mov_b32 s%d, 0x3e0293ee' % A_C)

def attn_task(P, stflag='', ldflag='', wait_mem=None):
    Q, K, KM, V, VMR = 16, 48, 80, 48, 208
    SX, SM, O = 112, 128, 144
    P('s_lshl_b32 s%d, s%d, 5' % (A_BASE, A_S)); P('s_add_u32 s%d, s%d, s%d' % (A_BASE, A_BASE, A_H))
    P('s_lshl_b32 s%d, s%d, 13' % (A_T, A_BASE))
    for (reg, region) in ((Q, WS_QF), (K, WS_KF)):
        P('s_add_u32 s%d, s%d, 0x%x' % (G_T0, A_T, region)); P('s_add_u32 s%d, s%d, 4096' % (G_T1, G_T0))
        for ks in range(8):
            P('buffer_load_dwordx4 %s, v1, %s, s%d offen offset:%d' % (vr(reg+4*ks,4), WSs, G_T0 if ks < 4 else G_T1, (ks % 4)*1024))
    for ks in range(8):
        P('v_mfma_f32_32x32x16_bf16 %s, %s, %s, %s' % (vr(SX,16), vr(K+4*ks,4), vr(Q+4*ks,4), '0' if ks == 0 else vr(SX,16)))
    P('s_add_u32 s%d, s%d, 0x%x' % (G_T0, A_T, WS_VF)); P('s_add_u32 s%d, s%d, 4096' % (G_T1, G_T0))
    for dt in range(4):
        for G in range(2):
            P('buffer_load_dwordx4 %s, v3, %s, s%d offen offset:%d' % (vr(V+4*(2*dt+G),4), WSs, G_T0 if G == 0 else G_T1, dt*512))
    if wait_mem: wait_mem(P)
    P('s_lshl_b32 s%d, s%d, 11' % (G_T2, A_BASE))
    P('s_add_u32 s%d, s%d, 0x%x' % (G_T0, G_T2, WS_KM))
    for ks in range(8): P('buffer_load_dwordx4 %s, v2, %s, s%d offen offset:%d%s' % (vr(KM+4*ks,4), WSs, G_T0, ks*256, ldflag))
    P('s_add_u32 s%d, s%d, 0x%x' % (G_T0, G_T2, WS_VM))
    for dt in range(4):
        P('buffer_load_dwordx2 %s, v4, %s, s%d offen offset:%d%s' % (vr(VMR+4*dt,2), WSs, G_T0, dt*512, ldflag))
        P('v_mov_b64 %s, 0' % vr(VMR+4*dt+2,2))
    for ks in range(8):
        P('v_mfma_f32_32x32x16_bf16 %s, %s, %s, %s' % (vr(SM,16), vr(KM+4*ks,4), vr(Q+4*ks,4), '0' if ks == 0 else vr(SM,16)))
    P('v_mov_b32 v8, 0xff800000')
    for r in range(16): P('v_cndmask_b32 v%d, v8, v%d, s[%d:%d]' % (SX+r, SX+r, A_MASK+2*r, A_MASK+2*r+1))
    vals = [SX+r for r in range(16)] + [SM+r for r in range(4)]
    P('v_max3_f32 v9, v%d, v%d, v%d' % tuple(vals[0:3]))
    for i in range(3, 19, 2): P('v_max3_f32 v9, v9, v%d, v%d' % (vals[i], vals[i+1]))
    P('v_max_f32 v9, v9, v%d' % vals[19])
    P('v_mov_b32 v10, v9'); P('v_permlane32_swap_b32 v9, v10'); P('v_max_f32 v9, v9, v10')
    P('v_mul_f32 v9, s%d, v9' % A_C)
    for r in vals: P('v_fma_f32 v%d, v%d, s%d, -v9' % (r, r, A_C))
    for r in vals: P('v_exp_f32 v%d, v%d' % (r, r))
    P('v_add_f32 v10, v%d, v%d' % (vals[0], vals[1]))
    for r in vals[2:]: P('v_add_f32 v10, v10, v%d' % r)
    P('v_mov_b32 v11, v10'); P('v_permlane32_swap_b32 v10, v11'); P('v_add_f32 v10, v10, v11')
    P('v_rcp_f32 v10, v10')
    PX, PM = 16, 24
    for G in range(2): pack8(P, PX+4*G, SX+8*G)
    P('v_cvt_pk_bf16_f32 v%d, v%d, v%d' % (PM, SM, SM+1)); P('v_cvt_pk_bf16_f32 v%d, v%d, v%d' % (PM+1, SM+2, SM+3))
    P('v_mov_b64 %s, 0' % vr(PM+2,2))
    for dt in range(4):
        o = vr(O+16*dt,16)
        P('v_mfma_f32_32x32x16_bf16 %s, %s, %s, 0' % (o, vr(V+8*dt,4), vr(PX,4)))
        P('v_mfma_f32_32x32x16_bf16 %s, %s, %s, %s' % (o, vr(V+8*dt+4,4), vr(PX+4,4), o))
        P('v_mfma_f32_32x32x16_bf16 %s, %s, %s, %s' % (o, vr(VMR+4*dt,4), vr(PM,4), o))
    P('s_lshl_b32 s%d, s%d, 18' % (G_T0, A_S)); P('s_lshl_b32 s%d, s%d, 13' % (G_T1, A_H))
    P('s_add_u32 s%d, s%d, s%d' % (G_T0, G_T0, G_T1)); P('s_add_u32 s%d, s%d, 0x%x' % (G_T0, G_T0, WS_OF))
    P('s_add_u32 s%d, s%d, 4096' % (G_T1, G_T0))
    for dt in range(4):
        for i in range(0, 16, 2): P('v_pk_mul_f32 %s, %s, v[10:11] op_sel_hi:[1,0]' % (vr(O+16*dt+i,2), vr(O+16*dt+i,2)))
        for G in range(2):
            d = 32 + 4*((2*dt+G) % 4)
            pack8(P, d, O+16*dt+8*G)
            j = 2*dt+G
            P('buffer_store_dwordx4 %s, v1, %s, s%d offen offset:%d%s' % (vr(d,4), WSs, G_T0 if j < 4 else G_T1, (j % 4)*1024, stflag))

def attn_kernel(k, end, nwg=256):
    P = Prog()
    std_entry(P, nwg, end)
    P('s_waitcnt lgkmcnt(0)')
    attn_setup(P)
    P('s_lshl_b32 s%d, s2, 2' % G_TASK); P('s_add_u32 s%d, s%d, s%d' % (G_TASK, G_TASK, G_W))
    k.straight(P)
    P = Prog()
    P.label('L_at_task')
    P('s_lshr_b32 s%d, s%d, 5' % (A_S, G_TASK)); P('s_and_b32 s%d, s%d, 31' % (A_H, G_TASK))
    attn_task(P)
    P('s_add_u32 s%d, s%d, %d' % (G_TASK, G_TASK, nwg*4))
    P('s_cmp_lt_u32 s%d, 2048' % G_TASK)
    P('s_cbranch_scc1 L_at_task')
    k.loop(P)
    P = Prog(); P('s_waitcnt vmcnt(0)'); k.straight(P)

def epi_final(g, P, XS, OS, BS):
    t = g.TMP
    P('v_and_b32 v%d, 31, v0' % t); P('s_lshl_b32 s%d, s45, 5' % G_T0); P('v_add_u32 v%d, s%d, v%d' % (t, G_T0, t))
    P('s_movk_i32 s%d, 1152' % G_T0); P('v_mul_lo_u32 v%d, v%d, s%d' % (t, t, G_T0))
    P('v_lshrrev_b32 v%d, 5, v0' % (t+1)); P('v_lshlrev_b32 v%d, 4, v%d' % (t+1, t+1))
    P('v_add_u32 v%d, v%d, v%d' % (t, t, t+1))
    for ft in range(g.NT):
        for qp in range(2):
            a = g.ACC + 16*ft + 8*qp
            off = ft*64 + qp*32
            P('buffer_load_dwordx4 %s, v%d, %s, s%d offen offset:%d' % (vr(t+2,4), t, XS, G_DST, off))
            P('buffer_load_dwordx4 %s, v%d, %s, s%d offen offset:%d' % (vr(t+6,4), t+1, BS, G_DST, off))
            for i in range(4): P('v_permlane32_swap_b32 v%d, v%d' % (a+i, a+4+i))
            for i in range(4):
                for src in (t+2+i, t+6+i):
                    P('v_lshlrev_b32 v%d, 16, v%d' % (t+10, src)); P('v_add_f32 v%d, v%d, v%d' % (a+2*i, a+2*i, t+10))
                    P('v_and_b32 v%d, 0xffff0000, v%d' % (t+11, src)); P('v_add_f32 v%d, v%d, v%d' % (a+2*i+1, a+2*i+1, t+11))
            pack8(P, t+12, a)
            P('buffer_store_dwordx4 %s, v%d, %s, s%d offen offset:%d' % (vr(t+12,4), t, OS, G_DST, off))

def final_kernel(k, end, nwg=96):
    g = Gemm(3, 4, 1152, 'fin'); g.stflag = ''
    P = Prog()
    std_entry(P, nwg, end)
    load_ptrs(P, ['w2', 'Wo', 'x', 'b2', 'out'], 48)
    P('s_waitcnt lgkmcnt(0)')
    srd(P, G_BSRD, 52, 53, 2048*1152); srd(P, G_OSRD, 56, 57, 2048*1152); srd(P, 60, 54, 55, 1152)
    g.setup(P)
    P('s_and_b32 s%d, s2, 15' % G_TT); P('s_lshr_b32 s%d, s2, 4' % G_FG)
    P('s_lshl_b32 s45, s%d, 2' % G_TT); P('s_add_u32 s45, s45, s%d' % G_W)
    P('s_mul_i32 s%d, s%d, 192' % (G_DST, G_FG))
    zero_acc(g, P)
    k.straight(P)
    for part, (ptr, krows, region, ksteps) in enumerate(((48, 4608, WS_HF, 288), (50, 4096, WS_OF, 256))):
        P = Prog()
        srd(P, G_WSRD, ptr, ptr+1, krows*1152)
        P('s_mul_i32 s%d, s%d, %d' % (G_WOFF, G_W, 16*1152)); P('s_add_u32 s%d, s%d, s%d' % (G_WOFF, G_WOFF, G_DST))
        P('s_mul_i32 s%d, s45, %d' % (G_XOFF, ksteps*1024)); P('s_add_u32 s%d, s%d, 0x%x' % (G_XOFF, G_XOFF, region))
        P('s_waitcnt vmcnt(0) lgkmcnt(0)')
        g.prologue(P); g.first_reads(P)
        P('s_mov_b32 s%d, %d' % (G_CNT, ksteps // 8))
        k.straight(P)
        k.loop(g.body(False, 'L_fin_loop%d' % part))
    P = Prog()
    P('s_waitcnt vmcnt(0) lgkmcnt(0)')
    epi_final(g, P, 's[%d:%d]' % (G_BSRD, G_BSRD+3), 's[%d:%d]' % (G_OSRD, G_OSRD+3), 's[60:63]')
    P('s_waitcnt vmcnt(0)')
    k.straight(P)

def ln_rows2(P, sRow0, stflag=''):
    X = 's[%d:%d]' % (G_BSRD, G_BSRD+3)
    D, F = 20, 40
    P('v_lshrrev_b32 v2, 4, v0'); P('v_and_b32 v3, 15, v0')
    P('v_add_u32 v2, s%d, v2' % sRow0)
    P('s_movk_i32 s%d, 1152' % G_T0); P('v_mul_lo_u32 v4, v2, s%d' % G_T0); P('v_lshl_add_u32 v4, v3, 3, v4')
    for i in range(9): P('buffer_load_dwordx2 %s, v4, %s, 0 offen offset:%d' % (vr(D+2*i,2), X, 128*i))
    P('v_lshrrev_b32 v18, 2, v3'); P('v_lshlrev_b32 v18, 10, v18'); P('v_and_b32 v10, 1, v3'); P('v_lshl_add_u32 v18, v10, 9, v18')
    P('v_and_b32 v11, 31, v2'); P('v_lshl_add_u32 v18, v11, 4, v18')
    P('v_bfe_u32 v10, v3, 1, 1'); P('v_cmp_eq_u32 s[84:85], 0, v10')
    P('v_mov_b32 v19, 0x40000000'); P('v_cndmask_b32 v19, v19, v18, s[84:85]')
    P('v_lshl_add_u32 v18, v10, 12, v18')
    P('s_lshr_b32 s%d, s%d, 5' % (G_DST, sRow0)); P('s_mul_i32 s%d, s%d, 36864' % (G_DST, G_DST))
    P('s_mov_b32 s%d, 0x3ae38e39' % G_T1); P('s_mov_b32 s%d, 0x3727c5ac' % G_T2)
    def unpack():
        for i in range(18):
            P('v_lshlrev_b32 v%d, 16, v%d' % (F+2*i, D+i)); P('v_and_b32 v%d, 0xffff0000, v%d' % (F+2*i+1, D+i))
    def rowsum(r):
        for sh in (8, 4, 2, 1): P('v_add_f32_dpp v%d, v%d, v%d row_ror:%d row_mask:0xf bank_mask:0xf' % (r, r, r, sh))
    def rbf(r): P('v_cvt_pk_bf16_f32 v%d, v%d, v%d' % (r, r, r)); P('v_lshlrev_b32 v%d, 16, v%d' % (r, r))
    def layernorm():
        P('v_pk_add_f32 v[6:7], %s, %s' % (vr(F,2), vr(F+2,2)))
        for i in range(4, 36, 2): P('v_pk_add_f32 v[6:7], v[6:7], %s' % vr(F+i,2))
        P('v_add_f32 v5, v6, v7'); rowsum(5)
        P('v_mul_f32 v8, s%d, v5' % G_T1)
        P('v_mov_b32 v12, 0'); P('v_mov_b32 v13, 0')
        for i in range(0, 36, 2):
            P('v_pk_add_f32 v[6:7], %s, v[8:9] op_sel_hi:[1,0] neg_lo:[0,1] neg_hi:[0,1]' % vr(F+i,2))
            P('v_fmac_f32 v12, v6, v6'); P('v_fmac_f32 v13, v7, v7')
        P('v_add_f32 v12, v12, v13'); rowsum(12)
        P('v_mul_f32 v12, s%d, v12' % G_T1)
        rbf(8); rbf(12)
        P('v_add_f32 v12, s%d, v12' % G_T2); rbf(12)
        P('v_sqrt_f32 v12, v12'); rbf(12)
        P('v_rcp_f32 v14, v12')
        for i in range(0, 36, 2):
            P('v_pk_add_f32 %s, %s, v[8:9] op_sel_hi:[1,0] neg_lo:[0,1] neg_hi:[0,1]' % (vr(F+i,2), vr(F+i,2)))
            P('v_cvt_pk_bf16_f32 v6, v%d, v%d' % (F+i, F+i+1))
            P('v_lshlrev_b32 v%d, 16, v6' % (F+i)); P('v_and_b32 v%d, 0xffff0000, v6' % (F+i+1))
            P('v_pk_mul_f32 %s, %s, v[14:15] op_sel_hi:[1,0]' % (vr(F+i,2), vr(F+i,2)))
            P('v_cvt_pk_bf16_f32 v%d, v%d, v%d' % (D + i//2, F+i, F+i+1))
    def store(region):
        Q = 'row_mask:0xf bank_mask:0xf'
        for i in range(0, 9, 2):
            a = D + 2*i; b = a + 2 if i < 8 else a
            P('v_cndmask_b32 v6, v%d, v%d, s[84:85]' % (a, b)); P('v_cndmask_b32 v7, v%d, v%d, s[84:85]' % (a+1, b+1))
            P('v_mov_b32_dpp v8, v6 quad_perm:[2,3,0,1] %s' % Q); P('v_mov_b32_dpp v9, v7 quad_perm:[2,3,0,1] %s' % Q)
            P('v_cndmask_b32 v12, v8, v%d, s[84:85]' % a); P('v_cndmask_b32 v13, v9, v%d, s[84:85]' % (a+1))
            P('v_cndmask_b32 v14, v%d, v8, s[84:85]' % b); P('v_cndmask_b32 v15, v%d, v9, s[84:85]' % (b+1))
            P('s_add_u32 s%d, s%d, %d' % (G_T3, G_DST, region + i*4096))
            P('buffer_store_dwordx4 v[12:15], v%d, %s, s%d offen%s' % (18 if i < 8 else 19, WSs, G_T3, stflag))
    unpack(); layernorm(); store(WS_XNF)
    unpack(); layernorm(); store(WS_YF)
```

```python
import sys
from asmlib import *
from common import *
import chain2 as C
import workers as W1
import workers2 as W2
import gemm2 as G2
from gemm2 import vr, WSs, G_W, G_T0, G_T1, G_T2, G_T3, G_BSRD, G_OSRD, G_DST
from workers import srd
from gen_chain_test import header, kdesc

F_QUEUE = 0; F_LN = 128*1; F_KV = 128*9; F_Q = 128*17; F_H = 128*25; F_M2 = 128*33; F_PROG = 128*41; F_O = 128*73
F_DIAG = 128*140; F_CB = 128*137; F_LD = 128*139; F_ERR = 128*138
F_ZERO = 24576
FL = WS_FLAG
BIGTMO = 400000
S_X = 4; S_TK = 5; S_G = 6; S_RANK = 7
S_DBG = 42
OPT = dict(force_abnormal=0)
NPF = 3
_uid = [0]
def uid(p):
    _uid[0] += 1; return '%s_%d' % (p, _uid[0])

def poll_ge(P, soff, target, vtmp=2, stmp=G_T0, scnt=G_T1, tgt_is_sgpr=False, x4min=False, sleep=4):
    L = uid('L_pg'); D = L + '_d'
    P('s_mov_b32 s%d, %d' % (scnt, BIGTMO))
    P.label(L)
    if x4min:
        P('buffer_load_dwordx4 %s, off, %s, s%d sc1' % (vr(vtmp,4), WSs, soff))
        P('s_waitcnt vmcnt(0)')
        P('v_min_u32 v%d, v%d, v%d' % (vtmp, vtmp, vtmp+1)); P('v_min_u32 v%d, v%d, v%d' % (vtmp+2, vtmp+2, vtmp+3)); P('v_min_u32 v%d, v%d, v%d' % (vtmp, vtmp, vtmp+2))
    else:
        P('buffer_load_dword v%d, off, %s, s%d sc1' % (vtmp, WSs, soff))
        P('s_waitcnt vmcnt(0)')
    P('s_nop 0')
    P('v_readfirstlane_b32 s%d, v%d' % (stmp, vtmp))
    P('s_cmp_ge_u32 s%d, %s' % (stmp, ('s%d' % target) if tgt_is_sgpr else str(target)))
    P('s_cbranch_scc1 %s' % D)
    if sleep: P('s_sleep %d' % sleep)
    P('s_sub_u32 s%d, s%d, 1' % (scnt, scnt)); P('s_cmp_lg_u32 s%d, 0' % scnt); P('s_cbranch_scc1 %s' % L)
    P.label(D)

def wg_wait(P, soff, target, vtmp=2, sleep=16):
    L = uid('L_wgw')
    P('s_cmp_eq_u32 s%d, 0' % G_W); P('s_cbranch_scc0 %s' % L)
    poll_ge(P, soff, target, vtmp=vtmp, sleep=sleep)
    P.label(L)
    P('s_barrier')

def signal(P, soff, vtmp=2):
    L = uid('L_sig')
    P('s_waitcnt vmcnt(0)'); P('s_barrier')
    P('s_cmp_eq_u32 s%d, 0' % G_W); P('s_cbranch_scc0 %s' % L)
    P('v_mov_b32 v%d, 1' % vtmp); P('s_mov_b64 exec, 1')
    P('buffer_atomic_add v%d, off, %s, s%d' % (vtmp, WSs, soff))
    P('s_mov_b64 exec, -1')
    P.label(L)

def bootstrap(k):
    P = Prog()
    P('s_cmp_ge_u32 s2, 256'); P('s_cbranch_scc1 L_end')
    if OPT.get('diag'): P('s_memrealtime s[90:91]')
    P('s_load_dwordx2 s[%d:%d], s[0:1], %d' % (S_DBG, S_DBG+1, KA['dbg']))
    P('s_load_dwordx2 s[8:9], s[0:1], %d' % KA['ws'])
    P('s_getreg_b32 s%d, hwreg(HW_REG_XCC_ID, 0, 4)' % S_X)
    P('v_lshrrev_b32 v1, 6, v0'); P('v_and_b32 v0, 63, v0'); P('s_nop 0')
    P('v_readfirstlane_b32 s%d, v1' % G_W)
    P('s_waitcnt lgkmcnt(0)')
    P('s_mov_b32 s10, 0x%x' % WS_SIZE); P('s_mov_b32 s11, 0x20000')
    if OPT.get('codepf', 1):
        P('s_cmp_eq_u32 s%d, 0' % G_W); P('s_cbranch_scc1 L_pf_done')
        P('s_getpc_b64 s[12:13]')
        P.label('L_pc_here')
        P('s_mov_b32 s15, CODE_LEN')
        P('s_sub_u32 s14, s%d, 1' % G_W); P('s_mul_i32 s14, s14, CODE_THIRD')
        P('v_lshlrev_b32 v2, 7, v0'); P('v_add_u32 v2, s14, v2')
        for i in range(NPF):
            P('v_min_u32 v3, s15, v2')
            P('global_load_dword v%d, v3, s[12:13]' % (40+i))
            P('v_add_u32 v2, 8192, v2')
        P.label('L_pf_done')
    P('s_cmp_eq_u32 s2, 0'); P('s_cbranch_scc0 L_bs2')
    P('s_lshl_b32 s12, s%d, 6' % G_W); P('v_add_u32 v2, s12, v0'); P('v_lshlrev_b32 v2, 4, v2')
    P('v_mov_b64 v[4:5], 0'); P('v_mov_b64 v[6:7], 0')
    for i in range(F_ZERO // 4096):
        P('s_mov_b32 s12, 0x%x' % (FL + i*4096)); P('buffer_store_dwordx4 v[4:7], v2, %s, s12 offen sc1' % WSs)
    P('s_waitcnt vmcnt(0)'); P('s_barrier')
    P.label('L_bs2')
    P('s_cmp_eq_u32 s%d, 0' % G_W); P('s_cbranch_scc0 L_bs3')
    P('s_add_u32 s12, s%d, 1' % S_X); P('v_mov_b32 v2, s2'); P('v_mov_b32 v3, s12')
    P('s_mov_b64 exec, 1'); P('global_store_byte v2, v3, s[%d:%d] sc1' % (S_DBG, S_DBG+1)); P('s_mov_b64 exec, -1')
    P('v_lshlrev_b32 v2, 2, v0'); P('s_mov_b32 s13, %d' % BIGTMO)
    P.label('L_bs_poll')
    P('global_load_dword v3, v2, s[%d:%d] sc1' % (S_DBG, S_DBG+1)); P('s_waitcnt vmcnt(0)')
    P('v_subrev_u32 v4, 0x01010101, v3'); P('v_not_b32 v5, v3'); P('v_and_b32 v4, v4, v5'); P('v_and_b32 v4, 0x80808080, v4')
    P('v_cmp_ne_u32 vcc, 0, v4'); P('s_cbranch_vccz L_bs_ok')
    P('s_sleep 6'); P('s_sub_u32 s13, s13, 1'); P('s_cmp_lg_u32 s13, 0'); P('s_cbranch_scc1 L_bs_poll')
    P.label('L_bs_ok')
    P('ds_write_b32 v2, v3'); P('s_waitcnt lgkmcnt(0)')
    P.label('L_bs3')
    P('s_waitcnt vmcnt(0)')
    P('s_barrier'); P('v_lshlrev_b32 v2, 2, v0'); P('ds_read_b32 v3, v2'); P('s_waitcnt lgkmcnt(0)'); P('s_barrier')
    for j in range(4): P('v_bfe_u32 v%d, v3, %d, 8' % (4+j, 8*j))
    P('s_lshr_b32 s12, s2, 2'); P('s_and_b32 s13, s2, 3'); P('s_bfm_b64 s[14:15], s12, 0')
    P('s_add_u32 s16, s%d, 1' % S_X); P('s_mov_b32 s%d, 0' % S_TK)
    for j in range(4):
        P('v_cmp_eq_u32 s[18:19], s16, v%d' % (4+j)); P('s_nop 1')
        P('s_and_b64 s[20:21], s[18:19], s[14:15]'); P('s_bcnt1_i32_b64 s22, s[20:21]'); P('s_add_u32 s%d, s%d, s22' % (S_TK, S_TK))
        P('s_bitcmp1_b64 s[18:19], s12'); P('s_cselect_b32 s22, 1, 0'); P('s_cmp_gt_u32 s13, %d' % j); P('s_cselect_b32 s22, s22, 0'); P('s_add_u32 s%d, s%d, s22' % (S_TK, S_TK))
    P('s_mov_b32 s%d, 0' % S_RANK); P('s_mov_b32 s23, 0')
    for xx in range(8):
        P('s_mov_b32 s22, 0')
        for j in range(4):
            P('v_cmp_eq_u32 s[18:19], %d, v%d' % (xx+1, 4+j)); P('s_nop 1'); P('s_bcnt1_i32_b64 s24, s[18:19]'); P('s_add_u32 s22, s22, s24')
        if xx == 0: P('s_mov_b32 s23, s22')
        P('s_cmp_gt_u32 s%d, %d' % (S_X, xx)); P('s_cselect_b32 s22, s22, 0'); P('s_add_u32 s%d, s%d, s22' % (S_RANK, S_RANK))
    P('s_add_u32 s%d, s%d, s%d' % (S_RANK, S_RANK, S_TK)); P('s_sub_u32 s%d, s%d, 32' % (S_RANK, S_RANK))
    if OPT['force_abnormal']: P('s_mov_b32 s23, 0')
    P('s_cmp_ge_u32 s23, 32'); P('s_cbranch_scc0 L_abnormal')
    P('s_cmp_eq_u32 s%d, 0' % S_X); P('s_cbranch_scc0 L_worker')
    P('s_cmp_lt_u32 s%d, 32' % S_TK); P('s_cbranch_scc0 L_worker')
    P('s_mov_b32 s%d, s%d' % (C.S_H, S_TK))
    P('s_branch L_chain_fast')
    P.label('L_abnormal')
    P('s_cmp_lt_u32 s2, 32'); P('s_cbranch_scc0 L_abn2')
    P('s_mov_b32 s%d, s2' % C.S_H); P('s_branch L_chain_slow')
    P.label('L_abn2')
    P('s_sub_u32 s%d, s2, 32' % S_RANK)
    P('s_branch L_worker')
    k.straight(P); k.reset_state()

def chain_ptrs(P):
    for i, n in enumerate(('Wq', 'Wk', 'Wv', 'Wo', 'mem0')): P('s_load_dwordx2 s[%d:%d], s[0:1], %d' % (C.S_PTR+2*i, C.S_PTR+2*i+1, KA[n]))
    P('s_waitcnt lgkmcnt(0)')

def chain_role(k, fast):
    st = '' if fast else ' sc1'
    sfx = 'f' if fast else 's'
    P = Prog(); P.label('L_chain_fast' if fast else 'L_chain_slow'); chain_ptrs(P)
    if OPT.get('diag'): P('s_memrealtime s[94:95]'); P('s_waitcnt lgkmcnt(0)')
    k.straight(P)
    C.load_weights(k, hook=C.early_init(st, FL + F_CB))
    if OPT.get('diag'):
        P = Prog(); P('s_memrealtime s[92:93]'); P('s_waitcnt lgkmcnt(0)')
        if OPT.get('loaderonly'):
            P('s_sub_u32 s92, s92, s90'); P('s_sub_u32 s94, s94, s90'); P('v_mov_b32 v20, s92'); P('v_mov_b32 v21, s94'); P('v_mov_b32 v22, 0'); P('v_mov_b32 v23, 0')
            P('s_mov_b32 s88, 0x%x' % (FL + F_DIAG + 16)); P('buffer_store_dwordx4 v[20:23], off, %s, s88 sc1' % C.WS); P('s_waitcnt vmcnt(0)'); P('s_branch L_end')
        k.straight(P)
    P = Prog()
    Lx = uid('L_ld')
    P('s_cmp_eq_u32 s%d, 0' % C.S_W); P('s_cbranch_scc0 %s' % Lx)
    P('s_mov_b32 s%d, 0x%x' % (C.S_T1, FL + F_LD)); P('v_mov_b32 v61, 1'); P('s_mov_b64 exec, 1')
    P('buffer_atomic_add v61, off, %s, s%d' % (C.WS, C.S_T1)); P('s_mov_b64 exec, -1')
    P.label(Lx)
    k.straight(P)
    C.lane_setup(k)
    P = Prog()
    P('v_mov_b32 v%d, -1' % C.V_NEG1)
    P('s_lshl_b32 s%d, s%d, 7' % (C.S_PROG, C.S_H)); P('s_lshl_b32 s%d, s%d, 2' % (C.S_T0, C.S_W)); P('s_add_u32 s%d, s%d, s%d' % (C.S_PROG, C.S_PROG, C.S_T0))
    P('s_add_u32 s%d, s%d, 0x%x' % (C.S_PROG, C.S_PROG, FL + F_PROG))
    C.pre_step(P)
    P('s_waitcnt vmcnt(0) lgkmcnt(0)'); P('s_barrier')
    L = 'L_cb_%s' % sfx
    P('s_cmp_eq_u32 s%d, 0' % C.S_W); P('s_cbranch_scc0 %s_wait' % L)
    P('s_mov_b32 s%d, 0x%x' % (C.S_T2, FL + F_CB))
    poll_ge(P, C.S_T2, 32, vtmp=22, stmp=C.S_T0, scnt=C.S_TMO, sleep=2)
    P('s_mov_b32 s%d, 0x%x' % (C.S_T2, FL + F_KV))
    poll_ge(P, C.S_T2, 64, vtmp=22, stmp=C.S_T0, scnt=C.S_TMO, sleep=8)
    P.label(L + '_wait')
    P('s_barrier')
    if OPT.get('diag'): P('s_memtime s[94:95]'); P('s_memrealtime s[96:97]'); P('s_waitcnt lgkmcnt(0)')
    k.straight(P)
    def kvwait(P):
        Lx = uid('L_kvw')
        P('s_and_b32 s%d, s%d, 7' % (C.S_T0, C.S_STEP)); P('s_or_b32 s%d, s%d, s%d' % (C.S_T0, C.S_T0, C.S_W))
        P('s_cmp_eq_u32 s%d, 0' % C.S_T0); P('s_cbranch_scc0 %s' % Lx)
        P('s_lshl_b32 s%d, s%d, 4' % (C.S_T3, C.S_STEP)); P('s_add_u32 s%d, s%d, 0x%x' % (C.S_T3, C.S_T3, FL + F_KV))
        poll_ge(P, C.S_T3, 64, vtmp=22, stmp=C.S_T0, scnt=C.S_TMO, sleep=0)
        P.label(Lx)
    def publish(P):
        P('s_sub_u32 s%d, s%d, 1' % (C.S_T0, C.S_STEP)); P('s_max_i32 s%d, s%d, 0' % (C.S_T0, C.S_T0))
        P('v_mov_b32 v%d, s%d' % (C.V_VMH, C.S_T0))
        P('buffer_store_dword v%d, off, %s, s%d sc1' % (C.V_VMH, C.WS, C.S_PROG))
    body = C.main_loop(k, st=st, kvwait=kvwait, publish=publish)
    txt = [i.text for i in body.items]
    B = Prog()
    for t in txt:
        t2 = t
        for lab in ('L_chain_loop', 'L_red', 'L_rdel', 'L_nored', 'L_gat', 'L_gdel', 'L_chain_last', 'L_chain_done', 'L_nopf'):
            t2 = t2.replace(lab, lab + sfx) if lab in t2 else t2
        B(t2)
    k.loop(B)
    P = Prog()
    P.label('L_chain_done' + sfx)
    P('s_waitcnt vmcnt(0)')
    P('v_mov_b32 v20, 64'); P('buffer_store_dword v20, off, %s, s%d sc1' % (C.WS, C.S_PROG))
    if OPT.get('diag'):
        P('s_memtime s[98:99]'); P('s_memrealtime s[40:41]'); P('s_waitcnt lgkmcnt(0)')
        P('s_sub_u32 s98, s98, s94'); P('s_sub_u32 s40, s40, s90'); P('s_sub_u32 s96, s96, s90'); P('s_sub_u32 s92, s92, s90')
        P('v_mov_b32 v20, s92'); P('v_mov_b32 v21, s96'); P('v_mov_b32 v22, s40'); P('v_mov_b32 v23, s98'); P('s_mov_b32 s88, 0x%x' % (FL + F_DIAG + 16))
        P('buffer_store_dwordx4 v[20:23], off, %s, s88 sc1' % C.WS)
    P('s_cmp_eq_u32 s%d, 0' % C.S_ERR); P('s_cbranch_scc1 L_cd_%s' % sfx)
    P('s_mov_b32 s%d, 0x%x' % (C.S_T2, FL + F_ERR)); P('v_mov_b32 v21, s%d' % C.S_ERR); P('buffer_atomic_or v21, off, %s, s%d' % (C.WS, C.S_T2))
    P.label('L_cd_%s' % sfx)
    P('s_waitcnt vmcnt(0)')
    P('s_branch L_end')
    k.straight(P); k.reset_state()

def worker_dispatch(k):
    P = Prog()
    P.label('L_worker')
    if OPT.get('loaderonly') == 1: P('s_branch L_end')
    end_stamp(P, 51)
    W1.load_ptrs(P, ['Wk', 'Wv', 'Wq', 'w1', 'b1', 'w2'], 48)
    W1.load_ptrs(P, ['x', 'b2', 'out', 'Wo'], 64)
    P('s_waitcnt lgkmcnt(0)')
    P('s_mov_b32 s%d, 0xc0135761' % G2.G_C0); P('s_mov_b32 s%d, 0xbdd2d3e7' % G2.G_C1)
    P('s_sub_u32 s46, s%d, 64' % S_RANK); P('s_cmp_lt_u32 s46, 128'); P('s_cbranch_scc0 L_noln')
    srd(P, G_BSRD, 64, 65, 2048*1152)
    P('s_lshl_b32 s47, s46, 4'); P('s_lshl_b32 s45, s%d, 2' % G_W); P('s_add_u32 s47, s47, s45')
    W1.ln_rows2(P, 47, ' sc1')
    P('s_lshr_b32 s46, s46, 4'); P('s_lshl_b32 s46, s46, 7'); P('s_add_u32 s46, s46, 0x%x' % (FL + F_LN))
    signal(P, 46)
    end_stamp(P, 52)
    P.label('L_noln')
    if OPT.get('loaderonly') == 2: P('s_branch L_end')
    P('s_cmp_lt_u32 s%d, 18' % S_RANK); P('s_cbranch_scc1 L_w6a')
    P('s_sub_u32 s46, s%d, 32' % S_RANK); P('s_cmp_lt_u32 s46, 18'); P('s_cbranch_scc1 L_w6b')
    P('s_sub_u32 s46, s%d, 192' % S_RANK); P('s_cmp_lt_u32 s46, 18'); P('s_cbranch_scc1 L_w6c')
    P('s_sub_u32 s46, s%d, 64' % S_RANK); P('s_cmp_lt_u32 s46, 16'); P('s_cbranch_scc1 L_w5')
    P('s_branch L_gemm')
    k.straight(P); k.reset_state()

def gemm_role(k):
    QI = 60; QN = 61
    P = Prog()
    P.label('L_gemm')
    def pull(dst_v):
        P('s_mov_b32 s62, 0x%x' % (FL + F_QUEUE))
        P('v_mov_b32 v%d, 1' % dst_v); P('s_mov_b64 exec, 1')
        P('buffer_atomic_add v%d, off, %s, s62 sc0' % (dst_v, WSs))
        P('s_mov_b64 exec, -1')
    P('s_mov_b32 s%d, s%d' % (QI, S_RANK))
    P('s_cmp_ge_u32 s%d, 80' % S_RANK); P('s_cselect_b32 s46, 52, 0'); P('s_cmp_ge_u32 s%d, 210' % S_RANK); P('s_cselect_b32 s46, 70, s46')
    P('s_cmp_lt_u32 s%d, 64' % S_RANK); P('s_cselect_b32 s47, 36, s46'); P('s_cmp_lt_u32 s%d, 32' % S_RANK); P('s_cselect_b32 s47, 18, s47')
    P('s_sub_u32 s%d, s%d, s47' % (QI, QI))
    if OPT.get('hold', 1):
        P('s_cmp_lt_u32 s%d, 64' % QI); P('s_cbranch_scc1 L_gm_decode')
        P('s_mov_b32 s46, 0x%x' % (FL + F_LD)); wg_wait(P, 46, OPT.get('holdn', 16), sleep=48)
    P('s_branch L_gm_decode')
    P.label('L_gm_next')
    P('s_waitcnt vmcnt(0) lgkmcnt(0)'); P('s_barrier')
    P('s_cmp_eq_u32 s%d, 0' % G_W); P('s_cbranch_scc0 L_gm_b')
    pull(2)
    P('s_waitcnt vmcnt(0)'); P('v_mov_b32 v3, 0x%x' % 65536); P('s_mov_b64 exec, 1'); P('ds_write_b32 v3, v2'); P('s_waitcnt lgkmcnt(0)'); P('s_mov_b64 exec, -1')
    P.label('L_gm_b')
    P('s_barrier'); P('v_mov_b32 v3, 0x%x' % 65536); P('ds_read_b32 v2, v3'); P('s_waitcnt lgkmcnt(0)')
    P('v_readfirstlane_b32 s%d, v2' % QI)
    P('s_add_u32 s%d, s%d, 154' % (QI, QI))
    P.label('L_gm_decode')
    TT, FG = W2.S_TT, W2.S_FG
    P('s_cmp_ge_u32 s%d, %d' % (QI, 264 + 6*156 + 48)); P('s_cbranch_scc1 L_end_drain')
    P('s_cmp_lt_u32 s%d, 264' % QI); P('s_cbranch_scc0 L_gm_d2')
    P('s_cmp_ge_u32 s%d, 132' % QI); P('s_cselect_b32 s%d, 1, 0' % TT); P('s_mul_i32 s46, s%d, 132' % TT); P('s_sub_u32 s%d, s%d, s46' % (FG, QI))
    P('s_branch L_gm_kvqh')
    P.label('L_gm_d2')
    P('s_sub_u32 s46, s%d, 264' % QI)
    P('s_cmp_ge_u32 s46, %d' % (6*156)); P('s_cbranch_scc1 L_gm_d3')
    P('s_mul_i32 s47, s46, 26887'); P('s_lshr_b32 s47, s47, 22')
    P('s_mul_i32 s45, s47, 156'); P('s_sub_u32 s45, s46, s45')
    P('s_cmp_lt_u32 s45, 24'); P('s_cbranch_scc0 L_gm_d2b')
    P('s_mov_b32 s%d, s47' % TT); P('s_mov_b32 s%d, s45' % FG); P('s_branch L_gm_m2')
    P.label('L_gm_d2b')
    P('s_add_u32 s%d, s47, 2' % TT); P('s_sub_u32 s%d, s45, 24' % FG); P('s_branch L_gm_kvqh')
    P.label('L_gm_d3')
    P('s_sub_u32 s46, s46, %d' % (6*156)); P('s_cmp_ge_u32 s46, 24'); P('s_cselect_b32 s47, 1, 0'); P('s_add_u32 s%d, s47, 6' % TT)
    P('s_mul_i32 s47, s47, 24'); P('s_sub_u32 s%d, s46, s47' % FG)
    P.label('L_gm_m2')
    P('s_lshl_b32 s63, s%d, 7' % TT); P('s_add_u32 s46, s63, 0x%x' % (FL + F_H))
    wg_wait(P, 46, 36)
    P('s_add_u32 s63, s63, 0x%x' % (FL + F_M2))
    P('s_branch L_gm_run_m2')
    P.label('L_gm_kvqh')
    P('s_lshl_b32 s63, s%d, 7' % TT); P('s_add_u32 s46, s63, 0x%x' % (FL + F_LN))
    wg_wait(P, 46, 16, sleep=8)
    P('s_cmp_ge_u32 s%d, 96' % FG); P('s_cbranch_scc1 L_gm_h')
    P('s_cmp_ge_u32 s%d, 64' % FG); P('s_cselect_b32 s46, %d, %d' % (F_Q, F_Q)) if False else None
    P('s_mov_b32 s46, 0x%x' % (FL + F_KV)); P('s_cmp_ge_u32 s%d, 64' % FG); P('s_cselect_b32 s46, 0x%x, s46' % (FL + F_Q))
    P('s_add_u32 s63, s63, s46')
    if OPT.get('diag'):
        P('s_cmp_lt_u32 s%d, 64' % QI); P('s_cbranch_scc0 L_dg1'); end_stamp(P, 53); P.label('L_dg1')
    k.straight(P)
    W2.task_kvq(k, 'L_gk', 'L_gm_sig')
    P = Prog(); P.label('L_gm_h'); P('s_sub_u32 s%d, s%d, 96' % (FG, FG)); P('s_add_u32 s63, s63, 0x%x' % (FL + F_H)); k.straight(P)
    W2.task_h(k, 'L_gh', 'L_gm_sig')
    P = Prog(); P.label('L_gm_run_m2'); k.straight(P)
    W2.task_m2(k, 'L_g2m', 'L_gm_sig')
    P = Prog(); P.label('L_gm_sig'); signal(P, 63)
    if OPT.get('diag'):
        P('s_cmp_lt_u32 s%d, 64' % QI); P('s_cbranch_scc0 L_dg2'); end_stamp(P, 54); P.label('L_dg2')
    P('s_branch L_gm_next')
    P.label('L_end_drain'); P('s_waitcnt vmcnt(0)'); end_stamp(P, 50); P('s_branch L_end')
    k.straight(P); k.reset_state()

def w5_role(k):
    P = Prog()
    P.label('L_w5')
    P('s_lshl_b32 s47, s46, 2'); P('s_add_u32 s47, s47, s%d' % G_W); P('s_and_b32 s%d, s47, 31' % W1.A_H); P('s_lshr_b32 s%d, s46, 3' % W1.A_S)
    W1.attn_setup(P)
    P('s_lshl_b32 s80, s%d, 7' % W1.A_H); P('s_add_u32 s80, s80, 0x%x' % (FL + F_PROG))
    k.straight(P)
    P = Prog()
    P.label('L_w5_loop')
    P('s_and_b32 s81, s%d, 6' % W1.A_S); P('s_cmp_eq_u32 s81, 0'); P('s_cbranch_scc0 L_w5_go')
    P('s_lshr_b32 s81, s%d, 3' % W1.A_S); P('s_lshl_b32 s81, s81, 7')
    P('s_add_u32 s82, s81, 0x%x' % (FL + F_KV)); poll_ge(P, 82, 64, vtmp=8, sleep=32)
    P('s_add_u32 s82, s81, 0x%x' % (FL + F_Q)); poll_ge(P, 82, 32, vtmp=8, sleep=32)
    P.label('L_w5_go')
    def wait_mem(P):
        P('s_add_u32 s83, s%d, 1' % W1.A_S)
        poll_ge(P, 80, 83, vtmp=8, tgt_is_sgpr=True, x4min=True, sleep=8)
    W1.attn_task(P, stflag=' sc1', wait_mem=wait_mem)
    P('s_waitcnt vmcnt(0)')
    P('s_lshl_b32 s81, s%d, 7' % W1.A_S); P('s_add_u32 s81, s81, 0x%x' % (FL + F_O))
    P('v_mov_b32 v8, 1'); P('s_mov_b64 exec, 1'); P('buffer_atomic_add v8, off, %s, s81' % WSs); P('s_mov_b64 exec, -1')
    P('s_add_u32 s%d, s%d, 2' % (W1.A_S, W1.A_S)); P('s_cmp_lt_u32 s%d, 64' % W1.A_S); P('s_cbranch_scc1 L_w5_loop')
    k.loop(P)
    P = Prog(); P('s_waitcnt vmcnt(0)'); end_stamp(P, 49); P('s_branch L_end'); k.straight(P); k.reset_state()

def w6_role(k):
    S_CT, S_SEG, S_PAR = 44, 45, 46
    P = Prog()
    P.label('L_w6a'); P('s_mov_b32 s%d, s%d' % (S_CT, S_RANK)); P('s_mov_b32 s%d, 0' % S_SEG); P('s_branch L_w6')
    P.label('L_w6b'); P('s_mov_b32 s%d, s46' % S_CT); P('s_mov_b32 s%d, 1' % S_SEG); P('s_branch L_w6')
    P.label('L_w6c'); P('s_mov_b32 s%d, s46' % S_CT); P('s_mov_b32 s%d, 2' % S_SEG)
    P.label('L_w6')
    if OPT.get('hold', 1):
        P('s_mov_b32 s47, 0x%x' % (FL + F_LD)); wg_wait(P, 47, OPT.get('holdn', 16), sleep=48)
    srd(P, 12, 70, 71, 4096*1152); srd(P, G_BSRD, 64, 65, 2048*1152); srd(P, G_OSRD, 68, 69, 2048*1152); srd(P, 76, 66, 67, 1152)
    L16, TRA, DMO = 1, 2, 3
    P('v_lshlrev_b32 v%d, 4, v0' % L16)
    P('v_lshrrev_b32 v4, 2, v0'); P('s_movk_i32 s%d, 1152' % G_T0); P('v_mul_lo_u32 v4, v4, s%d' % G_T0); P('v_and_b32 v5, 3, v0'); P('v_lshl_add_u32 v%d, v5, 4, v4' % DMO)
    P('v_lshrrev_b32 v4, 5, v0'); P('v_bfe_u32 v5, v0, 2, 2'); P('v_lshl_add_u32 v4, v4, 2, v5'); P('v_lshlrev_b32 v4, 6, v4')
    P('v_bfe_u32 v5, v0, 4, 1'); P('v_lshl_add_u32 v4, v5, 5, v4'); P('v_and_b32 v5, 3, v0'); P('v_lshl_add_u32 v4, v5, 3, v4')
    P('s_lshl_b32 s47, s%d, 15' % G_W); P('v_add_u32 v%d, s47, v4' % TRA)
    P('s_mul_i32 s48, s%d, %d' % (G_W, 1024*1152)); P('s_lshl_b32 s49, s%d, 6' % S_CT); P('s_add_u32 s48, s48, s49')
    for rnd in range(2):
        P('s_mov_b32 m0, s47')
        for j in range(32):
            P('buffer_load_dwordx4 v%d, s[12:15], s48 offen lds' % DMO)
            P('s_add_u32 m0, m0, 1024'); P('s_add_u32 s48, s48, %d' % (16*1152))
        P('s_waitcnt vmcnt(0)')
        for f in range(32):
            a = 4*(32*rnd + f)
            P('ds_read_b64_tr_b16 a[%d:%d], v%d offset:%d' % (a, a+1, TRA, f*1024)); P('ds_read_b64_tr_b16 a[%d:%d], v%d offset:%d' % (a+2, a+3, TRA, f*1024 + 512))
        P('s_waitcnt lgkmcnt(0)')
    P('v_and_b32 v4, 31, v0'); P('s_movk_i32 s%d, 1152' % G_T0); P('v_mul_lo_u32 v4, v4, s%d' % G_T0)
    P('v_lshrrev_b32 v5, 5, v0'); P('v_lshlrev_b32 v5, 4, v5'); P('v_add_u32 v4, v4, v5')
    P('s_barrier')
    k.straight(P)
    XA, XB, ACC, T = 16, 80, 144, 160
    P = Prog()
    P.label('L_w6_loop')
    P('s_lshr_b32 s50, s%d, 3' % S_SEG); P('s_lshl_b32 s50, s50, 7'); P('s_add_u32 s50, s50, 0x%x' % (FL + F_M2))
    wg_wait(P, 50, 24, vtmp=8, sleep=32)
    P('s_lshl_b32 s51, s%d, 6' % G_W); P('s_add_u32 s51, s51, s%d' % S_SEG); P('s_mul_i32 s51, s51, 18'); P('s_add_u32 s51, s51, s%d' % S_CT)
    P('s_lshl_b32 s51, s51, 12'); P('s_add_u32 s51, s51, 0x%x' % WS_BASE)
    for q in range(4): P('buffer_load_dwordx4 %s, v%d, %s, s51 offen offset:%d' % (vr(ACC+4*q,4), L16, WSs, q*1024))
    P('s_lshl_b32 s50, s%d, 7' % S_SEG); P('s_add_u32 s50, s50, 0x%x' % (FL + F_O))
    wg_wait(P, 50, 32, vtmp=8, sleep=4)
    P('s_lshl_b32 s52, s%d, 18' % S_SEG); P('s_lshl_b32 s53, s%d, 16' % G_W); P('s_add_u32 s52, s52, s53'); P('s_add_u32 s52, s52, 0x%x' % WS_OF)
    def xbatch(reg, b):
        for i in range(16):
            if i % 4 == 0: P('s_add_u32 s53, s52, %d' % ((16*b + i)*1024))
            P('buffer_load_dwordx4 %s, v%d, %s, s53 offen offset:%d' % (vr(reg+4*i,4), L16, WSs, (i % 4)*1024))
    def mbatch(reg, b):
        for i in range(16):
            f = 16*b + i
            P('v_mfma_f32_32x32x16_bf16 %s, a[%d:%d], %s, %s' % (vr(ACC,16), 4*f, 4*f+3, vr(reg+4*i,4), vr(ACC,16)))
    xbatch(XA, 0); xbatch(XB, 1); mbatch(XA, 0); xbatch(XA, 2); mbatch(XB, 1); xbatch(XB, 3); mbatch(XA, 2); mbatch(XB, 3)
    P('s_cmp_eq_u32 s%d, 0' % G_W); P('s_cbranch_scc1 L_w6_r0')
    P('s_lshl_b32 s53, s%d, 12' % G_W); P('v_add_u32 v8, s53, v%d' % L16)
    for q in range(4): P('ds_write_b128 v8, %s offset:%d' % (vr(ACC+4*q,4), q*1024))
    P('s_waitcnt lgkmcnt(0)'); P('s_barrier'); P('s_barrier')
    P('s_branch L_w6_next')
    P.label('L_w6_r0')
    P('s_mul_i32 s53, s%d, %d' % (S_SEG, 32*1152)); P('s_lshl_b32 s54, s%d, 6' % S_CT); P('s_add_u32 s53, s53, s54')
    for qp in range(2):
        P('buffer_load_dwordx4 %s, v4, s[%d:%d], s53 offen offset:%d' % (vr(T+8*qp,4), G_BSRD, G_BSRD+3, 32*qp))
        P('buffer_load_dwordx4 %s, v5, s[76:79], s54 offen offset:%d' % (vr(T+8*qp+4,4), 32*qp))
    P('s_barrier')
    for wv in range(1, 4):
        for q in range(4): P('ds_read_b128 %s, v%d offset:%d' % (vr(T+16+4*q,4), L16, wv*4096 + q*1024))
        for i in range(0, 16, 2): P('v_pk_add_f32 %s, %s, %s' % (vr(ACC+i,2), vr(ACC+i,2), vr(T+16+i,2)))
    P('s_waitcnt lgkmcnt(0)'); P('s_barrier')
    for qp in range(2):
        a = ACC + 8*qp
        for i in range(4): P('v_permlane32_swap_b32 v%d, v%d' % (a+i, a+4+i))
        for i in range(4):
            for src in (T+8*qp+i, T+8*qp+4+i):
                P('v_lshlrev_b32 v8, 16, v%d' % src); P('v_add_f32 v%d, v%d, v8' % (a+2*i, a+2*i))
                P('v_and_b32 v9, 0xffff0000, v%d' % src); P('v_add_f32 v%d, v%d, v9' % (a+2*i+1, a+2*i+1))
        G2.pack8(P, T+32, a)
        P('buffer_store_dwordx4 %s, v4, s[%d:%d], s53 offen offset:%d' % (vr(T+32,4), G_OSRD, G_OSRD+3, 32*qp))
    P.label('L_w6_next')
    P('s_add_u32 s%d, s%d, 3' % (S_SEG, S_SEG)); P('s_cmp_lt_u32 s%d, 64' % S_SEG); P('s_cbranch_scc1 L_w6_loop')
    k.loop(P)
    P = Prog(); P('s_waitcnt vmcnt(0)'); end_stamp(P, 48); P('s_branch L_end'); k.straight(P); k.reset_state()

def end_stamp(P, idx):
    if not OPT.get('diag'): return
    L = uid('L_es')
    P('s_and_b32 s88, s%d, 7' % S_RANK); P('s_or_b32 s88, s88, s%d' % G_W); P('s_cmp_eq_u32 s88, 0'); P('s_cbranch_scc0 %s' % L)
    P('s_memrealtime s[92:93]'); P('s_waitcnt lgkmcnt(0)'); P('s_sub_u32 s92, s92, s90')
    P('s_mov_b32 s88, 0x%x' % (FL + F_DIAG + 128*(idx-44))); P('v_mov_b32 v21, s92'); P('s_mov_b64 exec, 1')
    P('buffer_atomic_umax v21, off, %s, s88' % WSs); P('s_mov_b64 exec, -1')
    P.label(L)

def gen(name):
    k = Kernel()
    bootstrap(k)
    worker_dispatch(k)
    gemm_role(k)
    w5_role(k)
    w6_role(k)
    chain_role(k, True)
    chain_role(k, False)
    P = Prog(); P.label('L_end'); P('s_endpgm'); P.label('L_code_end'); k.straight(P)
    return '.globl %s\n.p2align 8\n.type %s,@function\n%s:\n' % (name, name, name) + k.text() + kdesc(name)

HDR = open('parallel_sum__memory_aug_recurrent_mem_tr__mixer_channel_mlp__prompt.s.ref').read().split('; Override launch')[0]
NAME = 'parallel_sum__memory_aug_recurrent_mem_tr__mixer_channel_mlp__prompt_kernel'
if __name__ == '__main__':
    out = sys.argv[1]
    for a in sys.argv[2:]:
        kk, vv = a.split('=')
        if kk.startswith('c.'): C.OPT[kk[2:]] = int(vv)
        else: OPT[kk] = int(vv)
    txt = HDR + header(['; @launch grid=(256,1,1) block=(256,1,1) lds=163840']) + gen(NAME).replace('CODE_THIRD', str(NPF*8192)).replace('CODE_LEN', 'L_code_end-L_pc_here-4')
    open(out, 'w').write(txt)
    print('written', out, len(txt))
```

```python
from asmlib import *
from common import *

OPT = dict(stamps=0, gdel=6, gdel0=14, rc=0, pf=0, kxtop=1)

L_MF = 0; L_S = 9216; L_O = 14336; L_WL = 16384; LDS_TOTAL = 163840

def wreg(i):
    if i < 32: return 'a[%d:%d]' % (8*i, 8*i+7), ('a', 8*i)
    j = i - 32
    return 'v[%d:%d]' % (80+8*j, 80+8*j+7), ('v', 80+8*j)
LDS_CHUNKS = [('k',0), ('k',2), ('k',4), ('k',6), ('k',8), ('v',2), ('v',6)]
LDS_BLOCKS = [(m, tile, t) for (m, t) in LDS_CHUNKS for tile in (0, 1)] + [('od', p, 3) for p in range(4)]
ALL_BLOCKS = [(m,tile,t) for m in 'qkv' for t in range(9) for tile in (0,1)] + [('oh',0),('oh',1)] + [('od',p,c) for p in range(4) for c in range(4)]
REG_BLOCKS = [b for b in ALL_BLOCKS if b not in LDS_BLOCKS]
assert len(LDS_BLOCKS) == 18 and len(REG_BLOCKS) == 54
REG_OF = {b: wreg(i) for i, b in enumerate(REG_BLOCKS)}
LDS_OF = {b: i for i, b in enumerate(LDS_BLOCKS)}

S_WS = 8; S_SRD2 = 12
S_H = 16; S_W = 17; S_STEP = 18; S_T0 = 19; S_T1 = 20; S_T2 = 21; S_T3 = 22
S_PCUR = 23; S_PCUR4 = 24; S_PR0 = 25
S_MNXT = 30; S_MPOI = 31
S_KV = 32; S_KM = 33; S_RED = 34; S_TMO = 35
S_EXN8 = 36; S_C = 38; S_ERR = 39; S_TS = 40; S_DBG = 42
S_TAG = 44; S_RDEL = 45
S_PTR = 46
S_OW = 56; S_GW = 57; S_EXMM = 60; S_PERM = 62; S_PERM2 = 63
S_BM = 64
S_VV = 72; S_KMW = 73; S_VMP = 74; S_KVRDY = 75
S_ST = 76
S_RC = 84
S_PROG = 86
S_G0 = 87; S_G1 = 88; S_G2 = 89; S_MPN = 29

V_NEG1=0; V_L16=1; V_IDX=2; V_PST=3; V_RED=4; V_MST=5; V_G16=6; V_SW=7; V_SR=8; V_SM=9; V_KX=10; V_VX=11; V_WL=12; V_VM=13
V_BSEL=14; V_BVAL=16; V_PT0=17; V_VMH=18
V_AR=20; V_ST=32
V_QA=48; V_QB=52; V_KA=56; V_KB=60; V_VA=64; V_VB=68; V_KF=72

def vr(a, n=1): return 'v%d' % a if n == 1 else 'v[%d:%d]' % (a, a+n-1)
WS = 's[%d:%d]' % (S_WS, S_WS+3)
DPP8 = 'row_ror:8 row_mask:0xf bank_mask:0xf'
OOB = 0x40000000
TMO = 20000
def pk_add(P, d, a, b): P('v_pk_add_f32 %s, %s, %s' % (vr(d,2), vr(a,2), vr(b,2)))
def cvt(P, d, a, b): P('v_cvt_pk_bf16_f32 v%d, v%d, v%d' % (d, a, b))
def mfma16(P, d, a, b, c=None): P('v_mfma_f32_16x16x16_bf16 %s, %s, %s, %s' % (vr(d,4), vr(a,2), vr(b,2), '0' if c is None else vr(c,4)))
def mfma32(P, d, a, b, c=None): P('v_mfma_f32_16x16x32_bf16 %s, %s, %s, %s' % (vr(d,4), vr(a,4), vr(b,4), '0' if c is None else vr(c,4)))
def smf_s(acc, a, b): return 'v_smfmac_f32_16x16x64_bf16 %s, %s, %s, v%d' % (vr(acc, 4), vr(a, 4), b, V_IDX)
def smf(P, acc, a, b): P(smf_s(acc, a, b))
def aread_s(t, dst): return 'ds_read_b128 %s, v%d offset:%d' % (vr(dst, 4), V_L16, L_MF + 1024*t)
def blk_s(blk, buf):
    off = LDS_OF[blk]*2048
    return 'ds_read_b128 %s, v%d offset:%d\nds_read_b128 %s, v%d offset:%d' % (vr(buf,4), V_WL, off, vr(buf+4,4), V_WL, off+1024)

def load_weights(k, hook=None):
    P = Prog()
    n, gb = 2, 3
    DA0, DA1, TA0, TA1, TB0, TB1, OD, OH, OL = 4, 5, 6, 7, 8, 9, 10, 11, 12
    t0, t1, t2, t3 = 14, 15, 16, 17
    P('v_and_b32 v%d, 15, v0' % n); P('v_lshrrev_b32 v%d, 4, v0' % gb)
    P('v_and_b32 v%d, 1, v%d' % (t0, gb)); P('v_lshrrev_b32 v%d, 1, v%d' % (t1, gb)); P('v_lshl_add_u32 v%d, v%d, 2, v%d' % (t0, t1, t0))
    for var, dst in ((0, DA0), (1, DA1)):
        P('v_xor_b32 v%d, v%d, v%d' % (t1, n, t0))
        if var: P('v_xor_b32 v%d, 8, v%d' % (t1, t1))
        P('v_lshlrev_b32 v%d, 4, v%d' % (t1, t1))
        P('v_lshl_add_u32 v%d, v%d, 13, v%d' % (dst, gb, t1))
    P('v_bfe_u32 v%d, v0, 3, 1' % t0)
    P('v_bfe_u32 v%d, v0, 2, 1' % t1)
    P('v_and_b32 v%d, 1, v%d' % (t2, gb))
    P('v_lshlrev_b32 v%d, 3, v%d' % (t3, t0)); P('v_lshl_add_u32 v%d, v%d, 1, v%d' % (t3, t1, t3)); P('v_add_u32 v%d, v%d, v%d' % (t3, t3, t2))
    P('v_lshlrev_b32 v%d, 8, v%d' % (t3, t3))
    P('v_lshlrev_b32 v%d, 3, v%d' % (t0, t0)); P('v_lshl_add_u32 v%d, v%d, 2, v%d' % (t0, t1, t0)); P('v_add_u32 v%d, v%d, v%d' % (t0, t0, t2))
    P('v_bfe_u32 v%d, v0, 1, 1' % t1); P('v_lshlrev_b32 v%d, 1, v%d' % (t1, t1))
    P('s_lshl_b32 s%d, s%d, 2' % (S_T0, S_W)); P('v_add_u32 v%d, s%d, v%d' % (t1, S_T0, t1))
    P('v_lshrrev_b32 v%d, 1, v%d' % (t2, gb)); P('s_mov_b32 s%d, 36864' % S_T0); P('v_mul_lo_u32 v%d, v%d, s%d' % (t2, t2, S_T0))
    P('v_add_u32 v%d, v%d, v%d' % (t3, t3, t2))
    P('v_and_b32 v%d, 1, v0' % t2); P('v_lshl_add_u32 v%d, v%d, 3, v%d' % (t3, t2, t3))
    P('v_add_u32 v%d, %d, v%d' % (t3, L_WL, t3))
    for tile, (d0, d1) in ((0, (TA0, TA1)), (1, (TB0, TB1))):
        P('v_xor_b32 v%d, v%d, v%d' % (t2, t1, t0))
        if tile: P('v_xor_b32 v%d, 1, v%d' % (t2, t2))
        P('v_lshl_add_u32 v%d, v%d, 4, v%d' % (d0, t2, t3))
        P('v_add_u32 v%d, 73728, v%d' % (d1, d0))
    P('v_lshrrev_b32 v%d, 1, v%d' % (t0, gb)); P('v_lshlrev_b32 v%d, 2, v%d' % (t0, t0))
    P('v_bfe_u32 v%d, v0, 2, 1' % t1); P('v_add_u32 v%d, v%d, v%d' % (t0, t0, t1))
    P('v_and_b32 v%d, 1, v%d' % (t1, gb)); P('v_lshl_add_u32 v%d, v%d, 3, v%d' % (t0, t1, t0))
    P('s_movk_i32 s%d, 1152' % S_T0); P('v_mul_lo_u32 v%d, v%d, s%d' % (t0, t0, S_T0))
    P('v_and_b32 v%d, 3, v0' % t1); P('v_lshl_add_u32 v%d, v%d, 3, v%d' % (t0, t1, t0))
    P('s_lshl_b32 s%d, s%d, 5' % (S_T0, S_W)); P('s_add_u32 s%d, s%d, %d' % (S_T0, S_T0, L_WL)); P('v_add_u32 v%d, s%d, v%d' % (t0, S_T0, t0))
    P('v_bfe_u32 v%d, v0, 3, 1' % t1)
    P('v_lshl_add_u32 v%d, v%d, 7, v%d' % (OD, t1, t0))
    P('s_mov_b32 s%d, 36864' % S_T0); P('v_mul_lo_u32 v%d, v%d, s%d' % (t1, t1, S_T0)); P('v_add_u32 v%d, v%d, v%d' % (OH, t1, t0))
    P('v_lshlrev_b32 v%d, 4, v0' % OL)
    WL = 13
    P('s_mul_i32 s%d, s%d, 36864' % (S_G0, S_W)); P('s_add_u32 s%d, s%d, %d' % (S_G0, S_G0, L_WL)); P('v_add_u32 v%d, s%d, v%d' % (WL, S_G0, OL))
    SR = 's[%d:%d]' % (S_SRD2, S_SRD2+3)
    def set_srd(ptr, size):
        P('s_mov_b32 s%d, s%d' % (S_SRD2, ptr)); P('s_mov_b32 s%d, s%d' % (S_SRD2+1, ptr+1))
        P('s_mov_b32 s%d, 0x%x' % (S_SRD2+2, size)); P('s_mov_b32 s%d, 0x20000' % (S_SRD2+3))
    set_srd(S_PTR+6, 4096*576*2)
    P('s_mul_i32 s%d, s%d, %d' % (S_T0, S_H, 147456)); P('s_mul_i32 s%d, s%d, 36864' % (S_T1, S_W)); P('s_add_u32 s%d, s%d, s%d' % (S_T0, S_T0, S_T1))
    P('s_mov_b32 m0, s%d' % S_G0)
    for j in range(36):
        P('buffer_load_dwordx4 v%d, %s, s%d offen lds' % (OL, SR, S_T0))
        if j < 35: P('s_add_u32 m0, m0, 1024'); P('s_add_u32 s%d, s%d, 1024' % (S_T0, S_T0))
    if hook: hook(P)
    P('s_waitcnt vmcnt(0) lgkmcnt(0)'); P('s_barrier')
    if hook: hook(P, True)
    def dst_regs(blk):
        cls, r0 = REG_OF[blk][1]; return cls, r0
    def tr(dstcls, r0, addr, off): P('ds_read_b64_tr_b16 %s[%d:%d], v%d offset:%d' % (dstcls, r0, r0+1, addr, off))
    TC = 20
    for pr in range(4):
        for c in range(4):
            blk = ('od', pr, c); Ta = 1 + 2*pr
            if blk in REG_OF: cls, r0 = dst_regs(blk)
            else: cls, r0 = 'v', TC + 8*pr
            for q in range(4):
                Pq, p1 = q >> 1, q & 1
                off = (16*Pq + 2*p1)*1152 + 128*Ta
                if c == 0: tr(cls, r0+2*q, OD, off)
                else:
                    if q == 0: P('v_add_u32 v%d, %d, v%d' % (t0, c*36864, OD))
                    tr(cls, r0+2*q, t0, off)
    for s2 in range(2):
        cls, r0 = dst_regs(('oh', s2))
        P('v_add_u32 v%d, %d, v%d' % (t0, 2*s2*36864, OH))
        for q in range(4): tr(cls, r0+2*q, t0, (16*(q >> 1) + 2*(q & 1))*1152)
    P('s_waitcnt lgkmcnt(0)'); P('s_barrier')
    for pr in range(4):
        off = LDS_OF[('od', pr, 3)]*2048
        P('ds_write_b128 v%d, %s offset:%d' % (WL, vr(TC+8*pr,4), off)); P('ds_write_b128 v%d, %s offset:%d' % (WL, vr(TC+8*pr+4,4), off+1024))
    k.straight(P)
    reg_chunks = [(m, t) for m in 'qkv' for t in range(9) if (m, t) not in LDS_CHUNKS]
    order = reg_chunks + LDS_CHUNKS
    NS = 7
    slot_of = {}
    for j, ch in enumerate(reg_chunks): slot_of[ch] = j % NS
    for i, ch in enumerate(LDS_CHUNKS): slot_of[ch] = i
    last_use = {}
    for j, ch in enumerate(reg_chunks): last_use[slot_of[ch]] = j
    lds_sorted = sorted(LDS_CHUNKS, key=lambda ch: last_use[slot_of[ch]])
    order = reg_chunks + lds_sorted
    cur_m = [None]
    def issue(P, ch):
        m, t = ch
        if cur_m[0] != m:
            ptr = {'q': S_PTR, 'k': S_PTR+2, 'v': S_PTR+4}[m]
            P('s_mov_b32 s%d, s%d' % (S_SRD2, ptr)); P('s_mov_b32 s%d, s%d' % (S_SRD2+1, ptr+1))
            P('s_mov_b32 s%d, 0x%x' % (S_SRD2+2, 576*8192)); P('s_mov_b32 s%d, 0x20000' % (S_SRD2+3))
            cur_m[0] = m
        for jj in range(4):
            P('s_add_u32 m0, s%d, %d' % (S_G0, slot_of[ch]*4096 + jj*1024))
            P('s_add_u32 s%d, s%d, %d' % (S_T0, S_G1, (64*t + 4*jj)*8192))
            P('buffer_load_dwordx4 v%d, %s, s%d offen lds' % (DA0 if jj < 2 else DA1, SR, S_T0))
    P = Prog()
    P('s_lshl_b32 s%d, s%d, 8' % (S_G1, S_H)); P('s_mul_i32 s%d, s%d, %d' % (S_T0, S_W, 16*8192)); P('s_add_u32 s%d, s%d, s%d' % (S_G1, S_G1, S_T0))
    issued = 0
    def can_issue(j, consumed):
        ch = order[j]; s = slot_of[ch]
        prev = [i for i in range(j) if slot_of[order[i]] == s]
        return (not prev) or prev[-1] < consumed
    while issued < len(order) and can_issue(issued, 0) and issued < NS:
        issue(P, order[issued]); issued += 1
    TB = 20
    for j, ch in enumerate(order):
        m, t = ch
        P('s_waitcnt vmcnt(%d) lgkmcnt(0)' % (4*(issued - j - 1)))
        P('s_barrier')
        while issued < len(order) and can_issue(issued, j):
            issue(P, order[issued]); issued += 1
        so = slot_of[ch]*4096
        for tile, (a0, a1) in ((0, (TA0, TA1)), (1, (TB0, TB1))):
            blk = (m, tile, t)
            if blk in REG_OF: cls, r0 = dst_regs(blk)
            else: cls, r0 = 'v', TB + 8*tile
            for q in range(4): tr(cls, r0+2*q, a0 if q < 2 else a1, so + (q & 1)*1024)
        if ch in LDS_CHUNKS:
            P('s_waitcnt lgkmcnt(0)'); P('s_barrier')
            for tile in range(2):
                off = LDS_OF[(m, tile, t)]*2048
                P('ds_write_b128 v%d, %s offset:%d' % (WL, vr(TB+8*tile,4), off)); P('ds_write_b128 v%d, %s offset:%d' % (WL, vr(TB+8*tile+4,4), off+1024))
    P('s_waitcnt lgkmcnt(0)'); P('s_barrier')
    k.straight(P); k.reset_state()

def lane_setup(k):
    P = Prog()
    n, rg, t0, t1, t2, nh, n7, dt = 20, 21, 22, 23, 24, 25, 26, 27
    P('v_and_b32 v%d, 15, v0' % n); P('v_lshrrev_b32 v%d, 4, v0' % rg); P('v_lshlrev_b32 v%d, 4, v0' % V_L16)
    P('v_mov_b32 v%d, 0x44444444' % V_IDX); P('v_mov_b32 v%d, 0xeeeeeeee' % t0)
    P('v_cmp_lt_u32 vcc, 7, v%d' % n); P('v_cndmask_b32 v%d, v%d, v%d, vcc' % (V_IDX, V_IDX, t0))
    P('v_lshrrev_b32 v%d, 3, v%d' % (nh, n)); P('v_and_b32 v%d, 7, v%d' % (n7, n))
    P('v_lshl_add_u32 v%d, v%d, 3, v%d' % (t0, rg, n7)); P('v_lshlrev_b32 v%d, 4, v%d' % (V_G16, t0))
    P('v_lshrrev_b32 v%d, 1, v%d' % (t0, rg)); P('v_lshl_add_u32 v%d, v%d, 6, v%d' % (t0, t0, n))
    P('s_lshl_b32 s%d, s%d, 4' % (S_T0, S_W)); P('v_add_u32 v%d, s%d, v%d' % (t0, S_T0, t0)); P('v_lshlrev_b32 v%d, 4, v%d' % (t0, t0))
    P('v_and_b32 v%d, 1, v%d' % (t1, rg)); P('v_lshl_add_u32 v%d, v%d, 3, v%d' % (V_PST, t1, t0))
    if OPT.get('quad', 1):
        P('v_and_b32 v%d, 1, v%d' % (t0, rg)); P('v_lshlrev_b32 v%d, 1, v%d' % (t0, t0)); P('v_lshrrev_b32 v%d, 1, v%d' % (t1, rg)); P('v_add_u32 v%d, v%d, v%d' % (t0, t0, t1))
        P('v_lshl_add_u32 v%d, v%d, 6, v%d' % (t0, t0, n)); P('s_lshl_b32 s%d, s%d, 4' % (S_T0, S_W)); P('v_add_u32 v%d, s%d, v%d' % (t0, S_T0, t0))
        P('v_lshlrev_b32 v%d, 4, v%d' % (V_PST, t0))
    P('v_lshlrev_b32 v%d, 4, v%d' % (t0, n)); P('v_lshl_add_u32 v%d, v%d, 2, v%d' % (t0, rg, t0))
    P('s_lshl_b32 s%d, s%d, 8' % (S_T0, S_W)); P('v_add_u32 v%d, s%d, v%d' % (V_PT0, S_T0, t0))
    P('s_sub_u32 s%d, s%d, 1' % (S_T0, S_W)); P('s_lshl_b32 s%d, s%d, 5' % (S_T0, S_T0)); P('s_add_u32 s%d, s%d, s%d' % (S_T0, S_T0, S_H))
    P('s_cmp_lt_u32 s%d, 72' % S_T0); P('s_cselect_b32 s%d, 1, 0' % S_RED)
    P('s_cmp_eq_u32 s%d, 0' % S_W); P('s_cselect_b32 s%d, 0, s%d' % (S_RED, S_RED))
    P('s_cmp_eq_u32 s%d, 0' % S_RED); P('s_cselect_b32 s%d, 0, s%d' % (S_T0, S_T0))
    P('s_lshr_b32 s%d, s%d, 3' % (S_T1, S_T0))
    tab = OPT.get('rtab')
    if tab:
        P('s_mov_b32 s%d, %d' % (S_RDEL, tab[0]))
        for T in range(1, 9):
            P('s_cmp_eq_u32 s%d, %d' % (S_T1, T)); P('s_cselect_b32 s%d, %d, s%d' % (S_RDEL, tab[T], S_RDEL))
    else:
        P('s_mul_i32 s%d, s%d, %d' % (S_RDEL, S_T1, OPT.get('rslope', 1))); P('s_add_u32 s%d, s%d, %d' % (S_RDEL, S_RDEL, OPT.get('rbase', 1)))
    P('s_lshl_b32 s%d, s%d, 7' % (S_T2, S_T0))
    P('v_lshl_add_u32 v%d, v%d, 1, v%d' % (t0, rg, nh)); P('s_movk_i32 s%d, 9216' % S_T1); P('v_mul_lo_u32 v%d, v%d, s%d' % (t0, t0, S_T1))
    P('v_lshl_add_u32 v%d, v%d, 4, v%d' % (t0, n7, t0)); P('v_add_u32 v%d, s%d, v%d' % (V_RED, S_T2, t0))
    P('v_lshlrev_b32 v%d, 1, v%d' % (t0, n)); P('v_and_b32 v%d, 7, v%d' % (t0, t0)); P('v_bfe_u32 v%d, v%d, 2, 1' % (t1, n)); P('v_add_u32 v%d, v%d, v%d' % (t0, t0, t1))
    P('s_cmp_lt_u32 s%d, 8' % S_T0); P('s_cselect_b64 vcc, -1, 0'); P('v_cndmask_b32 v%d, v%d, v%d, vcc' % (t0, n, t0))
    P('v_lshlrev_b32 v%d, 4, v%d' % (t0, t0)); P('v_lshl_add_u32 v%d, v%d, 2, v%d' % (t0, rg, t0)); P('v_add_u32 v%d, s%d, v%d' % (t0, S_T2, t0))
    P('v_mov_b32 v%d, 0x%x' % (t1, OOB)); P('v_cmp_lt_u32 vcc, 7, v%d' % n); P('v_cndmask_b32 v%d, v%d, v%d, vcc' % (t0, t0, t1))
    P('s_cmp_eq_u32 s%d, 0' % S_RED); P('s_cselect_b64 vcc, -1, 0'); P('v_cndmask_b32 v%d, v%d, v%d, vcc' % (V_MST, t0, t1))
    P('s_mul_i32 s%d, s%d, 1280' % (S_T0, S_W)); P('s_add_u32 s%d, s%d, %d' % (S_T0, S_T0, L_S)); P('v_add_u32 v%d, s%d, v%d' % (V_SW, S_T0, V_G16))
    P('v_lshl_add_u32 v%d, v%d, 9, v%d' % (t0, nh, V_G16)); P('v_add_u32 v%d, %d, v%d' % (V_SR, L_S, t0))
    P('v_and_b32 v%d, 1, v%d' % (t0, rg)); P('v_lshl_add_u32 v%d, v%d, 3, v%d' % (t0, t0, n7)); P('v_lshlrev_b32 v%d, 4, v%d' % (t0, t0))
    P('s_movk_i32 s%d, 2560' % S_T1); P('v_mul_lo_u32 v%d, v%d, s%d' % (t1, nh, S_T1)); P('v_add_u32 v%d, v%d, v%d' % (t0, t0, t1))
    P('v_add_u32 v%d, %d, v%d' % (V_SM, L_S + 1024, t0))
    P('v_lshl_add_u32 v%d, v%d, 4, v%d' % (dt, nh, n7))
    P('s_lshl_b32 s%d, s%d, 2' % (S_T0, S_W)); P('v_add_u32 v%d, s%d, v%d' % (t0, S_T0, rg)); P('v_lshl_add_u32 v%d, v%d, 5, v%d' % (t0, t0, dt)); P('v_lshlrev_b32 v%d, 4, v%d' % (V_KX, t0))
    P('s_lshl_b32 s%d, s%d, 5' % (S_T0, S_W)); P('v_lshl_add_u32 v%d, v%d, 7, v%d' % (t0, rg, dt)); P('v_add_u32 v%d, s%d, v%d' % (t0, S_T0, t0)); P('v_lshlrev_b32 v%d, 4, v%d' % (V_VX, t0))
    P('v_lshrrev_b32 v%d, 1, v%d' % (t0, rg)); P('v_lshl_add_u32 v%d, v%d, 3, v%d' % (t0, t0, dt)); P('v_add_u32 v%d, s%d, v%d' % (t0, S_T0, t0)); P('v_lshlrev_b32 v%d, 4, v%d' % (t0, t0))
    P('v_and_b32 v%d, 1, v%d' % (t1, rg)); P('v_lshl_add_u32 v%d, v%d, 3, v%d' % (V_VM, t1, t0))
    P('s_mul_i32 s%d, s%d, 36864' % (S_T0, S_W)); P('s_add_u32 s%d, s%d, %d' % (S_T0, S_T0, L_WL)); P('v_add_u32 v%d, s%d, v%d' % (V_WL, S_T0, V_L16))
    P('v_and_b32 v%d, 3, v%d' % (t0, n)); P('v_lshrrev_b32 v%d, 2, v%d' % (t1, n7)); P('v_and_b32 v%d, 1, v%d' % (t2, rg))
    P('v_cmp_eq_u32 s[%d:%d], v%d, v%d' % (S_TS, S_TS+1, t1, t2))
    P('v_and_b32 v%d, 1, v%d' % (t1, t0)); P('v_lshlrev_b32 v%d, 4, v%d' % (t1, t1)); P('v_mov_b32 v28, 0x3f80'); P('v_lshlrev_b32 v%d, v%d, v28' % (V_BVAL, t1))
    P('v_cndmask_b32 v29, 0, v%d, s[%d:%d]' % (V_BVAL, S_TS, S_TS+1))
    P('v_cmp_gt_u32 vcc, 2, v%d' % t0); P('v_cndmask_b32 v%d, 0, v29, vcc' % V_BSEL)
    P('v_cmp_lt_u32 vcc, 1, v%d' % t0); P('v_cndmask_b32 v%d, 0, v29, vcc' % (V_BSEL+1))
    P('v_lshrrev_b32 v%d, 1, v%d' % (t1, n))
    for r in range(4): P('v_cmp_eq_u32 s[%d:%d], %d, v%d' % (S_BM+2*r, S_BM+2*r+1, r, t1))
    P('s_mov_b32 s%d, 0x00ff00ff' % S_EXN8); P('s_mov_b32 s%d, 0x00ff00ff' % (S_EXN8+1))
    P('s_mov_b32 s%d, 0x00ff00ff' % S_EXMM); P('s_mov_b32 s%d, 0' % (S_EXMM+1))
    P('s_mov_b32 s%d, 0x3e0293ee' % S_C)
    P('s_lshl_b32 s%d, s%d, 9' % (S_OW, S_W)); P('s_add_u32 s%d, s%d, %d' % (S_OW, S_OW, L_O))
    P('s_lshl_b32 s%d, s%d, 10' % (S_GW, S_W))
    P('s_mov_b32 s%d, 0' % S_ERR)
    P('s_mul_i32 s%d, s%d, %d' % (S_PCUR, S_H, P_HEAD)); P('s_add_u32 s%d, s%d, 0x%x' % (S_PCUR, S_PCUR, WS_P)); P('s_add_u32 s%d, s%d, 4096' % (S_PCUR4, S_PCUR))
    for t in range(4): P('s_mov_b32 s%d, 0x%x' % (S_PR0+t, WS_P + t*8*P_HEAD))
    P('s_mov_b32 s%d, 0x%x' % (S_MNXT, WS_M + 1*M_SLOT)); P('s_mov_b32 s%d, 0x%x' % (S_MPOI, WS_M + 2*M_SLOT))
    P('s_lshl_b32 s%d, s%d, 13' % (S_KV, S_H)); P('s_add_u32 s%d, s%d, 0x%x' % (S_VV, S_KV, WS_VF)); P('s_add_u32 s%d, s%d, 0x%x' % (S_KV, S_KV, WS_KF))
    P('s_lshl_b32 s%d, s%d, 11' % (S_KM, S_H)); P('s_lshl_b32 s%d, s%d, 9' % (S_T1, S_W))
    P('s_add_u32 s%d, s%d, s%d' % (S_KMW, S_KM, S_T1)); P('s_add_u32 s%d, s%d, 0x%x' % (S_KMW, S_KMW, WS_KM))
    P('s_add_u32 s%d, s%d, 0x%x' % (S_KM, S_KM, WS_VM))
    P('s_mov_b32 s%d, 0' % S_STEP); P('s_mov_b32 s%d, 0' % S_TAG)
    P('s_mov_b32 s%d, 0x%x' % (S_VMP, OOB)); P('v_mov_b64 %s, 0' % vr(V_VMH,2))
    P('s_mov_b32 s%d, 0' % S_RC); P('s_mov_b32 s%d, 0' % (S_RC+1))
    k.straight(P)

def initial_m(k):
    P = Prog()
    P('s_mov_b32 s%d, s%d' % (S_SRD2, S_PTR+8)); P('s_mov_b32 s%d, s%d' % (S_SRD2+1, S_PTR+9))
    P('s_mov_b32 s%d, %d' % (S_SRD2+2, 8*576*2)); P('s_mov_b32 s%d, 0x20000' % (S_SRD2+3))
    P('s_mov_b32 s%d, 0x05040100' % S_PERM); P('s_mov_b32 s%d, 0x07060302' % S_PERM2)
    P('s_lshl_b32 s%d, s%d, 6' % (S_T0, S_W)); P('v_add_u32 v20, s%d, v0' % S_T0)
    for i in range(3):
        P('v_add_u32 v21, %d, v20' % (256*i)); P('v_and_b32 v22, 7, v21'); P('v_lshrrev_b32 v23, 3, v21')
        P('s_movk_i32 s%d, 1152' % S_T1); P('v_mul_lo_u32 v22, v22, s%d' % S_T1); P('v_lshl_add_u32 v22, v23, 4, v22')
        P('v_cmp_gt_u32 vcc, 576, v21'); P('v_mov_b32 v24, 0x%x' % OOB); P('v_cndmask_b32 v22, v24, v22, vcc')
        P('buffer_load_dwordx4 v[28:31], v22, s[%d:%d], 0 offen' % (S_SRD2, S_SRD2+3))
        P('v_perm_b32 v32, v29, v28, s%d' % S_PERM); P('v_perm_b32 v33, v31, v30, s%d' % S_PERM)
        P('v_perm_b32 v34, v29, v28, s%d' % S_PERM2); P('v_perm_b32 v35, v31, v30, s%d' % S_PERM2)
        P('v_lshlrev_b32 v25, 4, v21')
        P('s_and_saveexec_b64 s[%d:%d], vcc' % (S_TS, S_TS+1))
        P('ds_write_b128 v25, v[32:35] offset:%d' % L_MF)
        P('s_mov_b64 exec, s[%d:%d]' % (S_TS, S_TS+1))
    P('s_waitcnt lgkmcnt(0)')
    k.straight(P)

def poison_init(k, st=''):
    P = Prog()
    P('v_mov_b32 v20, -1'); P('v_mov_b32 v21, -1'); P('v_mov_b32 v22, -1'); P('v_mov_b32 v23, -1')
    if OPT.get('quad', 1):
        P('buffer_store_dword v20, v%d, %s, s%d offen%s' % (V_PT0, WS, S_PCUR, st))
        P('buffer_store_dwordx4 v[20:23], v%d, %s, s%d offen offset:1024%s' % (V_PST, WS, S_PCUR, st))
        P('buffer_store_dwordx4 v[20:23], v%d, %s, s%d offen offset:1024%s' % (V_PST, WS, S_PCUR4, st))
    else:
      for T in (0, 2, 4, 6, 7):
        off = T*1024
        P('buffer_store_dwordx2 v[20:21], v%d, %s, s%d offen offset:%d%s' % (V_PST, WS, S_PCUR if off < 4096 else S_PCUR4, off & 4095, st))
    for slot in range(4):
        P('s_mov_b32 s%d, 0x%x' % (S_T1, WS_M + slot*M_SLOT))
        P('buffer_store_dword v20, v%d, %s, s%d offen%s' % (V_MST, WS, S_T1, st))
    P('s_waitcnt vmcnt(0)')
    P('v_mov_b32 v%d, -1' % V_NEG1)
    k.straight(P); k.reset_state()

STAMP_SET = None
def stamp(P, i):
    if not OPT['stamps']: return
    if STAMP_SET is not None and i not in STAMP_SET: return
    P('s_memtime s[%d:%d]' % (S_TS, S_TS+1)); P('s_waitcnt lgkmcnt(0)'); P('s_mov_b32 s%d, s%d' % (S_ST+i, S_TS))
def flush_stamps(P, n=8):
    if not OPT['stamps']: return
    P('s_lshl_b32 s%d, s%d, 2' % (S_T0, S_H)); P('s_add_u32 s%d, s%d, s%d' % (S_T0, S_T0, S_W))
    P('s_lshl_b32 s%d, s%d, 6' % (S_T0, S_T0)); P('s_add_u32 s%d, s%d, s%d' % (S_T0, S_T0, S_STEP)); P('s_sub_u32 s%d, s%d, 1' % (S_T0, S_T0))
    P('s_lshl_b32 s%d, s%d, 6' % (S_T0, S_T0)); P('s_add_u32 s%d, s%d, 0x%x' % (S_T0, S_T0, WS_STAT))
    P('s_mov_b64 exec, 1')
    for i in range(n):
        P('v_mov_b32 v21, s%d' % (S_ST+i)); P('buffer_store_dword v21, off, %s, s%d offset:%d' % (WS, S_T0, 4*i))
    P('s_mov_b64 exec, -1')

def poll_tail(P, lab, done, errbit, rc):
    P('s_cbranch_vccz %s' % done)
    if OPT['rc']: P('s_add_u32 s%d, s%d, 1' % (S_RC+rc, S_RC+rc))
    P('s_sub_u32 s%d, s%d, 1' % (S_TMO, S_TMO)); P('s_cmp_lg_u32 s%d, 0' % S_TMO); P('s_cbranch_scc1 %s' % lab)
    P('s_or_b32 s%d, s%d, %d' % (S_ERR, S_ERR, errbit))
    P.label(done)

def delay(P, sreg, label):
    P('s_cmp_eq_u32 s%d, 0' % sreg)
    P('s_cbranch_scc1 %s_x' % label)
    P('s_mov_b32 s%d, s%d' % (S_T3, sreg))
    P.label(label)
    P('s_sub_u32 s%d, s%d, 1' % (S_T3, S_T3)); P('s_cmp_gt_i32 s%d, 0' % S_T3); P('s_cbranch_scc1 %s' % label)
    P.label(label + '_x')

def kx_loads(P):
    P('buffer_load_dwordx4 %s, v%d, %s, s%d offen%s' % (vr(V_KF,4), V_KX, WS, S_KV, OPT.get('kvf', '')))
    P('buffer_load_dwordx4 %s, v%d, %s, s%d offen offset:128%s' % (vr(V_KF+4,4), V_KX, WS, S_KV, OPT.get('kvf', '')))
def prefetch(P, lab, tmp, kvwait):
    P('s_cmp_eq_u32 s%d, 0' % S_W)
    P('s_cbranch_scc0 %s' % lab)
    P('v_lshlrev_b32 v%d, 3, v%d' % (tmp, V_L16))
    P('s_add_u32 s%d, s%d, %d' % (S_T0, S_KV, OPT.get('pfd', 1)*32*8192)); P('s_mov_b32 m0, %d' % L_S); P('s_add_u32 s%d, s%d, %d' % (S_T1, S_VV, OPT.get('pfd', 1)*32*8192))
    if kvwait: P('s_cmp_eq_u32 s%d, 0' % S_KVRDY); P('s_cbranch_scc1 %s' % lab)
    P('buffer_load_dword v%d, %s, s%d offen%s lds' % (tmp, WS, S_T0, OPT.get('pff', ''))); P('buffer_load_dword v%d, %s, s%d offen%s lds' % (tmp, WS, S_T1, OPT.get('pff', '')))
    P.label(lab)
def pre_step(P):
    if not OPT.get('kxtop'): kx_loads(P)
    for r in range(V_QA, V_VB+4, 2): P('v_mov_b64 %s, 0' % vr(r,2))
    P(blk_s(('k',0,0), V_ST)); P(blk_s(('k',1,0), V_ST+8))

class Filler:
    def __init__(self): self.q = []
    def add(self, t): self.q.append(t)
    def emit(self, P, n):
        for _ in range(n):
            if self.q: P(self.q.pop(0))
    def drain(self, P): self.emit(P, len(self.q))

def bop(blk, buf): return REG_OF[blk][0] if blk in REG_OF else vr(buf, 8)

def main_loop(k, st='', kvwait=None, publish=None):
    P = Prog()
    SB = [V_ST, V_ST+8]
    P.label('L_chain_loop')
    stamp(P, 0)
    P(aread_s(0, V_AR)); P(aread_s(1, V_AR+4))
    if OPT.get('kxtop'): kx_loads(P)
    for t in range(9):
        a = V_AR + 4*(t % 3)
        if t + 2 < 9: P(aread_s(t+2, V_AR + 4*((t+2) % 3)))
        if t < 8:
            smf(P, V_QA, a, bop(('q',0,t), 0))
            if t == 6: P('WAIT_SPEC'); P('v_mov_b64 %s, 0' % vr(V_VB,2))
            smf(P, V_QB, a, bop(('q',1,t), 0))
            if t == 6: P('v_mov_b64 %s, 0' % vr(V_VB+2,2))
            if t % 2 == 1: P(blk_s(('k',0,t+1), SB[0]))
            smf(P, V_KA, a, bop(('k',0,t), SB[0]))
            if t % 2 == 1: P(blk_s(('k',1,t+1), SB[1]))
            smf(P, V_KB, a, bop(('k',1,t), SB[1]))
    a = V_AR + 4*(8 % 3)
    smf(P, V_QA, a, bop(('q',0,8), 0)); smf(P, V_QB, a, bop(('q',1,8), 0))
    vorder = [2, 6, 0, 1, 3, 4, 5, 7, 8]
    ring = [V_AR, V_AR+4, V_AR+8]
    P(aread_s(vorder[0], ring[0])); P(aread_s(vorder[1], ring[1]))
    smf(P, V_KA, a, bop(('k',0,8), SB[0])); P(blk_s(('v',0,2), SB[0]))
    smf(P, V_KB, a, bop(('k',1,8), SB[1])); P(blk_s(('v',1,2), SB[1]))
    stamp(P, 1)
    F = Filler()
    for i, t in enumerate(vorder):
        ar = ring[i % 3] if i != 2 else ring[2]
        g1 = []; g2 = []
        if i + 2 < 9: g1.append(aread_s(vorder[i+2], ring[(i+2) % 3]))
        s1 = smf_s(V_VA, ar, bop(('v',0,t), SB[0])); s2 = smf_s(V_VB, ar, bop(('v',1,t), SB[1]))
        if t == 2:
            F.add('\n'.join([s1, blk_s(('v',0,6), SB[0])])); F.add('\n'.join([s2, blk_s(('v',1,6), SB[1])] + g1))
        else:
            F.add('\n'.join([s1] + g1)); F.add(s2)
    cvt(P, V_QA, V_QA, V_QA+1); cvt(P, V_QA+1, V_QA+2, V_QA+3); cvt(P, V_QB, V_QB, V_QB+1); cvt(P, V_QB+1, V_QB+2, V_QB+3)
    mfma16(P, V_QA, V_QA, V_BSEL); mfma16(P, V_QB, V_QB, V_BSEL)
    cvt(P, V_KA, V_KA, V_KA+1); cvt(P, V_KA+1, V_KA+2, V_KA+3); cvt(P, V_KB, V_KB, V_KB+1); cvt(P, V_KB+1, V_KB+2, V_KB+3)
    mfma16(P, V_KA, V_KA, V_BSEL); mfma16(P, V_KB, V_KB, V_BSEL)
    F.emit(P, 1)
    for i in range(4): cvt(P, V_QA+i, V_QA+2*i, V_QA+2*i+1)
    qop = V_QA; kop = V_KA
    X0, X1, MM = V_QB, V_KF+4, V_KB
    mfma32(P, X0, V_KF, qop); mfma32(P, X1, V_KF+4, qop)
    for i in range(4): cvt(P, V_KA+i, V_KA+2*i, V_KA+2*i+1)
    F.emit(P, 1)
    mfma32(P, MM, kop, qop)
    F.emit(P, 1)
    P('s_mov_b64 exec, s[%d:%d]' % (S_EXN8, S_EXN8+1))
    P('ds_write_b128 v%d, %s' % (V_SW, vr(X0,4)))
    P('ds_write_b128 v%d, %s offset:512' % (V_SW, vr(X1,4)))
    P('s_mov_b64 exec, -1')
    P('buffer_load_dwordx4 %s, v%d, %s, s%d offen%s' % (vr(V_KF,4), V_VX, WS, S_VV, OPT.get('kvf', '')))
    P('s_mov_b64 exec, s[%d:%d]' % (S_EXMM, S_EXMM+1))
    P('ds_write_b128 v%d, %s offset:1024' % (V_SW, vr(MM,4)))
    P('s_mov_b64 exec, -1')
    P('buffer_load_dwordx4 %s, v%d, %s, s%d offen offset:128%s' % (vr(V_KF+4,4), V_VX, WS, S_VV, OPT.get('kvf', '')))
    F.emit(P, 1)
    P('s_mov_b64 exec, s[%d:%d]' % (S_EXN8, S_EXN8+1))
    if OPT.get('nopub', 0) in (0, 2): P('buffer_store_dwordx4 %s, v%d, %s, s%d offen%s' % (vr(kop,4), V_G16, WS, S_KMW, OPT.get('pubf', ' sc1')))
    P('s_mov_b64 exec, -1')
    F.emit(P, 2)
    P('WAIT_LDSW')
    stamp(P, 2)
    P('s_barrier')
    X, M = V_QA, SB[1]
    for e in range(4): P('ds_read_b128 %s, v%d offset:%d' % (vr(V_QA+4*e,4), V_SR, 1280*e))
    for e in range(2): P('ds_read_b128 %s, v%d offset:%d' % (vr(M+4*e,4), V_SM, 1280*e))
    if OPT.get('nopub', 0) in (0, 3): P('buffer_store_dwordx2 %s, v%d, %s, s%d offen%s' % (vr(V_VMH,2), V_VM, WS, S_VMP, OPT.get('pubf', ' sc1')))
    F.emit(P, 2)
    if publish: publish(P)
    F.emit(P, 3)
    pk_add(P, X, X, X+4); pk_add(P, X+2, X+2, X+6); F.emit(P, 1)
    pk_add(P, X+8, X+8, X+12); pk_add(P, X+10, X+10, X+14); F.emit(P, 1)
    pk_add(P, M, M, M+4); pk_add(P, M+2, M+2, M+6); F.emit(P, 1)
    pk_add(P, X, X, X+8); pk_add(P, X+2, X+2, X+10)
    for i in range(4): P('v_add_f32_dpp v%d, v%d, v%d %s' % (M+i, M+i, M+i, DPP8))
    mx, t1 = M+4, M+5
    P('v_max3_f32 v%d, v%d, v%d, v%d' % (mx, X, X+1, X+2)); P('v_max3_f32 v%d, v%d, v%d, v%d' % (mx, mx, X+3, M))
    P('v_max3_f32 v%d, v%d, v%d, v%d' % (mx, mx, M+1, M+2)); P('v_max_f32 v%d, v%d, v%d' % (mx, mx, M+3))
    AV = V_QA + 10
    F.emit(P, 1)
    P('v_max_f32_dpp v%d, v%d, v%d %s' % (mx, mx, mx, DPP8))
    P('v_mov_b32 v%d, 0x3f803f80' % (V_QA+14))
    P('v_mov_b32 v%d, v%d' % (t1, mx))
    F.drain(P)
    P('v_mov_b32 v%d, 0x3f803f80' % (V_QA+15))
    P('v_permlane16_swap_b32 v%d, v%d' % (mx, t1))
    P('v_max_f32 v%d, v%d, v%d' % (mx, mx, t1))
    P('v_mov_b32 v%d, v%d' % (t1, mx))
    P('v_mov_b32 v%d, 0x3f003f00' % (M+6)); P('v_mov_b32 v%d, 0x3f003f00' % (M+7))
    P('v_permlane32_swap_b32 v%d, v%d' % (mx, t1))
    P('v_max_f32 v%d, v%d, v%d' % (mx, mx, t1))
    P('v_mul_f32 v%d, s%d, v%d' % (mx, S_C, mx))
    vals = [X+i for i in range(4)] + [M+i for i in range(4)]
    for r in vals: P('v_fma_f32 v%d, v%d, s%d, -v%d' % (r, r, S_C, mx))
    for r in vals: P('v_exp_f32 v%d, v%d' % (r, r))
    px, pm = V_QA+4, V_QA+8
    cvt(P, pm, M, M+1); cvt(P, pm+1, M+2, M+3); cvt(P, px, X, X+1); cvt(P, px+1, X+2, X+3)
    oa, ob, sm = V_AR, V_AR+4, V_AR+8
    ONES, HALF = V_QA+14, M+6
    mfma16(P, sm, HALF, pm)
    P('v_mov_b32_dpp v%d, v%d %s' % (px+2, px, DPP8)); P('v_mov_b32_dpp v%d, v%d %s' % (px+3, px+1, DPP8))
    mfma16(P, sm, ONES, px, sm)
    cvt(P, AV, V_VA, V_VA+1)
    mfma16(P, sm, ONES, px+2, sm)
    cvt(P, AV+1, V_VA+2, V_VA+3)
    mfma32(P, oa, V_KF, px)
    cvt(P, AV+2, V_VB, V_VB+1)
    mfma32(P, ob, V_KF+4, px)
    cvt(P, AV+3, V_VB+2, V_VB+3)
    mfma16(P, oa, AV, pm, oa)
    ow = M
    P('v_add_u32 v%d, s%d, v%d' % (ow, S_OW, V_G16))
    mfma16(P, ob, AV+2, pm, ob)
    lds_o = [('od', p, 3) for p in range(4)]
    P('v_rcp_f32 v%d, v%d' % (sm, sm))
    P(blk_s(lds_o[0], SB[0]))
    for i in range(0, 8, 2): P('v_pk_mul_f32 %s, %s, %s op_sel_hi:[1,0]' % (vr(oa+i,2), vr(oa+i,2), vr(sm,2)))
    og = V_QA + 12
    for i in range(4): cvt(P, og+i, oa+2*i, oa+2*i+1)
    P('s_mov_b64 exec, s[%d:%d]' % (S_EXN8, S_EXN8+1))
    P('ds_write_b128 v%d, %s' % (ow, vr(og,4)))
    P('s_mov_b64 exec, -1')
    P('s_cmp_eq_u32 s%d, 63' % S_STEP)
    P('s_cbranch_scc1 L_chain_last')
    th = V_AR + 8
    accs = [V_KF, V_KF+4, V_AR, V_AR+4]
    for r in list(range(V_KF, V_KF+8, 2)) + [th, th+2]: P('v_mov_b64 %s, 0' % vr(r,2))
    P(blk_s(lds_o[1], SB[1]))
    P('WAIT_LDSW')
    stamp(P, 3)
    P('s_barrier')
    dual, half = V_QA, V_AR
    for s2 in range(2): P('ds_read_b128 %s, v%d offset:%d' % (vr(half+4*s2,4), V_SR, L_O - L_S + 1024*s2))
    for c in range(4): P('ds_read_b128 %s, v%d offset:%d' % (vr(dual+4*c,4), V_G16, L_O + 512*c))
    smf(P, th, half, bop(('oh',0), 0)); smf(P, th, half+4, bop(('oh',1), 0))
    def tagst(reg): P('v_bfi_b32 v%d, 1, s%d, v%d' % (reg, S_TAG, reg))
    def pstore(pr):
        off = (1 + 2*pr)*1024
        P('buffer_store_dwordx2 %s, v%d, %s, s%d offen offset:%d%s' % (vr(accs[pr],2), V_PST, WS, S_PCUR if off < 4096 else S_PCUR4, off & 4095, st))
    def pcvt(pr):
        acc = accs[pr]; cvt(P, acc, acc, acc+1); cvt(P, acc+1, acc+2, acc+3)
    seq = [(p, c) for p in range(4) for c in range(4)]
    extra = {0: lambda: [P('v_mov_b64 %s, 0' % vr(V_AR, 2)), P('v_mov_b64 %s, 0' % vr(V_AR+2, 2))],
             1: lambda: [P('v_mov_b64 %s, 0' % vr(V_AR+4, 2)), P('v_mov_b64 %s, 0' % vr(V_AR+6, 2))],
             2: lambda: [P('v_permlane32_swap_b32 v%d, v%d' % (th, th+1))],
             3: lambda: [P(blk_s(lds_o[2], SB[0])), P('v_permlane32_swap_b32 v%d, v%d' % (th+2, th+3))],
             4: lambda: [P('v_add_f32 v%d, v%d, v%d' % (th, th, th+1)), P('v_add_f32 v%d, v%d, v%d' % (th+2, th+2, th+3))],
             5: lambda: [cvt(P, th, th, th+2), tagst(th), P('buffer_store_dword v%d, v%d, %s, s%d offen%s' % (th, V_PT0, WS, S_PCUR, st))],
             6: lambda: [pcvt(0), tagst(accs[0]), pstore(0)],
             7: lambda: [P(blk_s(lds_o[3], SB[1]))],
             10: lambda: [pcvt(1), tagst(accs[1]), pstore(1)],
             14: lambda: [pcvt(2), tagst(accs[2]), pstore(2)]}
    for i, (pr, c) in enumerate(seq):
        smf(P, accs[pr], dual + 4*c, bop(('od', pr, c), SB[pr % 2]))
        if i in extra: extra[i]()
    pcvt(3); tagst(accs[3]); pstore(3)
    stamp(P, 4)
    def idle_a(P):
        for i in range(4): P('v_permlane32_swap_b32 v%d, v%d' % (V_VA+i, V_VB+i))
        pk_add(P, V_VA, V_VA, V_VB); pk_add(P, V_VA+2, V_VA+2, V_VB+2)
        cvt(P, V_VMH, V_VA, V_VA+1); cvt(P, V_VMH+1, V_VA+2, V_VA+3)
        P('s_mov_b32 s%d, s%d' % (S_VMP, S_KM))
        if not OPT.get('nokv'):
            P('s_add_u32 s%d, s%d, %d' % (S_KV, S_KV, 32*8192)); P('s_add_u32 s%d, s%d, %d' % (S_VV, S_VV, 32*8192))
        P('s_add_u32 s%d, s%d, %d' % (S_KM, S_KM, 32*2048)); P('s_add_u32 s%d, s%d, %d' % (S_KMW, S_KMW, 32*2048))
        P('s_add_u32 s%d, s%d, s%d' % (S_G0, S_MNXT, S_GW)); P('s_add_u32 s%d, s%d, 4096' % (S_G1, S_G0)); P('s_add_u32 s%d, s%d, 8192' % (S_G2, S_MNXT))
        P('s_add_u32 s%d, s%d, 3' % (S_T1, S_STEP)); P('s_and_b32 s%d, s%d, 3' % (S_T1, S_T1)); P('s_mul_i32 s%d, s%d, %d' % (S_T1, S_T1, M_SLOT))
        P('s_add_u32 s%d, s%d, 0x%x' % (S_MPN, S_T1, WS_M))
        P('s_add_u32 s%d, s%d, 1' % (S_STEP, S_STEP))
    BR = V_QA; CK = V_QA+4
    RL = [V_AR, V_AR+4, V_AR+8, SB[1]]; D = SB[1]+4
    def red_loads(P):
        for t in range(4): P('buffer_load_dwordx4 %s, v%d, %s, s%d offen sc1 ;@spec' % (vr(RL[t],4), V_RED, WS, S_PR0+t))
    def red_check(P, par):
        if par == 0:
            P('v_or3_b32 v%d, v%d, v%d, v%d' % (CK, RL[0], RL[0]+2, RL[1])); P('v_or3_b32 v%d, v%d, v%d, v%d' % (CK+1, RL[1]+2, RL[2], RL[2]+2))
            P('v_or3_b32 v%d, v%d, v%d, v%d' % (CK, CK, RL[3], RL[3]+2)); P('v_or_b32 v%d, v%d, v%d' % (CK, CK, CK+1))
        else:
            P('v_and_b32 v%d, v%d, v%d' % (CK, RL[0], RL[0]+2)); P('v_and_b32 v%d, v%d, v%d' % (CK+1, RL[1], RL[1]+2))
            P('v_and_b32 v%d, v%d, v%d' % (CK+2, RL[2], RL[2]+2)); P('v_and_b32 v%d, v%d, v%d' % (CK+3, RL[3], RL[3]+2))
            P('v_and_b32 v%d, v%d, v%d' % (CK, CK, CK+1)); P('v_and_b32 v%d, v%d, v%d' % (CK+2, CK+2, CK+3)); P('v_and_b32 v%d, v%d, v%d' % (CK, CK, CK+2))
        P('v_and_b32 v%d, 1, v%d' % (CK, CK))
        P('v_cmp_ne_u32 vcc, s%d, v%d' % (S_TAG, CK))
    P('s_cmp_eq_u32 s%d, 0' % S_RED)
    P('s_cbranch_scc1 L_nored')
    P('buffer_store_dword v%d, v%d, %s, s%d offen%s' % (V_NEG1, V_MST, WS, S_MPOI, st))
    if OPT.get('canary'):
        P('s_memtime s[90:91]')
        P('s_cmp_eq_u32 s%d, 0' % S_TAG); P('s_cbranch_scc0 L_can1')
        for par in range(2):
            P.label('L_can%d' % par)
            for t in range(4): P('buffer_load_dword v%d, v%d, %s, s%d offen offset:8 sc1' % (V_AR+t, V_RED, WS, S_PR0+t))
            P('s_waitcnt vmcnt(0)')
            if par == 0: P('v_or3_b32 v24, v20, v21, v22'); P('v_or_b32 v24, v24, v23')
            else: P('v_and_b32 v24, v20, v21'); P('v_and_b32 v25, v22, v23'); P('v_and_b32 v24, v24, v25')
            P('v_and_b32 v24, 1, v24'); P('v_cmp_ne_u32 vcc, s%d, v24' % S_TAG)
            P('s_cbranch_vccnz L_can%d' % par)
            P('s_branch L_can_done')
        P.label('L_can_done')
        P('s_memtime s[92:93]'); P('s_waitcnt lgkmcnt(0)'); P('s_sub_u32 s%d, s92, s90' % (S_ST+3))
    delay(P, S_RDEL, 'L_rdel')
    stamp(P, 7)
    red_loads(P)
    for r in range(4): P('v_cndmask_b32 v%d, 0, v%d, s[%d:%d]' % (BR+r, V_BVAL, S_BM+2*r, S_BM+2*r+1))
    idle_a(P)
    RD = OPT.get('rdepth', 2)
    if RD == 2: red_loads(P)
    P('s_mov_b32 s%d, %d' % (S_TMO, TMO))
    P('s_cmp_eq_u32 s%d, 0' % S_TAG); P('s_cbranch_scc0 L_red_poll1')
    for par in range(2):
        P.label('L_red_poll%d' % par)
        P('s_waitcnt vmcnt(%d)' % (4 if RD == 2 else 0))
        red_check(P, par)
        P('s_cbranch_vccz L_red_done')
        if OPT['rc']: P('s_add_u32 s%d, s%d, 1' % (S_RC, S_RC))
        red_loads(P)
        P('s_sub_u32 s%d, s%d, 1' % (S_TMO, S_TMO)); P('s_cmp_lg_u32 s%d, 0' % S_TMO); P('s_cbranch_scc1 L_red_poll%d' % par)
        P('s_or_b32 s%d, s%d, 1' % (S_ERR, S_ERR))
        P('s_branch L_red_done')
    P.label('L_red_done')
    mfma32(P, D, RL[0], BR)
    for t in range(1, 4): mfma32(P, D, RL[t], BR, D)
    P('v_permlane32_swap_b32 v%d, v%d' % (D, D+1)); P('v_permlane32_swap_b32 v%d, v%d' % (D+2, D+3))
    P('v_add_f32 v%d, v%d, v%d' % (D, D, D+1)); P('v_add_f32 v%d, v%d, v%d' % (D+2, D+2, D+3))
    cvt(P, D, D, D+2)
    P('buffer_store_dword v%d, v%d, %s, s%d offen%s' % (D, V_MST, WS, S_MNXT, st))
    P('s_mov_b32 s%d, %d' % (S_T2, OPT['gdel']))
    P('s_branch L_red_done2')
    P.label('L_nored')
    idle_a(P)
    P('s_mov_b32 s%d, %d' % (S_T2, OPT['gdel0']))
    P.label('L_red_done2')
    stamp(P, 5)
    if kvwait: kvwait(P)
    GL = V_QA + 8; CK = V_QA + 9
    P('v_add_u32 v%d, s%d, v%d' % (GL, S_GW, V_L16))
    delay(P, S_T2, 'L_gdel')
    def gat_loads(P, w0):
        P('buffer_load_dwordx4 v[72:75], v%d, %s, s%d offen sc1 ;@spec' % (V_L16, WS, S_G0))
        P('buffer_load_dwordx4 v[76:79], v%d, %s, s%d offen sc1 ;@spec' % (V_L16, WS, S_G1))
        if w0: P('buffer_load_dwordx4 v[68:71], v%d, %s, s%d offen sc1 ;@spec' % (V_L16, WS, S_G2))
    def gat_check(P, w0):
        P('v_max3_u32 v%d, v72, v73, v74' % CK); P('v_max3_u32 v%d, v75, v76, v77' % (CK+1))
        P('v_max3_u32 v%d, v%d, v78, v79' % (CK, CK))
        if w0:
            P('v_max3_u32 v%d, v%d, v68, v69' % (CK+1, CK+1)); P('v_max3_u32 v%d, v%d, v70, v71' % (CK, CK))
        P('v_max_u32 v%d, v%d, v%d' % (CK, CK, CK+1))
        P('v_cmp_eq_u32 vcc, -1, v%d' % CK)
    def idle_b(P):
        P('s_xor_b32 s%d, s%d, 1' % (S_TAG, S_TAG))
        P('s_mov_b32 s%d, s%d' % (S_MNXT, S_MPOI)); P('s_mov_b32 s%d, s%d' % (S_MPOI, S_MPN))
        P('s_mov_b32 s%d, %d' % (S_TMO, TMO))
        for r in (V_QA, V_QA+2, V_QA+4, V_QA+6, V_QA+12, V_QA+14, V_VA, V_VA+2): P('v_mov_b64 %s, 0' % vr(r,2))
        P(blk_s(('k',0,0), V_ST))
    P('s_cmp_eq_u32 s%d, 0' % S_W)
    P('s_cbranch_scc1 L_gat0')
    for w0, pfx in ((False, 'L_gat'), (True, 'L_gat0')):
        n = 3 if w0 else 2
        if w0: P.label('L_gat0')
        gat_loads(P, w0)
        idle_b(P)
        GD = OPT.get('gdepth', 2)
        if GD == 2: gat_loads(P, w0)
        P.label(pfx + '_poll')
        P('s_waitcnt vmcnt(%d)' % (n if GD == 2 else 0))
        gat_check(P, w0)
        P('s_cbranch_vccz %s_ok' % pfx)
        if OPT['rc']: P('s_add_u32 s%d, s%d, 1' % (S_RC+1, S_RC+1))
        gat_loads(P, w0)
        P('s_sub_u32 s%d, s%d, 1' % (S_TMO, S_TMO)); P('s_cmp_lg_u32 s%d, 0' % S_TMO); P('s_cbranch_scc1 %s_poll' % pfx)
        P('s_or_b32 s%d, s%d, 2' % (S_ERR, S_ERR))
        P.label(pfx + '_ok')
        P('ds_write_b128 v%d, v[72:75] offset:%d' % (GL, L_MF))
        P('ds_write_b128 v%d, v[76:79] offset:%d' % (GL, L_MF + 4096))
        if w0: P('ds_write_b128 v%d, v[68:71] offset:%d' % (V_L16, L_MF + 8192))
        P(blk_s(('k',1,0), V_ST+8))
        P('v_mov_b64 %s, 0' % vr(V_QA+8,2)); P('v_mov_b64 %s, 0' % vr(V_QA+10,2))
        if not w0: P('s_branch L_gat_w')
    P.label('L_gat_w')
    stamp(P, 6)
    flush_stamps(P)
    P('WAIT_LDSW')
    P('s_barrier')
    P('s_branch L_chain_loop')
    P.label('L_chain_last')
    for i in range(4): P('v_permlane32_swap_b32 v%d, v%d' % (V_VA+i, V_VB+i))
    pk_add(P, V_VA, V_VA, V_VB); pk_add(P, V_VA+2, V_VA+2, V_VB+2)
    cvt(P, V_VA, V_VA, V_VA+1); cvt(P, V_VA+1, V_VA+2, V_VA+3)
    P('buffer_store_dwordx2 %s, v%d, %s, s%d offen sc1' % (vr(V_VA,2), V_VM, WS, S_KM))
    P('s_branch L_chain_done')
    return P


def early_init(st, cb_off, zcheck=None):
    def hook(P, second=False):
        if not second:
            if zcheck: P('v_mov_b32 v59, %d' % zcheck[1]); P('global_load_dword v58, v59, s[%d:%d] sc1' % (zcheck[0], zcheck[0]+1))
            P('s_mov_b32 s64, s%d' % (S_PTR+8)); P('s_mov_b32 s65, s%d' % (S_PTR+9)); P('s_mov_b32 s66, %d' % (8*576*2)); P('s_mov_b32 s67, 0x20000')
            P('s_lshl_b32 s%d, s%d, 6' % (S_T0, S_W)); P('v_add_u32 v60, s%d, v0' % S_T0)
            for i in range(3):
                P('v_add_u32 v61, %d, v60' % (256*i)); P('v_and_b32 v62, 7, v61'); P('v_lshrrev_b32 v63, 3, v61')
                P('s_movk_i32 s%d, 1152' % S_T1); P('v_mul_lo_u32 v62, v62, s%d' % S_T1); P('v_lshl_add_u32 v62, v63, 4, v62')
                P('v_cmp_gt_u32 vcc, 576, v61'); P('v_mov_b32 v63, 0x%x' % OOB); P('v_cndmask_b32 v62, v63, v62, vcc')
                P('buffer_load_dwordx4 %s, v62, s[64:67], 0 offen' % vr(64+4*i,4))
            P('v_mov_b32 v76, -1'); P('v_mov_b32 v77, -1'); P('v_mov_b32 v78, -1'); P('v_mov_b32 v79, -1')
            P('s_mul_i32 s%d, s%d, %d' % (S_T0, S_H, P_HEAD)); P('s_add_u32 s%d, s%d, 0x%x' % (S_T0, S_T0, WS_P))
            P('v_lshlrev_b32 v61, 4, v60')
            for i in range(3):
                if i == 2:
                    P('v_mov_b32 v63, 0x%x' % OOB); P('v_cmp_gt_u32 vcc, 64, v60'); P('v_cndmask_b32 v61, v63, v61, vcc')
                P('s_add_u32 s%d, s%d, %d' % (S_T1, S_T0, 4096*i)); P('buffer_store_dwordx4 v[76:79], v61, %s, s%d offen%s' % (WS, S_T1, st))
            P('s_sub_u32 s%d, s%d, 1' % (S_T0, S_W)); P('s_lshl_b32 s%d, s%d, 5' % (S_T0, S_T0)); P('s_add_u32 s%d, s%d, s%d' % (S_T0, S_T0, S_H))
            P('s_cmp_lt_u32 s%d, 72' % S_T0); P('s_cselect_b32 s%d, 1, 0' % S_T1); P('s_cmp_eq_u32 s%d, 0' % S_W); P('s_cselect_b32 s%d, 0, s%d' % (S_T1, S_T1))
            P('s_lshl_b32 s%d, s%d, 7' % (S_T0, S_T0))
            P('v_lshlrev_b32 v61, 2, v0'); P('v_mov_b32 v63, 0x%x' % OOB); P('v_cmp_gt_u32 vcc, 32, v0'); P('v_cndmask_b32 v61, v63, v61, vcc')
            P('s_cmp_eq_u32 s%d, 0' % S_T1); P('s_cselect_b64 vcc, -1, 0'); P('v_cndmask_b32 v61, v61, v63, vcc')
            for slot in range(4):
                P('s_add_u32 s%d, s%d, 0x%x' % (S_T1, S_T0, WS_M + slot*M_SLOT)); P('buffer_store_dword v76, v61, %s, s%d offen%s' % (WS, S_T1, st))
        else:
            P('s_mov_b32 s%d, 0x05040100' % S_PERM); P('s_mov_b32 s%d, 0x07060302' % S_PERM2)
            for i in range(3):
                d = 64 + 4*i
                P('v_perm_b32 v76, v%d, v%d, s%d' % (d+1, d, S_PERM)); P('v_perm_b32 v77, v%d, v%d, s%d' % (d+3, d+2, S_PERM))
                P('v_perm_b32 v78, v%d, v%d, s%d' % (d+1, d, S_PERM2)); P('v_perm_b32 v79, v%d, v%d, s%d' % (d+3, d+2, S_PERM2))
                P('v_add_u32 v61, %d, v60' % (256*i)); P('v_cmp_gt_u32 vcc, 576, v61'); P('v_lshlrev_b32 v61, 4, v61')
                P('s_and_saveexec_b64 s[%d:%d], vcc' % (S_TS, S_TS+1))
                P('ds_write_b128 v61, v[76:79] offset:%d' % L_MF)
                P('s_mov_b64 exec, s[%d:%d]' % (S_TS, S_TS+1))
            if cb_off is not None:
                P('s_cmp_eq_u32 s%d, 0' % S_W); P('s_cbranch_scc0 L_ei_%s' % ('s' if st else 'f'))
                if zcheck:
                    P('s_mov_b32 s%d, 400000' % S_TMO)
                    P.label('L_ei_z')
                    P('v_readfirstlane_b32 s%d, v58' % S_T1); P('s_cmp_lg_u32 s%d, 0' % S_T1); P('s_cbranch_scc1 L_ei_zd')
                    P('global_load_dword v58, v59, s[%d:%d] sc1' % (zcheck[0], zcheck[0]+1)); P('s_waitcnt vmcnt(0)')
                    P('s_sub_u32 s%d, s%d, 1' % (S_TMO, S_TMO)); P('s_cmp_lg_u32 s%d, 0' % S_TMO); P('s_cbranch_scc1 L_ei_z')
                    P.label('L_ei_zd')
                P('s_mov_b32 s%d, 0x%x' % (S_T1, cb_off)); P('v_mov_b32 v61, 1'); P('s_mov_b64 exec, 1')
                P('buffer_atomic_add v61, off, %s, s%d' % (WS, S_T1)); P('s_mov_b64 exec, -1')
                P.label('L_ei_%s' % ('s' if st else 'f'))
    return hook
```

```python
import sys
from asmlib import *
from common import *
import chain2 as C
import workers as W1
import workers2 as W2
import gemm2 as G2
from gemm2 import vr, WSs, G_W, G_T0, G_T1, G_T2, G_T3, G_BSRD, G_OSRD, G_DST
from workers import srd
from gen_chain_test import header, kdesc

F_QUEUE = 0; F_LN = 128*1; F_KV = 128*9; F_Q = 128*17; F_H = 128*25; F_M2 = 128*33; F_PROG = 128*41; F_O = 128*73
F_DIAG = 128*140; F_CB = 128*137; F_LD = 128*139; F_ERR = 128*138
F_ZERO = 24576
FL = WS_FLAG
BIGTMO = 400000
S_X = 4; S_TK = 5; S_G = 6; S_RANK = 7
S_DBG = 42
OPT = dict(force_abnormal=0)
NPF = 3
_uid = [0]
def uid(p):
    _uid[0] += 1; return '%s_%d' % (p, _uid[0])

def poll_ge(P, soff, target, vtmp=2, stmp=G_T0, scnt=G_T1, tgt_is_sgpr=False, x4min=False, sleep=4):
    L = uid('L_pg'); D = L + '_d'
    P('s_mov_b32 s%d, %d' % (scnt, BIGTMO))
    P.label(L)
    if x4min:
        P('buffer_load_dwordx4 %s, off, %s, s%d sc1' % (vr(vtmp,4), WSs, soff))
        P('s_waitcnt vmcnt(0)')
        P('v_min_u32 v%d, v%d, v%d' % (vtmp, vtmp, vtmp+1)); P('v_min_u32 v%d, v%d, v%d' % (vtmp+2, vtmp+2, vtmp+3)); P('v_min_u32 v%d, v%d, v%d' % (vtmp, vtmp, vtmp+2))
    else:
        P('buffer_load_dword v%d, off, %s, s%d sc1' % (vtmp, WSs, soff))
        P('s_waitcnt vmcnt(0)')
    P('s_nop 0')
    P('v_readfirstlane_b32 s%d, v%d' % (stmp, vtmp))
    P('s_cmp_ge_u32 s%d, %s' % (stmp, ('s%d' % target) if tgt_is_sgpr else str(target)))
    P('s_cbranch_scc1 %s' % D)
    if sleep: P('s_sleep %d' % sleep)
    P('s_sub_u32 s%d, s%d, 1' % (scnt, scnt)); P('s_cmp_lg_u32 s%d, 0' % scnt); P('s_cbranch_scc1 %s' % L)
    P.label(D)

def wg_wait(P, soff, target, vtmp=2, sleep=16):
    L = uid('L_wgw')
    P('s_cmp_eq_u32 s%d, 0' % G_W); P('s_cbranch_scc0 %s' % L)
    poll_ge(P, soff, target, vtmp=vtmp, sleep=sleep)
    P.label(L)
    P('s_barrier')

def signal(P, soff, vtmp=2):
    L = uid('L_sig')
    P('s_waitcnt vmcnt(0)'); P('s_barrier')
    P('s_cmp_eq_u32 s%d, 0' % G_W); P('s_cbranch_scc0 %s' % L)
    P('v_mov_b32 v%d, 1' % vtmp); P('s_mov_b64 exec, 1')
    P('buffer_atomic_add v%d, off, %s, s%d' % (vtmp, WSs, soff))
    P('s_mov_b64 exec, -1')
    P.label(L)

D_CNT0 = 0; D_CNTX = 128; D_ZERO = 192
def read_counts(P, v):
    P('v_and_b32 v%d, 7, v0' % (v+1)); P('v_lshlrev_b32 v%d, 2, v%d' % (v+1, v+1)); P('v_add_u32 v%d, %d, v%d' % (v+1, D_CNTX, v+1))
    P('v_and_b32 v%d, 7, v0' % v); P('v_cmp_eq_u32 vcc, 0, v%d' % v); P('v_cndmask_b32 v%d, v%d, 0, vcc' % (v+1, v+1))
    P('global_load_dword v%d, v%d, s[%d:%d] sc1' % (v, v+1, S_DBG, S_DBG+1)); P('s_waitcnt vmcnt(0)')

def wait_zeroed(P):
    L = uid('L_wz')
    P('s_cmp_eq_u32 s%d, 0' % G_W); P('s_cbranch_scc0 %s_d' % L)
    P('s_mov_b32 s13, %d' % BIGTMO)
    P.label(L)
    P('v_mov_b32 v2, %d' % D_ZERO); P('global_load_dword v3, v2, s[%d:%d] sc1' % (S_DBG, S_DBG+1)); P('s_waitcnt vmcnt(0)')
    P('v_readfirstlane_b32 s12, v3'); P('s_cmp_lg_u32 s12, 0'); P('s_cbranch_scc1 %s_d' % L)
    P('s_sleep 8'); P('s_sub_u32 s13, s13, 1'); P('s_cmp_lg_u32 s13, 0'); P('s_cbranch_scc1 %s' % L)
    P.label(L + '_d')
    P('s_barrier')

def bootstrap(k):
    P = Prog()
    P('s_cmp_ge_u32 s2, 256'); P('s_cbranch_scc1 L_end')
    if OPT.get('diag'): P('s_memrealtime s[90:91]')
    P('s_load_dwordx2 s[%d:%d], s[0:1], %d' % (S_DBG, S_DBG+1, KA['dbg']))
    P('s_load_dwordx2 s[8:9], s[0:1], %d' % KA['ws'])
    P('s_getreg_b32 s%d, hwreg(HW_REG_XCC_ID, 0, 4)' % S_X)
    P('v_lshrrev_b32 v1, 6, v0'); P('v_and_b32 v0, 63, v0'); P('s_nop 0')
    P('v_readfirstlane_b32 s%d, v1' % G_W)
    P('s_and_b32 s%d, s%d, %d' % (S_X, S_X, 6 if OPT['force_abnormal'] == 3 else 7))
    P('s_waitcnt lgkmcnt(0)')
    P('s_mov_b32 s10, 0x%x' % WS_SIZE); P('s_mov_b32 s11, 0x20000')
    P('s_cmp_eq_u32 s%d, 0' % G_W); P('s_cbranch_scc0 L_bs1')
    P('s_lshl_b32 s12, s%d, 2' % S_X); P('s_add_u32 s12, s12, %d' % D_CNTX); P('s_cmp_eq_u32 s%d, 0' % S_X); P('s_cselect_b32 s12, %d, s12' % D_CNT0)
    P('v_mov_b32 v2, s12'); P('v_mov_b32 v3, 1'); P('s_mov_b64 exec, 1')
    P('global_atomic_add v4, v2, v3, s[%d:%d] sc0' % (S_DBG, S_DBG+1))
    P('s_waitcnt vmcnt(0)'); P('v_mov_b32 v2, 0'); P('ds_write_b32 v2, v4'); P('s_waitcnt lgkmcnt(0)')
    P('s_mov_b64 exec, -1')
    P.label('L_bs1')
    P('s_cmp_eq_u32 s2, 0'); P('s_cbranch_scc0 L_bs2')
    P('s_lshl_b32 s12, s%d, 6' % G_W); P('v_add_u32 v2, s12, v0'); P('v_lshlrev_b32 v2, 4, v2')
    P('v_mov_b64 v[4:5], 0'); P('v_mov_b64 v[6:7], 0')
    for i in range(F_ZERO // 4096):
        P('s_mov_b32 s12, 0x%x' % (FL + i*4096)); P('buffer_store_dwordx4 v[4:7], v2, %s, s12 offen sc1' % WSs)
    P('s_waitcnt vmcnt(0)'); P('s_barrier')
    P('s_cmp_eq_u32 s%d, 0' % G_W); P('s_cbranch_scc0 L_bs2')
    P('v_mov_b32 v2, %d' % D_ZERO); P('v_mov_b32 v3, 1'); P('s_mov_b64 exec, 1'); P('global_store_dword v2, v3, s[%d:%d] sc1' % (S_DBG, S_DBG+1)); P('s_mov_b64 exec, -1')
    P.label('L_bs2')
    P('s_barrier'); P('v_mov_b32 v2, 0'); P('ds_read_b32 v4, v2'); P('s_waitcnt lgkmcnt(0)')
    P('v_readfirstlane_b32 s%d, v4' % S_TK)
    P('s_barrier')
    P('s_cmp_lt_u32 s%d, 32' % S_TK); P('s_cbranch_scc1 L_role')
    P('s_mov_b32 s13, %d' % BIGTMO)
    P.label('L_ov_poll')
    read_counts(P, 4)
    for x in range(8): P('v_readlane_b32 s%d, v4, %d' % (20+x, x))
    P('s_mov_b32 s12, 0')
    for x in range(8): P('s_add_u32 s12, s12, s%d' % (20+x))
    P('s_cmp_ge_u32 s12, 256'); P('s_cbranch_scc1 L_ov_ok')
    P('s_sleep 8'); P('s_sub_u32 s13, s13, 1'); P('s_cmp_lg_u32 s13, 0'); P('s_cbranch_scc1 L_ov_poll')
    P.label('L_ov_ok')
    P('s_sub_u32 s12, s%d, 32' % S_TK)
    for x in range(8):
        P('s_sub_i32 s14, s%d, 32' % (20+x)); P('s_max_i32 s14, s14, 0'); P('s_cmp_gt_u32 s%d, %d' % (S_X, x)); P('s_cselect_b32 s14, s14, 0'); P('s_add_u32 s12, s12, s14')
    P('s_mov_b32 s15, 0')
    for x in range(8):
        P('s_sub_i32 s14, 32, s%d' % (20+x)); P('s_max_i32 s14, s14, 0')
        P('s_cmp_eq_u32 s15, 0'); P('s_cselect_b32 s16, 1, 0'); P('s_cmp_lt_u32 s12, s14'); P('s_cselect_b32 s16, s16, 0')
        P('s_cmp_eq_u32 s16, 1'); P('s_cbranch_scc0 L_ov_n%d' % x)
        P('s_mov_b32 s%d, %d' % (S_X, x)); P('s_add_u32 s%d, s%d, s12' % (S_TK, 20+x)); P('s_mov_b32 s15, 1')
        P.label('L_ov_n%d' % x)
        P('s_cmp_eq_u32 s15, 0'); P('s_cselect_b32 s14, s14, 0'); P('s_sub_u32 s12, s12, s14')
    P.label('L_role')
    if OPT['force_abnormal'] == 2:
        P('s_and_b32 s12, s%d, 1' % S_TK); P('s_add_u32 s%d, s%d, s12' % (S_X, S_X)); P('s_and_b32 s%d, s%d, 7' % (S_X, S_X))
    P('s_cmp_eq_u32 s%d, 0' % S_X); P('s_cbranch_scc0 L_wk')
    P('s_mov_b32 s%d, s%d' % (C.S_H, S_TK))
    P('s_branch L_chain')
    P.label('L_wk')
    P('s_sub_u32 s%d, s%d, 1' % (S_RANK, S_X)); P('s_lshl_b32 s%d, s%d, 5' % (S_RANK, S_RANK)); P('s_add_u32 s%d, s%d, s%d' % (S_RANK, S_RANK, S_TK))
    P('s_branch L_worker')
    k.straight(P); k.reset_state()

def chain_ptrs(P):
    for i, n in enumerate(('Wq', 'Wk', 'Wv', 'Wo', 'mem0')): P('s_load_dwordx2 s[%d:%d], s[0:1], %d' % (C.S_PTR+2*i, C.S_PTR+2*i+1, KA[n]))
    P('s_waitcnt lgkmcnt(0)')

def chain_common(k):
    P = Prog(); P.label('L_chain'); chain_ptrs(P)
    if OPT.get('diag'): P('s_memrealtime s[94:95]'); P('s_waitcnt lgkmcnt(0)')
    k.straight(P)
    C.load_weights(k, hook=C.early_init(' sc1', FL + F_CB, zcheck=(S_DBG, D_ZERO)))
    P = Prog()
    if OPT.get('diag'):
        P('s_memrealtime s[92:93]'); P('s_waitcnt lgkmcnt(0)')
        if OPT.get('loaderonly'):
            P('s_sub_u32 s92, s92, s90'); P('s_sub_u32 s94, s94, s90'); P('v_mov_b32 v20, s92'); P('v_mov_b32 v21, s94'); P('v_mov_b32 v22, 0'); P('v_mov_b32 v23, 0')
            P('s_cmp_eq_u32 s17, 0'); P('s_cbranch_scc0 L_end')
            P('s_mov_b32 s88, 0x%x' % (FL + F_DIAG + 16)); P('buffer_store_dwordx4 v[20:23], off, %s, s88 sc1' % C.WS); P('s_waitcnt vmcnt(0)'); P('s_branch L_end')
    P('s_getreg_b32 s12, hwreg(HW_REG_XCC_ID, 0, 4)')
    P('v_mov_b32 v2, %d' % D_CNT0); P('global_load_dword v3, v2, s[%d:%d] sc1' % (S_DBG, S_DBG+1)); P('s_waitcnt vmcnt(0)')
    P('v_readfirstlane_b32 s13, v3')
    P('s_cmp_ge_u32 s13, 32'); P('s_cselect_b32 s13, 1, 0')
    if OPT['force_abnormal']: P('s_mov_b32 s13, 0')
    P('s_cmp_eq_u32 s13, 1'); P('s_cbranch_scc0 L_chain_slow')
    k.straight(P); k.reset_state()

def chain_role(k, fast):
    st = '' if fast else ' sc1'
    sfx = 'f' if fast else 's'
    P = Prog(); P.label('L_chain_fast' if fast else 'L_chain_slow'); k.straight(P)
    P = Prog()
    Lx = uid('L_ld')
    P('s_cmp_eq_u32 s%d, 0' % C.S_W); P('s_cbranch_scc0 %s' % Lx)
    P('s_mov_b32 s%d, 0x%x' % (C.S_T1, FL + F_LD)); P('v_mov_b32 v61, 1'); P('s_mov_b64 exec, 1')
    P('buffer_atomic_add v61, off, %s, s%d' % (C.WS, C.S_T1)); P('s_mov_b64 exec, -1')
    P.label(Lx)
    k.straight(P)
    C.lane_setup(k)
    P = Prog()
    P('v_mov_b32 v%d, -1' % C.V_NEG1)
    P('s_lshl_b32 s%d, s%d, 7' % (C.S_PROG, C.S_H)); P('s_lshl_b32 s%d, s%d, 2' % (C.S_T0, C.S_W)); P('s_add_u32 s%d, s%d, s%d' % (C.S_PROG, C.S_PROG, C.S_T0))
    P('s_add_u32 s%d, s%d, 0x%x' % (C.S_PROG, C.S_PROG, FL + F_PROG))
    C.pre_step(P)
    P('s_waitcnt vmcnt(0) lgkmcnt(0)'); P('s_barrier')
    L = 'L_cb_%s' % sfx
    P('s_cmp_eq_u32 s%d, 0' % C.S_W); P('s_cbranch_scc0 %s_wait' % L)
    P('s_mov_b32 s%d, 0x%x' % (C.S_T2, FL + F_CB))
    poll_ge(P, C.S_T2, 32, vtmp=22, stmp=C.S_T0, scnt=C.S_TMO, sleep=2)
    P('s_mov_b32 s%d, 0x%x' % (C.S_T2, FL + F_KV))
    poll_ge(P, C.S_T2, 64, vtmp=22, stmp=C.S_T0, scnt=C.S_TMO, sleep=8)
    P.label(L + '_wait')
    P('s_barrier')
    if OPT.get('diag'): P('s_memtime s[94:95]'); P('s_memrealtime s[96:97]'); P('s_waitcnt lgkmcnt(0)')
    k.straight(P)
    def kvwait(P):
        Lx = uid('L_kvw')
        P('s_and_b32 s%d, s%d, 7' % (C.S_T0, C.S_STEP)); P('s_or_b32 s%d, s%d, s%d' % (C.S_T0, C.S_T0, C.S_W))
        P('s_cmp_eq_u32 s%d, 0' % C.S_T0); P('s_cbranch_scc0 %s' % Lx)
        P('s_lshl_b32 s%d, s%d, 4' % (C.S_T3, C.S_STEP)); P('s_add_u32 s%d, s%d, 0x%x' % (C.S_T3, C.S_T3, FL + F_KV))
        poll_ge(P, C.S_T3, 64, vtmp=22, stmp=C.S_T0, scnt=C.S_TMO, sleep=0)
        P.label(Lx)
    def publish(P):
        P('s_sub_u32 s%d, s%d, 1' % (C.S_T0, C.S_STEP)); P('s_max_i32 s%d, s%d, 0' % (C.S_T0, C.S_T0))
        P('v_mov_b32 v%d, s%d' % (C.V_VMH, C.S_T0))
        P('buffer_store_dword v%d, off, %s, s%d sc1' % (C.V_VMH, C.WS, C.S_PROG))
    body = C.main_loop(k, st=st, kvwait=kvwait, publish=publish)
    txt = [i.text for i in body.items]
    B = Prog()
    for t in txt:
        t2 = t
        for lab in ('L_chain_loop', 'L_red', 'L_rdel', 'L_nored', 'L_gat', 'L_gdel', 'L_chain_last', 'L_chain_done', 'L_nopf'):
            t2 = t2.replace(lab, lab + sfx) if lab in t2 else t2
        B(t2)
    k.loop(B)
    P = Prog()
    P.label('L_chain_done' + sfx)
    P('s_waitcnt vmcnt(0)')
    P('v_mov_b32 v20, 64'); P('buffer_store_dword v20, off, %s, s%d sc1' % (C.WS, C.S_PROG))
    if OPT.get('diag'):
        P('s_memtime s[98:99]'); P('s_memrealtime s[40:41]'); P('s_waitcnt lgkmcnt(0)')
        P('s_sub_u32 s98, s98, s94'); P('s_sub_u32 s40, s40, s90'); P('s_sub_u32 s96, s96, s90'); P('s_sub_u32 s92, s92, s90')
        P('v_mov_b32 v20, s92'); P('v_mov_b32 v21, s96'); P('v_mov_b32 v22, s40'); P('v_mov_b32 v23, s98'); P('s_mov_b32 s88, 0x%x' % (FL + F_DIAG + 16))
        P('buffer_store_dwordx4 v[20:23], off, %s, s88 sc1' % C.WS)
    P('s_cmp_eq_u32 s%d, 0' % C.S_ERR); P('s_cbranch_scc1 L_cd_%s' % sfx)
    P('s_mov_b32 s%d, 0x%x' % (C.S_T2, FL + F_ERR)); P('v_mov_b32 v21, s%d' % C.S_ERR); P('buffer_atomic_or v21, off, %s, s%d' % (C.WS, C.S_T2))
    P.label('L_cd_%s' % sfx)
    P('s_waitcnt vmcnt(0)')
    P('s_branch L_end')
    k.straight(P); k.reset_state()

def worker_dispatch(k):
    P = Prog()
    P.label('L_worker')
    if OPT.get('loaderonly') == 1: P('s_branch L_end')
    wait_zeroed(P)
    end_stamp(P, 51)
    W1.load_ptrs(P, ['Wk', 'Wv', 'Wq', 'w1', 'b1', 'w2'], 48)
    W1.load_ptrs(P, ['x', 'b2', 'out', 'Wo'], 64)
    P('s_waitcnt lgkmcnt(0)')
    P('s_mov_b32 s%d, 0xc0135761' % G2.G_C0); P('s_mov_b32 s%d, 0xbdd2d3e7' % G2.G_C1)
    P('s_sub_u32 s46, s%d, 64' % S_RANK); P('s_cmp_lt_u32 s46, 128'); P('s_cbranch_scc0 L_noln')
    srd(P, G_BSRD, 64, 65, 2048*1152)
    P('s_lshl_b32 s47, s46, 4'); P('s_lshl_b32 s45, s%d, 2' % G_W); P('s_add_u32 s47, s47, s45')
    W1.ln_rows2(P, 47, ' sc1')
    P('s_lshr_b32 s46, s46, 4'); P('s_lshl_b32 s46, s46, 7'); P('s_add_u32 s46, s46, 0x%x' % (FL + F_LN))
    signal(P, 46)
    end_stamp(P, 52)
    P.label('L_noln')
    if OPT.get('loaderonly') == 2: P('s_branch L_end')
    P('s_cmp_lt_u32 s%d, 18' % S_RANK); P('s_cbranch_scc1 L_w6a')
    P('s_sub_u32 s46, s%d, 32' % S_RANK); P('s_cmp_lt_u32 s46, 18'); P('s_cbranch_scc1 L_w6b')
    P('s_sub_u32 s46, s%d, 192' % S_RANK); P('s_cmp_lt_u32 s46, 18'); P('s_cbranch_scc1 L_w6c')
    P('s_sub_u32 s46, s%d, 64' % S_RANK); P('s_cmp_lt_u32 s46, 16'); P('s_cbranch_scc1 L_w5')
    P('s_branch L_gemm')
    k.straight(P); k.reset_state()

def gemm_role(k):
    QI = 60; QN = 61
    P = Prog()
    P.label('L_gemm')
    def pull(dst_v):
        P('s_mov_b32 s62, 0x%x' % (FL + F_QUEUE))
        P('v_mov_b32 v%d, 1' % dst_v); P('s_mov_b64 exec, 1')
        P('buffer_atomic_add v%d, off, %s, s62 sc0' % (dst_v, WSs))
        P('s_mov_b64 exec, -1')
    P('s_mov_b32 s%d, s%d' % (QI, S_RANK))
    P('s_cmp_ge_u32 s%d, 80' % S_RANK); P('s_cselect_b32 s46, 52, 0'); P('s_cmp_ge_u32 s%d, 210' % S_RANK); P('s_cselect_b32 s46, 70, s46')
    P('s_cmp_lt_u32 s%d, 64' % S_RANK); P('s_cselect_b32 s47, 36, s46'); P('s_cmp_lt_u32 s%d, 32' % S_RANK); P('s_cselect_b32 s47, 18, s47')
    P('s_sub_u32 s%d, s%d, s47' % (QI, QI))
    if OPT.get('hold', 1):
        P('s_cmp_lt_u32 s%d, 64' % QI); P('s_cbranch_scc1 L_gm_decode')
        P('s_mov_b32 s46, 0x%x' % (FL + F_LD)); wg_wait(P, 46, OPT.get('holdn', 16), sleep=48)
    P('s_branch L_gm_decode')
    P.label('L_gm_next')
    P('s_waitcnt vmcnt(0) lgkmcnt(0)'); P('s_barrier')
    P('s_cmp_eq_u32 s%d, 0' % G_W); P('s_cbranch_scc0 L_gm_b')
    pull(2)
    P('s_waitcnt vmcnt(0)'); P('v_mov_b32 v3, 0x%x' % 65536); P('s_mov_b64 exec, 1'); P('ds_write_b32 v3, v2'); P('s_waitcnt lgkmcnt(0)'); P('s_mov_b64 exec, -1')
    P.label('L_gm_b')
    P('s_barrier'); P('v_mov_b32 v3, 0x%x' % 65536); P('ds_read_b32 v2, v3'); P('s_waitcnt lgkmcnt(0)')
    P('v_readfirstlane_b32 s%d, v2' % QI)
    P('s_add_u32 s%d, s%d, 154' % (QI, QI))
    P.label('L_gm_decode')
    TT, FG = W2.S_TT, W2.S_FG
    P('s_cmp_ge_u32 s%d, %d' % (QI, 264 + 6*156 + 48)); P('s_cbranch_scc1 L_end_drain')
    P('s_cmp_lt_u32 s%d, 264' % QI); P('s_cbranch_scc0 L_gm_d2')
    P('s_cmp_ge_u32 s%d, 132' % QI); P('s_cselect_b32 s%d, 1, 0' % TT); P('s_mul_i32 s46, s%d, 132' % TT); P('s_sub_u32 s%d, s%d, s46' % (FG, QI))
    P('s_branch L_gm_kvqh')
    P.label('L_gm_d2')
    P('s_sub_u32 s46, s%d, 264' % QI)
    P('s_cmp_ge_u32 s46, %d' % (6*156)); P('s_cbranch_scc1 L_gm_d3')
    P('s_mul_i32 s47, s46, 26887'); P('s_lshr_b32 s47, s47, 22')
    P('s_mul_i32 s45, s47, 156'); P('s_sub_u32 s45, s46, s45')
    P('s_cmp_lt_u32 s45, 24'); P('s_cbranch_scc0 L_gm_d2b')
    P('s_mov_b32 s%d, s47' % TT); P('s_mov_b32 s%d, s45' % FG); P('s_branch L_gm_m2')
    P.label('L_gm_d2b')
    P('s_add_u32 s%d, s47, 2' % TT); P('s_sub_u32 s%d, s45, 24' % FG); P('s_branch L_gm_kvqh')
    P.label('L_gm_d3')
    P('s_sub_u32 s46, s46, %d' % (6*156)); P('s_cmp_ge_u32 s46, 24'); P('s_cselect_b32 s47, 1, 0'); P('s_add_u32 s%d, s47, 6' % TT)
    P('s_mul_i32 s47, s47, 24'); P('s_sub_u32 s%d, s46, s47' % FG)
    P.label('L_gm_m2')
    P('s_lshl_b32 s63, s%d, 7' % TT); P('s_add_u32 s46, s63, 0x%x' % (FL + F_H))
    wg_wait(P, 46, 36)
    P('s_add_u32 s63, s63, 0x%x' % (FL + F_M2))
    P('s_branch L_gm_run_m2')
    P.label('L_gm_kvqh')
    P('s_lshl_b32 s63, s%d, 7' % TT); P('s_add_u32 s46, s63, 0x%x' % (FL + F_LN))
    wg_wait(P, 46, 16, sleep=8)
    P('s_cmp_ge_u32 s%d, 96' % FG); P('s_cbranch_scc1 L_gm_h')
    P('s_cmp_ge_u32 s%d, 64' % FG); P('s_cselect_b32 s46, %d, %d' % (F_Q, F_Q)) if False else None
    P('s_mov_b32 s46, 0x%x' % (FL + F_KV)); P('s_cmp_ge_u32 s%d, 64' % FG); P('s_cselect_b32 s46, 0x%x, s46' % (FL + F_Q))
    P('s_add_u32 s63, s63, s46')
    if OPT.get('diag'):
        P('s_cmp_lt_u32 s%d, 64' % QI); P('s_cbranch_scc0 L_dg1'); end_stamp(P, 53); P.label('L_dg1')
    k.straight(P)
    W2.task_kvq(k, 'L_gk', 'L_gm_sig')
    P = Prog(); P.label('L_gm_h'); P('s_sub_u32 s%d, s%d, 96' % (FG, FG)); P('s_add_u32 s63, s63, 0x%x' % (FL + F_H)); k.straight(P)
    W2.task_h(k, 'L_gh', 'L_gm_sig')
    P = Prog(); P.label('L_gm_run_m2'); k.straight(P)
    W2.task_m2(k, 'L_g2m', 'L_gm_sig')
    P = Prog(); P.label('L_gm_sig'); signal(P, 63)
    if OPT.get('diag'):
        P('s_cmp_lt_u32 s%d, 64' % QI); P('s_cbranch_scc0 L_dg2'); end_stamp(P, 54); P.label('L_dg2')
    P('s_branch L_gm_next')
    P.label('L_end_drain'); P('s_waitcnt vmcnt(0)'); end_stamp(P, 50); P('s_branch L_end')
    k.straight(P); k.reset_state()

def w5_role(k):
    P = Prog()
    P.label('L_w5')
    P('s_lshl_b32 s47, s46, 2'); P('s_add_u32 s47, s47, s%d' % G_W); P('s_and_b32 s%d, s47, 31' % W1.A_H); P('s_lshr_b32 s%d, s46, 3' % W1.A_S)
    W1.attn_setup(P)
    P('s_lshl_b32 s80, s%d, 7' % W1.A_H); P('s_add_u32 s80, s80, 0x%x' % (FL + F_PROG))
    k.straight(P)
    P = Prog()
    P.label('L_w5_loop')
    P('s_and_b32 s81, s%d, 6' % W1.A_S); P('s_cmp_eq_u32 s81, 0'); P('s_cbranch_scc0 L_w5_go')
    P('s_lshr_b32 s81, s%d, 3' % W1.A_S); P('s_lshl_b32 s81, s81, 7')
    P('s_add_u32 s82, s81, 0x%x' % (FL + F_KV)); poll_ge(P, 82, 64, vtmp=8, sleep=32)
    P('s_add_u32 s82, s81, 0x%x' % (FL + F_Q)); poll_ge(P, 82, 32, vtmp=8, sleep=32)
    P.label('L_w5_go')
    def wait_mem(P):
        P('s_add_u32 s83, s%d, 1' % W1.A_S)
        poll_ge(P, 80, 83, vtmp=8, tgt_is_sgpr=True, x4min=True, sleep=8)
    W1.attn_task(P, stflag=' sc1', wait_mem=wait_mem)
    P('s_waitcnt vmcnt(0)')
    P('s_lshl_b32 s81, s%d, 7' % W1.A_S); P('s_add_u32 s81, s81, 0x%x' % (FL + F_O))
    P('v_mov_b32 v8, 1'); P('s_mov_b64 exec, 1'); P('buffer_atomic_add v8, off, %s, s81' % WSs); P('s_mov_b64 exec, -1')
    P('s_add_u32 s%d, s%d, 2' % (W1.A_S, W1.A_S)); P('s_cmp_lt_u32 s%d, 64' % W1.A_S); P('s_cbranch_scc1 L_w5_loop')
    k.loop(P)
    P = Prog(); P('s_waitcnt vmcnt(0)'); end_stamp(P, 49); P('s_branch L_end'); k.straight(P); k.reset_state()

def w6_role(k):
    S_CT, S_SEG, S_PAR = 44, 45, 46
    P = Prog()
    P.label('L_w6a'); P('s_mov_b32 s%d, s%d' % (S_CT, S_RANK)); P('s_mov_b32 s%d, 0' % S_SEG); P('s_branch L_w6')
    P.label('L_w6b'); P('s_mov_b32 s%d, s46' % S_CT); P('s_mov_b32 s%d, 1' % S_SEG); P('s_branch L_w6')
    P.label('L_w6c'); P('s_mov_b32 s%d, s46' % S_CT); P('s_mov_b32 s%d, 2' % S_SEG)
    P.label('L_w6')
    if OPT.get('hold', 1):
        P('s_mov_b32 s47, 0x%x' % (FL + F_LD)); wg_wait(P, 47, OPT.get('holdn', 16), sleep=48)
    srd(P, 12, 70, 71, 4096*1152); srd(P, G_BSRD, 64, 65, 2048*1152); srd(P, G_OSRD, 68, 69, 2048*1152); srd(P, 76, 66, 67, 1152)
    L16, TRA, DMO = 1, 2, 3
    P('v_lshlrev_b32 v%d, 4, v0' % L16)
    P('v_lshrrev_b32 v4, 2, v0'); P('s_movk_i32 s%d, 1152' % G_T0); P('v_mul_lo_u32 v4, v4, s%d' % G_T0); P('v_and_b32 v5, 3, v0'); P('v_lshl_add_u32 v%d, v5, 4, v4' % DMO)
    P('v_lshrrev_b32 v4, 5, v0'); P('v_bfe_u32 v5, v0, 2, 2'); P('v_lshl_add_u32 v4, v4, 2, v5'); P('v_lshlrev_b32 v4, 6, v4')
    P('v_bfe_u32 v5, v0, 4, 1'); P('v_lshl_add_u32 v4, v5, 5, v4'); P('v_and_b32 v5, 3, v0'); P('v_lshl_add_u32 v4, v5, 3, v4')
    P('s_lshl_b32 s47, s%d, 15' % G_W); P('v_add_u32 v%d, s47, v4' % TRA)
    P('s_mul_i32 s48, s%d, %d' % (G_W, 1024*1152)); P('s_lshl_b32 s49, s%d, 6' % S_CT); P('s_add_u32 s48, s48, s49')
    for rnd in range(2):
        P('s_mov_b32 m0, s47')
        for j in range(32):
            P('buffer_load_dwordx4 v%d, s[12:15], s48 offen lds' % DMO)
            P('s_add_u32 m0, m0, 1024'); P('s_add_u32 s48, s48, %d' % (16*1152))
        P('s_waitcnt vmcnt(0)')
        for f in range(32):
            a = 4*(32*rnd + f)
            P('ds_read_b64_tr_b16 a[%d:%d], v%d offset:%d' % (a, a+1, TRA, f*1024)); P('ds_read_b64_tr_b16 a[%d:%d], v%d offset:%d' % (a+2, a+3, TRA, f*1024 + 512))
        P('s_waitcnt lgkmcnt(0)')
    P('v_and_b32 v4, 31, v0'); P('s_movk_i32 s%d, 1152' % G_T0); P('v_mul_lo_u32 v4, v4, s%d' % G_T0)
    P('v_lshrrev_b32 v5, 5, v0'); P('v_lshlrev_b32 v5, 4, v5'); P('v_add_u32 v4, v4, v5')
    P('s_barrier')
    k.straight(P)
    XA, XB, ACC, T = 16, 80, 144, 160
    P = Prog()
    P.label('L_w6_loop')
    P('s_lshr_b32 s50, s%d, 3' % S_SEG); P('s_lshl_b32 s50, s50, 7'); P('s_add_u32 s50, s50, 0x%x' % (FL + F_M2))
    wg_wait(P, 50, 24, vtmp=8, sleep=32)
    P('s_lshl_b32 s51, s%d, 6' % G_W); P('s_add_u32 s51, s51, s%d' % S_SEG); P('s_mul_i32 s51, s51, 18'); P('s_add_u32 s51, s51, s%d' % S_CT)
    P('s_lshl_b32 s51, s51, 12'); P('s_add_u32 s51, s51, 0x%x' % WS_BASE)
    for q in range(4): P('buffer_load_dwordx4 %s, v%d, %s, s51 offen offset:%d' % (vr(ACC+4*q,4), L16, WSs, q*1024))
    P('s_lshl_b32 s50, s%d, 7' % S_SEG); P('s_add_u32 s50, s50, 0x%x' % (FL + F_O))
    wg_wait(P, 50, 32, vtmp=8, sleep=4)
    P('s_lshl_b32 s52, s%d, 18' % S_SEG); P('s_lshl_b32 s53, s%d, 16' % G_W); P('s_add_u32 s52, s52, s53'); P('s_add_u32 s52, s52, 0x%x' % WS_OF)
    def xbatch(reg, b):
        for i in range(16):
            if i % 4 == 0: P('s_add_u32 s53, s52, %d' % ((16*b + i)*1024))
            P('buffer_load_dwordx4 %s, v%d, %s, s53 offen offset:%d' % (vr(reg+4*i,4), L16, WSs, (i % 4)*1024))
    def mbatch(reg, b):
        for i in range(16):
            f = 16*b + i
            P('v_mfma_f32_32x32x16_bf16 %s, a[%d:%d], %s, %s' % (vr(ACC,16), 4*f, 4*f+3, vr(reg+4*i,4), vr(ACC,16)))
    xbatch(XA, 0); xbatch(XB, 1); mbatch(XA, 0); xbatch(XA, 2); mbatch(XB, 1); xbatch(XB, 3); mbatch(XA, 2); mbatch(XB, 3)
    P('s_cmp_eq_u32 s%d, 0' % G_W); P('s_cbranch_scc1 L_w6_r0')
    P('s_lshl_b32 s53, s%d, 12' % G_W); P('v_add_u32 v8, s53, v%d' % L16)
    for q in range(4): P('ds_write_b128 v8, %s offset:%d' % (vr(ACC+4*q,4), q*1024))
    P('s_waitcnt lgkmcnt(0)'); P('s_barrier'); P('s_barrier')
    P('s_branch L_w6_next')
    P.label('L_w6_r0')
    P('s_mul_i32 s53, s%d, %d' % (S_SEG, 32*1152)); P('s_lshl_b32 s54, s%d, 6' % S_CT); P('s_add_u32 s53, s53, s54')
    for qp in range(2):
        P('buffer_load_dwordx4 %s, v4, s[%d:%d], s53 offen offset:%d' % (vr(T+8*qp,4), G_BSRD, G_BSRD+3, 32*qp))
        P('buffer_load_dwordx4 %s, v5, s[76:79], s54 offen offset:%d' % (vr(T+8*qp+4,4), 32*qp))
    P('s_barrier')
    for wv in range(1, 4):
        for q in range(4): P('ds_read_b128 %s, v%d offset:%d' % (vr(T+16+4*q,4), L16, wv*4096 + q*1024))
        for i in range(0, 16, 2): P('v_pk_add_f32 %s, %s, %s' % (vr(ACC+i,2), vr(ACC+i,2), vr(T+16+i,2)))
    P('s_waitcnt lgkmcnt(0)'); P('s_barrier')
    for qp in range(2):
        a = ACC + 8*qp
        for i in range(4): P('v_permlane32_swap_b32 v%d, v%d' % (a+i, a+4+i))
        for i in range(4):
            for src in (T+8*qp+i, T+8*qp+4+i):
                P('v_lshlrev_b32 v8, 16, v%d' % src); P('v_add_f32 v%d, v%d, v8' % (a+2*i, a+2*i))
                P('v_and_b32 v9, 0xffff0000, v%d' % src); P('v_add_f32 v%d, v%d, v9' % (a+2*i+1, a+2*i+1))
        G2.pack8(P, T+32, a)
        P('buffer_store_dwordx4 %s, v4, s[%d:%d], s53 offen offset:%d' % (vr(T+32,4), G_OSRD, G_OSRD+3, 32*qp))
    P.label('L_w6_next')
    P('s_add_u32 s%d, s%d, 3' % (S_SEG, S_SEG)); P('s_cmp_lt_u32 s%d, 64' % S_SEG); P('s_cbranch_scc1 L_w6_loop')
    k.loop(P)
    P = Prog(); P('s_waitcnt vmcnt(0)'); end_stamp(P, 48); P('s_branch L_end'); k.straight(P); k.reset_state()

def end_stamp(P, idx):
    if not OPT.get('diag'): return
    L = uid('L_es')
    P('s_and_b32 s88, s%d, 7' % S_RANK); P('s_or_b32 s88, s88, s%d' % G_W); P('s_cmp_eq_u32 s88, 0'); P('s_cbranch_scc0 %s' % L)
    P('s_memrealtime s[92:93]'); P('s_waitcnt lgkmcnt(0)'); P('s_sub_u32 s92, s92, s90')
    P('s_mov_b32 s88, 0x%x' % (FL + F_DIAG + 128*(idx-44))); P('v_mov_b32 v21, s92'); P('s_mov_b64 exec, 1')
    P('buffer_atomic_umax v21, off, %s, s88' % WSs); P('s_mov_b64 exec, -1')
    P.label(L)

def gen(name):
    k = Kernel()
    bootstrap(k)
    worker_dispatch(k)
    gemm_role(k)
    w5_role(k)
    w6_role(k)
    chain_common(k)
    chain_role(k, True)
    chain_role(k, False)
    P = Prog(); P.label('L_end'); P('s_endpgm'); P.label('L_code_end'); k.straight(P)
    return '.globl %s\n.p2align 8\n.type %s,@function\n%s:\n' % (name, name, name) + k.text() + kdesc(name)

HDR = open('parallel_sum__memory_aug_recurrent_mem_tr__mixer_channel_mlp__prompt.s.ref').read().split('; Override launch')[0]
NAME = 'parallel_sum__memory_aug_recurrent_mem_tr__mixer_channel_mlp__prompt_kernel'
if __name__ == '__main__':
    out = sys.argv[1]
    for a in sys.argv[2:]:
        kk, vv = a.split('=')
        if kk == 'set': C.STAMP_SET = set(int(x) for x in vv.split(',')); C.OPT['stamps'] = 1
        elif kk.startswith('c.'): C.OPT[kk[2:]] = int(vv)
        else: OPT[kk] = int(vv)
    txt = HDR + header(['; @launch grid=(256,1,1) block=(256,1,1) lds=163840']) + gen(NAME).replace('CODE_THIRD', str(NPF*8192)).replace('CODE_LEN', 'L_code_end-L_pc_here-4')
    open(out, 'w').write(txt)
    print('written', out, len(txt))
```

```python
from asmlib import *
from common import *

OPT = dict(stamps=0, gdel=6, gdel0=14, rc=0, pf=0, kxtop=1)

L_MF = 0; L_S = 9216; L_O = 14336; L_WL = 16384; LDS_TOTAL = 163840

def wreg(i):
    if i < 32: return 'a[%d:%d]' % (8*i, 8*i+7), ('a', 8*i)
    j = i - 32
    return 'v[%d:%d]' % (80+8*j, 80+8*j+7), ('v', 80+8*j)
LDS_CHUNKS = [('k',0), ('k',2), ('k',4), ('k',6), ('k',8), ('v',2), ('v',6)]
LDS_BLOCKS = [(m, tile, t) for (m, t) in LDS_CHUNKS for tile in (0, 1)] + [('od', p, 3) for p in range(4)]
ALL_BLOCKS = [(m,tile,t) for m in 'qkv' for t in range(9) for tile in (0,1)] + [('oh',0),('oh',1)] + [('od',p,c) for p in range(4) for c in range(4)]
REG_BLOCKS = [b for b in ALL_BLOCKS if b not in LDS_BLOCKS]
assert len(LDS_BLOCKS) == 18 and len(REG_BLOCKS) == 54
REG_OF = {b: wreg(i) for i, b in enumerate(REG_BLOCKS)}
LDS_OF = {b: i for i, b in enumerate(LDS_BLOCKS)}

S_WS = 8; S_SRD2 = 12
S_H = 16; S_W = 17; S_STEP = 18; S_T0 = 19; S_T1 = 20; S_T2 = 21; S_T3 = 22
S_PCUR = 23; S_PCUR4 = 24; S_PR0 = 25
S_MNXT = 30; S_MPOI = 31
S_KV = 32; S_KM = 33; S_RED = 34; S_TMO = 35
S_EXN8 = 36; S_C = 38; S_ERR = 39; S_TS = 40; S_DBG = 42
S_TAG = 44; S_RDEL = 45
S_PTR = 46
S_OW = 56; S_GW = 57; S_EXMM = 60; S_PERM = 62; S_PERM2 = 63
S_BM = 64
S_VV = 72; S_KMW = 73; S_VMP = 74; S_KVRDY = 75
S_ST = 76
S_RC = 84
S_PROG = 86
S_G0 = 87; S_G1 = 88; S_G2 = 89; S_MPN = 29; S_TMOV = 58

V_NEG1=0; V_L16=1; V_IDX=2; V_PST=3; V_RED=4; V_MST=5; V_G16=6; V_SW=7; V_SR=8; V_SM=9; V_KX=10; V_VX=11; V_WL=12; V_VM=13
V_BSEL=14; V_BVAL=16; V_PT0=17; V_VMH=18
V_AR=20; V_ST=32
V_QA=48; V_QB=52; V_KA=56; V_KB=60; V_VA=64; V_VB=68; V_KF=72

def vr(a, n=1): return 'v%d' % a if n == 1 else 'v[%d:%d]' % (a, a+n-1)
WS = 's[%d:%d]' % (S_WS, S_WS+3)
DPP8 = 'row_ror:8 row_mask:0xf bank_mask:0xf'
OOB = 0x40000000
TMO = 20000
def pk_add(P, d, a, b): P('v_pk_add_f32 %s, %s, %s' % (vr(d,2), vr(a,2), vr(b,2)))
def cvt(P, d, a, b): P('v_cvt_pk_bf16_f32 v%d, v%d, v%d' % (d, a, b))
def mfma16(P, d, a, b, c=None): P('v_mfma_f32_16x16x16_bf16 %s, %s, %s, %s' % (vr(d,4), vr(a,2), vr(b,2), '0' if c is None else vr(c,4)))
def mfma32(P, d, a, b, c=None): P('v_mfma_f32_16x16x32_bf16 %s, %s, %s, %s' % (vr(d,4), vr(a,4), vr(b,4), '0' if c is None else vr(c,4)))
def smf_s(acc, a, b): return 'v_smfmac_f32_16x16x64_bf16 %s, %s, %s, v%d' % (vr(acc, 4), vr(a, 4), b, V_IDX)
def smf(P, acc, a, b): P(smf_s(acc, a, b))
def aread_s(t, dst): return 'ds_read_b128 %s, v%d offset:%d' % (vr(dst, 4), V_L16, L_MF + 1024*t)
def blk_s(blk, buf):
    off = LDS_OF[blk]*2048
    return 'ds_read_b128 %s, v%d offset:%d\nds_read_b128 %s, v%d offset:%d' % (vr(buf,4), V_WL, off, vr(buf+4,4), V_WL, off+1024)

def load_weights(k, hook=None):
    P = Prog()
    n, gb = 2, 3
    DA0, DA1, TA0, TA1, TB0, TB1, OD, OH, OL = 4, 5, 6, 7, 8, 9, 10, 11, 12
    t0, t1, t2, t3 = 14, 15, 16, 17
    P('v_and_b32 v%d, 15, v0' % n); P('v_lshrrev_b32 v%d, 4, v0' % gb)
    P('v_and_b32 v%d, 1, v%d' % (t0, gb)); P('v_lshrrev_b32 v%d, 1, v%d' % (t1, gb)); P('v_lshl_add_u32 v%d, v%d, 2, v%d' % (t0, t1, t0))
    for var, dst in ((0, DA0), (1, DA1)):
        P('v_xor_b32 v%d, v%d, v%d' % (t1, n, t0))
        if var: P('v_xor_b32 v%d, 8, v%d' % (t1, t1))
        P('v_lshlrev_b32 v%d, 4, v%d' % (t1, t1))
        P('v_lshl_add_u32 v%d, v%d, 13, v%d' % (dst, gb, t1))
    P('v_bfe_u32 v%d, v0, 3, 1' % t0)
    P('v_bfe_u32 v%d, v0, 2, 1' % t1)
    P('v_and_b32 v%d, 1, v%d' % (t2, gb))
    P('v_lshlrev_b32 v%d, 3, v%d' % (t3, t0)); P('v_lshl_add_u32 v%d, v%d, 1, v%d' % (t3, t1, t3)); P('v_add_u32 v%d, v%d, v%d' % (t3, t3, t2))
    P('v_lshlrev_b32 v%d, 8, v%d' % (t3, t3))
    P('v_lshlrev_b32 v%d, 3, v%d' % (t0, t0)); P('v_lshl_add_u32 v%d, v%d, 2, v%d' % (t0, t1, t0)); P('v_add_u32 v%d, v%d, v%d' % (t0, t0, t2))
    P('v_bfe_u32 v%d, v0, 1, 1' % t1); P('v_lshlrev_b32 v%d, 1, v%d' % (t1, t1))
    P('s_lshl_b32 s%d, s%d, 2' % (S_T0, S_W)); P('v_add_u32 v%d, s%d, v%d' % (t1, S_T0, t1))
    P('v_lshrrev_b32 v%d, 1, v%d' % (t2, gb)); P('s_mov_b32 s%d, 36864' % S_T0); P('v_mul_lo_u32 v%d, v%d, s%d' % (t2, t2, S_T0))
    P('v_add_u32 v%d, v%d, v%d' % (t3, t3, t2))
    P('v_and_b32 v%d, 1, v0' % t2); P('v_lshl_add_u32 v%d, v%d, 3, v%d' % (t3, t2, t3))
    P('v_add_u32 v%d, %d, v%d' % (t3, L_WL, t3))
    for tile, (d0, d1) in ((0, (TA0, TA1)), (1, (TB0, TB1))):
        P('v_xor_b32 v%d, v%d, v%d' % (t2, t1, t0))
        if tile: P('v_xor_b32 v%d, 1, v%d' % (t2, t2))
        P('v_lshl_add_u32 v%d, v%d, 4, v%d' % (d0, t2, t3))
        P('v_add_u32 v%d, 73728, v%d' % (d1, d0))
    P('v_lshrrev_b32 v%d, 1, v%d' % (t0, gb)); P('v_lshlrev_b32 v%d, 2, v%d' % (t0, t0))
    P('v_bfe_u32 v%d, v0, 2, 1' % t1); P('v_add_u32 v%d, v%d, v%d' % (t0, t0, t1))
    P('v_and_b32 v%d, 1, v%d' % (t1, gb)); P('v_lshl_add_u32 v%d, v%d, 3, v%d' % (t0, t1, t0))
    P('s_movk_i32 s%d, 1152' % S_T0); P('v_mul_lo_u32 v%d, v%d, s%d' % (t0, t0, S_T0))
    P('v_and_b32 v%d, 3, v0' % t1); P('v_lshl_add_u32 v%d, v%d, 3, v%d' % (t0, t1, t0))
    P('s_lshl_b32 s%d, s%d, 5' % (S_T0, S_W)); P('s_add_u32 s%d, s%d, %d' % (S_T0, S_T0, L_WL)); P('v_add_u32 v%d, s%d, v%d' % (t0, S_T0, t0))
    P('v_bfe_u32 v%d, v0, 3, 1' % t1)
    P('v_lshl_add_u32 v%d, v%d, 7, v%d' % (OD, t1, t0))
    P('s_mov_b32 s%d, 36864' % S_T0); P('v_mul_lo_u32 v%d, v%d, s%d' % (t1, t1, S_T0)); P('v_add_u32 v%d, v%d, v%d' % (OH, t1, t0))
    P('v_lshlrev_b32 v%d, 4, v0' % OL)
    WL = 13
    P('s_mul_i32 s%d, s%d, 36864' % (S_G0, S_W)); P('s_add_u32 s%d, s%d, %d' % (S_G0, S_G0, L_WL)); P('v_add_u32 v%d, s%d, v%d' % (WL, S_G0, OL))
    SR = 's[%d:%d]' % (S_SRD2, S_SRD2+3)
    def set_srd(ptr, size):
        P('s_mov_b32 s%d, s%d' % (S_SRD2, ptr)); P('s_mov_b32 s%d, s%d' % (S_SRD2+1, ptr+1))
        P('s_mov_b32 s%d, 0x%x' % (S_SRD2+2, size)); P('s_mov_b32 s%d, 0x20000' % (S_SRD2+3))
    set_srd(S_PTR+6, 4096*576*2)
    P('s_mul_i32 s%d, s%d, %d' % (S_T0, S_H, 147456)); P('s_mul_i32 s%d, s%d, 36864' % (S_T1, S_W)); P('s_add_u32 s%d, s%d, s%d' % (S_T0, S_T0, S_T1))
    P('s_mov_b32 m0, s%d' % S_G0)
    for j in range(36):
        P('buffer_load_dwordx4 v%d, %s, s%d offen lds' % (OL, SR, S_T0))
        if j < 35: P('s_add_u32 m0, m0, 1024'); P('s_add_u32 s%d, s%d, 1024' % (S_T0, S_T0))
    if hook: hook(P)
    P('s_waitcnt vmcnt(0) lgkmcnt(0)'); P('s_barrier')
    if hook: hook(P, True)
    def dst_regs(blk):
        cls, r0 = REG_OF[blk][1]; return cls, r0
    def tr(dstcls, r0, addr, off): P('ds_read_b64_tr_b16 %s[%d:%d], v%d offset:%d' % (dstcls, r0, r0+1, addr, off))
    TC = 20
    for pr in range(4):
        for c in range(4):
            blk = ('od', pr, c); Ta = 1 + 2*pr
            if blk in REG_OF: cls, r0 = dst_regs(blk)
            else: cls, r0 = 'v', TC + 8*pr
            for q in range(4):
                Pq, p1 = q >> 1, q & 1
                off = (16*Pq + 2*p1)*1152 + 128*Ta
                if c == 0: tr(cls, r0+2*q, OD, off)
                else:
                    if q == 0: P('v_add_u32 v%d, %d, v%d' % (t0, c*36864, OD))
                    tr(cls, r0+2*q, t0, off)
    for s2 in range(2):
        cls, r0 = dst_regs(('oh', s2))
        P('v_add_u32 v%d, %d, v%d' % (t0, 2*s2*36864, OH))
        for q in range(4): tr(cls, r0+2*q, t0, (16*(q >> 1) + 2*(q & 1))*1152)
    P('s_waitcnt lgkmcnt(0)'); P('s_barrier')
    for pr in range(4):
        off = LDS_OF[('od', pr, 3)]*2048
        P('ds_write_b128 v%d, %s offset:%d' % (WL, vr(TC+8*pr,4), off)); P('ds_write_b128 v%d, %s offset:%d' % (WL, vr(TC+8*pr+4,4), off+1024))
    k.straight(P)
    reg_chunks = [(m, t) for m in 'qkv' for t in range(9) if (m, t) not in LDS_CHUNKS]
    order = reg_chunks + LDS_CHUNKS
    NS = 7
    slot_of = {}
    for j, ch in enumerate(reg_chunks): slot_of[ch] = j % NS
    for i, ch in enumerate(LDS_CHUNKS): slot_of[ch] = i
    last_use = {}
    for j, ch in enumerate(reg_chunks): last_use[slot_of[ch]] = j
    lds_sorted = sorted(LDS_CHUNKS, key=lambda ch: last_use[slot_of[ch]])
    order = reg_chunks + lds_sorted
    cur_m = [None]
    def issue(P, ch):
        m, t = ch
        if cur_m[0] != m:
            ptr = {'q': S_PTR, 'k': S_PTR+2, 'v': S_PTR+4}[m]
            P('s_mov_b32 s%d, s%d' % (S_SRD2, ptr)); P('s_mov_b32 s%d, s%d' % (S_SRD2+1, ptr+1))
            P('s_mov_b32 s%d, 0x%x' % (S_SRD2+2, 576*8192)); P('s_mov_b32 s%d, 0x20000' % (S_SRD2+3))
            cur_m[0] = m
        for jj in range(4):
            P('s_add_u32 m0, s%d, %d' % (S_G0, slot_of[ch]*4096 + jj*1024))
            P('s_add_u32 s%d, s%d, %d' % (S_T0, S_G1, (64*t + 4*jj)*8192))
            P('buffer_load_dwordx4 v%d, %s, s%d offen lds' % (DA0 if jj < 2 else DA1, SR, S_T0))
    P = Prog()
    P('s_lshl_b32 s%d, s%d, 8' % (S_G1, S_H)); P('s_mul_i32 s%d, s%d, %d' % (S_T0, S_W, 16*8192)); P('s_add_u32 s%d, s%d, s%d' % (S_G1, S_G1, S_T0))
    issued = 0
    def can_issue(j, consumed):
        ch = order[j]; s = slot_of[ch]
        prev = [i for i in range(j) if slot_of[order[i]] == s]
        return (not prev) or prev[-1] < consumed
    while issued < len(order) and can_issue(issued, 0) and issued < NS:
        issue(P, order[issued]); issued += 1
    TB = 20
    for j, ch in enumerate(order):
        m, t = ch
        P('s_waitcnt vmcnt(%d) lgkmcnt(0)' % (4*(issued - j - 1)))
        P('s_barrier')
        while issued < len(order) and can_issue(issued, j):
            issue(P, order[issued]); issued += 1
        so = slot_of[ch]*4096
        for tile, (a0, a1) in ((0, (TA0, TA1)), (1, (TB0, TB1))):
            blk = (m, tile, t)
            if blk in REG_OF: cls, r0 = dst_regs(blk)
            else: cls, r0 = 'v', TB + 8*tile
            for q in range(4): tr(cls, r0+2*q, a0 if q < 2 else a1, so + (q & 1)*1024)
        if ch in LDS_CHUNKS:
            P('s_waitcnt lgkmcnt(0)'); P('s_barrier')
            for tile in range(2):
                off = LDS_OF[(m, tile, t)]*2048
                P('ds_write_b128 v%d, %s offset:%d' % (WL, vr(TB+8*tile,4), off)); P('ds_write_b128 v%d, %s offset:%d' % (WL, vr(TB+8*tile+4,4), off+1024))
    P('s_waitcnt lgkmcnt(0)'); P('s_barrier')
    k.straight(P); k.reset_state()

def lane_setup(k):
    P = Prog()
    n, rg, t0, t1, t2, nh, n7, dt = 20, 21, 22, 23, 24, 25, 26, 27
    P('v_and_b32 v%d, 15, v0' % n); P('v_lshrrev_b32 v%d, 4, v0' % rg); P('v_lshlrev_b32 v%d, 4, v0' % V_L16)
    P('v_mov_b32 v%d, 0x44444444' % V_IDX); P('v_mov_b32 v%d, 0xeeeeeeee' % t0)
    P('v_cmp_lt_u32 vcc, 7, v%d' % n); P('v_cndmask_b32 v%d, v%d, v%d, vcc' % (V_IDX, V_IDX, t0))
    P('v_lshrrev_b32 v%d, 3, v%d' % (nh, n)); P('v_and_b32 v%d, 7, v%d' % (n7, n))
    P('v_lshl_add_u32 v%d, v%d, 3, v%d' % (t0, rg, n7)); P('v_lshlrev_b32 v%d, 4, v%d' % (V_G16, t0))
    P('v_lshrrev_b32 v%d, 1, v%d' % (t0, rg)); P('v_lshl_add_u32 v%d, v%d, 6, v%d' % (t0, t0, n))
    P('s_lshl_b32 s%d, s%d, 4' % (S_T0, S_W)); P('v_add_u32 v%d, s%d, v%d' % (t0, S_T0, t0)); P('v_lshlrev_b32 v%d, 4, v%d' % (t0, t0))
    P('v_and_b32 v%d, 1, v%d' % (t1, rg)); P('v_lshl_add_u32 v%d, v%d, 3, v%d' % (V_PST, t1, t0))
    if OPT.get('quad', 1):
        P('v_and_b32 v%d, 1, v%d' % (t0, rg)); P('v_lshlrev_b32 v%d, 1, v%d' % (t0, t0)); P('v_lshrrev_b32 v%d, 1, v%d' % (t1, rg)); P('v_add_u32 v%d, v%d, v%d' % (t0, t0, t1))
        P('v_lshl_add_u32 v%d, v%d, 6, v%d' % (t0, t0, n)); P('s_lshl_b32 s%d, s%d, 4' % (S_T0, S_W)); P('v_add_u32 v%d, s%d, v%d' % (t0, S_T0, t0))
        P('v_lshlrev_b32 v%d, 4, v%d' % (V_PST, t0))
    P('v_lshlrev_b32 v%d, 4, v%d' % (t0, n)); P('v_lshl_add_u32 v%d, v%d, 2, v%d' % (t0, rg, t0))
    P('s_lshl_b32 s%d, s%d, 8' % (S_T0, S_W)); P('v_add_u32 v%d, s%d, v%d' % (V_PT0, S_T0, t0))
    P('s_sub_u32 s%d, s%d, 1' % (S_T0, S_W)); P('s_lshl_b32 s%d, s%d, 5' % (S_T0, S_T0)); P('s_add_u32 s%d, s%d, s%d' % (S_T0, S_T0, S_H))
    P('s_cmp_lt_u32 s%d, 72' % S_T0); P('s_cselect_b32 s%d, 1, 0' % S_RED)
    P('s_cmp_eq_u32 s%d, 0' % S_W); P('s_cselect_b32 s%d, 0, s%d' % (S_RED, S_RED))
    P('s_cmp_eq_u32 s%d, 0' % S_RED); P('s_cselect_b32 s%d, 0, s%d' % (S_T0, S_T0))
    P('s_lshr_b32 s%d, s%d, 3' % (S_T1, S_T0))
    tab = OPT.get('rtab')
    if tab:
        P('s_mov_b32 s%d, %d' % (S_RDEL, tab[0]))
        for T in range(1, 9):
            P('s_cmp_eq_u32 s%d, %d' % (S_T1, T)); P('s_cselect_b32 s%d, %d, s%d' % (S_RDEL, tab[T], S_RDEL))
    else:
        P('s_mul_i32 s%d, s%d, %d' % (S_RDEL, S_T1, OPT.get('rslope', 1))); P('s_add_u32 s%d, s%d, %d' % (S_RDEL, S_RDEL, OPT.get('rbase', 1)))
    P('s_lshl_b32 s%d, s%d, 7' % (S_T2, S_T0))
    P('v_lshl_add_u32 v%d, v%d, 1, v%d' % (t0, rg, nh)); P('s_movk_i32 s%d, 9216' % S_T1); P('v_mul_lo_u32 v%d, v%d, s%d' % (t0, t0, S_T1))
    P('v_lshl_add_u32 v%d, v%d, 4, v%d' % (t0, n7, t0)); P('v_add_u32 v%d, s%d, v%d' % (V_RED, S_T2, t0))
    P('v_lshlrev_b32 v%d, 1, v%d' % (t0, n)); P('v_and_b32 v%d, 7, v%d' % (t0, t0)); P('v_bfe_u32 v%d, v%d, 2, 1' % (t1, n)); P('v_add_u32 v%d, v%d, v%d' % (t0, t0, t1))
    P('s_cmp_lt_u32 s%d, 8' % S_T0); P('s_cselect_b64 vcc, -1, 0'); P('v_cndmask_b32 v%d, v%d, v%d, vcc' % (t0, n, t0))
    P('v_lshlrev_b32 v%d, 4, v%d' % (t0, t0)); P('v_lshl_add_u32 v%d, v%d, 2, v%d' % (t0, rg, t0)); P('v_add_u32 v%d, s%d, v%d' % (t0, S_T2, t0))
    P('v_mov_b32 v%d, 0x%x' % (t1, OOB)); P('v_cmp_lt_u32 vcc, 7, v%d' % n); P('v_cndmask_b32 v%d, v%d, v%d, vcc' % (t0, t0, t1))
    P('s_cmp_eq_u32 s%d, 0' % S_RED); P('s_cselect_b64 vcc, -1, 0'); P('v_cndmask_b32 v%d, v%d, v%d, vcc' % (V_MST, t0, t1))
    P('s_mul_i32 s%d, s%d, 1280' % (S_T0, S_W)); P('s_add_u32 s%d, s%d, %d' % (S_T0, S_T0, L_S)); P('v_add_u32 v%d, s%d, v%d' % (V_SW, S_T0, V_G16))
    P('v_lshl_add_u32 v%d, v%d, 9, v%d' % (t0, nh, V_G16)); P('v_add_u32 v%d, %d, v%d' % (V_SR, L_S, t0))
    P('v_and_b32 v%d, 1, v%d' % (t0, rg)); P('v_lshl_add_u32 v%d, v%d, 3, v%d' % (t0, t0, n7)); P('v_lshlrev_b32 v%d, 4, v%d' % (t0, t0))
    P('s_movk_i32 s%d, 2560' % S_T1); P('v_mul_lo_u32 v%d, v%d, s%d' % (t1, nh, S_T1)); P('v_add_u32 v%d, v%d, v%d' % (t0, t0, t1))
    P('v_add_u32 v%d, %d, v%d' % (V_SM, L_S + 1024, t0))
    P('v_lshl_add_u32 v%d, v%d, 4, v%d' % (dt, nh, n7))
    P('s_lshl_b32 s%d, s%d, 2' % (S_T0, S_W)); P('v_add_u32 v%d, s%d, v%d' % (t0, S_T0, rg)); P('v_lshl_add_u32 v%d, v%d, 5, v%d' % (t0, t0, dt)); P('v_lshlrev_b32 v%d, 4, v%d' % (V_KX, t0))
    P('s_lshl_b32 s%d, s%d, 5' % (S_T0, S_W)); P('v_lshl_add_u32 v%d, v%d, 7, v%d' % (t0, rg, dt)); P('v_add_u32 v%d, s%d, v%d' % (t0, S_T0, t0)); P('v_lshlrev_b32 v%d, 4, v%d' % (V_VX, t0))
    P('v_lshrrev_b32 v%d, 1, v%d' % (t0, rg)); P('v_lshl_add_u32 v%d, v%d, 3, v%d' % (t0, t0, dt)); P('v_add_u32 v%d, s%d, v%d' % (t0, S_T0, t0)); P('v_lshlrev_b32 v%d, 4, v%d' % (t0, t0))
    P('v_and_b32 v%d, 1, v%d' % (t1, rg)); P('v_lshl_add_u32 v%d, v%d, 3, v%d' % (V_VM, t1, t0))
    P('s_mul_i32 s%d, s%d, 36864' % (S_T0, S_W)); P('s_add_u32 s%d, s%d, %d' % (S_T0, S_T0, L_WL)); P('v_add_u32 v%d, s%d, v%d' % (V_WL, S_T0, V_L16))
    P('v_and_b32 v%d, 3, v%d' % (t0, n)); P('v_lshrrev_b32 v%d, 2, v%d' % (t1, n7)); P('v_and_b32 v%d, 1, v%d' % (t2, rg))
    P('v_cmp_eq_u32 s[%d:%d], v%d, v%d' % (S_TS, S_TS+1, t1, t2))
    P('v_and_b32 v%d, 1, v%d' % (t1, t0)); P('v_lshlrev_b32 v%d, 4, v%d' % (t1, t1)); P('v_mov_b32 v28, 0x3f80'); P('v_lshlrev_b32 v%d, v%d, v28' % (V_BVAL, t1))
    P('v_cndmask_b32 v29, 0, v%d, s[%d:%d]' % (V_BVAL, S_TS, S_TS+1))
    P('v_cmp_gt_u32 vcc, 2, v%d' % t0); P('v_cndmask_b32 v%d, 0, v29, vcc' % V_BSEL)
    P('v_cmp_lt_u32 vcc, 1, v%d' % t0); P('v_cndmask_b32 v%d, 0, v29, vcc' % (V_BSEL+1))
    P('v_lshrrev_b32 v%d, 1, v%d' % (t1, n))
    for r in range(4): P('v_cmp_eq_u32 s[%d:%d], %d, v%d' % (S_BM+2*r, S_BM+2*r+1, r, t1))
    P('s_mov_b32 s%d, 0x00ff00ff' % S_EXN8); P('s_mov_b32 s%d, 0x00ff00ff' % (S_EXN8+1))
    P('s_mov_b32 s%d, 0x00ff00ff' % S_EXMM); P('s_mov_b32 s%d, 0' % (S_EXMM+1))
    P('s_mov_b32 s%d, 0x3e0293ee' % S_C)
    P('s_lshl_b32 s%d, s%d, 9' % (S_OW, S_W)); P('s_add_u32 s%d, s%d, %d' % (S_OW, S_OW, L_O))
    P('s_lshl_b32 s%d, s%d, 10' % (S_GW, S_W))
    P('s_mov_b32 s%d, 0' % S_ERR); P('s_mov_b32 s%d, %d' % (S_TMOV, TMO))
    P('s_mul_i32 s%d, s%d, %d' % (S_PCUR, S_H, P_HEAD)); P('s_add_u32 s%d, s%d, 0x%x' % (S_PCUR, S_PCUR, WS_P)); P('s_add_u32 s%d, s%d, 4096' % (S_PCUR4, S_PCUR))
    for t in range(4): P('s_mov_b32 s%d, 0x%x' % (S_PR0+t, WS_P + t*8*P_HEAD))
    P('s_mov_b32 s%d, 0x%x' % (S_MNXT, WS_M + 1*M_SLOT)); P('s_mov_b32 s%d, 0x%x' % (S_MPOI, WS_M + 2*M_SLOT))
    P('s_lshl_b32 s%d, s%d, 13' % (S_KV, S_H)); P('s_add_u32 s%d, s%d, 0x%x' % (S_VV, S_KV, WS_VF)); P('s_add_u32 s%d, s%d, 0x%x' % (S_KV, S_KV, WS_KF))
    P('s_lshl_b32 s%d, s%d, 11' % (S_KM, S_H)); P('s_lshl_b32 s%d, s%d, 9' % (S_T1, S_W))
    P('s_add_u32 s%d, s%d, s%d' % (S_KMW, S_KM, S_T1)); P('s_add_u32 s%d, s%d, 0x%x' % (S_KMW, S_KMW, WS_KM))
    P('s_add_u32 s%d, s%d, 0x%x' % (S_KM, S_KM, WS_VM))
    if OPT.get('puboob') == 1: P('s_mov_b32 s%d, 0x40000000' % S_KMW); P('s_mov_b32 s%d, 0x40000000' % S_KM)
    if OPT.get('puboob') == 2:
        P('s_cmp_eq_u32 s%d, 0' % S_W); P('s_cselect_b32 s%d, s%d, 0x40000000' % (S_KMW, S_KMW)); P('s_cselect_b32 s%d, s%d, 0x40000000' % (S_KM, S_KM))
    if OPT.get('puboob') == 3:
        P('s_cmp_lt_u32 s%d, 8' % S_H); P('s_cselect_b32 s%d, s%d, 0x40000000' % (S_KMW, S_KMW)); P('s_cselect_b32 s%d, s%d, 0x40000000' % (S_KM, S_KM))
    P('s_mov_b32 s%d, 0' % S_STEP); P('s_mov_b32 s%d, 0' % S_TAG)
    P('s_mov_b32 s%d, 0x%x' % (S_VMP, OOB)); P('v_mov_b64 %s, 0' % vr(V_VMH,2))
    P('s_mov_b32 s%d, 0' % S_RC); P('s_mov_b32 s%d, 0' % (S_RC+1))
    k.straight(P)

def initial_m(k):
    P = Prog()
    P('s_mov_b32 s%d, s%d' % (S_SRD2, S_PTR+8)); P('s_mov_b32 s%d, s%d' % (S_SRD2+1, S_PTR+9))
    P('s_mov_b32 s%d, %d' % (S_SRD2+2, 8*576*2)); P('s_mov_b32 s%d, 0x20000' % (S_SRD2+3))
    P('s_mov_b32 s%d, 0x05040100' % S_PERM); P('s_mov_b32 s%d, 0x07060302' % S_PERM2)
    P('s_lshl_b32 s%d, s%d, 6' % (S_T0, S_W)); P('v_add_u32 v20, s%d, v0' % S_T0)
    for i in range(3):
        P('v_add_u32 v21, %d, v20' % (256*i)); P('v_and_b32 v22, 7, v21'); P('v_lshrrev_b32 v23, 3, v21')
        P('s_movk_i32 s%d, 1152' % S_T1); P('v_mul_lo_u32 v22, v22, s%d' % S_T1); P('v_lshl_add_u32 v22, v23, 4, v22')
        P('v_cmp_gt_u32 vcc, 576, v21'); P('v_mov_b32 v24, 0x%x' % OOB); P('v_cndmask_b32 v22, v24, v22, vcc')
        P('buffer_load_dwordx4 v[28:31], v22, s[%d:%d], 0 offen' % (S_SRD2, S_SRD2+3))
        P('v_perm_b32 v32, v29, v28, s%d' % S_PERM); P('v_perm_b32 v33, v31, v30, s%d' % S_PERM)
        P('v_perm_b32 v34, v29, v28, s%d' % S_PERM2); P('v_perm_b32 v35, v31, v30, s%d' % S_PERM2)
        P('v_lshlrev_b32 v25, 4, v21')
        P('s_and_saveexec_b64 s[%d:%d], vcc' % (S_TS, S_TS+1))
        P('ds_write_b128 v25, v[32:35] offset:%d' % L_MF)
        P('s_mov_b64 exec, s[%d:%d]' % (S_TS, S_TS+1))
    P('s_waitcnt lgkmcnt(0)')
    k.straight(P)

def poison_init(k, st=''):
    P = Prog()
    P('v_mov_b32 v20, -1'); P('v_mov_b32 v21, -1'); P('v_mov_b32 v22, -1'); P('v_mov_b32 v23, -1')
    if OPT.get('quad', 1):
        P('buffer_store_dword v20, v%d, %s, s%d offen%s' % (V_PT0, WS, S_PCUR, st))
        P('buffer_store_dwordx4 v[20:23], v%d, %s, s%d offen offset:1024%s' % (V_PST, WS, S_PCUR, st))
        P('buffer_store_dwordx4 v[20:23], v%d, %s, s%d offen offset:1024%s' % (V_PST, WS, S_PCUR4, st))
    else:
      for T in (0, 2, 4, 6, 7):
        off = T*1024
        P('buffer_store_dwordx2 v[20:21], v%d, %s, s%d offen offset:%d%s' % (V_PST, WS, S_PCUR if off < 4096 else S_PCUR4, off & 4095, st))
    for slot in range(4):
        P('s_mov_b32 s%d, 0x%x' % (S_T1, WS_M + slot*M_SLOT))
        P('buffer_store_dword v20, v%d, %s, s%d offen%s' % (V_MST, WS, S_T1, st))
    P('s_waitcnt vmcnt(0)')
    P('v_mov_b32 v%d, -1' % V_NEG1)
    k.straight(P); k.reset_state()

STAMP_SET = None
def stamp(P, i):
    if not OPT['stamps']: return
    if STAMP_SET is not None and i not in STAMP_SET: return
    P('s_memtime s[%d:%d]' % (S_TS, S_TS+1)); P('s_waitcnt lgkmcnt(0)'); P('s_mov_b32 s%d, s%d' % (S_ST+i, S_TS))
def flush_stamps(P, n=8):
    if not OPT['stamps']: return
    P('s_lshl_b32 s%d, s%d, 2' % (S_T0, S_H)); P('s_add_u32 s%d, s%d, s%d' % (S_T0, S_T0, S_W))
    P('s_lshl_b32 s%d, s%d, 6' % (S_T0, S_T0)); P('s_add_u32 s%d, s%d, s%d' % (S_T0, S_T0, S_STEP)); P('s_sub_u32 s%d, s%d, 1' % (S_T0, S_T0))
    P('s_lshl_b32 s%d, s%d, 6' % (S_T0, S_T0)); P('s_add_u32 s%d, s%d, 0x%x' % (S_T0, S_T0, WS_STAT))
    P('s_mov_b64 exec, 1')
    for i in range(n):
        P('v_mov_b32 v21, s%d' % (S_ST+i)); P('buffer_store_dword v21, off, %s, s%d offset:%d' % (WS, S_T0, 4*i))
    P('s_mov_b64 exec, -1')

def poll_tail(P, lab, done, errbit, rc):
    P('s_cbranch_vccz %s' % done)
    if OPT['rc']: P('s_add_u32 s%d, s%d, 1' % (S_RC+rc, S_RC+rc))
    P('s_sub_u32 s%d, s%d, 1' % (S_TMO, S_TMO)); P('s_cmp_lg_u32 s%d, 0' % S_TMO); P('s_cbranch_scc1 %s' % lab)
    P('s_or_b32 s%d, s%d, %d' % (S_ERR, S_ERR, errbit))
    P.label(done)

def delay(P, sreg, label):
    P('s_cmp_eq_u32 s%d, 0' % sreg)
    P('s_cbranch_scc1 %s_x' % label)
    P('s_mov_b32 s%d, s%d' % (S_T3, sreg))
    P.label(label)
    P('s_sub_u32 s%d, s%d, 1' % (S_T3, S_T3)); P('s_cmp_gt_i32 s%d, 0' % S_T3); P('s_cbranch_scc1 %s' % label)
    P.label(label + '_x')

def kx_loads(P):
    P('buffer_load_dwordx4 %s, v%d, %s, s%d offen%s' % (vr(V_KF,4), V_KX, WS, S_KV, OPT.get('kvf', '')))
    P('buffer_load_dwordx4 %s, v%d, %s, s%d offen offset:128%s' % (vr(V_KF+4,4), V_KX, WS, S_KV, OPT.get('kvf', '')))
def prefetch(P, lab, tmp, kvwait):
    P('s_cmp_eq_u32 s%d, 0' % S_W)
    P('s_cbranch_scc0 %s' % lab)
    P('v_lshlrev_b32 v%d, 3, v%d' % (tmp, V_L16))
    P('s_add_u32 s%d, s%d, %d' % (S_T0, S_KV, OPT.get('pfd', 1)*32*8192)); P('s_mov_b32 m0, %d' % L_S); P('s_add_u32 s%d, s%d, %d' % (S_T1, S_VV, OPT.get('pfd', 1)*32*8192))
    if kvwait: P('s_cmp_eq_u32 s%d, 0' % S_KVRDY); P('s_cbranch_scc1 %s' % lab)
    P('buffer_load_dword v%d, %s, s%d offen%s lds' % (tmp, WS, S_T0, OPT.get('pff', ''))); P('buffer_load_dword v%d, %s, s%d offen%s lds' % (tmp, WS, S_T1, OPT.get('pff', '')))
    P.label(lab)
def pre_step(P):
    if not OPT.get('kxtop'): kx_loads(P)
    for r in range(V_QA, V_VB+4, 2): P('v_mov_b64 %s, 0' % vr(r,2))
    P(blk_s(('k',0,0), V_ST)); P(blk_s(('k',1,0), V_ST+8))

class Filler:
    def __init__(self): self.q = []
    def add(self, t): self.q.append(t)
    def emit(self, P, n):
        for _ in range(n):
            if self.q: P(self.q.pop(0))
    def drain(self, P): self.emit(P, len(self.q))

def bop(blk, buf): return REG_OF[blk][0] if blk in REG_OF else vr(buf, 8)

def main_loop(k, st='', kvwait=None, publish=None):
    P = Prog()
    SB = [V_ST, V_ST+8]
    P.label('L_chain_loop')
    stamp(P, 0)
    P(aread_s(0, V_AR)); P(aread_s(1, V_AR+4))
    kxpos = OPT.get('kxpos', 0)
    if OPT.get('kxtop') and kxpos == 0: kx_loads(P)
    for t in range(9):
        a = V_AR + 4*(t % 3)
        if t + 2 < 9: P(aread_s(t+2, V_AR + 4*((t+2) % 3)))
        if t < 8:
            smf(P, V_QA, a, bop(('q',0,t), 0))
            if OPT.get('kxtop') and kxpos == 1 and t == 0: P('buffer_load_dwordx4 %s, v%d, %s, s%d offen' % (vr(V_KF,4), V_KX, WS, S_KV))
            if t == 6: P('WAIT_SPEC'); P('v_mov_b64 %s, 0' % vr(V_VB,2))
            smf(P, V_QB, a, bop(('q',1,t), 0))
            if OPT.get('kxtop') and kxpos == 1 and t == 0: P('buffer_load_dwordx4 %s, v%d, %s, s%d offen offset:128' % (vr(V_KF+4,4), V_KX, WS, S_KV))
            if t == 6: P('v_mov_b64 %s, 0' % vr(V_VB+2,2))
            if t % 2 == 1: P(blk_s(('k',0,t+1), SB[0]))
            smf(P, V_KA, a, bop(('k',0,t), SB[0]))
            if t % 2 == 1: P(blk_s(('k',1,t+1), SB[1]))
            smf(P, V_KB, a, bop(('k',1,t), SB[1]))
    a = V_AR + 4*(8 % 3)
    smf(P, V_QA, a, bop(('q',0,8), 0)); smf(P, V_QB, a, bop(('q',1,8), 0))
    vorder = [2, 6, 0, 1, 3, 4, 5, 7, 8]
    ring = [V_AR, V_AR+4, V_AR+8]
    P(aread_s(vorder[0], ring[0])); P(aread_s(vorder[1], ring[1]))
    smf(P, V_KA, a, bop(('k',0,8), SB[0])); P(blk_s(('v',0,2), SB[0]))
    smf(P, V_KB, a, bop(('k',1,8), SB[1])); P(blk_s(('v',1,2), SB[1]))
    stamp(P, 1)
    F = Filler()
    for i, t in enumerate(vorder):
        ar = ring[i % 3] if i != 2 else ring[2]
        g1 = []; g2 = []
        if i + 2 < 9: g1.append(aread_s(vorder[i+2], ring[(i+2) % 3]))
        s1 = smf_s(V_VA, ar, bop(('v',0,t), SB[0])); s2 = smf_s(V_VB, ar, bop(('v',1,t), SB[1]))
        if t == 2:
            F.add('\n'.join([s1, blk_s(('v',0,6), SB[0])])); F.add('\n'.join([s2, blk_s(('v',1,6), SB[1])] + g1))
        else:
            F.add('\n'.join([s1] + g1)); F.add(s2)
    cvt(P, V_QA, V_QA, V_QA+1); cvt(P, V_QA+1, V_QA+2, V_QA+3); cvt(P, V_QB, V_QB, V_QB+1); cvt(P, V_QB+1, V_QB+2, V_QB+3)
    mfma16(P, V_QA, V_QA, V_BSEL); mfma16(P, V_QB, V_QB, V_BSEL)
    cvt(P, V_KA, V_KA, V_KA+1); cvt(P, V_KA+1, V_KA+2, V_KA+3); cvt(P, V_KB, V_KB, V_KB+1); cvt(P, V_KB+1, V_KB+2, V_KB+3)
    mfma16(P, V_KA, V_KA, V_BSEL); mfma16(P, V_KB, V_KB, V_BSEL)
    F.emit(P, 1)
    for i in range(4): cvt(P, V_QA+i, V_QA+2*i, V_QA+2*i+1)
    qop = V_QA; kop = V_KA
    X0, X1, MM = V_QB, V_KF+4, V_KB
    mfma32(P, X0, V_KF, qop); mfma32(P, X1, V_KF+4, qop)
    for i in range(4): cvt(P, V_KA+i, V_KA+2*i, V_KA+2*i+1)
    F.emit(P, 1)
    mfma32(P, MM, kop, qop)
    F.emit(P, 1)
    P('s_mov_b64 exec, s[%d:%d]' % (S_EXN8, S_EXN8+1))
    P('ds_write_b128 v%d, %s' % (V_SW, vr(X0,4)))
    P('ds_write_b128 v%d, %s offset:512' % (V_SW, vr(X1,4)))
    P('s_mov_b64 exec, -1')
    P('buffer_load_dwordx4 %s, v%d, %s, s%d offen%s' % (vr(V_KF,4), V_VX, WS, S_VV, OPT.get('kvf', '')))
    P('s_mov_b64 exec, s[%d:%d]' % (S_EXMM, S_EXMM+1))
    P('ds_write_b128 v%d, %s offset:1024' % (V_SW, vr(MM,4)))
    P('s_mov_b64 exec, -1')
    P('buffer_load_dwordx4 %s, v%d, %s, s%d offen offset:128%s' % (vr(V_KF+4,4), V_VX, WS, S_VV, OPT.get('kvf', '')))
    def km_store():
        P('s_mov_b64 exec, s[%d:%d]' % (S_EXN8, S_EXN8+1))
        if OPT.get('nopub', 0) in (0, 2): P('buffer_store_dwordx4 %s, v%d, %s, s%d offen%s' % (vr(kop,4), V_G16, WS, S_KMW, OPT.get('pubf', ' sc1')))
        P('s_mov_b64 exec, -1')
    late = OPT.get('kmlate', 1)
    F.emit(P, 1)
    if not late: km_store()
    F.emit(P, 2)
    P('WAIT_LDSW')
    stamp(P, 2)
    P('s_barrier')
    X, M = V_QA, SB[1]
    for e in ((0, 1, 3) if late else range(4)): P('ds_read_b128 %s, v%d offset:%d' % (vr(V_QA+4*e,4), V_SR, 1280*e))
    for e in range(2): P('ds_read_b128 %s, v%d offset:%d' % (vr(M+4*e,4), V_SM, 1280*e))
    if late:
        km_store()
        P('s_nop 3')
        P('ds_read_b128 %s, v%d offset:%d' % (vr(V_QA+8,4), V_SR, 2560))
    if OPT.get('nopub', 0) in (0, 3): P('buffer_store_dwordx2 %s, v%d, %s, s%d offen%s' % (vr(V_VMH,2), V_VM, WS, S_VMP, OPT.get('pubf', ' sc1')))
    F.emit(P, 2)
    if publish: publish(P)
    F.emit(P, 3)
    pk_add(P, X, X, X+4); pk_add(P, X+2, X+2, X+6); F.emit(P, 1)
    pk_add(P, X+8, X+8, X+12); pk_add(P, X+10, X+10, X+14); F.emit(P, 1)
    pk_add(P, M, M, M+4); pk_add(P, M+2, M+2, M+6); F.emit(P, 1)
    pk_add(P, X, X, X+8); pk_add(P, X+2, X+2, X+10)
    for i in range(4): P('v_add_f32_dpp v%d, v%d, v%d %s' % (M+i, M+i, M+i, DPP8))
    mx, t1 = M+4, M+5
    P('v_max3_f32 v%d, v%d, v%d, v%d' % (mx, X, X+1, X+2)); P('v_max3_f32 v%d, v%d, v%d, v%d' % (mx, mx, X+3, M))
    P('v_max3_f32 v%d, v%d, v%d, v%d' % (mx, mx, M+1, M+2)); P('v_max_f32 v%d, v%d, v%d' % (mx, mx, M+3))
    AV = V_QA + 10
    F.emit(P, 1)
    P('v_max_f32_dpp v%d, v%d, v%d %s' % (mx, mx, mx, DPP8))
    P('v_mov_b32 v%d, 0x3f803f80' % (V_QA+14))
    P('v_mov_b32 v%d, v%d' % (t1, mx))
    F.drain(P)
    P('v_mov_b32 v%d, 0x3f803f80' % (V_QA+15))
    P('v_permlane16_swap_b32 v%d, v%d' % (mx, t1))
    P('v_max_f32 v%d, v%d, v%d' % (mx, mx, t1))
    P('v_mov_b32 v%d, v%d' % (t1, mx))
    P('v_mov_b32 v%d, 0x3f003f00' % (M+6)); P('v_mov_b32 v%d, 0x3f003f00' % (M+7))
    P('v_permlane32_swap_b32 v%d, v%d' % (mx, t1))
    P('v_max_f32 v%d, v%d, v%d' % (mx, mx, t1))
    P('v_mul_f32 v%d, s%d, v%d' % (mx, S_C, mx))
    vals = [X+i for i in range(4)] + [M+i for i in range(4)]
    for r in vals: P('v_fma_f32 v%d, v%d, s%d, -v%d' % (r, r, S_C, mx))
    for r in vals: P('v_exp_f32 v%d, v%d' % (r, r))
    px, pm = V_QA+4, V_QA+8
    cvt(P, pm, M, M+1); cvt(P, pm+1, M+2, M+3); cvt(P, px, X, X+1); cvt(P, px+1, X+2, X+3)
    oa, ob, sm = V_AR, V_AR+4, V_AR+8
    ONES, HALF = V_QA+14, M+6
    mfma16(P, sm, HALF, pm)
    P('v_mov_b32_dpp v%d, v%d %s' % (px+2, px, DPP8)); P('v_mov_b32_dpp v%d, v%d %s' % (px+3, px+1, DPP8))
    mfma16(P, sm, ONES, px, sm)
    cvt(P, AV, V_VA, V_VA+1)
    mfma16(P, sm, ONES, px+2, sm)
    cvt(P, AV+1, V_VA+2, V_VA+3)
    mfma32(P, oa, V_KF, px)
    cvt(P, AV+2, V_VB, V_VB+1)
    mfma32(P, ob, V_KF+4, px)
    cvt(P, AV+3, V_VB+2, V_VB+3)
    mfma16(P, oa, AV, pm, oa)
    ow = M
    P('v_add_u32 v%d, s%d, v%d' % (ow, S_OW, V_G16))
    mfma16(P, ob, AV+2, pm, ob)
    lds_o = [('od', p, 3) for p in range(4)]
    P('v_rcp_f32 v%d, v%d' % (sm, sm))
    P(blk_s(lds_o[0], SB[0]))
    for i in range(0, 8, 2): P('v_pk_mul_f32 %s, %s, %s op_sel_hi:[1,0]' % (vr(oa+i,2), vr(oa+i,2), vr(sm,2)))
    og = V_QA + 12
    for i in range(4): cvt(P, og+i, oa+2*i, oa+2*i+1)
    P('s_mov_b64 exec, s[%d:%d]' % (S_EXN8, S_EXN8+1))
    P('ds_write_b128 v%d, %s' % (ow, vr(og,4)))
    P('s_mov_b64 exec, -1')
    P('s_cmp_eq_u32 s%d, 63' % S_STEP)
    P('s_cbranch_scc1 L_chain_last')
    th = V_AR + 8
    accs = [V_KF, V_KF+4, V_AR, V_AR+4]
    for r in list(range(V_KF, V_KF+8, 2)) + [th, th+2]: P('v_mov_b64 %s, 0' % vr(r,2))
    P(blk_s(lds_o[1], SB[1]))
    P('WAIT_LDSW')
    stamp(P, 3)
    if OPT.get('ackat3'): P('s_waitcnt vmcnt(0)'); stamp(P, 7)
    P('s_barrier')
    dual, half = V_QA, V_AR
    for s2 in range(2): P('ds_read_b128 %s, v%d offset:%d' % (vr(half+4*s2,4), V_SR, L_O - L_S + 1024*s2))
    for c in range(4): P('ds_read_b128 %s, v%d offset:%d' % (vr(dual+4*c,4), V_G16, L_O + 512*c))
    smf(P, th, half, bop(('oh',0), 0)); smf(P, th, half+4, bop(('oh',1), 0))
    def tagst(reg): P('v_bfi_b32 v%d, 1, s%d, v%d' % (reg, S_TAG, reg))
    def pstore(pr):
        off = (1 + 2*pr)*1024
        P('buffer_store_dwordx2 %s, v%d, %s, s%d offen offset:%d%s' % (vr(accs[pr],2), V_PST, WS, S_PCUR if off < 4096 else S_PCUR4, off & 4095, st))
    def pcvt(pr):
        acc = accs[pr]; cvt(P, acc, acc, acc+1); cvt(P, acc+1, acc+2, acc+3)
    seq = [(p, c) for p in range(4) for c in range(4)]
    extra = {0: lambda: [P('v_mov_b64 %s, 0' % vr(V_AR, 2)), P('v_mov_b64 %s, 0' % vr(V_AR+2, 2))],
             1: lambda: [P('v_mov_b64 %s, 0' % vr(V_AR+4, 2)), P('v_mov_b64 %s, 0' % vr(V_AR+6, 2))],
             2: lambda: [P('v_permlane32_swap_b32 v%d, v%d' % (th, th+1))],
             3: lambda: [P(blk_s(lds_o[2], SB[0])), P('v_permlane32_swap_b32 v%d, v%d' % (th+2, th+3))],
             4: lambda: [P('v_add_f32 v%d, v%d, v%d' % (th, th, th+1)), P('v_add_f32 v%d, v%d, v%d' % (th+2, th+2, th+3))],
             5: lambda: [cvt(P, th, th, th+2), tagst(th), P('buffer_store_dword v%d, v%d, %s, s%d offen%s' % (th, V_PT0, WS, S_PCUR, st))],
             6: lambda: [pcvt(0), tagst(accs[0]), pstore(0)],
             7: lambda: [P(blk_s(lds_o[3], SB[1]))],
             10: lambda: [pcvt(1), tagst(accs[1]), pstore(1)],
             14: lambda: [pcvt(2), tagst(accs[2]), pstore(2)]}
    for i, (pr, c) in enumerate(seq):
        smf(P, accs[pr], dual + 4*c, bop(('od', pr, c), SB[pr % 2]))
        if i in extra: extra[i]()
    pcvt(3); tagst(accs[3]); pstore(3)
    stamp(P, 4)
    def idle_a(P):
        for i in range(4): P('v_permlane32_swap_b32 v%d, v%d' % (V_VA+i, V_VB+i))
        pk_add(P, V_VA, V_VA, V_VB); pk_add(P, V_VA+2, V_VA+2, V_VB+2)
        cvt(P, V_VMH, V_VA, V_VA+1); cvt(P, V_VMH+1, V_VA+2, V_VA+3)
        P('s_mov_b32 s%d, s%d' % (S_VMP, S_KM))
        if not OPT.get('nokv'):
            P('s_add_u32 s%d, s%d, %d' % (S_KV, S_KV, 32*8192)); P('s_add_u32 s%d, s%d, %d' % (S_VV, S_VV, 32*8192))
        if not OPT.get('nokm'): P('s_add_u32 s%d, s%d, %d' % (S_KM, S_KM, 32*2048)); P('s_add_u32 s%d, s%d, %d' % (S_KMW, S_KMW, 32*2048))
        P('s_add_u32 s%d, s%d, s%d' % (S_G0, S_MNXT, S_GW)); P('s_add_u32 s%d, s%d, 4096' % (S_G1, S_G0)); P('s_add_u32 s%d, s%d, 8192' % (S_G2, S_MNXT))
        P('s_add_u32 s%d, s%d, 3' % (S_T1, S_STEP)); P('s_and_b32 s%d, s%d, 3' % (S_T1, S_T1)); P('s_mul_i32 s%d, s%d, %d' % (S_T1, S_T1, M_SLOT))
        P('s_add_u32 s%d, s%d, 0x%x' % (S_MPN, S_T1, WS_M))
        P('s_add_u32 s%d, s%d, 1' % (S_STEP, S_STEP))
    BR = V_QA; CK = V_QA+4
    RL = [V_AR, V_AR+4, V_AR+8, SB[1]]; D = SB[1]+4
    def red_loads(P):
        for t in range(4): P('buffer_load_dwordx4 %s, v%d, %s, s%d offen sc1 ;@spec' % (vr(RL[t],4), V_RED, WS, S_PR0+t))
    def red_check(P, par):
        if par == 0:
            P('v_or3_b32 v%d, v%d, v%d, v%d' % (CK, RL[0], RL[0]+2, RL[1])); P('v_or3_b32 v%d, v%d, v%d, v%d' % (CK+1, RL[1]+2, RL[2], RL[2]+2))
            P('v_or3_b32 v%d, v%d, v%d, v%d' % (CK, CK, RL[3], RL[3]+2)); P('v_or_b32 v%d, v%d, v%d' % (CK, CK, CK+1))
        else:
            P('v_and_b32 v%d, v%d, v%d' % (CK, RL[0], RL[0]+2)); P('v_and_b32 v%d, v%d, v%d' % (CK+1, RL[1], RL[1]+2))
            P('v_and_b32 v%d, v%d, v%d' % (CK+2, RL[2], RL[2]+2)); P('v_and_b32 v%d, v%d, v%d' % (CK+3, RL[3], RL[3]+2))
            P('v_and_b32 v%d, v%d, v%d' % (CK, CK, CK+1)); P('v_and_b32 v%d, v%d, v%d' % (CK+2, CK+2, CK+3)); P('v_and_b32 v%d, v%d, v%d' % (CK, CK, CK+2))
        P('v_and_b32 v%d, 1, v%d' % (CK, CK))
        P('v_cmp_ne_u32 vcc, s%d, v%d' % (S_TAG, CK))
    P('s_cmp_eq_u32 s%d, 0' % S_RED)
    P('s_cbranch_scc1 L_nored')
    P('buffer_store_dword v%d, v%d, %s, s%d offen%s' % (V_NEG1, V_MST, WS, S_MPOI, st))
    if OPT.get('canary'):
        P('s_memtime s[90:91]')
        P('s_cmp_eq_u32 s%d, 0' % S_TAG); P('s_cbranch_scc0 L_can1')
        for par in range(2):
            P.label('L_can%d' % par)
            for t in range(4): P('buffer_load_dword v%d, v%d, %s, s%d offen offset:8 sc1' % (V_AR+t, V_RED, WS, S_PR0+t))
            P('s_waitcnt vmcnt(0)')
            if par == 0: P('v_or3_b32 v24, v20, v21, v22'); P('v_or_b32 v24, v24, v23')
            else: P('v_and_b32 v24, v20, v21'); P('v_and_b32 v25, v22, v23'); P('v_and_b32 v24, v24, v25')
            P('v_and_b32 v24, 1, v24'); P('v_cmp_ne_u32 vcc, s%d, v24' % S_TAG)
            P('s_cbranch_vccnz L_can%d' % par)
            P('s_branch L_can_done')
        P.label('L_can_done')
        P('s_memtime s[92:93]'); P('s_waitcnt lgkmcnt(0)'); P('s_sub_u32 s%d, s92, s90' % (S_ST+3))
    delay(P, S_RDEL, 'L_rdel')
    stamp(P, 7)
    red_loads(P)
    for r in range(4): P('v_cndmask_b32 v%d, 0, v%d, s[%d:%d]' % (BR+r, V_BVAL, S_BM+2*r, S_BM+2*r+1))
    idle_a(P)
    RD = OPT.get('rdepth', 2)
    if RD == 2: red_loads(P)
    P('s_mov_b32 s%d, s%d' % (S_TMO, S_TMOV))
    P('s_cmp_eq_u32 s%d, 0' % S_TAG); P('s_cbranch_scc0 L_red_poll1')
    for par in range(2):
        P.label('L_red_poll%d' % par)
        P('s_waitcnt vmcnt(%d)' % (4 if RD == 2 else 0))
        red_check(P, par)
        P('s_cbranch_vccz L_red_done')
        if OPT['rc']: P('s_add_u32 s%d, s%d, 1' % (S_RC, S_RC))
        red_loads(P)
        P('s_sub_u32 s%d, s%d, 1' % (S_TMO, S_TMO)); P('s_cmp_lg_u32 s%d, 0' % S_TMO); P('s_cbranch_scc1 L_red_poll%d' % par)
        P('s_or_b32 s%d, s%d, 1' % (S_ERR, S_ERR)); P('s_mov_b32 s%d, 1' % S_TMOV)
        P('s_branch L_red_done')
    P.label('L_red_done')
    mfma32(P, D, RL[0], BR)
    for t in range(1, 4): mfma32(P, D, RL[t], BR, D)
    P('v_permlane32_swap_b32 v%d, v%d' % (D, D+1)); P('v_permlane32_swap_b32 v%d, v%d' % (D+2, D+3))
    P('v_add_f32 v%d, v%d, v%d' % (D, D, D+1)); P('v_add_f32 v%d, v%d, v%d' % (D+2, D+2, D+3))
    cvt(P, D, D, D+2)
    P('buffer_store_dword v%d, v%d, %s, s%d offen%s' % (D, V_MST, WS, S_MNXT, st))
    P('s_mov_b32 s%d, %d' % (S_T2, OPT['gdel']))
    P('s_branch L_red_done2')
    P.label('L_nored')
    idle_a(P)
    P('s_mov_b32 s%d, %d' % (S_T2, OPT['gdel0']))
    P.label('L_red_done2')
    stamp(P, 5)
    if kvwait: kvwait(P)
    GL = V_QA + 8; CK = V_QA + 9
    P('v_add_u32 v%d, s%d, v%d' % (GL, S_GW, V_L16))
    delay(P, S_T2, 'L_gdel')
    def gat_loads(P, w0):
        P('buffer_load_dwordx4 v[72:75], v%d, %s, s%d offen sc1 ;@spec' % (V_L16, WS, S_G0))
        P('buffer_load_dwordx4 v[76:79], v%d, %s, s%d offen sc1 ;@spec' % (V_L16, WS, S_G1))
        if w0: P('buffer_load_dwordx4 v[68:71], v%d, %s, s%d offen sc1 ;@spec' % (V_L16, WS, S_G2))
    def gat_check(P, w0):
        P('v_max3_u32 v%d, v72, v73, v74' % CK); P('v_max3_u32 v%d, v75, v76, v77' % (CK+1))
        P('v_max3_u32 v%d, v%d, v78, v79' % (CK, CK))
        if w0:
            P('v_max3_u32 v%d, v%d, v68, v69' % (CK+1, CK+1)); P('v_max3_u32 v%d, v%d, v70, v71' % (CK, CK))
        P('v_max_u32 v%d, v%d, v%d' % (CK, CK, CK+1))
        P('v_cmp_eq_u32 vcc, -1, v%d' % CK)
    def idle_b(P):
        P('s_xor_b32 s%d, s%d, 1' % (S_TAG, S_TAG))
        P('s_mov_b32 s%d, s%d' % (S_MNXT, S_MPOI)); P('s_mov_b32 s%d, s%d' % (S_MPOI, S_MPN))
        P('s_mov_b32 s%d, s%d' % (S_TMO, S_TMOV))
        for r in (V_QA, V_QA+2, V_QA+4, V_QA+6, V_QA+12, V_QA+14, V_VA, V_VA+2): P('v_mov_b64 %s, 0' % vr(r,2))
        P(blk_s(('k',0,0), V_ST))
    P('s_cmp_eq_u32 s%d, 0' % S_W)
    P('s_cbranch_scc1 L_gat0')
    for w0, pfx in ((False, 'L_gat'), (True, 'L_gat0')):
        n = 3 if w0 else 2
        if w0: P.label('L_gat0')
        gat_loads(P, w0)
        idle_b(P)
        GD = OPT.get('gdepth', 2)
        if GD == 2: gat_loads(P, w0)
        P.label(pfx + '_poll')
        P('s_waitcnt vmcnt(%d)' % (n if GD == 2 else 0))
        gat_check(P, w0)
        P('s_cbranch_vccz %s_ok' % pfx)
        if OPT['rc']: P('s_add_u32 s%d, s%d, 1' % (S_RC+1, S_RC+1))
        gat_loads(P, w0)
        P('s_sub_u32 s%d, s%d, 1' % (S_TMO, S_TMO)); P('s_cmp_lg_u32 s%d, 0' % S_TMO); P('s_cbranch_scc1 %s_poll' % pfx)
        P('s_or_b32 s%d, s%d, 2' % (S_ERR, S_ERR)); P('s_mov_b32 s%d, 1' % S_TMOV)
        P.label(pfx + '_ok')
        P('ds_write_b128 v%d, v[72:75] offset:%d' % (GL, L_MF))
        P('ds_write_b128 v%d, v[76:79] offset:%d' % (GL, L_MF + 4096))
        if w0: P('ds_write_b128 v%d, v[68:71] offset:%d' % (V_L16, L_MF + 8192))
        P(blk_s(('k',1,0), V_ST+8))
        P('v_mov_b64 %s, 0' % vr(V_QA+8,2)); P('v_mov_b64 %s, 0' % vr(V_QA+10,2))
        if not w0: P('s_branch L_gat_w')
    P.label('L_gat_w')
    stamp(P, 6)
    flush_stamps(P)
    P('WAIT_LDSW')
    P('s_barrier')
    P('s_branch L_chain_loop')
    P.label('L_chain_last')
    for i in range(4): P('v_permlane32_swap_b32 v%d, v%d' % (V_VA+i, V_VB+i))
    pk_add(P, V_VA, V_VA, V_VB); pk_add(P, V_VA+2, V_VA+2, V_VB+2)
    cvt(P, V_VA, V_VA, V_VA+1); cvt(P, V_VA+1, V_VA+2, V_VA+3)
    P('buffer_store_dwordx2 %s, v%d, %s, s%d offen sc1' % (vr(V_VA,2), V_VM, WS, S_KM))
    P('s_branch L_chain_done')
    return P


def early_init(st, cb_off, zcheck=None):
    def hook(P, second=False):
        if not second:
            if zcheck:
                P('v_mov_b32 v59, %d' % zcheck[1]); P('global_load_dword v58, v59, s[%d:%d] sc1' % (zcheck[0], zcheck[0]+1))
                P('v_mov_b32 v57, %d' % zcheck[2]); P('global_load_dword v56, v57, s[%d:%d] sc1' % (zcheck[0], zcheck[0]+1))
            P('s_mov_b32 s64, s%d' % (S_PTR+8)); P('s_mov_b32 s65, s%d' % (S_PTR+9)); P('s_mov_b32 s66, %d' % (8*576*2)); P('s_mov_b32 s67, 0x20000')
            P('s_lshl_b32 s%d, s%d, 6' % (S_T0, S_W)); P('v_add_u32 v60, s%d, v0' % S_T0)
            for i in range(3):
                P('v_add_u32 v61, %d, v60' % (256*i)); P('v_and_b32 v62, 7, v61'); P('v_lshrrev_b32 v63, 3, v61')
                P('s_movk_i32 s%d, 1152' % S_T1); P('v_mul_lo_u32 v62, v62, s%d' % S_T1); P('v_lshl_add_u32 v62, v63, 4, v62')
                P('v_cmp_gt_u32 vcc, 576, v61'); P('v_mov_b32 v63, 0x%x' % OOB); P('v_cndmask_b32 v62, v63, v62, vcc')
                P('buffer_load_dwordx4 %s, v62, s[64:67], 0 offen' % vr(64+4*i,4))
            P('v_mov_b32 v76, -1'); P('v_mov_b32 v77, -1'); P('v_mov_b32 v78, -1'); P('v_mov_b32 v79, -1')
            P('s_mul_i32 s%d, s%d, %d' % (S_T0, S_H, P_HEAD)); P('s_add_u32 s%d, s%d, 0x%x' % (S_T0, S_T0, WS_P))
            P('v_lshlrev_b32 v61, 4, v60')
            for i in range(3):
                if i == 2:
                    P('v_mov_b32 v63, 0x%x' % OOB); P('v_cmp_gt_u32 vcc, 64, v60'); P('v_cndmask_b32 v61, v63, v61, vcc')
                P('s_add_u32 s%d, s%d, %d' % (S_T1, S_T0, 4096*i)); P('buffer_store_dwordx4 v[76:79], v61, %s, s%d offen%s' % (WS, S_T1, st))
            P('s_sub_u32 s%d, s%d, 1' % (S_T0, S_W)); P('s_lshl_b32 s%d, s%d, 5' % (S_T0, S_T0)); P('s_add_u32 s%d, s%d, s%d' % (S_T0, S_T0, S_H))
            P('s_cmp_lt_u32 s%d, 72' % S_T0); P('s_cselect_b32 s%d, 1, 0' % S_T1); P('s_cmp_eq_u32 s%d, 0' % S_W); P('s_cselect_b32 s%d, 0, s%d' % (S_T1, S_T1))
            P('s_lshl_b32 s%d, s%d, 7' % (S_T0, S_T0))
            P('v_lshlrev_b32 v61, 2, v0'); P('v_mov_b32 v63, 0x%x' % OOB); P('v_cmp_gt_u32 vcc, 32, v0'); P('v_cndmask_b32 v61, v63, v61, vcc')
            P('s_cmp_eq_u32 s%d, 0' % S_T1); P('s_cselect_b64 vcc, -1, 0'); P('v_cndmask_b32 v61, v61, v63, vcc')
            for slot in range(4):
                P('s_add_u32 s%d, s%d, 0x%x' % (S_T1, S_T0, WS_M + slot*M_SLOT)); P('buffer_store_dword v76, v61, %s, s%d offen%s' % (WS, S_T1, st))
        else:
            if zcheck: P('v_readfirstlane_b32 s%d, v56' % zcheck[3])
            P('s_mov_b32 s%d, 0x05040100' % S_PERM); P('s_mov_b32 s%d, 0x07060302' % S_PERM2)
            for i in range(3):
                d = 64 + 4*i
                P('v_perm_b32 v76, v%d, v%d, s%d' % (d+1, d, S_PERM)); P('v_perm_b32 v77, v%d, v%d, s%d' % (d+3, d+2, S_PERM))
                P('v_perm_b32 v78, v%d, v%d, s%d' % (d+1, d, S_PERM2)); P('v_perm_b32 v79, v%d, v%d, s%d' % (d+3, d+2, S_PERM2))
                P('v_add_u32 v61, %d, v60' % (256*i)); P('v_cmp_gt_u32 vcc, 576, v61'); P('v_lshlrev_b32 v61, 4, v61')
                P('s_and_saveexec_b64 s[%d:%d], vcc' % (S_TS, S_TS+1))
                P('ds_write_b128 v61, v[76:79] offset:%d' % L_MF)
                P('s_mov_b64 exec, s[%d:%d]' % (S_TS, S_TS+1))
            if cb_off is not None:
                P('s_cmp_eq_u32 s%d, 0' % S_W); P('s_cbranch_scc0 L_ei_%s' % ('s' if st else 'f'))
                if zcheck:
                    P('s_mov_b32 s%d, 30000' % S_TMO)
                    P.label('L_ei_z')
                    P('v_readfirstlane_b32 s%d, v58' % S_T1); P('s_cmp_lg_u32 s%d, 0' % S_T1); P('s_cbranch_scc1 L_ei_zd')
                    P('global_load_dword v58, v59, s[%d:%d] sc1' % (zcheck[0], zcheck[0]+1)); P('s_waitcnt vmcnt(0)')
                    P('s_sub_u32 s%d, s%d, 1' % (S_TMO, S_TMO)); P('s_cmp_lg_u32 s%d, 0' % S_TMO); P('s_cbranch_scc1 L_ei_z')
                    P.label('L_ei_zd')
                P('s_mov_b32 s%d, 0x%x' % (S_T1, cb_off)); P('v_mov_b32 v61, 1'); P('s_mov_b64 exec, 1')
                P('buffer_atomic_add v61, off, %s, s%d' % (WS, S_T1)); P('s_mov_b64 exec, -1')
                P.label('L_ei_%s' % ('s' if st else 'f'))
    return hook
```

```python
import sys
from asmlib import *
from common import *
import chain2 as C
import workers as W1
import workers2 as W2
import gemm2 as G2
from gemm2 import vr, WSs, G_W, G_T0, G_T1, G_T2, G_T3, G_BSRD, G_OSRD, G_DST
from workers import srd
from gen_chain_test import header, kdesc

F_QUEUE = 0; F_LN = 128*1; F_KV = 128*9; F_Q = 128*17; F_H = 128*25; F_M2 = 128*33; F_PROG = 128*41; F_O = 128*73
F_DIAG = 128*140; F_CB = 128*137; F_LD = 128*139; F_ERR = 128*138
F_ZERO = 24576
FL = WS_FLAG
BIGTMO = 30000
S_ABORT = 3
S_X = 4; S_TK = 5; S_G = 6; S_RANK = 7
S_DBG = 42
OPT = dict(force_abnormal=0)
NPF = 3
_uid = [0]
def uid(p):
    _uid[0] += 1; return '%s_%d' % (p, _uid[0])

def poll_ge(P, soff, target, vtmp=2, stmp=G_T0, scnt=G_T1, tgt_is_sgpr=False, x4min=False, sleep=4):
    L = uid('L_pg'); D = L + '_d'
    P('s_mov_b32 s%d, s%d' % (scnt, S_ABORT))
    P.label(L)
    P('s_mov_b64 exec, 1')
    if x4min:
        P('buffer_load_dwordx4 %s, off, %s, s%d sc1' % (vr(vtmp,4), WSs, soff))
        P('s_waitcnt vmcnt(0)')
        P('v_min_u32 v%d, v%d, v%d' % (vtmp, vtmp, vtmp+1)); P('v_min_u32 v%d, v%d, v%d' % (vtmp+2, vtmp+2, vtmp+3)); P('v_min_u32 v%d, v%d, v%d' % (vtmp, vtmp, vtmp+2))
    else:
        P('buffer_load_dword v%d, off, %s, s%d sc1' % (vtmp, WSs, soff))
        P('s_waitcnt vmcnt(0)')
    P('s_nop 0')
    P('v_readfirstlane_b32 s%d, v%d' % (stmp, vtmp))
    P('s_mov_b64 exec, -1')
    P('s_cmp_ge_u32 s%d, %s' % (stmp, ('s%d' % target) if tgt_is_sgpr else str(target)))
    P('s_cbranch_scc1 %s' % D)
    if sleep: P('s_sleep %d' % sleep)
    P('s_sub_u32 s%d, s%d, 1' % (scnt, scnt)); P('s_cmp_lg_u32 s%d, 0' % scnt); P('s_cbranch_scc1 %s' % L)
    P('s_mov_b32 s%d, 1' % S_ABORT)
    P.label(D)

def wg_wait(P, soff, target, vtmp=2, sleep=16):
    L = uid('L_wgw')
    P('s_cmp_eq_u32 s%d, 0' % G_W); P('s_cbranch_scc0 %s' % L)
    poll_ge(P, soff, target, vtmp=vtmp, sleep=sleep)
    P.label(L)
    P('s_barrier')

def signal(P, soff, vtmp=2):
    L = uid('L_sig')
    P('s_waitcnt vmcnt(0)'); P('s_barrier')
    P('s_cmp_eq_u32 s%d, 0' % G_W); P('s_cbranch_scc0 %s' % L)
    P('v_mov_b32 v%d, 1' % vtmp); P('s_mov_b64 exec, 1')
    P('buffer_atomic_add v%d, off, %s, s%d' % (vtmp, WSs, soff))
    P('s_mov_b64 exec, -1')
    P.label(L)

D_CNT0 = 0; D_CNTX = 128; D_ZERO = 192
def read_counts(P, v):
    P('v_and_b32 v%d, 7, v0' % (v+1)); P('v_lshlrev_b32 v%d, 2, v%d' % (v+1, v+1)); P('v_add_u32 v%d, %d, v%d' % (v+1, D_CNTX, v+1))
    P('v_and_b32 v%d, 7, v0' % v); P('v_cmp_eq_u32 vcc, 0, v%d' % v); P('v_cndmask_b32 v%d, v%d, 0, vcc' % (v+1, v+1))
    P('global_load_dword v%d, v%d, s[%d:%d] sc1' % (v, v+1, S_DBG, S_DBG+1)); P('s_waitcnt vmcnt(0)')

def wait_zeroed(P):
    L = uid('L_wz')
    P('s_cmp_eq_u32 s%d, 0' % G_W); P('s_cbranch_scc0 %s_d' % L)
    P('s_mov_b32 s13, s%d' % S_ABORT)
    P.label(L)
    P('v_mov_b32 v2, %d' % D_ZERO); P('global_load_dword v3, v2, s[%d:%d] sc1' % (S_DBG, S_DBG+1)); P('s_waitcnt vmcnt(0)')
    P('v_readfirstlane_b32 s12, v3'); P('s_cmp_lg_u32 s12, 0'); P('s_cbranch_scc1 %s_d' % L)
    P('s_sleep 8'); P('s_sub_u32 s13, s13, 1'); P('s_cmp_lg_u32 s13, 0'); P('s_cbranch_scc1 %s' % L)
    P.label(L + '_d')
    P('s_barrier')

def bootstrap(k):
    P = Prog()
    P('s_cmp_ge_u32 s2, 256'); P('s_cbranch_scc1 L_end')
    P('s_mov_b32 s%d, %d' % (S_ABORT, BIGTMO))
    if OPT.get('diag'): P('s_memrealtime s[90:91]')
    P('s_load_dwordx2 s[%d:%d], s[0:1], %d' % (S_DBG, S_DBG+1, KA['dbg']))
    P('s_load_dwordx2 s[8:9], s[0:1], %d' % KA['ws'])
    P('s_getreg_b32 s%d, hwreg(HW_REG_XCC_ID, 0, 4)' % S_X)
    P('v_lshrrev_b32 v1, 6, v0'); P('v_and_b32 v0, 63, v0'); P('s_nop 0')
    P('v_readfirstlane_b32 s%d, v1' % G_W)
    P('s_and_b32 s%d, s%d, %d' % (S_X, S_X, 6 if OPT['force_abnormal'] == 3 else 7))
    P('s_waitcnt lgkmcnt(0)')
    P('s_mov_b32 s10, 0x%x' % WS_SIZE); P('s_mov_b32 s11, 0x20000')
    P('s_cmp_eq_u32 s%d, 0' % G_W); P('s_cbranch_scc0 L_bs1')
    P('s_lshl_b32 s12, s%d, 2' % S_X); P('s_add_u32 s12, s12, %d' % D_CNTX); P('s_cmp_eq_u32 s%d, 0' % S_X); P('s_cselect_b32 s12, %d, s12' % D_CNT0)
    P('v_mov_b32 v2, s12'); P('v_mov_b32 v3, 1'); P('s_mov_b64 exec, 1')
    P('global_atomic_add v4, v2, v3, s[%d:%d] sc0' % (S_DBG, S_DBG+1))
    P('s_waitcnt vmcnt(0)'); P('v_mov_b32 v2, 0'); P('ds_write_b32 v2, v4'); P('s_waitcnt lgkmcnt(0)')
    P('s_mov_b64 exec, -1')
    P.label('L_bs1')
    P('s_cmp_eq_u32 s2, 0'); P('s_cbranch_scc0 L_bs2')
    P('s_lshl_b32 s12, s%d, 6' % G_W); P('v_add_u32 v2, s12, v0'); P('v_lshlrev_b32 v2, 4, v2')
    P('v_mov_b64 v[4:5], 0'); P('v_mov_b64 v[6:7], 0')
    for i in range(F_ZERO // 4096):
        P('s_mov_b32 s12, 0x%x' % (FL + i*4096)); P('buffer_store_dwordx4 v[4:7], v2, %s, s12 offen sc1' % WSs)
    P('s_waitcnt vmcnt(0)'); P('s_barrier')
    P('s_cmp_eq_u32 s%d, 0' % G_W); P('s_cbranch_scc0 L_bs2')
    P('v_mov_b32 v2, %d' % D_ZERO); P('v_mov_b32 v3, 1'); P('s_mov_b64 exec, 1'); P('global_store_dword v2, v3, s[%d:%d] sc1' % (S_DBG, S_DBG+1)); P('s_mov_b64 exec, -1')
    P.label('L_bs2')
    P('s_barrier'); P('v_mov_b32 v2, 0'); P('ds_read_b32 v4, v2'); P('s_waitcnt lgkmcnt(0)')
    P('v_readfirstlane_b32 s%d, v4' % S_TK)
    P('s_barrier')
    P('s_cmp_lt_u32 s%d, 32' % S_TK); P('s_cbranch_scc1 L_role')
    P('s_mov_b32 s13, s%d' % S_ABORT)
    P.label('L_ov_poll')
    read_counts(P, 4)
    for x in range(8): P('v_readlane_b32 s%d, v4, %d' % (20+x, x))
    P('s_mov_b32 s12, 0')
    for x in range(8): P('s_add_u32 s12, s12, s%d' % (20+x))
    P('s_cmp_ge_u32 s12, 256'); P('s_cbranch_scc1 L_ov_ok')
    P('s_sleep 8'); P('s_sub_u32 s13, s13, 1'); P('s_cmp_lg_u32 s13, 0'); P('s_cbranch_scc1 L_ov_poll')
    P.label('L_ov_ok')
    P('s_sub_u32 s12, s%d, 32' % S_TK)
    for x in range(8):
        P('s_sub_i32 s14, s%d, 32' % (20+x)); P('s_max_i32 s14, s14, 0'); P('s_cmp_gt_u32 s%d, %d' % (S_X, x)); P('s_cselect_b32 s14, s14, 0'); P('s_add_u32 s12, s12, s14')
    P('s_mov_b32 s15, 0')
    for x in range(8):
        P('s_sub_i32 s14, 32, s%d' % (20+x)); P('s_max_i32 s14, s14, 0')
        P('s_cmp_eq_u32 s15, 0'); P('s_cselect_b32 s16, 1, 0'); P('s_cmp_lt_u32 s12, s14'); P('s_cselect_b32 s16, s16, 0')
        P('s_cmp_eq_u32 s16, 1'); P('s_cbranch_scc0 L_ov_n%d' % x)
        P('s_mov_b32 s%d, %d' % (S_X, x)); P('s_add_u32 s%d, s%d, s12' % (S_TK, 20+x)); P('s_mov_b32 s15, 1')
        P.label('L_ov_n%d' % x)
        P('s_cmp_eq_u32 s15, 0'); P('s_cselect_b32 s14, s14, 0'); P('s_sub_u32 s12, s12, s14')
    P.label('L_role')
    if OPT['force_abnormal'] == 2:
        P('s_and_b32 s12, s%d, 1' % S_TK); P('s_add_u32 s%d, s%d, s12' % (S_X, S_X)); P('s_and_b32 s%d, s%d, 7' % (S_X, S_X))
    P('s_cmp_eq_u32 s%d, 0' % S_X); P('s_cbranch_scc0 L_wk')
    P('s_mov_b32 s%d, s%d' % (C.S_H, S_TK))
    P('s_branch L_chain')
    P.label('L_wk')
    P('s_sub_u32 s%d, s%d, 1' % (S_RANK, S_X)); P('s_lshl_b32 s%d, s%d, 5' % (S_RANK, S_RANK)); P('s_add_u32 s%d, s%d, s%d' % (S_RANK, S_RANK, S_TK))
    P('s_branch L_worker')
    k.straight(P); k.reset_state()

def chain_ptrs(P):
    for i, n in enumerate(('Wq', 'Wk', 'Wv', 'Wo', 'mem0')): P('s_load_dwordx2 s[%d:%d], s[0:1], %d' % (C.S_PTR+2*i, C.S_PTR+2*i+1, KA[n]))
    P('s_waitcnt lgkmcnt(0)')

def chain_common(k):
    P = Prog(); P.label('L_chain'); chain_ptrs(P)
    if OPT.get('diag'): P('s_memrealtime s[94:95]'); P('s_waitcnt lgkmcnt(0)')
    k.straight(P)
    C.load_weights(k, hook=C.early_init(' sc1', FL + F_CB, zcheck=(S_DBG, D_ZERO, D_CNT0, 59)))
    P = Prog()
    if OPT.get('diag'):
        P('s_memrealtime s[92:93]'); P('s_waitcnt lgkmcnt(0)')
        if OPT.get('loaderonly'):
            P('s_sub_u32 s92, s92, s90'); P('s_sub_u32 s94, s94, s90'); P('v_mov_b32 v20, s92'); P('v_mov_b32 v21, s94'); P('v_mov_b32 v22, 0'); P('v_mov_b32 v23, 0')
            P('s_cmp_eq_u32 s17, 0'); P('s_cbranch_scc0 L_end')
            P('s_mov_b32 s88, 0x%x' % (FL + F_DIAG + 16)); P('buffer_store_dwordx4 v[20:23], off, %s, s88 sc1' % C.WS); P('s_waitcnt vmcnt(0)'); P('s_branch L_end')
    P('s_cmp_ge_u32 s59, 32'); P('s_cselect_b32 s13, 1, 0')
    if OPT['force_abnormal']: P('s_mov_b32 s13, 0')
    P('s_cmp_eq_u32 s13, 1'); P('s_cbranch_scc0 L_chain_slow')
    k.straight(P); k.reset_state()

def chain_role(k, fast):
    st = '' if fast else ' sc1'
    sfx = 'f' if fast else 's'
    P = Prog(); P.label('L_chain_fast' if fast else 'L_chain_slow'); k.straight(P)
    P = Prog()
    Lx = uid('L_ld')
    P('s_cmp_eq_u32 s%d, 0' % C.S_W); P('s_cbranch_scc0 %s' % Lx)
    P('s_mov_b32 s%d, 0x%x' % (C.S_T1, FL + F_LD)); P('v_mov_b32 v61, 1'); P('s_mov_b64 exec, 1')
    P('buffer_atomic_add v61, off, %s, s%d' % (C.WS, C.S_T1)); P('s_mov_b64 exec, -1')
    P('s_mov_b32 s%d, 0x%x' % (C.S_T1, FL + F_CB)); P('buffer_load_dword v78, off, %s, s%d sc1' % (C.WS, C.S_T1))
    P('s_mov_b32 s%d, 0x%x' % (C.S_T1, FL + F_KV)); P('buffer_load_dword v79, off, %s, s%d sc1' % (C.WS, C.S_T1))
    P.label(Lx)
    k.straight(P)
    C.lane_setup(k)
    P = Prog()
    P('v_mov_b32 v%d, -1' % C.V_NEG1)
    P('s_lshl_b32 s%d, s%d, 7' % (C.S_PROG, C.S_H)); P('s_lshl_b32 s%d, s%d, 2' % (C.S_T0, C.S_W)); P('s_add_u32 s%d, s%d, s%d' % (C.S_PROG, C.S_PROG, C.S_T0))
    P('s_add_u32 s%d, s%d, 0x%x' % (C.S_PROG, C.S_PROG, FL + F_PROG))
    L = 'L_cb_%s' % sfx
    P('s_cmp_eq_u32 s%d, 0' % C.S_W); P('s_cbranch_scc0 %s_wait' % L)
    P('s_waitcnt vmcnt(0)')
    P('v_readfirstlane_b32 s%d, v78' % C.S_T0); P('v_readfirstlane_b32 s%d, v79' % C.S_T1)
    P('s_cmp_ge_u32 s%d, 32' % C.S_T0); P('s_cselect_b32 s%d, 1, 0' % C.S_T0); P('s_cmp_ge_u32 s%d, 64' % C.S_T1); P('s_cselect_b32 s%d, s%d, 0' % (C.S_T0, C.S_T0))
    P('s_cmp_eq_u32 s%d, 1' % C.S_T0); P('s_cbranch_scc1 %s_wait' % L)
    P('s_mov_b32 s%d, 0x%x' % (C.S_T2, FL + F_CB))
    poll_ge(P, C.S_T2, 32, vtmp=22, stmp=C.S_T0, scnt=C.S_TMO, sleep=2)
    P('s_mov_b32 s%d, 0x%x' % (C.S_T2, FL + F_KV))
    poll_ge(P, C.S_T2, 64, vtmp=22, stmp=C.S_T0, scnt=C.S_TMO, sleep=2)
    P.label(L + '_wait')
    C.pre_step(P)
    P('s_waitcnt vmcnt(0) lgkmcnt(0)'); P('s_barrier')
    if OPT.get('diag'): P('s_memtime s[94:95]'); P('s_memrealtime s[96:97]'); P('s_waitcnt lgkmcnt(0)')
    k.straight(P)
    def kvwait(P):
        Lx = uid('L_kvw')
        P('s_and_b32 s%d, s%d, 7' % (C.S_T0, C.S_STEP)); P('s_or_b32 s%d, s%d, s%d' % (C.S_T0, C.S_T0, C.S_W))
        P('s_cmp_eq_u32 s%d, 0' % C.S_T0); P('s_cbranch_scc0 %s' % Lx)
        P('s_lshl_b32 s%d, s%d, 4' % (C.S_T3, C.S_STEP)); P('s_add_u32 s%d, s%d, 0x%x' % (C.S_T3, C.S_T3, FL + F_KV))
        poll_ge(P, C.S_T3, 64, vtmp=22, stmp=C.S_T0, scnt=C.S_TMO, sleep=0)
        P.label(Lx)
    def publish(P):
        P('s_sub_u32 s%d, s%d, 1' % (C.S_T0, C.S_STEP)); P('s_max_i32 s%d, s%d, 0' % (C.S_T0, C.S_T0))
        P('v_mov_b32 v%d, s%d' % (C.V_VMH, C.S_T0))
        P('s_mov_b64 exec, 1')
        P('buffer_store_dword v%d, off, %s, s%d sc1' % (C.V_VMH, C.WS, C.S_PROG))
        P('s_mov_b64 exec, -1')
    body = C.main_loop(k, st=st, kvwait=kvwait, publish=publish)
    txt = [i.text for i in body.items]
    B = Prog()
    for t in txt:
        t2 = t
        for lab in ('L_chain_loop', 'L_red', 'L_rdel', 'L_nored', 'L_gat', 'L_gdel', 'L_chain_last', 'L_chain_done', 'L_nopf'):
            t2 = t2.replace(lab, lab + sfx) if lab in t2 else t2
        B(t2)
    k.loop(B)
    P = Prog()
    P.label('L_chain_done' + sfx)
    P('s_waitcnt vmcnt(0)')
    P('v_mov_b32 v20, 64'); P('s_mov_b64 exec, 1'); P('buffer_store_dword v20, off, %s, s%d sc1' % (C.WS, C.S_PROG)); P('s_mov_b64 exec, -1')
    if OPT.get('diag'):
        P('s_memtime s[98:99]'); P('s_memrealtime s[40:41]'); P('s_waitcnt lgkmcnt(0)')
        P('s_sub_u32 s98, s98, s94'); P('s_sub_u32 s40, s40, s90'); P('s_sub_u32 s96, s96, s90'); P('s_sub_u32 s92, s92, s90')
        P('v_mov_b32 v20, s92'); P('v_mov_b32 v21, s96'); P('v_mov_b32 v22, s40'); P('v_mov_b32 v23, s98'); P('s_mov_b32 s88, 0x%x' % (FL + F_DIAG + 16))
        P('buffer_store_dwordx4 v[20:23], off, %s, s88 sc1' % C.WS)
    P('s_cmp_eq_u32 s%d, 0' % C.S_ERR); P('s_cbranch_scc1 L_cd_%s' % sfx)
    P('s_mov_b32 s%d, 0x%x' % (C.S_T2, FL + F_ERR)); P('v_mov_b32 v21, s%d' % C.S_ERR); P('buffer_atomic_or v21, off, %s, s%d' % (C.WS, C.S_T2))
    P.label('L_cd_%s' % sfx)
    P('s_waitcnt vmcnt(0)')
    P('s_branch L_end')
    k.straight(P); k.reset_state()

def worker_dispatch(k):
    P = Prog()
    P.label('L_worker')
    if OPT.get('loaderonly') == 1: P('s_branch L_end')
    wait_zeroed(P)
    end_stamp(P, 51)
    W1.load_ptrs(P, ['Wk', 'Wv', 'Wq', 'w1', 'b1', 'w2'], 48)
    W1.load_ptrs(P, ['x', 'b2', 'out', 'Wo'], 64)
    P('s_waitcnt lgkmcnt(0)')
    P('s_mov_b32 s%d, 0xc0135761' % G2.G_C0); P('s_mov_b32 s%d, 0xbdd2d3e7' % G2.G_C1)
    P('s_sub_u32 s46, s%d, 64' % S_RANK); P('s_cmp_lt_u32 s46, 128'); P('s_cbranch_scc0 L_noln')
    srd(P, G_BSRD, 64, 65, 2048*1152)
    P('s_lshl_b32 s47, s46, 4'); P('s_lshl_b32 s45, s%d, 2' % G_W); P('s_add_u32 s47, s47, s45')
    W1.ln_rows2(P, 47, ' sc1')
    P('s_lshr_b32 s46, s46, 4'); P('s_lshl_b32 s46, s46, 7'); P('s_add_u32 s46, s46, 0x%x' % (FL + F_LN))
    signal(P, 46)
    end_stamp(P, 52)
    P.label('L_noln')
    if OPT.get('loaderonly') == 2: P('s_branch L_end')
    P('s_cmp_lt_u32 s%d, 18' % S_RANK); P('s_cbranch_scc1 L_w6a')
    P('s_sub_u32 s46, s%d, 32' % S_RANK); P('s_cmp_lt_u32 s46, 18'); P('s_cbranch_scc1 L_w6b')
    P('s_sub_u32 s46, s%d, 192' % S_RANK); P('s_cmp_lt_u32 s46, 18'); P('s_cbranch_scc1 L_w6c')
    P('s_sub_u32 s46, s%d, 64' % S_RANK); P('s_cmp_lt_u32 s46, 16'); P('s_cbranch_scc1 L_w5')
    P('s_branch L_gemm')
    k.straight(P); k.reset_state()

def gemm_role(k):
    QI = 60; QN = 61
    P = Prog()
    P.label('L_gemm')
    def pull(dst_v):
        P('s_mov_b32 s62, 0x%x' % (FL + F_QUEUE))
        P('v_mov_b32 v%d, 1' % dst_v); P('s_mov_b64 exec, 1')
        P('buffer_atomic_add v%d, off, %s, s62 sc0' % (dst_v, WSs))
        P('s_mov_b64 exec, -1')
    P('s_mov_b32 s%d, s%d' % (QI, S_RANK))
    P('s_cmp_ge_u32 s%d, 80' % S_RANK); P('s_cselect_b32 s46, 52, 0'); P('s_cmp_ge_u32 s%d, 210' % S_RANK); P('s_cselect_b32 s46, 70, s46')
    P('s_cmp_lt_u32 s%d, 64' % S_RANK); P('s_cselect_b32 s47, 36, s46'); P('s_cmp_lt_u32 s%d, 32' % S_RANK); P('s_cselect_b32 s47, 18, s47')
    P('s_sub_u32 s%d, s%d, s47' % (QI, QI))
    if OPT.get('hold', 1):
        P('s_cmp_lt_u32 s%d, 64' % QI); P('s_cbranch_scc1 L_gm_decode')
        P('s_mov_b32 s46, 0x%x' % (FL + F_LD)); wg_wait(P, 46, OPT.get('holdn', 16), sleep=48)
    P('s_branch L_gm_decode')
    P.label('L_gm_next')
    P('s_waitcnt vmcnt(0) lgkmcnt(0)'); P('s_barrier')
    P('s_cmp_eq_u32 s%d, 0' % G_W); P('s_cbranch_scc0 L_gm_b')
    pull(2)
    P('s_waitcnt vmcnt(0)'); P('v_mov_b32 v3, 0x%x' % 65536); P('s_mov_b64 exec, 1'); P('ds_write_b32 v3, v2'); P('s_waitcnt lgkmcnt(0)'); P('s_mov_b64 exec, -1')
    P.label('L_gm_b')
    P('s_barrier'); P('v_mov_b32 v3, 0x%x' % 65536); P('ds_read_b32 v2, v3'); P('s_waitcnt lgkmcnt(0)')
    P('v_readfirstlane_b32 s%d, v2' % QI)
    P('s_add_u32 s%d, s%d, 154' % (QI, QI))
    P.label('L_gm_decode')
    TT, FG = W2.S_TT, W2.S_FG
    P('s_cmp_ge_u32 s%d, %d' % (QI, 264 + 6*156 + 48)); P('s_cbranch_scc1 L_end_drain')
    P('s_cmp_lt_u32 s%d, 264' % QI); P('s_cbranch_scc0 L_gm_d2')
    P('s_cmp_ge_u32 s%d, 132' % QI); P('s_cselect_b32 s%d, 1, 0' % TT); P('s_mul_i32 s46, s%d, 132' % TT); P('s_sub_u32 s%d, s%d, s46' % (FG, QI))
    P('s_branch L_gm_kvqh')
    P.label('L_gm_d2')
    P('s_sub_u32 s46, s%d, 264' % QI)
    P('s_cmp_ge_u32 s46, %d' % (6*156)); P('s_cbranch_scc1 L_gm_d3')
    P('s_mul_i32 s47, s46, 26887'); P('s_lshr_b32 s47, s47, 22')
    P('s_mul_i32 s45, s47, 156'); P('s_sub_u32 s45, s46, s45')
    P('s_cmp_lt_u32 s45, 24'); P('s_cbranch_scc0 L_gm_d2b')
    P('s_mov_b32 s%d, s47' % TT); P('s_mov_b32 s%d, s45' % FG); P('s_branch L_gm_m2')
    P.label('L_gm_d2b')
    P('s_add_u32 s%d, s47, 2' % TT); P('s_sub_u32 s%d, s45, 24' % FG); P('s_branch L_gm_kvqh')
    P.label('L_gm_d3')
    P('s_sub_u32 s46, s46, %d' % (6*156)); P('s_cmp_ge_u32 s46, 24'); P('s_cselect_b32 s47, 1, 0'); P('s_add_u32 s%d, s47, 6' % TT)
    P('s_mul_i32 s47, s47, 24'); P('s_sub_u32 s%d, s46, s47' % FG)
    P.label('L_gm_m2')
    P('s_lshl_b32 s63, s%d, 7' % TT); P('s_add_u32 s46, s63, 0x%x' % (FL + F_H))
    wg_wait(P, 46, 36)
    P('s_add_u32 s63, s63, 0x%x' % (FL + F_M2))
    P('s_branch L_gm_run_m2')
    P.label('L_gm_kvqh')
    P('s_lshl_b32 s63, s%d, 7' % TT); P('s_add_u32 s46, s63, 0x%x' % (FL + F_LN))
    wg_wait(P, 46, 16, sleep=8)
    P('s_cmp_ge_u32 s%d, 96' % FG); P('s_cbranch_scc1 L_gm_h')
    P('s_cmp_ge_u32 s%d, 64' % FG); P('s_cselect_b32 s46, %d, %d' % (F_Q, F_Q)) if False else None
    P('s_mov_b32 s46, 0x%x' % (FL + F_KV)); P('s_cmp_ge_u32 s%d, 64' % FG); P('s_cselect_b32 s46, 0x%x, s46' % (FL + F_Q))
    P('s_add_u32 s63, s63, s46')
    if OPT.get('diag'):
        P('s_cmp_lt_u32 s%d, 64' % QI); P('s_cbranch_scc0 L_dg1'); end_stamp(P, 53); P.label('L_dg1')
    k.straight(P)
    W2.task_kvq(k, 'L_gk', 'L_gm_sig')
    P = Prog(); P.label('L_gm_h'); P('s_sub_u32 s%d, s%d, 96' % (FG, FG)); P('s_add_u32 s63, s63, 0x%x' % (FL + F_H)); k.straight(P)
    W2.task_h(k, 'L_gh', 'L_gm_sig')
    P = Prog(); P.label('L_gm_run_m2'); k.straight(P)
    W2.task_m2(k, 'L_g2m', 'L_gm_sig')
    P = Prog(); P.label('L_gm_sig'); signal(P, 63)
    if OPT.get('diag'):
        P('s_cmp_lt_u32 s%d, 64' % QI); P('s_cbranch_scc0 L_dg2'); end_stamp(P, 54); P.label('L_dg2')
    P('s_branch L_gm_next')
    P.label('L_end_drain'); P('s_waitcnt vmcnt(0)'); end_stamp(P, 50); P('s_branch L_end')
    k.straight(P); k.reset_state()

def w5_role(k):
    P = Prog()
    P.label('L_w5')
    P('s_lshl_b32 s47, s46, 2'); P('s_add_u32 s47, s47, s%d' % G_W); P('s_and_b32 s%d, s47, 31' % W1.A_H); P('s_lshr_b32 s%d, s46, 3' % W1.A_S)
    W1.attn_setup(P)
    P('s_lshl_b32 s80, s%d, 7' % W1.A_H); P('s_add_u32 s80, s80, 0x%x' % (FL + F_PROG))
    k.straight(P)
    P = Prog()
    P.label('L_w5_loop')
    P('s_and_b32 s81, s%d, 6' % W1.A_S); P('s_cmp_eq_u32 s81, 0'); P('s_cbranch_scc0 L_w5_go')
    P('s_lshr_b32 s81, s%d, 3' % W1.A_S); P('s_lshl_b32 s81, s81, 7')
    P('s_add_u32 s82, s81, 0x%x' % (FL + F_KV)); poll_ge(P, 82, 64, vtmp=8, sleep=32)
    P('s_add_u32 s82, s81, 0x%x' % (FL + F_Q)); poll_ge(P, 82, 32, vtmp=8, sleep=32)
    P.label('L_w5_go')
    def wait_mem(P):
        P('s_add_u32 s83, s%d, 1' % W1.A_S)
        poll_ge(P, 80, 83, vtmp=8, tgt_is_sgpr=True, x4min=True, sleep=8)
    W1.attn_task(P, stflag=' sc1', wait_mem=wait_mem)
    P('s_waitcnt vmcnt(0)')
    P('s_lshl_b32 s81, s%d, 7' % W1.A_S); P('s_add_u32 s81, s81, 0x%x' % (FL + F_O))
    P('v_mov_b32 v8, 1'); P('s_mov_b64 exec, 1'); P('buffer_atomic_add v8, off, %s, s81' % WSs); P('s_mov_b64 exec, -1')
    P('s_add_u32 s%d, s%d, 2' % (W1.A_S, W1.A_S)); P('s_cmp_lt_u32 s%d, 64' % W1.A_S); P('s_cbranch_scc1 L_w5_loop')
    k.loop(P)
    P = Prog(); P('s_waitcnt vmcnt(0)'); end_stamp(P, 49); P('s_branch L_end'); k.straight(P); k.reset_state()

def w6_role(k):
    S_CT, S_SEG, S_PAR = 44, 45, 46
    P = Prog()
    P.label('L_w6a'); P('s_mov_b32 s%d, s%d' % (S_CT, S_RANK)); P('s_mov_b32 s%d, 0' % S_SEG); P('s_branch L_w6')
    P.label('L_w6b'); P('s_mov_b32 s%d, s46' % S_CT); P('s_mov_b32 s%d, 1' % S_SEG); P('s_branch L_w6')
    P.label('L_w6c'); P('s_mov_b32 s%d, s46' % S_CT); P('s_mov_b32 s%d, 2' % S_SEG)
    P.label('L_w6')
    if OPT.get('hold', 1):
        P('s_mov_b32 s47, 0x%x' % (FL + F_LD)); wg_wait(P, 47, OPT.get('holdn', 16), sleep=48)
    srd(P, 12, 70, 71, 4096*1152); srd(P, G_BSRD, 64, 65, 2048*1152); srd(P, G_OSRD, 68, 69, 2048*1152); srd(P, 76, 66, 67, 1152)
    L16, TRA, DMO = 1, 2, 3
    P('v_lshlrev_b32 v%d, 4, v0' % L16)
    P('v_lshrrev_b32 v4, 2, v0'); P('s_movk_i32 s%d, 1152' % G_T0); P('v_mul_lo_u32 v4, v4, s%d' % G_T0); P('v_and_b32 v5, 3, v0'); P('v_lshl_add_u32 v%d, v5, 4, v4' % DMO)
    P('v_lshrrev_b32 v4, 5, v0'); P('v_bfe_u32 v5, v0, 2, 2'); P('v_lshl_add_u32 v4, v4, 2, v5'); P('v_lshlrev_b32 v4, 6, v4')
    P('v_bfe_u32 v5, v0, 4, 1'); P('v_lshl_add_u32 v4, v5, 5, v4'); P('v_and_b32 v5, 3, v0'); P('v_lshl_add_u32 v4, v5, 3, v4')
    P('s_lshl_b32 s47, s%d, 15' % G_W); P('v_add_u32 v%d, s47, v4' % TRA)
    P('s_mul_i32 s48, s%d, %d' % (G_W, 1024*1152)); P('s_lshl_b32 s49, s%d, 6' % S_CT); P('s_add_u32 s48, s48, s49')
    for rnd in range(2):
        P('s_mov_b32 m0, s47')
        for j in range(32):
            P('buffer_load_dwordx4 v%d, s[12:15], s48 offen lds' % DMO)
            P('s_add_u32 m0, m0, 1024'); P('s_add_u32 s48, s48, %d' % (16*1152))
        P('s_waitcnt vmcnt(0)')
        for f in range(32):
            a = 4*(32*rnd + f)
            P('ds_read_b64_tr_b16 a[%d:%d], v%d offset:%d' % (a, a+1, TRA, f*1024)); P('ds_read_b64_tr_b16 a[%d:%d], v%d offset:%d' % (a+2, a+3, TRA, f*1024 + 512))
        P('s_waitcnt lgkmcnt(0)')
    P('v_and_b32 v4, 31, v0'); P('s_movk_i32 s%d, 1152' % G_T0); P('v_mul_lo_u32 v4, v4, s%d' % G_T0)
    P('v_lshrrev_b32 v5, 5, v0'); P('v_lshlrev_b32 v5, 4, v5'); P('v_add_u32 v4, v4, v5')
    P('s_barrier')
    k.straight(P)
    XA, XB, ACC, T = 16, 80, 144, 160
    P = Prog()
    P.label('L_w6_loop')
    P('s_lshr_b32 s50, s%d, 3' % S_SEG); P('s_lshl_b32 s50, s50, 7'); P('s_add_u32 s50, s50, 0x%x' % (FL + F_M2))
    wg_wait(P, 50, 24, vtmp=8, sleep=32)
    P('s_lshl_b32 s51, s%d, 6' % G_W); P('s_add_u32 s51, s51, s%d' % S_SEG); P('s_mul_i32 s51, s51, 18'); P('s_add_u32 s51, s51, s%d' % S_CT)
    P('s_lshl_b32 s51, s51, 12'); P('s_add_u32 s51, s51, 0x%x' % WS_BASE)
    for q in range(4): P('buffer_load_dwordx4 %s, v%d, %s, s51 offen offset:%d' % (vr(ACC+4*q,4), L16, WSs, q*1024))
    P('s_lshl_b32 s50, s%d, 7' % S_SEG); P('s_add_u32 s50, s50, 0x%x' % (FL + F_O))
    wg_wait(P, 50, 32, vtmp=8, sleep=4)
    P('s_lshl_b32 s52, s%d, 18' % S_SEG); P('s_lshl_b32 s53, s%d, 16' % G_W); P('s_add_u32 s52, s52, s53'); P('s_add_u32 s52, s52, 0x%x' % WS_OF)
    def xbatch(reg, b):
        for i in range(16):
            if i % 4 == 0: P('s_add_u32 s53, s52, %d' % ((16*b + i)*1024))
            P('buffer_load_dwordx4 %s, v%d, %s, s53 offen offset:%d' % (vr(reg+4*i,4), L16, WSs, (i % 4)*1024))
    def mbatch(reg, b):
        for i in range(16):
            f = 16*b + i
            P('v_mfma_f32_32x32x16_bf16 %s, a[%d:%d], %s, %s' % (vr(ACC,16), 4*f, 4*f+3, vr(reg+4*i,4), vr(ACC,16)))
    xbatch(XA, 0); xbatch(XB, 1); mbatch(XA, 0); xbatch(XA, 2); mbatch(XB, 1); xbatch(XB, 3); mbatch(XA, 2); mbatch(XB, 3)
    P('s_cmp_eq_u32 s%d, 0' % G_W); P('s_cbranch_scc1 L_w6_r0')
    P('s_lshl_b32 s53, s%d, 12' % G_W); P('v_add_u32 v8, s53, v%d' % L16)
    for q in range(4): P('ds_write_b128 v8, %s offset:%d' % (vr(ACC+4*q,4), q*1024))
    P('s_waitcnt lgkmcnt(0)'); P('s_barrier'); P('s_barrier')
    P('s_branch L_w6_next')
    P.label('L_w6_r0')
    P('s_mul_i32 s53, s%d, %d' % (S_SEG, 32*1152)); P('s_lshl_b32 s54, s%d, 6' % S_CT); P('s_add_u32 s53, s53, s54')
    for qp in range(2):
        P('buffer_load_dwordx4 %s, v4, s[%d:%d], s53 offen offset:%d' % (vr(T+8*qp,4), G_BSRD, G_BSRD+3, 32*qp))
        P('buffer_load_dwordx4 %s, v5, s[76:79], s54 offen offset:%d' % (vr(T+8*qp+4,4), 32*qp))
    P('s_barrier')
    for wv in range(1, 4):
        for q in range(4): P('ds_read_b128 %s, v%d offset:%d' % (vr(T+16+4*q,4), L16, wv*4096 + q*1024))
        for i in range(0, 16, 2): P('v_pk_add_f32 %s, %s, %s' % (vr(ACC+i,2), vr(ACC+i,2), vr(T+16+i,2)))
    P('s_waitcnt lgkmcnt(0)'); P('s_barrier')
    for qp in range(2):
        a = ACC + 8*qp
        for i in range(4): P('v_permlane32_swap_b32 v%d, v%d' % (a+i, a+4+i))
        for i in range(4):
            for src in (T+8*qp+i, T+8*qp+4+i):
                P('v_lshlrev_b32 v8, 16, v%d' % src); P('v_add_f32 v%d, v%d, v8' % (a+2*i, a+2*i))
                P('v_and_b32 v9, 0xffff0000, v%d' % src); P('v_add_f32 v%d, v%d, v9' % (a+2*i+1, a+2*i+1))
        G2.pack8(P, T+32, a)
        P('buffer_store_dwordx4 %s, v4, s[%d:%d], s53 offen offset:%d' % (vr(T+32,4), G_OSRD, G_OSRD+3, 32*qp))
    P.label('L_w6_next')
    P('s_add_u32 s%d, s%d, 3' % (S_SEG, S_SEG)); P('s_cmp_lt_u32 s%d, 64' % S_SEG); P('s_cbranch_scc1 L_w6_loop')
    k.loop(P)
    P = Prog(); P('s_waitcnt vmcnt(0)'); end_stamp(P, 48); P('s_branch L_end'); k.straight(P); k.reset_state()

def end_stamp(P, idx):
    if not OPT.get('diag'): return
    L = uid('L_es')
    P('s_and_b32 s88, s%d, 7' % S_RANK); P('s_or_b32 s88, s88, s%d' % G_W); P('s_cmp_eq_u32 s88, 0'); P('s_cbranch_scc0 %s' % L)
    P('s_memrealtime s[92:93]'); P('s_waitcnt lgkmcnt(0)'); P('s_sub_u32 s92, s92, s90')
    P('s_mov_b32 s88, 0x%x' % (FL + F_DIAG + 128*(idx-44))); P('v_mov_b32 v21, s92'); P('s_mov_b64 exec, 1')
    P('buffer_atomic_umax v21, off, %s, s88' % WSs); P('s_mov_b64 exec, -1')
    P.label(L)

def gen(name):
    k = Kernel()
    bootstrap(k)
    worker_dispatch(k)
    gemm_role(k)
    w5_role(k)
    w6_role(k)
    chain_common(k)
    chain_role(k, True)
    chain_role(k, False)
    P = Prog(); P.label('L_end'); P('s_endpgm'); P.label('L_code_end'); k.straight(P)
    return '.globl %s\n.p2align 8\n.type %s,@function\n%s:\n' % (name, name, name) + k.text() + kdesc(name)

HDR = open('parallel_sum__memory_aug_recurrent_mem_tr__mixer_channel_mlp__prompt.s.ref').read().split('; Override launch')[0]
NAME = 'parallel_sum__memory_aug_recurrent_mem_tr__mixer_channel_mlp__prompt_kernel'
if __name__ == '__main__':
    out = sys.argv[1]
    for a in sys.argv[2:]:
        kk, vv = a.split('=')
        if kk == 'set': C.STAMP_SET = set(int(x) for x in vv.split(',')); C.OPT['stamps'] = 1
        elif kk.startswith('c.'): C.OPT[kk[2:]] = int(vv)
        else: OPT[kk] = int(vv)
    txt = HDR + header(['; @launch grid=(256,1,1) block=(256,1,1) lds=163840']) + gen(NAME).replace('CODE_THIRD', str(NPF*8192)).replace('CODE_LEN', 'L_code_end-L_pc_here-4')
    open(out, 'w').write(txt)
    print('written', out, len(txt))
```

```python
from asmlib import *
from common import *

OPT = dict(stamps=0, gdel=6, gdel0=14, rc=0, pf=0, kxtop=1)

L_MF = 0; L_S = 9216; L_O = 14336; L_WL = 16384; LDS_TOTAL = 163840

def wreg(i):
    if i < 32: return 'a[%d:%d]' % (8*i, 8*i+7), ('a', 8*i)
    j = i - 32
    return 'v[%d:%d]' % (80+8*j, 80+8*j+7), ('v', 80+8*j)
LDS_CHUNKS = [('k',0), ('k',2), ('k',4), ('k',6), ('k',8), ('v',2), ('v',6)]
LDS_BLOCKS = [(m, tile, t) for (m, t) in LDS_CHUNKS for tile in (0, 1)] + [('od', p, 3) for p in range(4)]
ALL_BLOCKS = [(m,tile,t) for m in 'qkv' for t in range(9) for tile in (0,1)] + [('oh',0),('oh',1)] + [('od',p,c) for p in range(4) for c in range(4)]
REG_BLOCKS = [b for b in ALL_BLOCKS if b not in LDS_BLOCKS]
assert len(LDS_BLOCKS) == 18 and len(REG_BLOCKS) == 54
REG_OF = {b: wreg(i) for i, b in enumerate(REG_BLOCKS)}
LDS_OF = {b: i for i, b in enumerate(LDS_BLOCKS)}

S_WS = 8; S_SRD2 = 12
S_H = 16; S_W = 17; S_STEP = 18; S_T0 = 19; S_T1 = 20; S_T2 = 21; S_T3 = 22
S_PCUR = 23; S_PCUR4 = 24; S_PR0 = 25
S_MNXT = 30; S_MPOI = 31
S_KV = 32; S_KM = 33; S_RED = 34; S_TMO = 35
S_EXN8 = 36; S_C = 38; S_ERR = 39; S_TS = 40; S_DBG = 42
S_TAG = 44; S_RDEL = 45
S_PTR = 46
S_OW = 56; S_GW = 57; S_EXMM = 60; S_PERM = 62; S_PERM2 = 63
S_BM = 64
S_VV = 72; S_KMW = 73; S_VMP = 74; S_KVRDY = 75
S_ST = 76
S_RC = 84
S_PROG = 86
S_G0 = 87; S_G1 = 88; S_G2 = 89; S_MPN = 29; S_TMOV = 58; S_PROGW = 59

V_NEG1=0; V_L16=1; V_IDX=2; V_PST=3; V_RED=4; V_MST=5; V_G16=6; V_SW=7; V_SR=8; V_SM=9; V_KX=10; V_VX=11; V_WL=12; V_VM=13
V_BSEL=14; V_BVAL=16; V_PT0=17; V_VMH=18
V_AR=20; V_ST=32
V_QA=48; V_QB=52; V_KA=56; V_KB=60; V_VA=64; V_VB=68; V_KF=72

def vr(a, n=1): return 'v%d' % a if n == 1 else 'v[%d:%d]' % (a, a+n-1)
WS = 's[%d:%d]' % (S_WS, S_WS+3)
DPP8 = 'row_ror:8 row_mask:0xf bank_mask:0xf'
OOB = 0x40000000
TMO = 20000
def pk_add(P, d, a, b): P('v_pk_add_f32 %s, %s, %s' % (vr(d,2), vr(a,2), vr(b,2)))
def cvt(P, d, a, b): P('v_cvt_pk_bf16_f32 v%d, v%d, v%d' % (d, a, b))
def mfma16(P, d, a, b, c=None): P('v_mfma_f32_16x16x16_bf16 %s, %s, %s, %s' % (vr(d,4), vr(a,2), vr(b,2), '0' if c is None else vr(c,4)))
def mfma32(P, d, a, b, c=None): P('v_mfma_f32_16x16x32_bf16 %s, %s, %s, %s' % (vr(d,4), vr(a,4), vr(b,4), '0' if c is None else vr(c,4)))
def smf_s(acc, a, b): return 'v_smfmac_f32_16x16x64_bf16 %s, %s, %s, v%d' % (vr(acc, 4), vr(a, 4), b, V_IDX)
def smf(P, acc, a, b): P(smf_s(acc, a, b))
def aread_s(t, dst): return 'ds_read_b128 %s, v%d offset:%d' % (vr(dst, 4), V_L16, L_MF + 1024*t)
def blk_s(blk, buf):
    off = LDS_OF[blk]*2048
    return 'ds_read_b128 %s, v%d offset:%d\nds_read_b128 %s, v%d offset:%d' % (vr(buf,4), V_WL, off, vr(buf+4,4), V_WL, off+1024)

def load_weights(k, hook=None):
    P = Prog()
    n, gb = 2, 3
    DA0, DA1, TA0, TA1, TB0, TB1, OD, OH, OL = 4, 5, 6, 7, 8, 9, 10, 11, 12
    t0, t1, t2, t3 = 14, 15, 16, 17
    P('v_and_b32 v%d, 15, v0' % n); P('v_lshrrev_b32 v%d, 4, v0' % gb)
    P('v_and_b32 v%d, 1, v%d' % (t0, gb)); P('v_lshrrev_b32 v%d, 1, v%d' % (t1, gb)); P('v_lshl_add_u32 v%d, v%d, 2, v%d' % (t0, t1, t0))
    for var, dst in ((0, DA0), (1, DA1)):
        P('v_xor_b32 v%d, v%d, v%d' % (t1, n, t0))
        if var: P('v_xor_b32 v%d, 8, v%d' % (t1, t1))
        P('v_lshlrev_b32 v%d, 4, v%d' % (t1, t1))
        P('v_lshl_add_u32 v%d, v%d, 13, v%d' % (dst, gb, t1))
    P('v_bfe_u32 v%d, v0, 3, 1' % t0)
    P('v_bfe_u32 v%d, v0, 2, 1' % t1)
    P('v_and_b32 v%d, 1, v%d' % (t2, gb))
    P('v_lshlrev_b32 v%d, 3, v%d' % (t3, t0)); P('v_lshl_add_u32 v%d, v%d, 1, v%d' % (t3, t1, t3)); P('v_add_u32 v%d, v%d, v%d' % (t3, t3, t2))
    P('v_lshlrev_b32 v%d, 8, v%d' % (t3, t3))
    P('v_lshlrev_b32 v%d, 3, v%d' % (t0, t0)); P('v_lshl_add_u32 v%d, v%d, 2, v%d' % (t0, t1, t0)); P('v_add_u32 v%d, v%d, v%d' % (t0, t0, t2))
    P('v_bfe_u32 v%d, v0, 1, 1' % t1); P('v_lshlrev_b32 v%d, 1, v%d' % (t1, t1))
    P('s_lshl_b32 s%d, s%d, 2' % (S_T0, S_W)); P('v_add_u32 v%d, s%d, v%d' % (t1, S_T0, t1))
    P('v_lshrrev_b32 v%d, 1, v%d' % (t2, gb)); P('s_mov_b32 s%d, 36864' % S_T0); P('v_mul_lo_u32 v%d, v%d, s%d' % (t2, t2, S_T0))
    P('v_add_u32 v%d, v%d, v%d' % (t3, t3, t2))
    P('v_and_b32 v%d, 1, v0' % t2); P('v_lshl_add_u32 v%d, v%d, 3, v%d' % (t3, t2, t3))
    P('v_add_u32 v%d, %d, v%d' % (t3, L_WL, t3))
    for tile, (d0, d1) in ((0, (TA0, TA1)), (1, (TB0, TB1))):
        P('v_xor_b32 v%d, v%d, v%d' % (t2, t1, t0))
        if tile: P('v_xor_b32 v%d, 1, v%d' % (t2, t2))
        P('v_lshl_add_u32 v%d, v%d, 4, v%d' % (d0, t2, t3))
        P('v_add_u32 v%d, 73728, v%d' % (d1, d0))
    P('v_lshrrev_b32 v%d, 1, v%d' % (t0, gb)); P('v_lshlrev_b32 v%d, 2, v%d' % (t0, t0))
    P('v_bfe_u32 v%d, v0, 2, 1' % t1); P('v_add_u32 v%d, v%d, v%d' % (t0, t0, t1))
    P('v_and_b32 v%d, 1, v%d' % (t1, gb)); P('v_lshl_add_u32 v%d, v%d, 3, v%d' % (t0, t1, t0))
    P('s_movk_i32 s%d, 1152' % S_T0); P('v_mul_lo_u32 v%d, v%d, s%d' % (t0, t0, S_T0))
    P('v_and_b32 v%d, 3, v0' % t1); P('v_lshl_add_u32 v%d, v%d, 3, v%d' % (t0, t1, t0))
    P('s_lshl_b32 s%d, s%d, 5' % (S_T0, S_W)); P('s_add_u32 s%d, s%d, %d' % (S_T0, S_T0, L_WL)); P('v_add_u32 v%d, s%d, v%d' % (t0, S_T0, t0))
    P('v_bfe_u32 v%d, v0, 3, 1' % t1)
    P('v_lshl_add_u32 v%d, v%d, 7, v%d' % (OD, t1, t0))
    P('s_mov_b32 s%d, 36864' % S_T0); P('v_mul_lo_u32 v%d, v%d, s%d' % (t1, t1, S_T0)); P('v_add_u32 v%d, v%d, v%d' % (OH, t1, t0))
    P('v_lshlrev_b32 v%d, 4, v0' % OL)
    WL = 13
    P('s_mul_i32 s%d, s%d, 36864' % (S_G0, S_W)); P('s_add_u32 s%d, s%d, %d' % (S_G0, S_G0, L_WL)); P('v_add_u32 v%d, s%d, v%d' % (WL, S_G0, OL))
    SR = 's[%d:%d]' % (S_SRD2, S_SRD2+3)
    def set_srd(ptr, size):
        P('s_mov_b32 s%d, s%d' % (S_SRD2, ptr)); P('s_mov_b32 s%d, s%d' % (S_SRD2+1, ptr+1))
        P('s_mov_b32 s%d, 0x%x' % (S_SRD2+2, size)); P('s_mov_b32 s%d, 0x20000' % (S_SRD2+3))
    set_srd(S_PTR+6, 4096*576*2)
    P('s_mul_i32 s%d, s%d, %d' % (S_T0, S_H, 147456)); P('s_mul_i32 s%d, s%d, 36864' % (S_T1, S_W)); P('s_add_u32 s%d, s%d, s%d' % (S_T0, S_T0, S_T1))
    P('s_mov_b32 m0, s%d' % S_G0)
    for j in range(36):
        P('buffer_load_dwordx4 v%d, %s, s%d offen lds' % (OL, SR, S_T0))
        if j < 35: P('s_add_u32 m0, m0, 1024'); P('s_add_u32 s%d, s%d, 1024' % (S_T0, S_T0))
    if hook: hook(P)
    P('s_waitcnt vmcnt(0) lgkmcnt(0)'); P('s_barrier')
    if hook: hook(P, True)
    def dst_regs(blk):
        cls, r0 = REG_OF[blk][1]; return cls, r0
    def tr(dstcls, r0, addr, off): P('ds_read_b64_tr_b16 %s[%d:%d], v%d offset:%d' % (dstcls, r0, r0+1, addr, off))
    TC = 20
    for pr in range(4):
        for c in range(4):
            blk = ('od', pr, c); Ta = 1 + 2*pr
            if blk in REG_OF: cls, r0 = dst_regs(blk)
            else: cls, r0 = 'v', TC + 8*pr
            for q in range(4):
                Pq, p1 = q >> 1, q & 1
                off = (16*Pq + 2*p1)*1152 + 128*Ta
                if c == 0: tr(cls, r0+2*q, OD, off)
                else:
                    if q == 0: P('v_add_u32 v%d, %d, v%d' % (t0, c*36864, OD))
                    tr(cls, r0+2*q, t0, off)
    for s2 in range(2):
        cls, r0 = dst_regs(('oh', s2))
        P('v_add_u32 v%d, %d, v%d' % (t0, 2*s2*36864, OH))
        for q in range(4): tr(cls, r0+2*q, t0, (16*(q >> 1) + 2*(q & 1))*1152)
    P('s_waitcnt lgkmcnt(0)'); P('s_barrier')
    for pr in range(4):
        off = LDS_OF[('od', pr, 3)]*2048
        P('ds_write_b128 v%d, %s offset:%d' % (WL, vr(TC+8*pr,4), off)); P('ds_write_b128 v%d, %s offset:%d' % (WL, vr(TC+8*pr+4,4), off+1024))
    k.straight(P)
    reg_chunks = [(m, t) for m in 'qkv' for t in range(9) if (m, t) not in LDS_CHUNKS]
    order = reg_chunks + LDS_CHUNKS
    NS = 7
    slot_of = {}
    for j, ch in enumerate(reg_chunks): slot_of[ch] = j % NS
    for i, ch in enumerate(LDS_CHUNKS): slot_of[ch] = i
    last_use = {}
    for j, ch in enumerate(reg_chunks): last_use[slot_of[ch]] = j
    lds_sorted = sorted(LDS_CHUNKS, key=lambda ch: last_use[slot_of[ch]])
    order = reg_chunks + lds_sorted
    cur_m = [None]
    def issue(P, ch):
        m, t = ch
        if cur_m[0] != m:
            ptr = {'q': S_PTR, 'k': S_PTR+2, 'v': S_PTR+4}[m]
            P('s_mov_b32 s%d, s%d' % (S_SRD2, ptr)); P('s_mov_b32 s%d, s%d' % (S_SRD2+1, ptr+1))
            P('s_mov_b32 s%d, 0x%x' % (S_SRD2+2, 576*8192)); P('s_mov_b32 s%d, 0x20000' % (S_SRD2+3))
            cur_m[0] = m
        for jj in range(4):
            P('s_add_u32 m0, s%d, %d' % (S_G0, slot_of[ch]*4096 + jj*1024))
            P('s_add_u32 s%d, s%d, %d' % (S_T0, S_G1, (64*t + 4*jj)*8192))
            P('buffer_load_dwordx4 v%d, %s, s%d offen lds' % (DA0 if jj < 2 else DA1, SR, S_T0))
    P = Prog()
    P('s_lshl_b32 s%d, s%d, 8' % (S_G1, S_H)); P('s_mul_i32 s%d, s%d, %d' % (S_T0, S_W, 16*8192)); P('s_add_u32 s%d, s%d, s%d' % (S_G1, S_G1, S_T0))
    issued = 0
    def can_issue(j, consumed):
        ch = order[j]; s = slot_of[ch]
        prev = [i for i in range(j) if slot_of[order[i]] == s]
        return (not prev) or prev[-1] < consumed
    while issued < len(order) and can_issue(issued, 0) and issued < NS:
        issue(P, order[issued]); issued += 1
    TB = 20
    for j, ch in enumerate(order):
        m, t = ch
        P('s_waitcnt vmcnt(%d) lgkmcnt(0)' % (4*(issued - j - 1)))
        P('s_barrier')
        while issued < len(order) and can_issue(issued, j):
            issue(P, order[issued]); issued += 1
        so = slot_of[ch]*4096
        for tile, (a0, a1) in ((0, (TA0, TA1)), (1, (TB0, TB1))):
            blk = (m, tile, t)
            if blk in REG_OF: cls, r0 = dst_regs(blk)
            else: cls, r0 = 'v', TB + 8*tile
            for q in range(4): tr(cls, r0+2*q, a0 if q < 2 else a1, so + (q & 1)*1024)
        if ch in LDS_CHUNKS:
            P('s_waitcnt lgkmcnt(0)'); P('s_barrier')
            for tile in range(2):
                off = LDS_OF[(m, tile, t)]*2048
                P('ds_write_b128 v%d, %s offset:%d' % (WL, vr(TB+8*tile,4), off)); P('ds_write_b128 v%d, %s offset:%d' % (WL, vr(TB+8*tile+4,4), off+1024))
    P('s_waitcnt lgkmcnt(0)'); P('s_barrier')
    k.straight(P); k.reset_state()

def lane_setup(k):
    P = Prog()
    n, rg, t0, t1, t2, nh, n7, dt = 20, 21, 22, 23, 24, 25, 26, 27
    P('v_and_b32 v%d, 15, v0' % n); P('v_lshrrev_b32 v%d, 4, v0' % rg); P('v_lshlrev_b32 v%d, 4, v0' % V_L16)
    P('v_mov_b32 v%d, 0x44444444' % V_IDX); P('v_mov_b32 v%d, 0xeeeeeeee' % t0)
    P('v_cmp_lt_u32 vcc, 7, v%d' % n); P('v_cndmask_b32 v%d, v%d, v%d, vcc' % (V_IDX, V_IDX, t0))
    P('v_lshrrev_b32 v%d, 3, v%d' % (nh, n)); P('v_and_b32 v%d, 7, v%d' % (n7, n))
    P('v_lshl_add_u32 v%d, v%d, 3, v%d' % (t0, rg, n7)); P('v_lshlrev_b32 v%d, 4, v%d' % (V_G16, t0))
    P('v_lshrrev_b32 v%d, 1, v%d' % (t0, rg)); P('v_lshl_add_u32 v%d, v%d, 6, v%d' % (t0, t0, n))
    P('s_lshl_b32 s%d, s%d, 4' % (S_T0, S_W)); P('v_add_u32 v%d, s%d, v%d' % (t0, S_T0, t0)); P('v_lshlrev_b32 v%d, 4, v%d' % (t0, t0))
    P('v_and_b32 v%d, 1, v%d' % (t1, rg)); P('v_lshl_add_u32 v%d, v%d, 3, v%d' % (V_PST, t1, t0))
    if OPT.get('quad', 1):
        P('v_and_b32 v%d, 1, v%d' % (t0, rg)); P('v_lshlrev_b32 v%d, 1, v%d' % (t0, t0)); P('v_lshrrev_b32 v%d, 1, v%d' % (t1, rg)); P('v_add_u32 v%d, v%d, v%d' % (t0, t0, t1))
        P('v_lshl_add_u32 v%d, v%d, 6, v%d' % (t0, t0, n)); P('s_lshl_b32 s%d, s%d, 4' % (S_T0, S_W)); P('v_add_u32 v%d, s%d, v%d' % (t0, S_T0, t0))
        P('v_lshlrev_b32 v%d, 4, v%d' % (V_PST, t0))
    P('v_lshlrev_b32 v%d, 4, v%d' % (t0, n)); P('v_lshl_add_u32 v%d, v%d, 2, v%d' % (t0, rg, t0))
    P('s_lshl_b32 s%d, s%d, 8' % (S_T0, S_W)); P('v_add_u32 v%d, s%d, v%d' % (V_PT0, S_T0, t0))
    P('s_sub_u32 s%d, s%d, 1' % (S_T0, S_W)); P('s_lshl_b32 s%d, s%d, 5' % (S_T0, S_T0)); P('s_add_u32 s%d, s%d, s%d' % (S_T0, S_T0, S_H))
    P('s_cmp_lt_u32 s%d, 72' % S_T0); P('s_cselect_b32 s%d, 1, 0' % S_RED)
    P('s_cmp_eq_u32 s%d, 0' % S_W); P('s_cselect_b32 s%d, 0, s%d' % (S_RED, S_RED))
    P('s_cmp_eq_u32 s%d, 0' % S_RED); P('s_cselect_b32 s%d, 0, s%d' % (S_T0, S_T0))
    P('s_lshr_b32 s%d, s%d, 3' % (S_T1, S_T0))
    tab = OPT.get('rtab')
    if tab:
        P('s_mov_b32 s%d, %d' % (S_RDEL, tab[0]))
        for T in range(1, 9):
            P('s_cmp_eq_u32 s%d, %d' % (S_T1, T)); P('s_cselect_b32 s%d, %d, s%d' % (S_RDEL, tab[T], S_RDEL))
    else:
        P('s_mul_i32 s%d, s%d, %d' % (S_RDEL, S_T1, OPT.get('rslope', 1))); P('s_add_u32 s%d, s%d, %d' % (S_RDEL, S_RDEL, OPT.get('rbase', 1)))
    P('s_lshl_b32 s%d, s%d, 7' % (S_T2, S_T0))
    P('v_lshl_add_u32 v%d, v%d, 1, v%d' % (t0, rg, nh)); P('s_movk_i32 s%d, 9216' % S_T1); P('v_mul_lo_u32 v%d, v%d, s%d' % (t0, t0, S_T1))
    P('v_lshl_add_u32 v%d, v%d, 4, v%d' % (t0, n7, t0)); P('v_add_u32 v%d, s%d, v%d' % (V_RED, S_T2, t0))
    P('v_lshlrev_b32 v%d, 1, v%d' % (t0, n)); P('v_and_b32 v%d, 7, v%d' % (t0, t0)); P('v_bfe_u32 v%d, v%d, 2, 1' % (t1, n)); P('v_add_u32 v%d, v%d, v%d' % (t0, t0, t1))
    P('s_cmp_lt_u32 s%d, 8' % S_T0); P('s_cselect_b64 vcc, -1, 0'); P('v_cndmask_b32 v%d, v%d, v%d, vcc' % (t0, n, t0))
    P('v_lshlrev_b32 v%d, 4, v%d' % (t0, t0)); P('v_lshl_add_u32 v%d, v%d, 2, v%d' % (t0, rg, t0)); P('v_add_u32 v%d, s%d, v%d' % (t0, S_T2, t0))
    P('v_mov_b32 v%d, 0x%x' % (t1, OOB)); P('v_cmp_lt_u32 vcc, 7, v%d' % n); P('v_cndmask_b32 v%d, v%d, v%d, vcc' % (t0, t0, t1))
    P('s_cmp_eq_u32 s%d, 0' % S_RED); P('s_cselect_b64 vcc, -1, 0'); P('v_cndmask_b32 v%d, v%d, v%d, vcc' % (V_MST, t0, t1))
    P('s_mul_i32 s%d, s%d, 1280' % (S_T0, S_W)); P('s_add_u32 s%d, s%d, %d' % (S_T0, S_T0, L_S)); P('v_add_u32 v%d, s%d, v%d' % (V_SW, S_T0, V_G16))
    P('v_lshl_add_u32 v%d, v%d, 9, v%d' % (t0, nh, V_G16)); P('v_add_u32 v%d, %d, v%d' % (V_SR, L_S, t0))
    P('v_and_b32 v%d, 1, v%d' % (t0, rg)); P('v_lshl_add_u32 v%d, v%d, 3, v%d' % (t0, t0, n7)); P('v_lshlrev_b32 v%d, 4, v%d' % (t0, t0))
    P('s_movk_i32 s%d, 2560' % S_T1); P('v_mul_lo_u32 v%d, v%d, s%d' % (t1, nh, S_T1)); P('v_add_u32 v%d, v%d, v%d' % (t0, t0, t1))
    P('v_add_u32 v%d, %d, v%d' % (V_SM, L_S + 1024, t0))
    P('v_lshl_add_u32 v%d, v%d, 4, v%d' % (dt, nh, n7))
    P('s_lshl_b32 s%d, s%d, 2' % (S_T0, S_W)); P('v_add_u32 v%d, s%d, v%d' % (t0, S_T0, rg)); P('v_lshl_add_u32 v%d, v%d, 5, v%d' % (t0, t0, dt)); P('v_lshlrev_b32 v%d, 4, v%d' % (V_KX, t0))
    P('s_lshl_b32 s%d, s%d, 5' % (S_T0, S_W)); P('v_lshl_add_u32 v%d, v%d, 7, v%d' % (t0, rg, dt)); P('v_add_u32 v%d, s%d, v%d' % (t0, S_T0, t0)); P('v_lshlrev_b32 v%d, 4, v%d' % (V_VX, t0))
    P('v_lshrrev_b32 v%d, 1, v%d' % (t0, rg)); P('v_lshl_add_u32 v%d, v%d, 3, v%d' % (t0, t0, dt)); P('v_add_u32 v%d, s%d, v%d' % (t0, S_T0, t0)); P('v_lshlrev_b32 v%d, 4, v%d' % (t0, t0))
    P('v_and_b32 v%d, 1, v%d' % (t1, rg)); P('v_lshl_add_u32 v%d, v%d, 3, v%d' % (V_VM, t1, t0))
    P('s_mul_i32 s%d, s%d, 36864' % (S_T0, S_W)); P('s_add_u32 s%d, s%d, %d' % (S_T0, S_T0, L_WL)); P('v_add_u32 v%d, s%d, v%d' % (V_WL, S_T0, V_L16))
    P('v_and_b32 v%d, 3, v%d' % (t0, n)); P('v_lshrrev_b32 v%d, 2, v%d' % (t1, n7)); P('v_and_b32 v%d, 1, v%d' % (t2, rg))
    P('v_cmp_eq_u32 s[%d:%d], v%d, v%d' % (S_TS, S_TS+1, t1, t2))
    P('v_and_b32 v%d, 1, v%d' % (t1, t0)); P('v_lshlrev_b32 v%d, 4, v%d' % (t1, t1)); P('v_mov_b32 v28, 0x3f80'); P('v_lshlrev_b32 v%d, v%d, v28' % (V_BVAL, t1))
    P('v_cndmask_b32 v29, 0, v%d, s[%d:%d]' % (V_BVAL, S_TS, S_TS+1))
    P('v_cmp_gt_u32 vcc, 2, v%d' % t0); P('v_cndmask_b32 v%d, 0, v29, vcc' % V_BSEL)
    P('v_cmp_lt_u32 vcc, 1, v%d' % t0); P('v_cndmask_b32 v%d, 0, v29, vcc' % (V_BSEL+1))
    P('v_lshrrev_b32 v%d, 1, v%d' % (t1, n))
    for r in range(4): P('v_cmp_eq_u32 s[%d:%d], %d, v%d' % (S_BM+2*r, S_BM+2*r+1, r, t1))
    P('s_mov_b32 s%d, 0x00ff00ff' % S_EXN8); P('s_mov_b32 s%d, 0x00ff00ff' % (S_EXN8+1))
    P('s_mov_b32 s%d, 0x00ff00ff' % S_EXMM); P('s_mov_b32 s%d, 0' % (S_EXMM+1))
    P('s_mov_b32 s%d, 0x3e0293ee' % S_C)
    P('s_lshl_b32 s%d, s%d, 9' % (S_OW, S_W)); P('s_add_u32 s%d, s%d, %d' % (S_OW, S_OW, L_O))
    P('s_lshl_b32 s%d, s%d, 10' % (S_GW, S_W))
    P('s_mov_b32 s%d, 0' % S_ERR); P('s_mov_b32 s%d, %d' % (S_TMOV, TMO))
    P('s_mul_i32 s%d, s%d, %d' % (S_PCUR, S_H, P_HEAD)); P('s_add_u32 s%d, s%d, 0x%x' % (S_PCUR, S_PCUR, WS_P)); P('s_add_u32 s%d, s%d, 4096' % (S_PCUR4, S_PCUR))
    for t in range(4): P('s_mov_b32 s%d, 0x%x' % (S_PR0+t, WS_P + t*8*P_HEAD))
    P('s_mov_b32 s%d, 0x%x' % (S_MNXT, WS_M + 1*M_SLOT)); P('s_mov_b32 s%d, 0x%x' % (S_MPOI, WS_M + 2*M_SLOT))
    P('s_lshl_b32 s%d, s%d, 13' % (S_KV, S_H)); P('s_add_u32 s%d, s%d, 0x%x' % (S_VV, S_KV, WS_VF)); P('s_add_u32 s%d, s%d, 0x%x' % (S_KV, S_KV, WS_KF))
    P('s_lshl_b32 s%d, s%d, 11' % (S_KM, S_H)); P('s_lshl_b32 s%d, s%d, 9' % (S_T1, S_W))
    P('s_add_u32 s%d, s%d, s%d' % (S_KMW, S_KM, S_T1)); P('s_add_u32 s%d, s%d, 0x%x' % (S_KMW, S_KMW, WS_KM))
    P('s_add_u32 s%d, s%d, 0x%x' % (S_KM, S_KM, WS_VM))
    if OPT.get('puboob') == 1: P('s_mov_b32 s%d, 0x40000000' % S_KMW); P('s_mov_b32 s%d, 0x40000000' % S_KM)
    if OPT.get('puboob') == 2:
        P('s_cmp_eq_u32 s%d, 0' % S_W); P('s_cselect_b32 s%d, s%d, 0x40000000' % (S_KMW, S_KMW)); P('s_cselect_b32 s%d, s%d, 0x40000000' % (S_KM, S_KM))
    if OPT.get('puboob') == 3:
        P('s_cmp_lt_u32 s%d, 8' % S_H); P('s_cselect_b32 s%d, s%d, 0x40000000' % (S_KMW, S_KMW)); P('s_cselect_b32 s%d, s%d, 0x40000000' % (S_KM, S_KM))
    P('s_mov_b32 s%d, 0' % S_STEP); P('s_mov_b32 s%d, 0' % S_TAG)
    P('s_mov_b32 s%d, 0x%x' % (S_VMP, OOB)); P('v_mov_b64 %s, 0' % vr(V_VMH,2))
    P('s_mov_b32 s%d, 0' % S_RC); P('s_mov_b32 s%d, 0' % (S_RC+1))
    k.straight(P)

def initial_m(k):
    P = Prog()
    P('s_mov_b32 s%d, s%d' % (S_SRD2, S_PTR+8)); P('s_mov_b32 s%d, s%d' % (S_SRD2+1, S_PTR+9))
    P('s_mov_b32 s%d, %d' % (S_SRD2+2, 8*576*2)); P('s_mov_b32 s%d, 0x20000' % (S_SRD2+3))
    P('s_mov_b32 s%d, 0x05040100' % S_PERM); P('s_mov_b32 s%d, 0x07060302' % S_PERM2)
    P('s_lshl_b32 s%d, s%d, 6' % (S_T0, S_W)); P('v_add_u32 v20, s%d, v0' % S_T0)
    for i in range(3):
        P('v_add_u32 v21, %d, v20' % (256*i)); P('v_and_b32 v22, 7, v21'); P('v_lshrrev_b32 v23, 3, v21')
        P('s_movk_i32 s%d, 1152' % S_T1); P('v_mul_lo_u32 v22, v22, s%d' % S_T1); P('v_lshl_add_u32 v22, v23, 4, v22')
        P('v_cmp_gt_u32 vcc, 576, v21'); P('v_mov_b32 v24, 0x%x' % OOB); P('v_cndmask_b32 v22, v24, v22, vcc')
        P('buffer_load_dwordx4 v[28:31], v22, s[%d:%d], 0 offen' % (S_SRD2, S_SRD2+3))
        P('v_perm_b32 v32, v29, v28, s%d' % S_PERM); P('v_perm_b32 v33, v31, v30, s%d' % S_PERM)
        P('v_perm_b32 v34, v29, v28, s%d' % S_PERM2); P('v_perm_b32 v35, v31, v30, s%d' % S_PERM2)
        P('v_lshlrev_b32 v25, 4, v21')
        P('s_and_saveexec_b64 s[%d:%d], vcc' % (S_TS, S_TS+1))
        P('ds_write_b128 v25, v[32:35] offset:%d' % L_MF)
        P('s_mov_b64 exec, s[%d:%d]' % (S_TS, S_TS+1))
    P('s_waitcnt lgkmcnt(0)')
    k.straight(P)

def poison_init(k, st=''):
    P = Prog()
    P('v_mov_b32 v20, -1'); P('v_mov_b32 v21, -1'); P('v_mov_b32 v22, -1'); P('v_mov_b32 v23, -1')
    if OPT.get('quad', 1):
        P('buffer_store_dword v20, v%d, %s, s%d offen%s' % (V_PT0, WS, S_PCUR, st))
        P('buffer_store_dwordx4 v[20:23], v%d, %s, s%d offen offset:1024%s' % (V_PST, WS, S_PCUR, st))
        P('buffer_store_dwordx4 v[20:23], v%d, %s, s%d offen offset:1024%s' % (V_PST, WS, S_PCUR4, st))
    else:
      for T in (0, 2, 4, 6, 7):
        off = T*1024
        P('buffer_store_dwordx2 v[20:21], v%d, %s, s%d offen offset:%d%s' % (V_PST, WS, S_PCUR if off < 4096 else S_PCUR4, off & 4095, st))
    for slot in range(4):
        P('s_mov_b32 s%d, 0x%x' % (S_T1, WS_M + slot*M_SLOT))
        P('buffer_store_dword v20, v%d, %s, s%d offen%s' % (V_MST, WS, S_T1, st))
    P('s_waitcnt vmcnt(0)')
    P('v_mov_b32 v%d, -1' % V_NEG1)
    k.straight(P); k.reset_state()

STAMP_SET = None
def stamp(P, i):
    if not OPT['stamps']: return
    if STAMP_SET is not None and i not in STAMP_SET: return
    P('s_memtime s[%d:%d]' % (S_TS, S_TS+1)); P('s_waitcnt lgkmcnt(0)'); P('s_mov_b32 s%d, s%d' % (S_ST+i, S_TS))
def flush_stamps(P, n=8):
    if not OPT['stamps']: return
    P('s_lshl_b32 s%d, s%d, 2' % (S_T0, S_H)); P('s_add_u32 s%d, s%d, s%d' % (S_T0, S_T0, S_W))
    P('s_lshl_b32 s%d, s%d, 6' % (S_T0, S_T0)); P('s_add_u32 s%d, s%d, s%d' % (S_T0, S_T0, S_STEP)); P('s_sub_u32 s%d, s%d, 1' % (S_T0, S_T0))
    P('s_lshl_b32 s%d, s%d, 6' % (S_T0, S_T0)); P('s_add_u32 s%d, s%d, 0x%x' % (S_T0, S_T0, WS_STAT))
    P('s_mov_b64 exec, 1')
    for i in range(n):
        P('v_mov_b32 v21, s%d' % (S_ST+i)); P('buffer_store_dword v21, off, %s, s%d offset:%d' % (WS, S_T0, 4*i))
    P('s_mov_b64 exec, -1')

def poll_tail(P, lab, done, errbit, rc):
    P('s_cbranch_vccz %s' % done)
    if OPT['rc']: P('s_add_u32 s%d, s%d, 1' % (S_RC+rc, S_RC+rc))
    P('s_sub_u32 s%d, s%d, 1' % (S_TMO, S_TMO)); P('s_cmp_lg_u32 s%d, 0' % S_TMO); P('s_cbranch_scc1 %s' % lab)
    P('s_or_b32 s%d, s%d, %d' % (S_ERR, S_ERR, errbit))
    P.label(done)

def delay(P, sreg, label):
    P('s_cmp_eq_u32 s%d, 0' % sreg)
    P('s_cbranch_scc1 %s_x' % label)
    P('s_mov_b32 s%d, s%d' % (S_T3, sreg))
    P.label(label)
    P('s_sub_u32 s%d, s%d, 1' % (S_T3, S_T3)); P('s_cmp_gt_i32 s%d, 0' % S_T3); P('s_cbranch_scc1 %s' % label)
    P.label(label + '_x')

def kx_loads(P):
    P('buffer_load_dwordx4 %s, v%d, %s, s%d offen%s' % (vr(V_KF,4), V_KX, WS, S_KV, OPT.get('kvf', '')))
    P('buffer_load_dwordx4 %s, v%d, %s, s%d offen offset:128%s' % (vr(V_KF+4,4), V_KX, WS, S_KV, OPT.get('kvf', '')))
def prefetch(P, lab, tmp, kvwait):
    P('s_cmp_eq_u32 s%d, 0' % S_W)
    P('s_cbranch_scc0 %s' % lab)
    P('v_lshlrev_b32 v%d, 3, v%d' % (tmp, V_L16))
    P('s_add_u32 s%d, s%d, %d' % (S_T0, S_KV, OPT.get('pfd', 1)*32*8192)); P('s_mov_b32 m0, %d' % L_S); P('s_add_u32 s%d, s%d, %d' % (S_T1, S_VV, OPT.get('pfd', 1)*32*8192))
    if kvwait: P('s_cmp_eq_u32 s%d, 0' % S_KVRDY); P('s_cbranch_scc1 %s' % lab)
    P('buffer_load_dword v%d, %s, s%d offen%s lds' % (tmp, WS, S_T0, OPT.get('pff', ''))); P('buffer_load_dword v%d, %s, s%d offen%s lds' % (tmp, WS, S_T1, OPT.get('pff', '')))
    P.label(lab)
def pre_step(P):
    if not OPT.get('kxtop'): kx_loads(P)
    for r in range(V_QA, V_VB+4, 2): P('v_mov_b64 %s, 0' % vr(r,2))
    P(blk_s(('k',0,0), V_ST)); P(blk_s(('k',1,0), V_ST+8))

class Filler:
    def __init__(self): self.q = []
    def add(self, t): self.q.append(t)
    def emit(self, P, n):
        for _ in range(n):
            if self.q: P(self.q.pop(0))
    def drain(self, P): self.emit(P, len(self.q))

def bop(blk, buf): return REG_OF[blk][0] if blk in REG_OF else vr(buf, 8)

def main_loop(k, st='', kvwait=None, publish=None):
    P = Prog()
    SB = [V_ST, V_ST+8]
    P.label('L_chain_loop')
    stamp(P, 0)
    P(aread_s(0, V_AR)); P(aread_s(1, V_AR+4))
    kxpos = OPT.get('kxpos', 0)
    if OPT.get('kxtop') and kxpos == 0: kx_loads(P)
    for t in range(9):
        a = V_AR + 4*(t % 3)
        if t + 2 < 9: P(aread_s(t+2, V_AR + 4*((t+2) % 3)))
        if t < 8:
            smf(P, V_QA, a, bop(('q',0,t), 0))
            if OPT.get('kxtop') and kxpos == 1 and t == 0: P('buffer_load_dwordx4 %s, v%d, %s, s%d offen' % (vr(V_KF,4), V_KX, WS, S_KV))
            if t == 6: P('WAIT_SPEC'); P('v_mov_b64 %s, 0' % vr(V_VB,2))
            smf(P, V_QB, a, bop(('q',1,t), 0))
            if OPT.get('kxtop') and kxpos == 1 and t == 0: P('buffer_load_dwordx4 %s, v%d, %s, s%d offen offset:128' % (vr(V_KF+4,4), V_KX, WS, S_KV))
            if t == 6: P('v_mov_b64 %s, 0' % vr(V_VB+2,2))
            if t % 2 == 1: P(blk_s(('k',0,t+1), SB[0]))
            smf(P, V_KA, a, bop(('k',0,t), SB[0]))
            if t % 2 == 1: P(blk_s(('k',1,t+1), SB[1]))
            smf(P, V_KB, a, bop(('k',1,t), SB[1]))
    a = V_AR + 4*(8 % 3)
    smf(P, V_QA, a, bop(('q',0,8), 0)); smf(P, V_QB, a, bop(('q',1,8), 0))
    vorder = [2, 6, 0, 1, 3, 4, 5, 7, 8]
    ring = [V_AR, V_AR+4, V_AR+8]
    P(aread_s(vorder[0], ring[0])); P(aread_s(vorder[1], ring[1]))
    smf(P, V_KA, a, bop(('k',0,8), SB[0])); P(blk_s(('v',0,2), SB[0]))
    smf(P, V_KB, a, bop(('k',1,8), SB[1])); P(blk_s(('v',1,2), SB[1]))
    stamp(P, 1)
    F = Filler()
    for i, t in enumerate(vorder):
        ar = ring[i % 3] if i != 2 else ring[2]
        g1 = []; g2 = []
        if i + 2 < 9: g1.append(aread_s(vorder[i+2], ring[(i+2) % 3]))
        s1 = smf_s(V_VA, ar, bop(('v',0,t), SB[0])); s2 = smf_s(V_VB, ar, bop(('v',1,t), SB[1]))
        if t == 2:
            F.add('\n'.join([s1, blk_s(('v',0,6), SB[0])])); F.add('\n'.join([s2, blk_s(('v',1,6), SB[1])] + g1))
        else:
            F.add('\n'.join([s1] + g1)); F.add(s2)
    cvt(P, V_QA, V_QA, V_QA+1); cvt(P, V_QA+1, V_QA+2, V_QA+3); cvt(P, V_QB, V_QB, V_QB+1); cvt(P, V_QB+1, V_QB+2, V_QB+3)
    mfma16(P, V_QA, V_QA, V_BSEL); mfma16(P, V_QB, V_QB, V_BSEL)
    cvt(P, V_KA, V_KA, V_KA+1); cvt(P, V_KA+1, V_KA+2, V_KA+3); cvt(P, V_KB, V_KB, V_KB+1); cvt(P, V_KB+1, V_KB+2, V_KB+3)
    mfma16(P, V_KA, V_KA, V_BSEL); mfma16(P, V_KB, V_KB, V_BSEL)
    F.emit(P, 1)
    for i in range(4): cvt(P, V_QA+i, V_QA+2*i, V_QA+2*i+1)
    qop = V_QA; kop = V_KA
    X0, X1, MM = V_QB, V_KF+4, V_KB
    mfma32(P, X0, V_KF, qop); mfma32(P, X1, V_KF+4, qop)
    for i in range(4): cvt(P, V_KA+i, V_KA+2*i, V_KA+2*i+1)
    F.emit(P, 1)
    mfma32(P, MM, kop, qop)
    F.emit(P, 1)
    P('s_mov_b64 exec, s[%d:%d]' % (S_EXN8, S_EXN8+1))
    P('ds_write_b128 v%d, %s' % (V_SW, vr(X0,4)))
    P('ds_write_b128 v%d, %s offset:512' % (V_SW, vr(X1,4)))
    P('s_mov_b64 exec, -1')
    P('buffer_load_dwordx4 %s, v%d, %s, s%d offen%s' % (vr(V_KF,4), V_VX, WS, S_VV, OPT.get('kvf', '')))
    P('s_mov_b64 exec, s[%d:%d]' % (S_EXMM, S_EXMM+1))
    P('ds_write_b128 v%d, %s offset:1024' % (V_SW, vr(MM,4)))
    P('s_mov_b64 exec, -1')
    P('buffer_load_dwordx4 %s, v%d, %s, s%d offen offset:128%s' % (vr(V_KF+4,4), V_VX, WS, S_VV, OPT.get('kvf', '')))
    def km_store():
        P('s_mov_b64 exec, s[%d:%d]' % (S_EXN8, S_EXN8+1))
        if OPT.get('nopub', 0) in (0, 2): P('buffer_store_dwordx4 %s, v%d, %s, s%d offen%s' % (vr(kop,4), V_G16, WS, S_KMW, OPT.get('pubf', ' sc1')))
        P('s_mov_b64 exec, -1')
    late = OPT.get('kmlate', 1)
    F.emit(P, 1)
    if not late: km_store()
    F.emit(P, 2)
    P('WAIT_LDSW')
    stamp(P, 2)
    Flast = list(F.q)
    if OPT.get('earlylast', 1) and late:
        P('s_cmp_eq_u32 s%d, 63' % S_STEP)
        P('s_cbranch_scc1 L_chain_last')
    P('s_barrier')
    X, M = V_QA, SB[1]
    for e in ((0, 1, 3) if late else range(4)): P('ds_read_b128 %s, v%d offset:%d' % (vr(V_QA+4*e,4), V_SR, 1280*e))
    for e in range(2): P('ds_read_b128 %s, v%d offset:%d' % (vr(M+4*e,4), V_SM, 1280*e))
    if late:
        km_store()
        P('s_nop 3')
        P('ds_read_b128 %s, v%d offset:%d' % (vr(V_QA+8,4), V_SR, 2560))
    if OPT.get('nopub', 0) in (0, 3): P('buffer_store_dwordx2 %s, v%d, %s, s%d offen%s' % (vr(V_VMH,2), V_VM, WS, S_VMP, OPT.get('pubf', ' sc1')))
    F.emit(P, 2)
    if publish: publish(P)
    F.emit(P, 3)
    pk_add(P, X, X, X+4); pk_add(P, X+2, X+2, X+6); F.emit(P, 1)
    pk_add(P, X+8, X+8, X+12); pk_add(P, X+10, X+10, X+14); F.emit(P, 1)
    pk_add(P, M, M, M+4); pk_add(P, M+2, M+2, M+6); F.emit(P, 1)
    pk_add(P, X, X, X+8); pk_add(P, X+2, X+2, X+10)
    for i in range(4): P('v_add_f32_dpp v%d, v%d, v%d %s' % (M+i, M+i, M+i, DPP8))
    mx, t1 = M+4, M+5
    P('v_max3_f32 v%d, v%d, v%d, v%d' % (mx, X, X+1, X+2)); P('v_max3_f32 v%d, v%d, v%d, v%d' % (mx, mx, X+3, M))
    P('v_max3_f32 v%d, v%d, v%d, v%d' % (mx, mx, M+1, M+2)); P('v_max_f32 v%d, v%d, v%d' % (mx, mx, M+3))
    AV = V_QA + 10
    F.emit(P, 1)
    P('v_max_f32_dpp v%d, v%d, v%d %s' % (mx, mx, mx, DPP8))
    P('v_mov_b32 v%d, 0x3f803f80' % (V_QA+14))
    P('v_mov_b32 v%d, v%d' % (t1, mx))
    F.drain(P)
    P('v_mov_b32 v%d, 0x3f803f80' % (V_QA+15))
    P('v_permlane16_swap_b32 v%d, v%d' % (mx, t1))
    P('v_max_f32 v%d, v%d, v%d' % (mx, mx, t1))
    P('v_mov_b32 v%d, v%d' % (t1, mx))
    P('v_mov_b32 v%d, 0x3f003f00' % (M+6)); P('v_mov_b32 v%d, 0x3f003f00' % (M+7))
    P('v_permlane32_swap_b32 v%d, v%d' % (mx, t1))
    P('v_max_f32 v%d, v%d, v%d' % (mx, mx, t1))
    P('v_mul_f32 v%d, s%d, v%d' % (mx, S_C, mx))
    vals = [X+i for i in range(4)] + [M+i for i in range(4)]
    for r in vals: P('v_fma_f32 v%d, v%d, s%d, -v%d' % (r, r, S_C, mx))
    for r in vals: P('v_exp_f32 v%d, v%d' % (r, r))
    px, pm = V_QA+4, V_QA+8
    cvt(P, pm, M, M+1); cvt(P, pm+1, M+2, M+3); cvt(P, px, X, X+1); cvt(P, px+1, X+2, X+3)
    oa, ob, sm = V_AR, V_AR+4, V_AR+8
    ONES, HALF = V_QA+14, M+6
    mfma16(P, sm, HALF, pm)
    P('v_mov_b32_dpp v%d, v%d %s' % (px+2, px, DPP8)); P('v_mov_b32_dpp v%d, v%d %s' % (px+3, px+1, DPP8))
    mfma16(P, sm, ONES, px, sm)
    cvt(P, AV, V_VA, V_VA+1)
    mfma16(P, sm, ONES, px+2, sm)
    cvt(P, AV+1, V_VA+2, V_VA+3)
    mfma32(P, oa, V_KF, px)
    cvt(P, AV+2, V_VB, V_VB+1)
    mfma32(P, ob, V_KF+4, px)
    cvt(P, AV+3, V_VB+2, V_VB+3)
    mfma16(P, oa, AV, pm, oa)
    ow = M
    P('v_add_u32 v%d, s%d, v%d' % (ow, S_OW, V_G16))
    mfma16(P, ob, AV+2, pm, ob)
    lds_o = [('od', p, 3) for p in range(4)]
    P('v_rcp_f32 v%d, v%d' % (sm, sm))
    P(blk_s(lds_o[0], SB[0]))
    for i in range(0, 8, 2): P('v_pk_mul_f32 %s, %s, %s op_sel_hi:[1,0]' % (vr(oa+i,2), vr(oa+i,2), vr(sm,2)))
    og = V_QA + 12
    for i in range(4): cvt(P, og+i, oa+2*i, oa+2*i+1)
    P('s_mov_b64 exec, s[%d:%d]' % (S_EXN8, S_EXN8+1))
    P('ds_write_b128 v%d, %s' % (ow, vr(og,4)))
    P('s_mov_b64 exec, -1')
    if not (OPT.get('earlylast', 1) and late):
        P('s_cmp_eq_u32 s%d, 63' % S_STEP)
        P('s_cbranch_scc1 L_chain_last')
    th = V_AR + 8
    accs = [V_KF, V_KF+4, V_AR, V_AR+4]
    for r in list(range(V_KF, V_KF+8, 2)) + [th, th+2]: P('v_mov_b64 %s, 0' % vr(r,2))
    P(blk_s(lds_o[1], SB[1]))
    P('WAIT_LDSW')
    stamp(P, 3)
    if OPT.get('ackat3'): P('s_waitcnt vmcnt(0)'); stamp(P, 7)
    P('s_barrier')
    dual, half = V_QA, V_AR
    for s2 in range(2): P('ds_read_b128 %s, v%d offset:%d' % (vr(half+4*s2,4), V_SR, L_O - L_S + 1024*s2))
    for c in range(4): P('ds_read_b128 %s, v%d offset:%d' % (vr(dual+4*c,4), V_G16, L_O + 512*c))
    smf(P, th, half, bop(('oh',0), 0)); smf(P, th, half+4, bop(('oh',1), 0))
    def tagst(reg): P('v_bfi_b32 v%d, 1, s%d, v%d' % (reg, S_TAG, reg))
    def pstore(pr):
        off = (1 + 2*pr)*1024
        P('buffer_store_dwordx2 %s, v%d, %s, s%d offen offset:%d%s' % (vr(accs[pr],2), V_PST, WS, S_PCUR if off < 4096 else S_PCUR4, off & 4095, st))
    def pcvt(pr):
        acc = accs[pr]; cvt(P, acc, acc, acc+1); cvt(P, acc+1, acc+2, acc+3)
    seq = [(p, c) for p in range(4) for c in range(4)]
    extra = {0: lambda: [P('v_mov_b64 %s, 0' % vr(V_AR, 2)), P('v_mov_b64 %s, 0' % vr(V_AR+2, 2))],
             1: lambda: [P('v_mov_b64 %s, 0' % vr(V_AR+4, 2)), P('v_mov_b64 %s, 0' % vr(V_AR+6, 2))],
             2: lambda: [P('v_permlane32_swap_b32 v%d, v%d' % (th, th+1))],
             3: lambda: [P(blk_s(lds_o[2], SB[0])), P('v_permlane32_swap_b32 v%d, v%d' % (th+2, th+3))],
             4: lambda: [P('v_add_f32 v%d, v%d, v%d' % (th, th, th+1)), P('v_add_f32 v%d, v%d, v%d' % (th+2, th+2, th+3))],
             5: lambda: [cvt(P, th, th, th+2), tagst(th), P('buffer_store_dword v%d, v%d, %s, s%d offen%s' % (th, V_PT0, WS, S_PCUR, st))],
             6: lambda: [pcvt(0), tagst(accs[0]), pstore(0)],
             7: lambda: [P(blk_s(lds_o[3], SB[1]))],
             10: lambda: [pcvt(1), tagst(accs[1]), pstore(1)],
             14: lambda: [pcvt(2), tagst(accs[2]), pstore(2)]}
    for i, (pr, c) in enumerate(seq):
        smf(P, accs[pr], dual + 4*c, bop(('od', pr, c), SB[pr % 2]))
        if i in extra: extra[i]()
    pcvt(3); tagst(accs[3]); pstore(3)
    stamp(P, 4)
    def idle_a(P):
        for i in range(4): P('v_permlane32_swap_b32 v%d, v%d' % (V_VA+i, V_VB+i))
        pk_add(P, V_VA, V_VA, V_VB); pk_add(P, V_VA+2, V_VA+2, V_VB+2)
        cvt(P, V_VMH, V_VA, V_VA+1); cvt(P, V_VMH+1, V_VA+2, V_VA+3)
        P('s_mov_b32 s%d, s%d' % (S_VMP, S_KM))
        if not OPT.get('nokv'):
            P('s_add_u32 s%d, s%d, %d' % (S_KV, S_KV, 32*8192)); P('s_add_u32 s%d, s%d, %d' % (S_VV, S_VV, 32*8192))
        if not OPT.get('nokm'): P('s_add_u32 s%d, s%d, %d' % (S_KM, S_KM, 32*2048)); P('s_add_u32 s%d, s%d, %d' % (S_KMW, S_KMW, 32*2048))
        P('s_add_u32 s%d, s%d, s%d' % (S_G0, S_MNXT, S_GW)); P('s_add_u32 s%d, s%d, 4096' % (S_G1, S_G0)); P('s_add_u32 s%d, s%d, 8192' % (S_G2, S_MNXT))
        P('s_add_u32 s%d, s%d, 3' % (S_T1, S_STEP)); P('s_and_b32 s%d, s%d, 3' % (S_T1, S_T1)); P('s_mul_i32 s%d, s%d, %d' % (S_T1, S_T1, M_SLOT))
        P('s_add_u32 s%d, s%d, 0x%x' % (S_MPN, S_T1, WS_M))
        P('s_add_u32 s%d, s%d, 1' % (S_STEP, S_STEP))
    BR = V_QA; CK = V_QA+4
    RL = [V_AR, V_AR+4, V_AR+8, SB[1]]; D = SB[1]+4
    def red_loads(P):
        for t in range(4): P('buffer_load_dwordx4 %s, v%d, %s, s%d offen sc1 ;@spec' % (vr(RL[t],4), V_RED, WS, S_PR0+t))
    def red_check(P, par):
        if par == 0:
            P('v_or3_b32 v%d, v%d, v%d, v%d' % (CK, RL[0], RL[0]+2, RL[1])); P('v_or3_b32 v%d, v%d, v%d, v%d' % (CK+1, RL[1]+2, RL[2], RL[2]+2))
            P('v_or3_b32 v%d, v%d, v%d, v%d' % (CK, CK, RL[3], RL[3]+2)); P('v_or_b32 v%d, v%d, v%d' % (CK, CK, CK+1))
        else:
            P('v_and_b32 v%d, v%d, v%d' % (CK, RL[0], RL[0]+2)); P('v_and_b32 v%d, v%d, v%d' % (CK+1, RL[1], RL[1]+2))
            P('v_and_b32 v%d, v%d, v%d' % (CK+2, RL[2], RL[2]+2)); P('v_and_b32 v%d, v%d, v%d' % (CK+3, RL[3], RL[3]+2))
            P('v_and_b32 v%d, v%d, v%d' % (CK, CK, CK+1)); P('v_and_b32 v%d, v%d, v%d' % (CK+2, CK+2, CK+3)); P('v_and_b32 v%d, v%d, v%d' % (CK, CK, CK+2))
        P('v_and_b32 v%d, 1, v%d' % (CK, CK))
        P('v_cmp_ne_u32 vcc, s%d, v%d' % (S_TAG, CK))
    P('s_cmp_eq_u32 s%d, 0' % S_RED)
    P('s_cbranch_scc1 L_nored')
    P('buffer_store_dword v%d, v%d, %s, s%d offen%s' % (V_NEG1, V_MST, WS, S_MPOI, st))
    if OPT.get('canary'):
        P('s_memtime s[90:91]')
        P('s_cmp_eq_u32 s%d, 0' % S_TAG); P('s_cbranch_scc0 L_can1')
        for par in range(2):
            P.label('L_can%d' % par)
            for t in range(4): P('buffer_load_dword v%d, v%d, %s, s%d offen offset:8 sc1' % (V_AR+t, V_RED, WS, S_PR0+t))
            P('s_waitcnt vmcnt(0)')
            if par == 0: P('v_or3_b32 v24, v20, v21, v22'); P('v_or_b32 v24, v24, v23')
            else: P('v_and_b32 v24, v20, v21'); P('v_and_b32 v25, v22, v23'); P('v_and_b32 v24, v24, v25')
            P('v_and_b32 v24, 1, v24'); P('v_cmp_ne_u32 vcc, s%d, v24' % S_TAG)
            P('s_cbranch_vccnz L_can%d' % par)
            P('s_branch L_can_done')
        P.label('L_can_done')
        P('s_memtime s[92:93]'); P('s_waitcnt lgkmcnt(0)'); P('s_sub_u32 s%d, s92, s90' % (S_ST+3))
    delay(P, S_RDEL, 'L_rdel')
    stamp(P, 7)
    red_loads(P)
    for r in range(4): P('v_cndmask_b32 v%d, 0, v%d, s[%d:%d]' % (BR+r, V_BVAL, S_BM+2*r, S_BM+2*r+1))
    idle_a(P)
    RD = OPT.get('rdepth', 2)
    if RD == 2: red_loads(P)
    P('s_mov_b32 s%d, s%d' % (S_TMO, S_TMOV))
    P('s_cmp_eq_u32 s%d, 0' % S_TAG); P('s_cbranch_scc0 L_red_poll1')
    for par in range(2):
        P.label('L_red_poll%d' % par)
        P('s_waitcnt vmcnt(%d)' % (4 if RD == 2 else 0))
        red_check(P, par)
        P('s_cbranch_vccz L_red_done')
        if OPT['rc']: P('s_add_u32 s%d, s%d, 1' % (S_RC, S_RC))
        red_loads(P)
        P('s_sub_u32 s%d, s%d, 1' % (S_TMO, S_TMO)); P('s_cmp_lg_u32 s%d, 0' % S_TMO); P('s_cbranch_scc1 L_red_poll%d' % par)
        P('s_or_b32 s%d, s%d, 1' % (S_ERR, S_ERR)); P('s_mov_b32 s%d, 1' % S_TMOV)
        P('s_branch L_red_done')
    P.label('L_red_done')
    mfma32(P, D, RL[0], BR)
    for t in range(1, 4): mfma32(P, D, RL[t], BR, D)
    P('v_permlane32_swap_b32 v%d, v%d' % (D, D+1)); P('v_permlane32_swap_b32 v%d, v%d' % (D+2, D+3))
    P('v_add_f32 v%d, v%d, v%d' % (D, D, D+1)); P('v_add_f32 v%d, v%d, v%d' % (D+2, D+2, D+3))
    cvt(P, D, D, D+2)
    P('buffer_store_dword v%d, v%d, %s, s%d offen%s' % (D, V_MST, WS, S_MNXT, st))
    P('s_mov_b32 s%d, %d' % (S_T2, OPT['gdel']))
    P('s_branch L_red_done2')
    P.label('L_nored')
    idle_a(P)
    if kvwait: kvwait(P)
    P('s_mov_b32 s%d, %d' % (S_T2, OPT['gdel0']))
    P.label('L_red_done2')
    stamp(P, 5)
    GL = V_QA + 8; CK = V_QA + 9
    P('v_add_u32 v%d, s%d, v%d' % (GL, S_GW, V_L16))
    delay(P, S_T2, 'L_gdel')
    def gat_loads(P, w0):
        P('buffer_load_dwordx4 v[72:75], v%d, %s, s%d offen sc1 ;@spec' % (V_L16, WS, S_G0))
        P('buffer_load_dwordx4 v[76:79], v%d, %s, s%d offen sc1 ;@spec' % (V_L16, WS, S_G1))
        if w0: P('buffer_load_dwordx4 v[68:71], v%d, %s, s%d offen sc1 ;@spec' % (V_L16, WS, S_G2))
    def gat_check(P, w0):
        P('v_max3_u32 v%d, v72, v73, v74' % CK); P('v_max3_u32 v%d, v75, v76, v77' % (CK+1))
        P('v_max3_u32 v%d, v%d, v78, v79' % (CK, CK))
        if w0:
            P('v_max3_u32 v%d, v%d, v68, v69' % (CK+1, CK+1)); P('v_max3_u32 v%d, v%d, v70, v71' % (CK, CK))
        P('v_max_u32 v%d, v%d, v%d' % (CK, CK, CK+1))
        P('v_cmp_eq_u32 vcc, -1, v%d' % CK)
    def idle_b(P):
        P('s_xor_b32 s%d, s%d, 1' % (S_TAG, S_TAG))
        P('s_mov_b32 s%d, s%d' % (S_MNXT, S_MPOI)); P('s_mov_b32 s%d, s%d' % (S_MPOI, S_MPN))
        P('s_mov_b32 s%d, s%d' % (S_TMO, S_TMOV))
        for r in (V_QA, V_QA+2, V_QA+4, V_QA+6, V_QA+12, V_QA+14, V_VA, V_VA+2): P('v_mov_b64 %s, 0' % vr(r,2))
        P(blk_s(('k',0,0), V_ST))
    P('s_cmp_eq_u32 s%d, 0' % S_W)
    P('s_cbranch_scc1 L_gat0')
    for w0, pfx in ((False, 'L_gat'), (True, 'L_gat0')):
        n = 3 if w0 else 2
        if w0: P.label('L_gat0')
        gat_loads(P, w0)
        idle_b(P)
        GD = OPT.get('gdepth', 2)
        if GD == 2: gat_loads(P, w0)
        P.label(pfx + '_poll')
        P('s_waitcnt vmcnt(%d)' % (n if GD == 2 else 0))
        gat_check(P, w0)
        P('s_cbranch_vccz %s_ok' % pfx)
        if OPT['rc']: P('s_add_u32 s%d, s%d, 1' % (S_RC+1, S_RC+1))
        gat_loads(P, w0)
        P('s_sub_u32 s%d, s%d, 1' % (S_TMO, S_TMO)); P('s_cmp_lg_u32 s%d, 0' % S_TMO); P('s_cbranch_scc1 %s_poll' % pfx)
        P('s_or_b32 s%d, s%d, 2' % (S_ERR, S_ERR)); P('s_mov_b32 s%d, 1' % S_TMOV)
        P.label(pfx + '_ok')
        P('ds_write_b128 v%d, v[72:75] offset:%d' % (GL, L_MF))
        P('ds_write_b128 v%d, v[76:79] offset:%d' % (GL, L_MF + 4096))
        if w0: P('ds_write_b128 v%d, v[68:71] offset:%d' % (V_L16, L_MF + 8192))
        P(blk_s(('k',1,0), V_ST+8))
        P('v_mov_b64 %s, 0' % vr(V_QA+8,2)); P('v_mov_b64 %s, 0' % vr(V_QA+10,2))
        if not w0: P('s_branch L_gat_w')
    P.label('L_gat_w')
    stamp(P, 6)
    flush_stamps(P)
    P('WAIT_LDSW')
    P('s_barrier')
    P('s_branch L_chain_loop')
    P.label('L_chain_last')
    if OPT.get('earlylast', 1) and late:
        km_store()
        P('buffer_store_dwordx2 %s, v%d, %s, s%d offen sc1' % (vr(V_VMH,2), V_VM, WS, S_VMP))
        for x in Flast: P(x)
    for i in range(4): P('v_permlane32_swap_b32 v%d, v%d' % (V_VA+i, V_VB+i))
    pk_add(P, V_VA, V_VA, V_VB); pk_add(P, V_VA+2, V_VA+2, V_VB+2)
    cvt(P, V_VA, V_VA, V_VA+1); cvt(P, V_VA+1, V_VA+2, V_VA+3)
    P('buffer_store_dwordx2 %s, v%d, %s, s%d offen sc1' % (vr(V_VA,2), V_VM, WS, S_KM))
    P('s_branch L_chain_done')
    return P


def early_init(st, cb_off, zcheck=None):
    def hook(P, second=False):
        if not second:
            if zcheck:
                P('v_mov_b32 v59, %d' % zcheck[1]); P('global_load_dword v58, v59, s[%d:%d] sc1' % (zcheck[0], zcheck[0]+1))
                P('v_mov_b32 v57, %d' % zcheck[2]); P('global_load_dword v56, v57, s[%d:%d] sc1' % (zcheck[0], zcheck[0]+1))
            P('s_mov_b32 s64, s%d' % (S_PTR+8)); P('s_mov_b32 s65, s%d' % (S_PTR+9)); P('s_mov_b32 s66, %d' % (8*576*2)); P('s_mov_b32 s67, 0x20000')
            P('s_lshl_b32 s%d, s%d, 6' % (S_T0, S_W)); P('v_add_u32 v60, s%d, v0' % S_T0)
            for i in range(3):
                P('v_add_u32 v61, %d, v60' % (256*i)); P('v_and_b32 v62, 7, v61'); P('v_lshrrev_b32 v63, 3, v61')
                P('s_movk_i32 s%d, 1152' % S_T1); P('v_mul_lo_u32 v62, v62, s%d' % S_T1); P('v_lshl_add_u32 v62, v63, 4, v62')
                P('v_cmp_gt_u32 vcc, 576, v61'); P('v_mov_b32 v63, 0x%x' % OOB); P('v_cndmask_b32 v62, v63, v62, vcc')
                P('buffer_load_dwordx4 %s, v62, s[64:67], 0 offen' % vr(64+4*i,4))
            P('v_mov_b32 v76, -1'); P('v_mov_b32 v77, -1'); P('v_mov_b32 v78, -1'); P('v_mov_b32 v79, -1')
            P('s_mul_i32 s%d, s%d, %d' % (S_T0, S_H, P_HEAD)); P('s_add_u32 s%d, s%d, 0x%x' % (S_T0, S_T0, WS_P))
            P('v_lshlrev_b32 v61, 4, v60')
            for i in range(3):
                if i == 2:
                    P('v_mov_b32 v63, 0x%x' % OOB); P('v_cmp_gt_u32 vcc, 64, v60'); P('v_cndmask_b32 v61, v63, v61, vcc')
                P('s_add_u32 s%d, s%d, %d' % (S_T1, S_T0, 4096*i)); P('buffer_store_dwordx4 v[76:79], v61, %s, s%d offen%s' % (WS, S_T1, st))
            P('s_sub_u32 s%d, s%d, 1' % (S_T0, S_W)); P('s_lshl_b32 s%d, s%d, 5' % (S_T0, S_T0)); P('s_add_u32 s%d, s%d, s%d' % (S_T0, S_T0, S_H))
            P('s_cmp_lt_u32 s%d, 72' % S_T0); P('s_cselect_b32 s%d, 1, 0' % S_T1); P('s_cmp_eq_u32 s%d, 0' % S_W); P('s_cselect_b32 s%d, 0, s%d' % (S_T1, S_T1))
            P('s_lshl_b32 s%d, s%d, 7' % (S_T0, S_T0))
            P('v_lshlrev_b32 v61, 2, v0'); P('v_mov_b32 v63, 0x%x' % OOB); P('v_cmp_gt_u32 vcc, 32, v0'); P('v_cndmask_b32 v61, v63, v61, vcc')
            P('s_cmp_eq_u32 s%d, 0' % S_T1); P('s_cselect_b64 vcc, -1, 0'); P('v_cndmask_b32 v61, v61, v63, vcc')
            for slot in range(4):
                P('s_add_u32 s%d, s%d, 0x%x' % (S_T1, S_T0, WS_M + slot*M_SLOT)); P('buffer_store_dword v76, v61, %s, s%d offen%s' % (WS, S_T1, st))
        else:
            if zcheck: P('v_readfirstlane_b32 s%d, v56' % zcheck[3])
            P('s_mov_b32 s%d, 0x05040100' % S_PERM); P('s_mov_b32 s%d, 0x07060302' % S_PERM2)
            for i in range(3):
                d = 64 + 4*i
                P('v_perm_b32 v76, v%d, v%d, s%d' % (d+1, d, S_PERM)); P('v_perm_b32 v77, v%d, v%d, s%d' % (d+3, d+2, S_PERM))
                P('v_perm_b32 v78, v%d, v%d, s%d' % (d+1, d, S_PERM2)); P('v_perm_b32 v79, v%d, v%d, s%d' % (d+3, d+2, S_PERM2))
                P('v_add_u32 v61, %d, v60' % (256*i)); P('v_cmp_gt_u32 vcc, 576, v61'); P('v_lshlrev_b32 v61, 4, v61')
                P('s_and_saveexec_b64 s[%d:%d], vcc' % (S_TS, S_TS+1))
                P('ds_write_b128 v61, v[76:79] offset:%d' % L_MF)
                P('s_mov_b64 exec, s[%d:%d]' % (S_TS, S_TS+1))
            if cb_off is not None:
                P('s_cmp_eq_u32 s%d, 0' % S_W); P('s_cbranch_scc0 L_ei_%s' % ('s' if st else 'f'))
                if zcheck:
                    P('s_mov_b32 s%d, 30000' % S_TMO)
                    P.label('L_ei_z')
                    P('v_readfirstlane_b32 s%d, v58' % S_T1); P('s_cmp_lg_u32 s%d, 0' % S_T1); P('s_cbranch_scc1 L_ei_zd')
                    P('global_load_dword v58, v59, s[%d:%d] sc1' % (zcheck[0], zcheck[0]+1)); P('s_waitcnt vmcnt(0)')
                    P('s_sub_u32 s%d, s%d, 1' % (S_TMO, S_TMO)); P('s_cmp_lg_u32 s%d, 0' % S_TMO); P('s_cbranch_scc1 L_ei_z')
                    P.label('L_ei_zd')
                P('s_mov_b32 s%d, 0x%x' % (S_T1, cb_off)); P('v_mov_b32 v61, 1'); P('s_mov_b64 exec, 1')
                P('buffer_atomic_add v61, off, %s, s%d' % (WS, S_T1)); P('s_mov_b64 exec, -1')
                P.label('L_ei_%s' % ('s' if st else 'f'))
    return hook
```

```python
from asmlib import *
from common import *

def vr(a, n=1): return 'v%d' % a if n == 1 else 'v[%d:%d]' % (a, a+n-1)

G_WS = 8; G_WSRD = 12; G_W = 17
G_T0 = 19; G_T1 = 20; G_T2 = 21; G_T3 = 22
G_XOFF = 24; G_WOFF = 25; G_SLOT = 26; G_NSLOT = 27; G_CNT = 28
G_DST = 29; G_XGS = 30
G_M0B = 31
G_BSRD = 32; G_OSRD = 36
G_C0 = 40; G_C1 = 41
G_XOF2 = 23
WSs = 's[%d:%d]' % (G_WS, G_WS+3)
OOB = 0x40000000

class Gemm:
    def __init__(self, TG, NT, rsg, name, stflag=' sc1', nslot=4):
        self.TG, self.NT, self.rsg, self.name, self.stflag = TG, NT, rsg, name, stflag
        self.resident = nslot > 4
        self.KS = 2
        self.rsl = NT*64
        self.slot = self.rsl*32
        self.NSLOT = nslot
        self.swz = (NT == 4)
        self.cpr = self.rsl // 16
        self.nchunk = self.slot // 16 // 4
        self.NI = (self.nchunk + 63) // 64
        self.ACC = 256 - TG*NT*16
        self.XF = 16
        self.WF = self.XF + 2*self.KS*TG*4
        self.AD = self.WF + 16
        self.NA = 4 if self.swz else 1
        self.AB = self.AD + 2*self.NA
        self.DO = self.AB + self.NA
        self.L16 = self.DO + self.NI
        self.TMP = (self.L16 + 2) & ~1
        assert self.TMP + 24 <= self.ACC, (self.TMP, self.ACC)
    def setup(self, P):
        t = self.TMP
        P('v_lshlrev_b32 v%d, 4, v0' % self.L16)
        P('v_lshrrev_b32 v%d, 5, v0' % t); P('v_bfe_u32 v%d, v0, 2, 2' % (t+1))
        P('v_lshl_add_u32 v%d, v%d, 2, v%d' % (t+2, t, t+1))
        P('s_movk_i32 s%d, %d' % (G_T0, self.rsl)); P('v_mul_lo_u32 v%d, v%d, s%d' % (t+2, t+2, G_T0))
        P('v_bfe_u32 v%d, v0, 4, 1' % (t+3)); P('v_and_b32 v%d, 3, v0' % (t+4))
        P('v_lshlrev_b32 v%d, 5, v%d' % (t+3, t+3)); P('v_lshl_add_u32 v%d, v%d, 3, v%d' % (t+3, t+4, t+3))
        P('v_add_u32 v%d, v%d, v%d' % (t+2, t+2, t+3))
        if self.swz:
            for j in range(4):
                P('v_xor_b32 v%d, %d, v%d' % (t+4, j, t+1)); P('v_lshl_add_u32 v%d, v%d, 6, v%d' % (self.AB+j, t+4, t+2))
        else:
            P('v_mov_b32 v%d, v%d' % (self.AB, t+2))
        for i in range(self.NI):
            P('v_add_u32 v%d, %d, v0' % (t, 64*i))
            P('s_mov_b32 s%d, 0x%x' % (G_T0, (1 << 20)//self.cpr + 1))
            P('v_mul_lo_u32 v%d, v%d, s%d' % (t+1, t, G_T0)); P('v_lshrrev_b32 v%d, 20, v%d' % (t+1, t+1))
            P('s_movk_i32 s%d, %d' % (G_T0, self.cpr)); P('v_mul_lo_u32 v%d, v%d, s%d' % (t+2, t+1, G_T0))
            P('v_sub_u32 v%d, v%d, v%d' % (t+2, t, t+2))
            if self.swz:
                P('v_and_b32 v%d, 3, v%d' % (t+3, t+1)); P('v_lshrrev_b32 v%d, 2, v%d' % (t+4, t+2))
                P('v_xor_b32 v%d, v%d, v%d' % (t+4, t+4, t+3)); P('v_and_b32 v%d, 3, v%d' % (t+2, t+2))
                P('v_lshl_add_u32 v%d, v%d, 2, v%d' % (t+2, t+4, t+2))
            P('s_movk_i32 s%d, %d' % (G_T0, self.rsg)); P('v_mul_lo_u32 v%d, v%d, s%d' % (t+1, t+1, G_T0))
            P('v_lshl_add_u32 v%d, v%d, 4, v%d' % (self.DO+i, t+2, t+1))
            if 64*(i+1) > self.nchunk:
                P('v_mov_b32 v%d, 0x%x' % (t+3, OOB)); P('v_cmp_gt_u32 vcc, %d, v%d' % (self.nchunk, t))
                P('v_cndmask_b32 v%d, v%d, v%d, vcc' % (self.DO+i, t+3, self.DO+i))
        P('s_mul_i32 s%d, s%d, %d' % (G_M0B, G_W, self.nchunk*16))
    def dma(self, P):
        W = 's[%d:%d]' % (G_WSRD, G_WSRD+3)
        for i in range(self.NI):
            if i == 0: P('s_add_u32 m0, s%d, s%d' % (G_SLOT, G_M0B))
            else: P('s_add_u32 m0, m0, 1024')
            part = 64*(i+1) > self.nchunk
            if part:
                assert self.nchunk - 64*i == 32
                P('s_mov_b32 exec_hi, 0')
            else: P('s_nop 0')
            P('buffer_load_dwordx4 v%d, %s, s%d offen lds' % (self.DO + i, W, G_WOFF))
            if part: P('s_mov_b32 exec_hi, -1')
        P('s_add_u32 s%d, s%d, %d' % (G_WOFF, G_WOFF, 32*self.rsg))
        P('s_add_u32 s%d, s%d, %d' % (G_SLOT, G_SLOT, self.slot))
        P('s_cmp_eq_u32 s%d, %d' % (G_SLOT, self.NSLOT*self.slot))
        P('s_cselect_b32 s%d, 0, s%d' % (G_SLOT, G_SLOT))
    def xreg(self, st, ks, g): return self.XF + 4*((st*self.KS + ks)*self.TG + g)
    def xload(self, P, st, ks):
        for g in range(self.TG):
            P('buffer_load_dwordx4 %s, v%d, %s, s%d offen offset:%d' % (vr(self.xreg(st, ks, g), 4), self.L16, WSs, G_XOFF if g == 0 else G_XOF2, ks*1024))
    def xadv(self, P):
        P('s_add_u32 s%d, s%d, %d' % (G_XOFF, G_XOFF, 1024*self.KS))
        if self.TG > 1: P('s_add_u32 s%d, s%d, %d' % (G_XOF2, G_XOF2, 1024*self.KS))
    def addr_set(self, P, st):
        for j in range(self.NA): P('v_add_u32 v%d, s%d, v%d' % (self.AD + st*self.NA + j, G_NSLOT, self.AB + j))
        P('s_add_u32 s%d, s%d, %d' % (G_NSLOT, G_NSLOT, self.slot))
        P('s_cmp_eq_u32 s%d, %d' % (G_NSLOT, self.NSLOT*self.slot))
        P('s_cselect_b32 s%d, 0, s%d' % (G_NSLOT, G_NSLOT))
    def wread(self, P, st, q):
        ks, ft = divmod(q, self.NT)
        dst = self.WF + 4*(q % 4)
        if self.swz: a = self.AD + st*self.NA + ft; off = ks*16*self.rsl
        else: a = self.AD + st*self.NA; off = ks*16*self.rsl + ft*64
        P('ds_read_b64_tr_b16 %s, v%d offset:%d' % (vr(dst, 2), a, off))
        P('ds_read_b64_tr_b16 %s, v%d offset:%d' % (vr(dst+2, 2), a, off + 8*self.rsl))
    def acc(self, g, ft): return self.ACC + 16*(g*self.NT + ft)
    def mfma(self, P, st, q, swap):
        ks, ft = divmod(q, self.NT)
        w = vr(self.WF + 4*(q % 4), 4)
        for g in range(self.TG):
            a = vr(self.acc(g, ft), 16); x = vr(self.xreg(st, ks, g), 4)
            if swap: P('v_mfma_f32_32x32x16_bf16 %s, %s, %s, %s' % (a, x, w, a))
            else: P('v_mfma_f32_32x32x16_bf16 %s, %s, %s, %s' % (a, w, x, a))
    def prologue(self, P):
        if self.TG > 1: P('s_add_u32 s%d, s%d, s%d' % (G_XOF2, G_XOFF, G_XGS))
        P('s_mov_b32 s%d, 0' % G_SLOT); P('s_mov_b32 s%d, 0' % G_NSLOT)
        P('s_barrier')
        self.dma(P)
        for st in range(2):
            for ks in range(self.KS): self.xload(P, st, ks)
            self.xadv(P)
            self.dma(P)
    def preload_w(self, P):
        P('s_mov_b32 s%d, 0' % G_SLOT); P('s_mov_b32 s%d, 0' % G_NSLOT)
        P('s_barrier')
        for _ in range(self.NSLOT): self.dma(P)
    def resident_start(self, P):
        if self.TG > 1: P('s_add_u32 s%d, s%d, s%d' % (G_XOF2, G_XOFF, G_XGS))
        for st in range(2):
            for ks in range(self.KS): self.xload(P, st, ks)
            self.xadv(P)
        P('s_waitcnt vmcnt(%d)' % (2*self.KS*self.TG))
        P('s_barrier')
        self.addr_set(P, 0)
        for q in range(3): self.wread(P, 0, q)
    def first_reads(self, P):
        P('s_waitcnt vmcnt(%d)' % (2*(self.NI + self.KS*self.TG)))
        P('s_barrier')
        self.addr_set(P, 0)
        for q in range(3): self.wread(P, 0, q)
    def body(self, swap, label):
        assert (self.NT*self.KS*2) % 4 == 0
        P = Prog()
        P.label(label)
        NQ = self.NT*self.KS
        gq = 0
        P('s_cmp_eq_u32 s%d, 1' % G_CNT)
        P('s_cselect_b32 s%d, 0x%x, s%d' % (G_XOFF, OOB, G_XOFF))
        if self.TG > 1: P('s_cselect_b32 s%d, 0x%x, s%d' % (G_XOF2, OOB, G_XOF2))
        for st in range(2):
            for q in range(NQ):
                if q == NQ // 2:
                    if self.resident:
                        self.addr_set(P, 1 - st)
                    else:
                        P('s_waitcnt vmcnt(%d)' % (3*self.TG*(self.KS // 2) + self.NI))
                        P('s_barrier')
                        self.addr_set(P, 1 - st)
                        self.dma(P)
                nq = q + 3
                qq = lambda x: x + st*NQ
                ks, ft = divmod(nq % NQ, self.NT)
                self._wread_ring(P, st if nq < NQ else 1 - st, nq % NQ, (st*NQ + nq) % 4)
                self._mfma_ring(P, st, q, (st*NQ + q) % 4, swap)
                ks, ft = divmod(q, self.NT)
                if ft == self.NT - 1:
                    self.xload(P, st, ks)
                    if ks == self.KS - 1: self.xadv(P)
        P('s_sub_u32 s%d, s%d, 1' % (G_CNT, G_CNT))
        P('s_cmp_lg_u32 s%d, 0' % G_CNT)
        P('s_cbranch_scc1 %s' % label)
        return P
    def _wread_ring(self, P, st, q, ring):
        ks, ft = divmod(q, self.NT)
        dst = self.WF + 4*ring
        if self.swz: a = self.AD + st*self.NA + ft; off = ks*16*self.rsl
        else: a = self.AD + st*self.NA; off = ks*16*self.rsl + ft*64
        P('ds_read_b64_tr_b16 %s, v%d offset:%d' % (vr(dst, 2), a, off))
        P('ds_read_b64_tr_b16 %s, v%d offset:%d' % (vr(dst+2, 2), a, off + 8*self.rsl))
    def _mfma_ring(self, P, st, q, ring, swap):
        ks, ft = divmod(q, self.NT)
        w = vr(self.WF + 4*ring, 4)
        for g in range(self.TG):
            a = vr(self.acc(g, ft), 16); x = vr(self.xreg(st, ks, g), 4)
            if swap: P('v_mfma_f32_32x32x16_bf16 %s, %s, %s, %s' % (a, x, w, a))
            else: P('v_mfma_f32_32x32x16_bf16 %s, %s, %s, %s' % (a, w, x, a))

def zero_acc(g, P):
    for r in range(g.ACC, 256, 2): P('v_mov_b64 %s, 0' % vr(r, 2))
def pack8(P, dst, src):
    for i in range(4): P('v_cvt_pk_bf16_f32 v%d, v%d, v%d' % (dst+i, src+2*i, src+2*i+1))

def epi_kq(g, P):
    t = g.TMP; n = 0
    for tg in range(g.TG):
        for ft in range(4):
            for G in range(2):
                d = t + 4*(n % 4); n += 1
                pack8(P, d, g.acc(tg, ft) + 8*G)
                off = tg*32*8192 + (4*ft + 2*G)*512
                P('s_add_u32 s%d, s%d, %d' % (G_T0, G_DST, off & ~4095))
                P('buffer_store_dwordx4 %s, v%d, %s, s%d offen offset:%d%s' % (vr(d,4), g.L16, WSs, G_T0, off & 4095, g.stflag))
def epi_v(g, P):
    t = g.TMP; va = t + 16; n = 0
    P('v_lshrrev_b32 v%d, 5, v0' % va); P('v_lshlrev_b32 v%d, 11, v%d' % (va, va))
    P('v_and_b32 v%d, 31, v0' % (va+1)); P('v_lshl_add_u32 v%d, v%d, 4, v%d' % (va, va+1, va))
    for tg in range(g.TG):
        for ft in range(4):
            for G in range(2):
                d = t + 4*(n % 4); n += 1
                pack8(P, d, g.acc(tg, ft) + 8*G)
                off = tg*32*8192 + G*4096 + ft*512
                P('s_add_u32 s%d, s%d, %d' % (G_T0, G_DST, off & ~4095))
                P('buffer_store_dwordx4 %s, v%d, %s, s%d offen offset:%d%s' % (vr(d,4), va, WSs, G_T0, off & 4095, g.stflag))
def init_bias(g, P):
    t = g.TMP
    B = 's[%d:%d]' % (G_BSRD, G_BSRD+3)
    P('v_lshrrev_b32 v%d, 5, v0' % t); P('v_lshlrev_b32 v%d, 3, v%d' % (t, t))
    for ft in range(g.NT):
        for q in range(4): P('buffer_load_dwordx2 %s, v%d, %s, s%d offen offset:%d' % (vr(t+2+2*q, 2), t, B, G_T3, 64*ft + 16*q))
        for q in range(4):
            for tg in range(g.TG):
                a = g.acc(tg, ft) + 4*q
                P('v_lshlrev_b32 v%d, 16, v%d' % (a, t+2+2*q)); P('v_and_b32 v%d, 0xffff0000, v%d' % (a+1, t+2+2*q))
                P('v_lshlrev_b32 v%d, 16, v%d' % (a+2, t+3+2*q)); P('v_and_b32 v%d, 0xffff0000, v%d' % (a+3, t+3+2*q))
def epi_h(g, P):
    t = g.TMP; c0 = t + 20; n = 0
    P('v_mov_b32 v%d, s%d' % (c0, G_C0))
    for tg in range(g.TG):
        for ft in range(g.NT):
            A = g.acc(tg, ft)
            for base in range(0, 16, 4):
                xs = [A + base + i for i in range(4)]; ts = [t + 16 + i for i in range(4)]
                for i in (0, 2): P('v_pk_mul_f32 %s, %s, %s' % (vr(ts[i],2), vr(xs[i],2), vr(xs[i],2)))
                for i in range(4): P('v_fma_f32 v%d, v%d, s%d, v%d' % (ts[i], ts[i], G_C1, c0))
                for i in (0, 2): P('v_pk_mul_f32 %s, %s, %s' % (vr(ts[i],2), vr(ts[i],2), vr(xs[i],2)))
                for i in range(4): P('v_exp_f32 v%d, v%d' % (ts[i], ts[i]))
                for i in range(4): P('v_add_f32 v%d, 1.0, v%d' % (ts[i], ts[i]))
                for i in range(4): P('v_rcp_f32 v%d, v%d' % (ts[i], ts[i]))
                for i in (0, 2): P('v_pk_mul_f32 %s, %s, %s' % (vr(xs[i],2), vr(xs[i],2), vr(ts[i],2)))
            for G in range(2):
                d = t + 4*(n % 4); n += 1
                pack8(P, d, A + 8*G)
                off = tg*288*1024 + (2*ft+G)*1024
                P('s_add_u32 s%d, s%d, %d' % (G_T0, G_DST, off & ~4095))
                P('buffer_store_dwordx4 %s, v%d, %s, s%d offen offset:%d%s' % (vr(d,4), g.L16, WSs, G_T0, off & 4095, g.stflag))
def epi_base(g, P):
    for tg in range(g.TG):
        for ft in range(g.NT):
            off = tg*18*4096 + ft*4096
            P('s_add_u32 s%d, s%d, %d' % (G_T0, G_DST, off))
            for q in range(4):
                P('buffer_store_dwordx4 %s, v%d, %s, s%d offen offset:%d%s' % (vr(g.acc(tg, ft) + 4*q, 4), g.L16, WSs, G_T0, q*1024, g.stflag))
```

```python
from asmlib import *
from common import *
from gemm2 import *
import workers as W1
from workers import srd, load_ptrs, std_entry

DIAG = False
S_TT = 43; S_FG = 44; S_SEG = 45; G_TASK = 42
P_WK, P_WV, P_WQ, P_W1, P_B1, P_W2 = 48, 50, 52, 54, 56, 58
gA = Gemm(2, 4, 8192, 'qkv'); gA18 = Gemm(1, 4, 8192, 'qkv18', nslot=18); gA18b = Gemm(2, 4, 8192, 'qkv18b', nslot=18); HALF = True; gH = Gemm(2, 4, 9216, 'h'); gM = Gemm(2, 3, 1152, 'm2')

def seg_of_wave(P):
    P('s_lshl_b32 s%d, s%d, 3' % (S_SEG, S_TT)); P('s_lshl_b32 s%d, s%d, 1' % (G_T0, G_W)); P('s_add_u32 s%d, s%d, s%d' % (S_SEG, S_SEG, G_T0))

def task_kvq(k, pfx, nxt, resident=False, wait_x=None):
    g = (gA18 if HALF else gA18b) if resident else gA
    P = Prog()
    if resident and HALF:
        P('s_lshl_b32 s%d, s%d, 2' % (S_SEG, S_TT)); P('s_add_u32 s%d, s%d, s%d' % (S_SEG, S_SEG, G_W))
    else: seg_of_wave(P)
    g.setup(P)
    P('s_lshr_b32 s46, s%d, 5' % S_FG); P('s_and_b32 s47, s%d, 31' % S_FG)
    P('s_mov_b32 s12, s%d' % P_WK); P('s_mov_b32 s13, s%d' % (P_WK+1))
    P('s_cmp_eq_u32 s46, 1'); P('s_cselect_b32 s12, s%d, s12' % P_WV); P('s_cselect_b32 s13, s%d, s13' % (P_WV+1))
    P('s_cmp_eq_u32 s46, 2'); P('s_cselect_b32 s12, s%d, s12' % P_WQ); P('s_cselect_b32 s13, s%d, s13' % (P_WQ+1))
    P('s_mov_b32 s14, 0x%x' % (576*8192)); P('s_mov_b32 s15, 0x20000')
    P('s_lshl_b32 s%d, s47, 8' % G_WOFF)
    P('s_mul_i32 s%d, s%d, %d' % (G_T0, G_W, 8*8192)); P('s_add_u32 s%d, s%d, s%d' % (G_WOFF, G_WOFF, G_T0))
    P('s_mul_i32 s%d, s%d, 36864' % (G_XOFF, S_SEG)); P('s_add_u32 s%d, s%d, 0x%x' % (G_XOFF, G_XOFF, WS_XNF))
    P('s_mov_b32 s%d, 36864' % G_XGS)
    P('s_lshl_b32 s%d, s%d, 5' % (G_DST, S_SEG)); P('s_add_u32 s%d, s%d, s47' % (G_DST, G_DST))
    P('s_lshl_b32 s%d, s%d, 13' % (G_DST, G_DST)); P('s_lshl_b32 s%d, s46, 24' % G_T0)
    P('s_add_u32 s%d, s%d, s%d' % (G_DST, G_DST, G_T0)); P('s_add_u32 s%d, s%d, 0x%x' % (G_DST, G_DST, WS_KF))
    if DIAG: P('s_memtime s[64:65]'); P('s_memrealtime s[74:75]')
    if resident:
        g.preload_w(P); zero_acc(g, P)
        if wait_x: wait_x(P)
        g.resident_start(P)
    else:
        g.prologue(P); zero_acc(g, P); g.first_reads(P)
    P('s_mov_b32 s%d, 9' % G_CNT)
    if DIAG: P('s_memtime s[66:67]'); P('s_waitcnt lgkmcnt(0)')
    P('s_cmp_eq_u32 s46, 1'); P('s_cbranch_scc1 %s_v' % pfx)
    k.straight(P)
    k.loop(g.body(False, pfx + '_kq_loop'))
    P = Prog()
    if DIAG: P('s_memtime s[68:69]')
    epi_kq(g, P)
    if DIAG:
        P('s_memtime s[70:71]'); P('s_memrealtime s[76:77]'); P('s_waitcnt lgkmcnt(0)')
        P('s_sub_u32 s66, s66, s64'); P('s_sub_u32 s68, s68, s64'); P('s_sub_u32 s70, s70, s64'); P('s_sub_u32 s76, s76, s74')
        P('s_lshl_b32 s72, s%d, 4' % G_TASK); P('s_add_u32 s72, s72, 0x%x' % WS_STAT)
        P('v_mov_b32 v2, s66'); P('v_mov_b32 v3, s68'); P('v_mov_b32 v4, s70'); P('v_mov_b32 v5, s76')
        P('buffer_store_dwordx4 v[2:5], off, %s, s72' % WSs)
    P('s_branch %s' % nxt); P.label(pfx + '_v'); k.straight(P)
    k.loop(g.body(True, pfx + '_v_loop'))
    P = Prog(); epi_v(g, P); P('s_branch %s' % nxt); k.straight(P)

def task_h(k, pfx, nxt):
    g = gH
    P = Prog()
    seg_of_wave(P)
    g.setup(P)
    srd(P, G_WSRD, P_W1, P_W1+1, 576*9216)
    srd(P, G_BSRD, P_B1, P_B1+1, 4608*2)
    P('s_lshl_b32 s%d, s%d, 8' % (G_WOFF, S_FG))
    P('s_mov_b32 s%d, s%d' % (G_T3, G_WOFF))
    P('s_mul_i32 s%d, s%d, %d' % (G_T0, G_W, 8*9216)); P('s_add_u32 s%d, s%d, s%d' % (G_WOFF, G_WOFF, G_T0))
    P('s_mul_i32 s%d, s%d, 36864' % (G_XOFF, S_SEG)); P('s_add_u32 s%d, s%d, 0x%x' % (G_XOFF, G_XOFF, WS_YF))
    P('s_mov_b32 s%d, 36864' % G_XGS)
    P('s_mul_i32 s%d, s%d, %d' % (G_DST, S_SEG, 288*1024)); P('s_lshl_b32 s%d, s%d, 13' % (G_T0, S_FG))
    P('s_add_u32 s%d, s%d, s%d' % (G_DST, G_DST, G_T0)); P('s_add_u32 s%d, s%d, 0x%x' % (G_DST, G_DST, WS_HF))
    g.prologue(P)
    init_bias(g, P)
    g.first_reads_after_bias = True
    P('s_waitcnt vmcnt(0)')
    P('s_barrier'); g.addr_set(P, 0)
    for q in range(3): g.wread(P, 0, q)
    P('s_mov_b32 s%d, 9' % G_CNT)
    k.straight(P)
    k.loop(g.body(False, pfx + '_h_loop'))
    P = Prog(); epi_h(g, P); P('s_branch %s' % nxt); k.straight(P)

def task_m2(k, pfx, nxt):
    g = gM
    P = Prog()
    seg_of_wave(P)
    g.setup(P)
    srd(P, G_WSRD, P_W2, P_W2+1, 4608*1152)
    P('s_mul_i32 s46, s%d, 43' % S_FG); P('s_lshr_b32 s46, s46, 8')
    P('s_mul_i32 s47, s46, 6'); P('s_sub_u32 s47, s%d, s47' % S_FG)
    P('s_mul_i32 s%d, s46, %d' % (G_WOFF, 1152*1152)); P('s_mul_i32 s%d, s47, 192' % G_T0); P('s_add_u32 s%d, s%d, s%d' % (G_WOFF, G_WOFF, G_T0))
    P('s_mul_i32 s%d, s%d, %d' % (G_T0, G_W, 8*1152)); P('s_add_u32 s%d, s%d, s%d' % (G_WOFF, G_WOFF, G_T0))
    P('s_mul_i32 s%d, s%d, %d' % (G_XOFF, S_SEG, 288*1024)); P('s_mul_i32 s%d, s46, %d' % (G_T0, 72*1024))
    P('s_add_u32 s%d, s%d, s%d' % (G_XOFF, G_XOFF, G_T0)); P('s_add_u32 s%d, s%d, 0x%x' % (G_XOFF, G_XOFF, WS_HF))
    P('s_mov_b32 s%d, %d' % (G_XGS, 288*1024))
    P('s_lshl_b32 s%d, s46, 6' % G_DST); P('s_add_u32 s%d, s%d, s%d' % (G_DST, G_DST, S_SEG)); P('s_mul_i32 s%d, s%d, 18' % (G_DST, G_DST))
    P('s_mul_i32 s%d, s47, 3' % G_T0); P('s_add_u32 s%d, s%d, s%d' % (G_DST, G_DST, G_T0)); P('s_lshl_b32 s%d, s%d, 12' % (G_DST, G_DST))
    P('s_add_u32 s%d, s%d, 0x%x' % (G_DST, G_DST, WS_BASE))
    g.prologue(P); zero_acc(g, P); g.first_reads(P)
    P('s_mov_b32 s%d, 18' % G_CNT)
    k.straight(P)
    k.loop(g.body(False, pfx + '_m2_loop'))
    P = Prog(); epi_base(g, P); P('s_branch %s' % nxt); k.straight(P)

def common_entry(P, nwg, end):
    std_entry(P, nwg, end)
    load_ptrs(P, ['Wk', 'Wv', 'Wq', 'w1', 'b1', 'w2'], 48)
    P('s_waitcnt lgkmcnt(0)')
    P('s_mov_b32 s%d, 0xc0135761' % G_C0); P('s_mov_b32 s%d, 0xbdd2d3e7' % G_C1)

def gemma2_kernel(k, end, nwg=256):
    P = Prog(); common_entry(P, nwg, end); P('s_mov_b32 s%d, s2' % G_TASK); k.straight(P)
    P = Prog()
    P.label('L_g2_task')
    P('s_cmp_ge_u32 s%d, %d' % (G_TASK, 256*5)); P('s_cbranch_scc1 %s' % end)
    P('s_and_b32 s46, s%d, 255' % G_TASK); P('s_lshr_b32 s47, s%d, 8' % G_TASK)
    P('s_lshr_b32 s%d, s46, 3' % S_TT); P('s_lshr_b32 s%d, s%d, 3' % (S_FG, S_TT)); P('s_and_b32 s%d, s%d, 7' % (S_TT, S_TT))
    P('s_lshl_b32 s%d, s%d, 3' % (S_FG, S_FG)); P('s_and_b32 s46, s46, 7'); P('s_add_u32 s%d, s%d, s46' % (S_FG, S_FG))
    P('s_lshl_b32 s47, s47, 5'); P('s_add_u32 s%d, s%d, s47' % (S_FG, S_FG))
    P('s_cmp_ge_u32 s%d, 132' % S_FG); P('s_cbranch_scc1 L_g2_next')
    P('s_cmp_ge_u32 s%d, 96' % S_FG); P('s_cbranch_scc1 L_g2_h')
    k.straight(P)
    task_kvq(k, 'L_g2', 'L_g2_next')
    P = Prog(); P.label('L_g2_h'); P('s_sub_u32 s%d, s%d, 96' % (S_FG, S_FG)); k.straight(P)
    task_h(k, 'L_g2', 'L_g2_next')
    P = Prog(); P.label('L_g2_next'); P('s_add_u32 s%d, s%d, %d' % (G_TASK, G_TASK, nwg)); P('s_branch L_g2_task'); k.straight(P)

def m2_kernel(k, end, nwg=192):
    P = Prog(); common_entry(P, nwg, end)
    P('s_and_b32 s%d, s2, 7' % S_TT); P('s_lshr_b32 s%d, s2, 3' % S_FG)
    k.straight(P)
    task_m2(k, 'L_m2', end)
```

```python
import sys
from asmlib import *
from common import *
import chain2 as C
import workers as W1
import workers2 as W2
import gemm2 as G2
from gemm2 import vr, WSs, G_W, G_T0, G_T1, G_T2, G_T3, G_BSRD, G_OSRD, G_DST
from workers import srd
from gen_chain_test import header, kdesc

F_QUEUE = 0; F_LN = 128*1; F_KV = 128*9; F_Q = 128*17; F_H = 128*25; F_M2 = 128*33; F_PROG = 128*41; F_O = 128*73
F_DIAG = 128*140; F_CB = 128*137; F_LD = 128*139; F_ERR = 128*138
F_ZERO = 24576
FL = WS_FLAG
BIGTMO = 30000
S_ABORT = 3
S_X = 4; S_TK = 5; S_G = 6; S_RANK = 7
S_DBG = 42
OPT = dict(force_abnormal=0)
NPF = 3
_uid = [0]
def uid(p):
    _uid[0] += 1; return '%s_%d' % (p, _uid[0])

def poll_ge(P, soff, target, vtmp=2, stmp=G_T0, scnt=G_T1, tgt_is_sgpr=False, x4min=False, sleep=4):
    L = uid('L_pg'); D = L + '_d'
    P('s_mov_b32 s%d, s%d' % (scnt, S_ABORT))
    P.label(L)
    P('s_mov_b64 exec, 1')
    if x4min:
        P('buffer_load_dwordx4 %s, off, %s, s%d sc1' % (vr(vtmp,4), WSs, soff))
        P('s_waitcnt vmcnt(0)')
        P('v_min_u32 v%d, v%d, v%d' % (vtmp, vtmp, vtmp+1)); P('v_min_u32 v%d, v%d, v%d' % (vtmp+2, vtmp+2, vtmp+3)); P('v_min_u32 v%d, v%d, v%d' % (vtmp, vtmp, vtmp+2))
    else:
        P('buffer_load_dword v%d, off, %s, s%d sc1' % (vtmp, WSs, soff))
        P('s_waitcnt vmcnt(0)')
    P('s_nop 0')
    P('v_readfirstlane_b32 s%d, v%d' % (stmp, vtmp))
    P('s_mov_b64 exec, -1')
    P('s_cmp_ge_u32 s%d, %s' % (stmp, ('s%d' % target) if tgt_is_sgpr else str(target)))
    P('s_cbranch_scc1 %s' % D)
    if sleep: P('s_sleep %d' % sleep)
    P('s_sub_u32 s%d, s%d, 1' % (scnt, scnt)); P('s_cmp_lg_u32 s%d, 0' % scnt); P('s_cbranch_scc1 %s' % L)
    P('s_mov_b32 s%d, 1' % S_ABORT)
    P.label(D)

def wg_wait(P, soff, target, vtmp=2, sleep=16):
    L = uid('L_wgw')
    P('s_cmp_eq_u32 s%d, 0' % G_W); P('s_cbranch_scc0 %s' % L)
    poll_ge(P, soff, target, vtmp=vtmp, sleep=sleep)
    P.label(L)
    P('s_barrier')

def signal(P, soff, vtmp=2, val='1'):
    L = uid('L_sig')
    P('s_waitcnt vmcnt(0)'); P('s_barrier')
    P('s_cmp_eq_u32 s%d, 0' % G_W); P('s_cbranch_scc0 %s' % L)
    P('v_mov_b32 v%d, %s' % (vtmp, val)); P('s_mov_b64 exec, 1')
    P('buffer_atomic_add v%d, off, %s, s%d' % (vtmp, WSs, soff))
    P('s_mov_b64 exec, -1')
    P.label(L)

D_CNT0 = 0; D_CNTX = 128; D_ZERO = 192
def read_counts(P, v):
    P('v_and_b32 v%d, 7, v0' % (v+1)); P('v_lshlrev_b32 v%d, 2, v%d' % (v+1, v+1)); P('v_add_u32 v%d, %d, v%d' % (v+1, D_CNTX, v+1))
    P('v_and_b32 v%d, 7, v0' % v); P('v_cmp_eq_u32 vcc, 0, v%d' % v); P('v_cndmask_b32 v%d, v%d, 0, vcc' % (v+1, v+1))
    P('global_load_dword v%d, v%d, s[%d:%d] sc1' % (v, v+1, S_DBG, S_DBG+1)); P('s_waitcnt vmcnt(0)')

def wait_zeroed(P):
    L = uid('L_wz')
    P('s_cmp_eq_u32 s%d, 0' % G_W); P('s_cbranch_scc0 %s_d' % L)
    P('s_mov_b32 s13, s%d' % S_ABORT)
    P.label(L)
    P('v_mov_b32 v2, %d' % D_ZERO); P('global_load_dword v3, v2, s[%d:%d] sc1' % (S_DBG, S_DBG+1)); P('s_waitcnt vmcnt(0)')
    P('v_readfirstlane_b32 s12, v3'); P('s_cmp_lg_u32 s12, 0'); P('s_cbranch_scc1 %s_d' % L)
    P('s_sleep 8'); P('s_sub_u32 s13, s13, 1'); P('s_cmp_lg_u32 s13, 0'); P('s_cbranch_scc1 %s' % L)
    P.label(L + '_d')
    P('s_barrier')

def bootstrap(k):
    P = Prog()
    P('s_cmp_ge_u32 s2, 256'); P('s_cbranch_scc1 L_end')
    P('s_mov_b32 s%d, %d' % (S_ABORT, BIGTMO))
    if OPT.get('diag'): P('s_memrealtime s[90:91]')
    P('s_load_dwordx2 s[%d:%d], s[0:1], %d' % (S_DBG, S_DBG+1, KA['dbg']))
    P('s_load_dwordx2 s[8:9], s[0:1], %d' % KA['ws'])
    P('s_getreg_b32 s%d, hwreg(HW_REG_XCC_ID, 0, 4)' % S_X)
    P('v_lshrrev_b32 v1, 6, v0'); P('v_and_b32 v0, 63, v0'); P('s_nop 0')
    P('v_readfirstlane_b32 s%d, v1' % G_W)
    P('s_and_b32 s%d, s%d, %d' % (S_X, S_X, 6 if OPT['force_abnormal'] == 3 else 7))
    P('s_waitcnt lgkmcnt(0)')
    P('s_mov_b32 s10, 0x%x' % WS_SIZE); P('s_mov_b32 s11, 0x20000')
    P('s_cmp_eq_u32 s%d, 0' % G_W); P('s_cbranch_scc0 L_bs1')
    P('s_lshl_b32 s12, s%d, 2' % S_X); P('s_add_u32 s12, s12, %d' % D_CNTX); P('s_cmp_eq_u32 s%d, 0' % S_X); P('s_cselect_b32 s12, %d, s12' % D_CNT0)
    P('v_mov_b32 v2, s12'); P('v_mov_b32 v3, 1'); P('s_mov_b64 exec, 1')
    P('global_atomic_add v4, v2, v3, s[%d:%d] sc0' % (S_DBG, S_DBG+1))
    P('s_waitcnt vmcnt(0)'); P('v_mov_b32 v2, 0'); P('ds_write_b32 v2, v4'); P('s_waitcnt lgkmcnt(0)')
    P('s_mov_b64 exec, -1')
    P.label('L_bs1')
    P('s_cmp_eq_u32 s2, 0'); P('s_cbranch_scc0 L_bs2')
    P('s_lshl_b32 s12, s%d, 6' % G_W); P('v_add_u32 v2, s12, v0'); P('v_lshlrev_b32 v2, 4, v2')
    P('v_mov_b64 v[4:5], 0'); P('v_mov_b64 v[6:7], 0')
    for i in range(F_ZERO // 4096):
        P('s_mov_b32 s12, 0x%x' % (FL + i*4096)); P('buffer_store_dwordx4 v[4:7], v2, %s, s12 offen sc1' % WSs)
    P('s_waitcnt vmcnt(0)'); P('s_barrier')
    P('s_cmp_eq_u32 s%d, 0' % G_W); P('s_cbranch_scc0 L_bs2')
    P('v_mov_b32 v2, %d' % D_ZERO); P('v_mov_b32 v3, 1'); P('s_mov_b64 exec, 1'); P('global_store_dword v2, v3, s[%d:%d] sc1' % (S_DBG, S_DBG+1)); P('s_mov_b64 exec, -1')
    P.label('L_bs2')
    P('s_barrier'); P('v_mov_b32 v2, 0'); P('ds_read_b32 v4, v2'); P('s_waitcnt lgkmcnt(0)')
    P('v_readfirstlane_b32 s%d, v4' % S_TK)
    P('s_barrier')
    P('s_cmp_lt_u32 s%d, 32' % S_TK); P('s_cbranch_scc1 L_role')
    P('s_mov_b32 s13, s%d' % S_ABORT)
    P.label('L_ov_poll')
    read_counts(P, 4)
    for x in range(8): P('v_readlane_b32 s%d, v4, %d' % (20+x, x))
    P('s_mov_b32 s12, 0')
    for x in range(8): P('s_add_u32 s12, s12, s%d' % (20+x))
    P('s_cmp_ge_u32 s12, 256'); P('s_cbranch_scc1 L_ov_ok')
    P('s_sleep 8'); P('s_sub_u32 s13, s13, 1'); P('s_cmp_lg_u32 s13, 0'); P('s_cbranch_scc1 L_ov_poll')
    P.label('L_ov_ok')
    P('s_sub_u32 s12, s%d, 32' % S_TK)
    for x in range(8):
        P('s_sub_i32 s14, s%d, 32' % (20+x)); P('s_max_i32 s14, s14, 0'); P('s_cmp_gt_u32 s%d, %d' % (S_X, x)); P('s_cselect_b32 s14, s14, 0'); P('s_add_u32 s12, s12, s14')
    P('s_mov_b32 s15, 0')
    for x in range(8):
        P('s_sub_i32 s14, 32, s%d' % (20+x)); P('s_max_i32 s14, s14, 0')
        P('s_cmp_eq_u32 s15, 0'); P('s_cselect_b32 s16, 1, 0'); P('s_cmp_lt_u32 s12, s14'); P('s_cselect_b32 s16, s16, 0')
        P('s_cmp_eq_u32 s16, 1'); P('s_cbranch_scc0 L_ov_n%d' % x)
        P('s_mov_b32 s%d, %d' % (S_X, x)); P('s_add_u32 s%d, s%d, s12' % (S_TK, 20+x)); P('s_mov_b32 s15, 1')
        P.label('L_ov_n%d' % x)
        P('s_cmp_eq_u32 s15, 0'); P('s_cselect_b32 s14, s14, 0'); P('s_sub_u32 s12, s12, s14')
    P.label('L_role')
    if OPT['force_abnormal'] == 2:
        P('s_and_b32 s12, s%d, 1' % S_TK); P('s_add_u32 s%d, s%d, s12' % (S_X, S_X)); P('s_and_b32 s%d, s%d, 7' % (S_X, S_X))
    P('s_cmp_eq_u32 s%d, 0' % S_X); P('s_cbranch_scc0 L_wk')
    P('s_mov_b32 s%d, s%d' % (C.S_H, S_TK))
    P('s_branch L_chain')
    P.label('L_wk')
    P('s_sub_u32 s%d, s%d, 1' % (S_RANK, S_X)); P('s_lshl_b32 s%d, s%d, 5' % (S_RANK, S_RANK)); P('s_add_u32 s%d, s%d, s%d' % (S_RANK, S_RANK, S_TK))
    P('s_branch L_worker')
    k.straight(P); k.reset_state()

def chain_ptrs(P):
    for i, n in enumerate(('Wq', 'Wk', 'Wv', 'Wo', 'mem0')): P('s_load_dwordx2 s[%d:%d], s[0:1], %d' % (C.S_PTR+2*i, C.S_PTR+2*i+1, KA[n]))
    P('s_waitcnt lgkmcnt(0)')

def chain_common(k):
    P = Prog(); P.label('L_chain'); chain_ptrs(P)
    if OPT.get('diag'): P('s_memrealtime s[94:95]'); P('s_waitcnt lgkmcnt(0)')
    k.straight(P)
    C.load_weights(k, hook=C.early_init(' sc1', FL + F_CB, zcheck=(S_DBG, D_ZERO, D_CNT0, 75)))
    P = Prog()
    if OPT.get('diag'):
        P('s_memrealtime s[92:93]'); P('s_waitcnt lgkmcnt(0)')
        if OPT.get('loaderonly'):
            P('s_sub_u32 s92, s92, s90'); P('s_sub_u32 s94, s94, s90'); P('v_mov_b32 v20, s92'); P('v_mov_b32 v21, s94'); P('v_mov_b32 v22, 0'); P('v_mov_b32 v23, 0')
            P('s_cmp_eq_u32 s17, 0'); P('s_cbranch_scc0 L_end')
            P('s_mov_b32 s88, 0x%x' % (FL + F_DIAG + 16)); P('buffer_store_dwordx4 v[20:23], off, %s, s88 sc1' % C.WS); P('s_waitcnt vmcnt(0)'); P('s_branch L_end')
    P('s_cmp_ge_u32 s75, 32'); P('s_cselect_b32 s13, 1, 0')
    if OPT['force_abnormal']: P('s_mov_b32 s13, 0')
    P('s_cmp_eq_u32 s13, 1'); P('s_cbranch_scc0 L_chain_slow')
    k.straight(P); k.reset_state()

def chain_role(k, fast):
    st = '' if fast else ' sc1'
    sfx = 'f' if fast else 's'
    P = Prog(); P.label('L_chain_fast' if fast else 'L_chain_slow'); k.straight(P)
    P = Prog()
    Lx = uid('L_ld')
    P('s_cmp_eq_u32 s%d, 0' % C.S_W); P('s_cbranch_scc0 %s' % Lx)
    P('s_mov_b32 s%d, 0x%x' % (C.S_T1, FL + F_LD)); P('v_mov_b32 v61, 1'); P('s_mov_b64 exec, 1')
    P('buffer_atomic_add v61, off, %s, s%d' % (C.WS, C.S_T1)); P('s_mov_b64 exec, -1')
    P('s_mov_b32 s%d, 0x%x' % (C.S_T1, FL + F_CB)); P('buffer_load_dword v78, off, %s, s%d sc1' % (C.WS, C.S_T1))
    P('s_mov_b32 s%d, 0x%x' % (C.S_T1, FL + F_KV)); P('buffer_load_dword v79, off, %s, s%d sc1' % (C.WS, C.S_T1))
    P.label(Lx)
    k.straight(P)
    C.lane_setup(k)
    P = Prog()
    P('v_mov_b32 v%d, -1' % C.V_NEG1)
    P('s_lshl_b32 s%d, s%d, 7' % (C.S_PROG, C.S_H))
    P('s_add_u32 s%d, s%d, 0x%x' % (C.S_PROG, C.S_PROG, FL + F_PROG))
    P('s_cmp_eq_u32 s%d, 0' % C.S_W); P('s_cselect_b32 s%d, s%d, 0x40000000' % (C.S_PROGW, C.S_PROG))
    L = 'L_cb_%s' % sfx
    P('s_cmp_eq_u32 s%d, 0' % C.S_W); P('s_cbranch_scc0 %s_wait' % L)
    P('s_waitcnt vmcnt(0)')
    P('v_readfirstlane_b32 s%d, v78' % C.S_T0); P('v_readfirstlane_b32 s%d, v79' % C.S_T1)
    P('s_cmp_ge_u32 s%d, 32' % C.S_T0); P('s_cselect_b32 s%d, 1, 0' % C.S_T0); P('s_cmp_ge_u32 s%d, 128' % C.S_T1); P('s_cselect_b32 s%d, s%d, 0' % (C.S_T0, C.S_T0))
    P('s_cmp_eq_u32 s%d, 1' % C.S_T0); P('s_cbranch_scc1 %s_wait' % L)
    P('s_mov_b32 s%d, 0x%x' % (C.S_T2, FL + F_CB))
    poll_ge(P, C.S_T2, 32, vtmp=22, stmp=C.S_T0, scnt=C.S_TMO, sleep=2)
    P('s_mov_b32 s%d, 0x%x' % (C.S_T2, FL + F_KV))
    poll_ge(P, C.S_T2, 128, vtmp=22, stmp=C.S_T0, scnt=C.S_TMO, sleep=2)
    P.label(L + '_wait')
    C.pre_step(P)
    P('s_waitcnt vmcnt(0) lgkmcnt(0)'); P('s_barrier')
    if OPT.get('diag'): P('s_memtime s[94:95]'); P('s_memrealtime s[96:97]'); P('s_waitcnt lgkmcnt(0)')
    k.straight(P)
    def kvwait(P):
        Lx = uid('L_kvw')
        P('s_and_b32 s%d, s%d, 7' % (C.S_T0, C.S_STEP)); P('s_or_b32 s%d, s%d, s%d' % (C.S_T0, C.S_T0, C.S_W))
        P('s_cmp_eq_u32 s%d, 0' % C.S_T0); P('s_cbranch_scc0 %s' % Lx)
        P('s_lshl_b32 s%d, s%d, 4' % (C.S_T3, C.S_STEP)); P('s_add_u32 s%d, s%d, 0x%x' % (C.S_T3, C.S_T3, FL + F_KV))
        poll_ge(P, C.S_T3, 128, vtmp=22, stmp=C.S_T0, scnt=C.S_TMO, sleep=0)
        P.label(Lx)
    def publish(P):
        P('s_sub_i32 s%d, s%d, 1' % (C.S_T0, C.S_STEP)); P('s_max_i32 s%d, s%d, 0' % (C.S_T0, C.S_T0))
        P('v_mov_b32 v%d, s%d' % (C.V_VMH, C.S_T0))
        P('s_mov_b64 exec, 1')
        P('buffer_store_dword v%d, off, %s, s%d sc1' % (C.V_VMH, C.WS, C.S_PROGW))
        P('s_mov_b64 exec, -1')
    body = C.main_loop(k, st=st, kvwait=kvwait, publish=publish)
    txt = [i.text for i in body.items]
    B = Prog()
    for t in txt:
        t2 = t
        for lab in ('L_chain_loop', 'L_red', 'L_rdel', 'L_nored', 'L_gat', 'L_gdel', 'L_chain_last', 'L_chain_done', 'L_nopf'):
            t2 = t2.replace(lab, lab + sfx) if lab in t2 else t2
        B(t2)
    k.loop(B)
    P = Prog()
    P.label('L_chain_done' + sfx)
    P('s_waitcnt vmcnt(0)'); P('s_barrier')
    P('s_cmp_eq_u32 s%d, 0' % C.S_W); P('s_cbranch_scc0 L_cdn_%s' % sfx)
    P('v_mov_b32 v20, 64'); P('s_mov_b64 exec, 1'); P('buffer_store_dword v20, off, %s, s%d sc1' % (C.WS, C.S_PROG)); P('s_mov_b64 exec, -1')
    P.label('L_cdn_%s' % sfx)
    if OPT.get('diag'):
        P('s_memtime s[98:99]'); P('s_memrealtime s[40:41]'); P('s_waitcnt lgkmcnt(0)')
        P('s_sub_u32 s98, s98, s94'); P('s_sub_u32 s40, s40, s90'); P('s_sub_u32 s96, s96, s90'); P('s_sub_u32 s92, s92, s90')
        P('v_mov_b32 v20, s92'); P('v_mov_b32 v21, s96'); P('v_mov_b32 v22, s40'); P('v_mov_b32 v23, s98'); P('s_mov_b32 s88, 0x%x' % (FL + F_DIAG + 16))
        P('buffer_store_dwordx4 v[20:23], off, %s, s88 sc1' % C.WS)
    P('s_cmp_eq_u32 s%d, 0' % C.S_ERR); P('s_cbranch_scc1 L_cd_%s' % sfx)
    P('s_mov_b32 s%d, 0x%x' % (C.S_T2, FL + F_ERR)); P('v_mov_b32 v21, s%d' % C.S_ERR); P('buffer_atomic_or v21, off, %s, s%d' % (C.WS, C.S_T2))
    P.label('L_cd_%s' % sfx)
    P('s_waitcnt vmcnt(0)')
    P('s_branch L_end')
    k.straight(P); k.reset_state()

def worker_dispatch(k):
    P = Prog()
    P.label('L_worker')
    if OPT.get('loaderonly') == 1: P('s_branch L_end')
    end_stamp(P, 51)
    W1.load_ptrs(P, ['Wk', 'Wv', 'Wq', 'w1', 'b1', 'w2'], 48)
    W1.load_ptrs(P, ['x', 'b2', 'out', 'Wo'], 64)
    P('s_waitcnt lgkmcnt(0)')
    P('s_mov_b32 s%d, 0xc0135761' % G2.G_C0); P('s_mov_b32 s%d, 0xbdd2d3e7' % G2.G_C1)
    P('s_sub_u32 s46, s%d, 64' % S_RANK); P('s_cmp_lt_u32 s46, 128'); P('s_cbranch_scc0 L_noln')
    srd(P, G_BSRD, 64, 65, 2048*1152)
    P('s_lshl_b32 s47, s46, 4'); P('s_lshl_b32 s45, s%d, 2' % G_W); P('s_add_u32 s47, s47, s45')
    W1.ln_rows2(P, 47, ' sc1')
    wait_zeroed(P)
    P('s_lshr_b32 s46, s46, 4'); P('s_lshl_b32 s46, s46, 7'); P('s_add_u32 s46, s46, 0x%x' % (FL + F_LN))
    signal(P, 46)
    end_stamp(P, 52)
    P('s_branch L_roles')
    P.label('L_noln')
    wait_zeroed(P)
    P.label('L_roles')
    if OPT.get('loaderonly') == 2: P('s_branch L_end')
    P('s_cmp_lt_u32 s%d, 18' % S_RANK); P('s_cbranch_scc1 L_w6a')
    P('s_sub_u32 s46, s%d, 32' % S_RANK); P('s_cmp_lt_u32 s46, 18'); P('s_cbranch_scc1 L_w6b')
    P('s_sub_u32 s46, s%d, 192' % S_RANK); P('s_cmp_lt_u32 s46, 18'); P('s_cbranch_scc1 L_w6c')
    P('s_sub_u32 s46, s%d, 64' % S_RANK); P('s_cmp_lt_u32 s46, 16'); P('s_cbranch_scc1 L_w5')
    P('s_branch L_gemm')
    k.straight(P); k.reset_state()

def gemm_role(k):
    QI = 60; QN = 61
    P = Prog()
    P.label('L_gemm')
    def pull(dst_v):
        P('s_mov_b32 s62, 0x%x' % (FL + F_QUEUE))
        P('v_mov_b32 v%d, 1' % dst_v); P('s_mov_b64 exec, 1')
        P('buffer_atomic_add v%d, off, %s, s62 sc0' % (dst_v, WSs))
        P('s_mov_b64 exec, -1')
    P('s_mov_b32 s%d, s%d' % (QI, S_RANK))
    P('s_cmp_ge_u32 s%d, 80' % S_RANK); P('s_cselect_b32 s46, 52, 0'); P('s_cmp_ge_u32 s%d, 210' % S_RANK); P('s_cselect_b32 s46, 70, s46')
    P('s_cmp_lt_u32 s%d, 64' % S_RANK); P('s_cselect_b32 s47, 36, s46'); P('s_cmp_lt_u32 s%d, 32' % S_RANK); P('s_cselect_b32 s47, 18, s47')
    P('s_sub_u32 s%d, s%d, s47' % (QI, QI))
    if OPT.get('first18', 1):
        if W2.HALF:
            P('s_cmp_lt_u32 s%d, 128' % QI); P('s_cbranch_scc1 L_gm_first')
            P('s_sub_u32 s%d, s%d, 64' % (QI, QI))
        else:
            P('s_cmp_lt_u32 s%d, 64' % QI); P('s_cbranch_scc1 L_gm_first')
    if OPT.get('hold', 1):
        P('s_cmp_lt_u32 s%d, 64' % QI); P('s_cbranch_scc1 L_gm_decode')
        P('s_mov_b32 s46, 0x%x' % (FL + F_LD)); wg_wait(P, 46, OPT.get('holdn', 16), sleep=48)
    P('s_branch L_gm_decode')
    P.label('L_gm_next')
    P('s_waitcnt vmcnt(0) lgkmcnt(0)'); P('s_barrier')
    P('s_cmp_eq_u32 s%d, 0' % G_W); P('s_cbranch_scc0 L_gm_b')
    pull(2)
    P('s_waitcnt vmcnt(0)'); P('v_mov_b32 v3, 0x%x' % 65536); P('s_mov_b64 exec, 1'); P('ds_write_b32 v3, v2'); P('s_waitcnt lgkmcnt(0)'); P('s_mov_b64 exec, -1')
    P.label('L_gm_b')
    P('s_barrier'); P('v_mov_b32 v3, 0x%x' % 65536); P('ds_read_b32 v2, v3'); P('s_waitcnt lgkmcnt(0)')
    P('v_readfirstlane_b32 s%d, v2' % QI)
    P('s_add_u32 s%d, s%d, %d' % (QI, QI, 154 - (64 if (W2.HALF and OPT.get('first18', 1)) else 0)))
    P.label('L_gm_decode')
    P('s_mov_b32 s61, 1')
    TT, FG = W2.S_TT, W2.S_FG
    P('s_cmp_ge_u32 s%d, %d' % (QI, 264 + 6*156 + 48)); P('s_cbranch_scc1 L_end_drain')
    P('s_cmp_lt_u32 s%d, 264' % QI); P('s_cbranch_scc0 L_gm_d2')
    P('s_cmp_ge_u32 s%d, 132' % QI); P('s_cselect_b32 s%d, 1, 0' % TT); P('s_mul_i32 s46, s%d, 132' % TT); P('s_sub_u32 s%d, s%d, s46' % (FG, QI))
    P('s_branch L_gm_kvqh')
    P.label('L_gm_d2')
    P('s_sub_u32 s46, s%d, 264' % QI)
    P('s_cmp_ge_u32 s46, %d' % (6*156)); P('s_cbranch_scc1 L_gm_d3')
    P('s_mul_i32 s47, s46, 26887'); P('s_lshr_b32 s47, s47, 22')
    P('s_mul_i32 s45, s47, 156'); P('s_sub_u32 s45, s46, s45')
    P('s_cmp_lt_u32 s45, 24'); P('s_cbranch_scc0 L_gm_d2b')
    P('s_mov_b32 s%d, s47' % TT); P('s_mov_b32 s%d, s45' % FG); P('s_branch L_gm_m2')
    P.label('L_gm_d2b')
    P('s_add_u32 s%d, s47, 2' % TT); P('s_sub_u32 s%d, s45, 24' % FG); P('s_branch L_gm_kvqh')
    P.label('L_gm_d3')
    P('s_sub_u32 s46, s46, %d' % (6*156)); P('s_cmp_ge_u32 s46, 24'); P('s_cselect_b32 s47, 1, 0'); P('s_add_u32 s%d, s47, 6' % TT)
    P('s_mul_i32 s47, s47, 24'); P('s_sub_u32 s%d, s46, s47' % FG)
    P.label('L_gm_m2')
    P('s_lshl_b32 s63, s%d, 7' % TT); P('s_add_u32 s46, s63, 0x%x' % (FL + F_H))
    wg_wait(P, 46, 36)
    P('s_add_u32 s63, s63, 0x%x' % (FL + F_M2))
    P('s_branch L_gm_run_m2')
    P.label('L_gm_kvqh')
    P('s_lshl_b32 s63, s%d, 7' % TT); P('s_add_u32 s46, s63, 0x%x' % (FL + F_LN))
    wg_wait(P, 46, 16, sleep=8)
    P('s_cmp_ge_u32 s%d, 96' % FG); P('s_cbranch_scc1 L_gm_h')
    P('s_cmp_ge_u32 s%d, 64' % FG); P('s_cselect_b32 s46, %d, %d' % (F_Q, F_Q)) if False else None
    P('s_mov_b32 s46, 0x%x' % (FL + F_KV)); P('s_cmp_ge_u32 s%d, 64' % FG); P('s_cselect_b32 s46, 0x%x, s46' % (FL + F_Q)); P('s_cselect_b32 s61, 1, 2')
    P('s_add_u32 s63, s63, s46')
    if OPT.get('diag'):
        P('s_cmp_lt_u32 s%d, 64' % QI); P('s_cbranch_scc0 L_dg1'); end_stamp(P, 53); P.label('L_dg1')
    k.straight(P)
    W2.task_kvq(k, 'L_gk', 'L_gm_sig')
    P = Prog(); P.label('L_gm_h'); P('s_sub_u32 s%d, s%d, 96' % (FG, FG)); P('s_add_u32 s63, s63, 0x%x' % (FL + F_H)); k.straight(P)
    W2.task_h(k, 'L_gh', 'L_gm_sig')
    P = Prog(); P.label('L_gm_run_m2'); k.straight(P)
    W2.task_m2(k, 'L_g2m', 'L_gm_sig')
    if OPT.get('first18', 1):
        P = Prog(); P.label('L_gm_first')
        P('s_lshr_b32 s%d, s%d, 6' % (TT, QI)); P('s_and_b32 s%d, s%d, 63' % (FG, QI)); P('s_mov_b32 s63, 0x%x' % (FL + F_KV)); P('s_mov_b32 s61, %d' % (1 if W2.HALF else 2))
        P('s_mov_b32 s%d, 0' % QI)
        k.straight(P)
        def wx(P):
            P('s_mov_b32 s62, 0x%x' % (FL + F_LN)); wg_wait(P, 62, 16, sleep=4)
        W2.task_kvq(k, 'L_gf', 'L_gm_sig', resident=True, wait_x=wx)
    P = Prog(); P.label('L_gm_sig'); signal(P, 63, val='s61')
    if OPT.get('diag'):
        P('s_cmp_lt_u32 s%d, 64' % QI); P('s_cbranch_scc0 L_dg2'); end_stamp(P, 54); P.label('L_dg2')
    P('s_branch L_gm_next')
    P.label('L_end_drain'); P('s_waitcnt vmcnt(0)'); end_stamp(P, 50); P('s_branch L_end')
    k.straight(P); k.reset_state()

def w5_role(k):
    P = Prog()
    P.label('L_w5')
    P('s_lshl_b32 s47, s46, 2'); P('s_add_u32 s47, s47, s%d' % G_W); P('s_and_b32 s%d, s47, 31' % W1.A_H); P('s_lshr_b32 s%d, s46, 3' % W1.A_S)
    W1.attn_setup(P)
    P('s_lshl_b32 s80, s%d, 7' % W1.A_H); P('s_add_u32 s80, s80, 0x%x' % (FL + F_PROG))
    k.straight(P)
    P = Prog()
    P.label('L_w5_loop')
    P('s_and_b32 s81, s%d, 6' % W1.A_S); P('s_cmp_eq_u32 s81, 0'); P('s_cbranch_scc0 L_w5_go')
    P('s_lshr_b32 s81, s%d, 3' % W1.A_S); P('s_lshl_b32 s81, s81, 7')
    P('s_add_u32 s82, s81, 0x%x' % (FL + F_KV)); poll_ge(P, 82, 128, vtmp=8, sleep=32)
    P('s_add_u32 s82, s81, 0x%x' % (FL + F_Q)); poll_ge(P, 82, 32, vtmp=8, sleep=32)
    P.label('L_w5_go')
    def wait_mem(P):
        P('s_add_u32 s83, s%d, 1' % W1.A_S)
        poll_ge(P, 80, 83, vtmp=8, tgt_is_sgpr=True, sleep=OPT.get('w5sleep', 4))
    W1.attn_task(P, stflag=' sc1', wait_mem=wait_mem)
    P('s_waitcnt vmcnt(0)')
    P('s_lshl_b32 s81, s%d, 7' % W1.A_S); P('s_add_u32 s81, s81, 0x%x' % (FL + F_O))
    P('v_mov_b32 v8, 1'); P('s_mov_b64 exec, 1'); P('buffer_atomic_add v8, off, %s, s81' % WSs); P('s_mov_b64 exec, -1')
    P('s_add_u32 s%d, s%d, 2' % (W1.A_S, W1.A_S)); P('s_cmp_lt_u32 s%d, 64' % W1.A_S); P('s_cbranch_scc1 L_w5_loop')
    k.loop(P)
    P = Prog(); P('s_waitcnt vmcnt(0)'); end_stamp(P, 49); P('s_branch L_end'); k.straight(P); k.reset_state()

def w6_role(k):
    S_CT, S_SEG, S_PAR = 44, 45, 46
    P = Prog()
    P.label('L_w6a'); P('s_mov_b32 s%d, s%d' % (S_CT, S_RANK)); P('s_mov_b32 s%d, 0' % S_SEG); P('s_branch L_w6')
    P.label('L_w6b'); P('s_mov_b32 s%d, s46' % S_CT); P('s_mov_b32 s%d, 1' % S_SEG); P('s_branch L_w6')
    P.label('L_w6c'); P('s_mov_b32 s%d, s46' % S_CT); P('s_mov_b32 s%d, 2' % S_SEG)
    P.label('L_w6')
    if OPT.get('hold', 1):
        P('s_mov_b32 s47, 0x%x' % (FL + F_LD)); wg_wait(P, 47, OPT.get('holdn', 16), sleep=48)
    srd(P, 12, 70, 71, 4096*1152); srd(P, G_BSRD, 64, 65, 2048*1152); srd(P, G_OSRD, 68, 69, 2048*1152); srd(P, 76, 66, 67, 1152)
    L16, TRA, DMO = 1, 2, 3
    P('v_lshlrev_b32 v%d, 4, v0' % L16)
    P('v_lshrrev_b32 v4, 2, v0'); P('s_movk_i32 s%d, 1152' % G_T0); P('v_mul_lo_u32 v4, v4, s%d' % G_T0); P('v_and_b32 v5, 3, v0'); P('v_lshl_add_u32 v%d, v5, 4, v4' % DMO)
    P('v_lshrrev_b32 v4, 5, v0'); P('v_bfe_u32 v5, v0, 2, 2'); P('v_lshl_add_u32 v4, v4, 2, v5'); P('v_lshlrev_b32 v4, 6, v4')
    P('v_bfe_u32 v5, v0, 4, 1'); P('v_lshl_add_u32 v4, v5, 5, v4'); P('v_and_b32 v5, 3, v0'); P('v_lshl_add_u32 v4, v5, 3, v4')
    P('s_lshl_b32 s47, s%d, 15' % G_W); P('v_add_u32 v%d, s47, v4' % TRA)
    P('s_mul_i32 s48, s%d, %d' % (G_W, 1024*1152)); P('s_lshl_b32 s49, s%d, 6' % S_CT); P('s_add_u32 s48, s48, s49')
    for rnd in range(2):
        P('s_mov_b32 m0, s47')
        for j in range(32):
            P('buffer_load_dwordx4 v%d, s[12:15], s48 offen lds' % DMO)
            P('s_add_u32 m0, m0, 1024'); P('s_add_u32 s48, s48, %d' % (16*1152))
        P('s_waitcnt vmcnt(0)')
        for f in range(32):
            a = 4*(32*rnd + f)
            P('ds_read_b64_tr_b16 a[%d:%d], v%d offset:%d' % (a, a+1, TRA, f*1024)); P('ds_read_b64_tr_b16 a[%d:%d], v%d offset:%d' % (a+2, a+3, TRA, f*1024 + 512))
        P('s_waitcnt lgkmcnt(0)')
    P('v_and_b32 v4, 31, v0'); P('s_movk_i32 s%d, 1152' % G_T0); P('v_mul_lo_u32 v4, v4, s%d' % G_T0)
    P('v_lshrrev_b32 v5, 5, v0'); P('v_lshlrev_b32 v5, 4, v5'); P('v_add_u32 v4, v4, v5')
    P('s_barrier')
    k.straight(P)
    XA, XB, XC, ACC, T = 16, 80, 144, 208, 16
    P = Prog()
    P.label('L_w6_loop')
    P('s_lshr_b32 s50, s%d, 3' % S_SEG); P('s_lshl_b32 s50, s50, 7'); P('s_add_u32 s50, s50, 0x%x' % (FL + F_M2))
    wg_wait(P, 50, 24, vtmp=8, sleep=32)
    P('s_lshl_b32 s51, s%d, 6' % G_W); P('s_add_u32 s51, s51, s%d' % S_SEG); P('s_mul_i32 s51, s51, 18'); P('s_add_u32 s51, s51, s%d' % S_CT)
    P('s_lshl_b32 s51, s51, 12'); P('s_add_u32 s51, s51, 0x%x' % WS_BASE)
    for q in range(4): P('buffer_load_dwordx4 %s, v%d, %s, s51 offen offset:%d' % (vr(ACC+4*q,4), L16, WSs, q*1024))
    P('s_lshl_b32 s50, s%d, 7' % S_SEG); P('s_add_u32 s50, s50, 0x%x' % (FL + F_O))
    wg_wait(P, 50, 32, vtmp=8, sleep=4)
    if OPT.get('diag'):
        Lq = uid('L_w6d'); P('s_cmp_eq_u32 s%d, 63' % S_SEG); P('s_cbranch_scc0 %s' % Lq); end_stamp(P, 55, force=True); P.label(Lq)
    P('s_lshl_b32 s52, s%d, 18' % S_SEG); P('s_lshl_b32 s53, s%d, 16' % G_W); P('s_add_u32 s52, s52, s53'); P('s_add_u32 s52, s52, 0x%x' % WS_OF)
    def xbatch(reg, b):
        for i in range(16):
            if i % 4 == 0: P('s_add_u32 s53, s52, %d' % ((16*b + i)*1024))
            P('buffer_load_dwordx4 %s, v%d, %s, s53 offen offset:%d' % (vr(reg+4*i,4), L16, WSs, (i % 4)*1024))
    def mbatch(reg, b):
        for i in range(16):
            f = 16*b + i
            P('v_mfma_f32_32x32x16_bf16 %s, a[%d:%d], %s, %s' % (vr(ACC,16), 4*f, 4*f+3, vr(reg+4*i,4), vr(ACC,16)))
    xbatch(XA, 0); xbatch(XB, 1); xbatch(XC, 2); mbatch(XA, 0); xbatch(XA, 3); mbatch(XB, 1); mbatch(XC, 2); mbatch(XA, 3)
    if OPT.get('diag'):
        Lq = uid('L_w6d'); P('s_cmp_eq_u32 s%d, 63' % S_SEG); P('s_cbranch_scc0 %s' % Lq); end_stamp(P, 56, force=True); P.label(Lq)
    P('s_cmp_eq_u32 s%d, 0' % G_W); P('s_cbranch_scc1 L_w6_r0')
    P('s_lshl_b32 s53, s%d, 12' % G_W); P('v_add_u32 v8, s53, v%d' % L16)
    for q in range(4): P('ds_write_b128 v8, %s offset:%d' % (vr(ACC+4*q,4), q*1024))
    P('s_waitcnt lgkmcnt(0)'); P('s_barrier'); P('s_barrier')
    P('s_branch L_w6_next')
    P.label('L_w6_r0')
    P('s_mul_i32 s53, s%d, %d' % (S_SEG, 32*1152)); P('s_lshl_b32 s54, s%d, 6' % S_CT); P('s_add_u32 s53, s53, s54')
    for qp in range(2):
        P('buffer_load_dwordx4 %s, v4, s[%d:%d], s53 offen offset:%d' % (vr(T+8*qp,4), G_BSRD, G_BSRD+3, 32*qp))
        P('buffer_load_dwordx4 %s, v5, s[76:79], s54 offen offset:%d' % (vr(T+8*qp+4,4), 32*qp))
    P('s_barrier')
    for wv in range(1, 4):
        for q in range(4): P('ds_read_b128 %s, v%d offset:%d' % (vr(T+16+4*q,4), L16, wv*4096 + q*1024))
        for i in range(0, 16, 2): P('v_pk_add_f32 %s, %s, %s' % (vr(ACC+i,2), vr(ACC+i,2), vr(T+16+i,2)))
    P('s_waitcnt lgkmcnt(0)'); P('s_barrier')
    for qp in range(2):
        a = ACC + 8*qp
        for i in range(4): P('v_permlane32_swap_b32 v%d, v%d' % (a+i, a+4+i))
        for i in range(4):
            for src in (T+8*qp+i, T+8*qp+4+i):
                P('v_lshlrev_b32 v8, 16, v%d' % src); P('v_add_f32 v%d, v%d, v8' % (a+2*i, a+2*i))
                P('v_and_b32 v9, 0xffff0000, v%d' % src); P('v_add_f32 v%d, v%d, v9' % (a+2*i+1, a+2*i+1))
        G2.pack8(P, T+32, a)
        P('buffer_store_dwordx4 %s, v4, s[%d:%d], s53 offen offset:%d' % (vr(T+32,4), G_OSRD, G_OSRD+3, 32*qp))
    P.label('L_w6_next')
    P('s_add_u32 s%d, s%d, 3' % (S_SEG, S_SEG)); P('s_cmp_lt_u32 s%d, 64' % S_SEG); P('s_cbranch_scc1 L_w6_loop')
    k.loop(P)
    P = Prog(); P('s_waitcnt vmcnt(0)'); end_stamp(P, 48); P('s_branch L_end'); k.straight(P); k.reset_state()

def end_stamp(P, idx, force=False):
    if not OPT.get('diag'): return
    L = uid('L_es')
    P('s_and_b32 s88, s%d, %d' % (S_RANK, 0 if force else 7)); P('s_or_b32 s88, s88, s%d' % G_W); P('s_cmp_eq_u32 s88, 0'); P('s_cbranch_scc0 %s' % L)
    P('s_memrealtime s[92:93]'); P('s_waitcnt lgkmcnt(0)'); P('s_sub_u32 s92, s92, s90')
    P('s_mov_b32 s88, 0x%x' % (FL + F_DIAG + 128*(idx-44))); P('v_mov_b32 v21, s92'); P('s_mov_b64 exec, 1')
    P('buffer_atomic_umax v21, off, %s, s88' % WSs); P('s_mov_b64 exec, -1')
    P.label(L)

def gen(name):
    k = Kernel()
    bootstrap(k)
    worker_dispatch(k)
    gemm_role(k)
    w5_role(k)
    w6_role(k)
    chain_common(k)
    chain_role(k, True)
    chain_role(k, False)
    P = Prog(); P.label('L_end'); P('s_endpgm'); P.label('L_code_end'); k.straight(P)
    return '.globl %s\n.p2align 8\n.type %s,@function\n%s:\n' % (name, name, name) + k.text() + kdesc(name)

HDR = open('parallel_sum__memory_aug_recurrent_mem_tr__mixer_channel_mlp__prompt.s.ref').read().split('; Override launch')[0]
NAME = 'parallel_sum__memory_aug_recurrent_mem_tr__mixer_channel_mlp__prompt_kernel'
if __name__ == '__main__':
    out = sys.argv[1]
    for a in sys.argv[2:]:
        kk, vv = a.split('=')
        if kk == 'half': W2.HALF = bool(int(vv))
        elif kk == 'set': C.STAMP_SET = set(int(x) for x in vv.split(',')); C.OPT['stamps'] = 1
        elif kk.startswith('c.'): C.OPT[kk[2:]] = int(vv)
        else: OPT[kk] = int(vv)
    txt = HDR + header(['; @launch grid=(256,1,1) block=(256,1,1) lds=163840']) + gen(NAME).replace('CODE_THIRD', str(NPF*8192)).replace('CODE_LEN', 'L_code_end-L_pc_here-4')
    open(out, 'w').write(txt)
    print('written', out, len(txt))
```

```python
from asmlib import *
from common import *

OPT = dict(stamps=0, rbase=1, rslope=1, gdel=5, gdel0=27, rc=0, pf=0, kxtop=1, quad=0, rdepth=2, gdepth=1, align=6)

L_MF = 0; L_S = 9216; L_O = 14336; L_WL = 16384; LDS_TOTAL = 163840

def wreg(i):
    if i < 32: return 'a[%d:%d]' % (8*i, 8*i+7), ('a', 8*i)
    j = i - 32
    return 'v[%d:%d]' % (80+8*j, 80+8*j+7), ('v', 80+8*j)
LDS_CHUNKS = [('k',0), ('k',2), ('k',4), ('k',6), ('k',8), ('v',2), ('v',6)]
LDS_BLOCKS = [(m, tile, t) for (m, t) in LDS_CHUNKS for tile in (0, 1)] + [('od', p, 3) for p in range(4)]
ALL_BLOCKS = [(m,tile,t) for m in 'qkv' for t in range(9) for tile in (0,1)] + [('oh',0),('oh',1)] + [('od',p,c) for p in range(4) for c in range(4)]
REG_BLOCKS = [b for b in ALL_BLOCKS if b not in LDS_BLOCKS]
assert len(LDS_BLOCKS) == 18 and len(REG_BLOCKS) == 54
REG_OF = {b: wreg(i) for i, b in enumerate(REG_BLOCKS)}
LDS_OF = {b: i for i, b in enumerate(LDS_BLOCKS)}

S_WS = 8; S_SRD2 = 12
S_H = 16; S_W = 17; S_STEP = 18; S_T0 = 19; S_T1 = 20; S_T2 = 21; S_T3 = 22
S_PCUR = 23; S_PCUR4 = 24; S_PR0 = 25
S_MNXT = 30; S_MPOI = 31
S_KV = 32; S_KM = 33; S_RED = 34; S_TMO = 35
S_EXN8 = 36; S_C = 38; S_ERR = 39; S_TS = 40; S_DBG = 42
S_TAG = 44; S_RDEL = 45
S_PTR = 46
S_OW = 56; S_GW = 57; S_EXMM = 60; S_PERM = 62; S_PERM2 = 63
S_BM = 64
S_VV = 72; S_KMW = 73; S_VMP = 74; S_KVRDY = 75
S_ST = 76
S_RC = 84
S_PROG = 86
S_G0 = 87; S_G1 = 88; S_G2 = 89; S_MPN = 29; S_TMOV = 58; S_PROGW = 59

V_NEG1=0; V_L16=1; V_IDX=2; V_PST=3; V_RED=4; V_MST=5; V_G16=6; V_SW=7; V_SR=8; V_SM=9; V_KX=10; V_VX=11; V_WL=12; V_VM=13
V_BSEL=14; V_BVAL=16; V_PT0=17; V_VMH=18
V_AR=20; V_ST=32
V_QA=48; V_QB=52; V_KA=56; V_KB=60; V_VA=64; V_VB=68; V_KF=72

def vr(a, n=1): return 'v%d' % a if n == 1 else 'v[%d:%d]' % (a, a+n-1)
WS = 's[%d:%d]' % (S_WS, S_WS+3)
DPP8 = 'row_ror:8 row_mask:0xf bank_mask:0xf'
OOB = 0x40000000
TMO = 20000
def pk_add(P, d, a, b): P('v_pk_add_f32 %s, %s, %s' % (vr(d,2), vr(a,2), vr(b,2)))
def cvt(P, d, a, b): P('v_cvt_pk_bf16_f32 v%d, v%d, v%d' % (d, a, b))
def mfma16(P, d, a, b, c=None): P('v_mfma_f32_16x16x16_bf16 %s, %s, %s, %s' % (vr(d,4), vr(a,2), vr(b,2), '0' if c is None else vr(c,4)))
def mfma32(P, d, a, b, c=None): P('v_mfma_f32_16x16x32_bf16 %s, %s, %s, %s' % (vr(d,4), vr(a,4), vr(b,4), '0' if c is None else vr(c,4)))
def smf_s(acc, a, b): return 'v_smfmac_f32_16x16x64_bf16 %s, %s, %s, v%d' % (vr(acc, 4), vr(a, 4), b, V_IDX)
def smf(P, acc, a, b): P(smf_s(acc, a, b))
def aread_s(t, dst): return 'ds_read_b128 %s, v%d offset:%d' % (vr(dst, 4), V_L16, L_MF + 1024*t)
def blk_s(blk, buf):
    off = LDS_OF[blk]*2048
    return 'ds_read_b128 %s, v%d offset:%d\nds_read_b128 %s, v%d offset:%d' % (vr(buf,4), V_WL, off, vr(buf+4,4), V_WL, off+1024)

def load_weights(k, hook=None):
    P = Prog()
    n, gb = 2, 3
    DA0, DA1, TA0, TA1, TB0, TB1, OD, OH, OL = 4, 5, 6, 7, 8, 9, 10, 11, 12
    t0, t1, t2, t3 = 14, 15, 16, 17
    P('v_and_b32 v%d, 15, v0' % n); P('v_lshrrev_b32 v%d, 4, v0' % gb)
    P('v_and_b32 v%d, 1, v%d' % (t0, gb)); P('v_lshrrev_b32 v%d, 1, v%d' % (t1, gb)); P('v_lshl_add_u32 v%d, v%d, 2, v%d' % (t0, t1, t0))
    for var, dst in ((0, DA0), (1, DA1)):
        P('v_xor_b32 v%d, v%d, v%d' % (t1, n, t0))
        if var: P('v_xor_b32 v%d, 8, v%d' % (t1, t1))
        P('v_lshlrev_b32 v%d, 4, v%d' % (t1, t1))
        P('v_lshl_add_u32 v%d, v%d, 13, v%d' % (dst, gb, t1))
    P('v_bfe_u32 v%d, v0, 3, 1' % t0)
    P('v_bfe_u32 v%d, v0, 2, 1' % t1)
    P('v_and_b32 v%d, 1, v%d' % (t2, gb))
    P('v_lshlrev_b32 v%d, 3, v%d' % (t3, t0)); P('v_lshl_add_u32 v%d, v%d, 1, v%d' % (t3, t1, t3)); P('v_add_u32 v%d, v%d, v%d' % (t3, t3, t2))
    P('v_lshlrev_b32 v%d, 8, v%d' % (t3, t3))
    P('v_lshlrev_b32 v%d, 3, v%d' % (t0, t0)); P('v_lshl_add_u32 v%d, v%d, 2, v%d' % (t0, t1, t0)); P('v_add_u32 v%d, v%d, v%d' % (t0, t0, t2))
    P('v_bfe_u32 v%d, v0, 1, 1' % t1); P('v_lshlrev_b32 v%d, 1, v%d' % (t1, t1))
    P('s_lshl_b32 s%d, s%d, 2' % (S_T0, S_W)); P('v_add_u32 v%d, s%d, v%d' % (t1, S_T0, t1))
    P('v_lshrrev_b32 v%d, 1, v%d' % (t2, gb)); P('s_mov_b32 s%d, 36864' % S_T0); P('v_mul_lo_u32 v%d, v%d, s%d' % (t2, t2, S_T0))
    P('v_add_u32 v%d, v%d, v%d' % (t3, t3, t2))
    P('v_and_b32 v%d, 1, v0' % t2); P('v_lshl_add_u32 v%d, v%d, 3, v%d' % (t3, t2, t3))
    P('v_add_u32 v%d, %d, v%d' % (t3, L_WL, t3))
    for tile, (d0, d1) in ((0, (TA0, TA1)), (1, (TB0, TB1))):
        P('v_xor_b32 v%d, v%d, v%d' % (t2, t1, t0))
        if tile: P('v_xor_b32 v%d, 1, v%d' % (t2, t2))
        P('v_lshl_add_u32 v%d, v%d, 4, v%d' % (d0, t2, t3))
        P('v_add_u32 v%d, 73728, v%d' % (d1, d0))
    P('v_lshrrev_b32 v%d, 1, v%d' % (t0, gb)); P('v_lshlrev_b32 v%d, 2, v%d' % (t0, t0))
    P('v_bfe_u32 v%d, v0, 2, 1' % t1); P('v_add_u32 v%d, v%d, v%d' % (t0, t0, t1))
    P('v_and_b32 v%d, 1, v%d' % (t1, gb)); P('v_lshl_add_u32 v%d, v%d, 3, v%d' % (t0, t1, t0))
    P('s_movk_i32 s%d, 1152' % S_T0); P('v_mul_lo_u32 v%d, v%d, s%d' % (t0, t0, S_T0))
    P('v_and_b32 v%d, 3, v0' % t1); P('v_lshl_add_u32 v%d, v%d, 3, v%d' % (t0, t1, t0))
    P('s_lshl_b32 s%d, s%d, 5' % (S_T0, S_W)); P('s_add_u32 s%d, s%d, %d' % (S_T0, S_T0, L_WL)); P('v_add_u32 v%d, s%d, v%d' % (t0, S_T0, t0))
    P('v_bfe_u32 v%d, v0, 3, 1' % t1)
    P('v_lshl_add_u32 v%d, v%d, 7, v%d' % (OD, t1, t0))
    P('s_mov_b32 s%d, 36864' % S_T0); P('v_mul_lo_u32 v%d, v%d, s%d' % (t1, t1, S_T0)); P('v_add_u32 v%d, v%d, v%d' % (OH, t1, t0))
    P('v_lshlrev_b32 v%d, 4, v0' % OL)
    WL = 13
    P('s_mul_i32 s%d, s%d, 36864' % (S_G0, S_W)); P('s_add_u32 s%d, s%d, %d' % (S_G0, S_G0, L_WL)); P('v_add_u32 v%d, s%d, v%d' % (WL, S_G0, OL))
    SR = 's[%d:%d]' % (S_SRD2, S_SRD2+3)
    def set_srd(ptr, size):
        P('s_mov_b32 s%d, s%d' % (S_SRD2, ptr)); P('s_mov_b32 s%d, s%d' % (S_SRD2+1, ptr+1))
        P('s_mov_b32 s%d, 0x%x' % (S_SRD2+2, size)); P('s_mov_b32 s%d, 0x20000' % (S_SRD2+3))
    set_srd(S_PTR+6, 4096*576*2)
    P('s_mul_i32 s%d, s%d, %d' % (S_T0, S_H, 147456)); P('s_mul_i32 s%d, s%d, 36864' % (S_T1, S_W)); P('s_add_u32 s%d, s%d, s%d' % (S_T0, S_T0, S_T1))
    P('s_mov_b32 m0, s%d' % S_G0)
    for j in range(36):
        P('buffer_load_dwordx4 v%d, %s, s%d offen lds' % (OL, SR, S_T0))
        if j < 35: P('s_add_u32 m0, m0, 1024'); P('s_add_u32 s%d, s%d, 1024' % (S_T0, S_T0))
    if hook: hook(P)
    P('s_waitcnt vmcnt(0) lgkmcnt(0)'); P('s_barrier')
    if hook: hook(P, True)
    def dst_regs(blk):
        cls, r0 = REG_OF[blk][1]; return cls, r0
    def tr(dstcls, r0, addr, off): P('ds_read_b64_tr_b16 %s[%d:%d], v%d offset:%d' % (dstcls, r0, r0+1, addr, off))
    TC = 20
    for pr in range(4):
        for c in range(4):
            blk = ('od', pr, c); Ta = 1 + 2*pr
            if blk in REG_OF: cls, r0 = dst_regs(blk)
            else: cls, r0 = 'v', TC + 8*pr
            for q in range(4):
                Pq, p1 = q >> 1, q & 1
                off = (16*Pq + 2*p1)*1152 + 128*Ta
                if c == 0: tr(cls, r0+2*q, OD, off)
                else:
                    if q == 0: P('v_add_u32 v%d, %d, v%d' % (t0, c*36864, OD))
                    tr(cls, r0+2*q, t0, off)
    for s2 in range(2):
        cls, r0 = dst_regs(('oh', s2))
        P('v_add_u32 v%d, %d, v%d' % (t0, 2*s2*36864, OH))
        for q in range(4): tr(cls, r0+2*q, t0, (16*(q >> 1) + 2*(q & 1))*1152)
    P('s_waitcnt lgkmcnt(0)'); P('s_barrier')
    for pr in range(4):
        off = LDS_OF[('od', pr, 3)]*2048
        P('ds_write_b128 v%d, %s offset:%d' % (WL, vr(TC+8*pr,4), off)); P('ds_write_b128 v%d, %s offset:%d' % (WL, vr(TC+8*pr+4,4), off+1024))
    k.straight(P)
    reg_chunks = [(m, t) for m in 'qkv' for t in range(9) if (m, t) not in LDS_CHUNKS]
    order = reg_chunks + LDS_CHUNKS
    NS = 7
    slot_of = {}
    for j, ch in enumerate(reg_chunks): slot_of[ch] = j % NS
    for i, ch in enumerate(LDS_CHUNKS): slot_of[ch] = i
    last_use = {}
    for j, ch in enumerate(reg_chunks): last_use[slot_of[ch]] = j
    lds_sorted = sorted(LDS_CHUNKS, key=lambda ch: last_use[slot_of[ch]])
    order = reg_chunks + lds_sorted
    cur_m = [None]
    def issue(P, ch):
        m, t = ch
        if cur_m[0] != m:
            ptr = {'q': S_PTR, 'k': S_PTR+2, 'v': S_PTR+4}[m]
            P('s_mov_b32 s%d, s%d' % (S_SRD2, ptr)); P('s_mov_b32 s%d, s%d' % (S_SRD2+1, ptr+1))
            P('s_mov_b32 s%d, 0x%x' % (S_SRD2+2, 576*8192)); P('s_mov_b32 s%d, 0x20000' % (S_SRD2+3))
            cur_m[0] = m
        for jj in range(4):
            P('s_add_u32 m0, s%d, %d' % (S_G0, slot_of[ch]*4096 + jj*1024))
            P('s_add_u32 s%d, s%d, %d' % (S_T0, S_G1, (64*t + 4*jj)*8192))
            P('buffer_load_dwordx4 v%d, %s, s%d offen lds' % (DA0 if jj < 2 else DA1, SR, S_T0))
    P = Prog()
    P('s_lshl_b32 s%d, s%d, 8' % (S_G1, S_H)); P('s_mul_i32 s%d, s%d, %d' % (S_T0, S_W, 16*8192)); P('s_add_u32 s%d, s%d, s%d' % (S_G1, S_G1, S_T0))
    issued = 0
    def can_issue(j, consumed):
        ch = order[j]; s = slot_of[ch]
        prev = [i for i in range(j) if slot_of[order[i]] == s]
        return (not prev) or prev[-1] < consumed
    while issued < len(order) and can_issue(issued, 0) and issued < NS:
        issue(P, order[issued]); issued += 1
    TB = 20
    for j, ch in enumerate(order):
        m, t = ch
        P('s_waitcnt vmcnt(%d) lgkmcnt(0)' % (4*(issued - j - 1)))
        P('s_barrier')
        while issued < len(order) and can_issue(issued, j):
            issue(P, order[issued]); issued += 1
        so = slot_of[ch]*4096
        for tile, (a0, a1) in ((0, (TA0, TA1)), (1, (TB0, TB1))):
            blk = (m, tile, t)
            if blk in REG_OF: cls, r0 = dst_regs(blk)
            else: cls, r0 = 'v', TB + 8*tile
            for q in range(4): tr(cls, r0+2*q, a0 if q < 2 else a1, so + (q & 1)*1024)
        if ch in LDS_CHUNKS:
            P('s_waitcnt lgkmcnt(0)'); P('s_barrier')
            for tile in range(2):
                off = LDS_OF[(m, tile, t)]*2048
                P('ds_write_b128 v%d, %s offset:%d' % (WL, vr(TB+8*tile,4), off)); P('ds_write_b128 v%d, %s offset:%d' % (WL, vr(TB+8*tile+4,4), off+1024))
    P('s_waitcnt lgkmcnt(0)'); P('s_barrier')
    k.straight(P); k.reset_state()

def lane_setup(k):
    P = Prog()
    n, rg, t0, t1, t2, nh, n7, dt = 20, 21, 22, 23, 24, 25, 26, 27
    P('v_and_b32 v%d, 15, v0' % n); P('v_lshrrev_b32 v%d, 4, v0' % rg); P('v_lshlrev_b32 v%d, 4, v0' % V_L16)
    P('v_mov_b32 v%d, 0x44444444' % V_IDX); P('v_mov_b32 v%d, 0xeeeeeeee' % t0)
    P('v_cmp_lt_u32 vcc, 7, v%d' % n); P('v_cndmask_b32 v%d, v%d, v%d, vcc' % (V_IDX, V_IDX, t0))
    P('v_lshrrev_b32 v%d, 3, v%d' % (nh, n)); P('v_and_b32 v%d, 7, v%d' % (n7, n))
    P('v_lshl_add_u32 v%d, v%d, 3, v%d' % (t0, rg, n7)); P('v_lshlrev_b32 v%d, 4, v%d' % (V_G16, t0))
    P('v_lshrrev_b32 v%d, 1, v%d' % (t0, rg)); P('v_lshl_add_u32 v%d, v%d, 6, v%d' % (t0, t0, n))
    P('s_lshl_b32 s%d, s%d, 4' % (S_T0, S_W)); P('v_add_u32 v%d, s%d, v%d' % (t0, S_T0, t0)); P('v_lshlrev_b32 v%d, 4, v%d' % (t0, t0))
    P('v_and_b32 v%d, 1, v%d' % (t1, rg)); P('v_lshl_add_u32 v%d, v%d, 3, v%d' % (V_PST, t1, t0))
    if OPT.get('quad', 1):
        P('v_and_b32 v%d, 1, v%d' % (t0, rg)); P('v_lshlrev_b32 v%d, 1, v%d' % (t0, t0)); P('v_lshrrev_b32 v%d, 1, v%d' % (t1, rg)); P('v_add_u32 v%d, v%d, v%d' % (t0, t0, t1))
        P('v_lshl_add_u32 v%d, v%d, 6, v%d' % (t0, t0, n)); P('s_lshl_b32 s%d, s%d, 4' % (S_T0, S_W)); P('v_add_u32 v%d, s%d, v%d' % (t0, S_T0, t0))
        P('v_lshlrev_b32 v%d, 4, v%d' % (V_PST, t0))
    P('v_lshlrev_b32 v%d, 4, v%d' % (t0, n)); P('v_lshl_add_u32 v%d, v%d, 2, v%d' % (t0, rg, t0))
    P('s_lshl_b32 s%d, s%d, 8' % (S_T0, S_W)); P('v_add_u32 v%d, s%d, v%d' % (V_PT0, S_T0, t0))
    P('s_sub_u32 s%d, s%d, 1' % (S_T0, S_W)); P('s_lshl_b32 s%d, s%d, 5' % (S_T0, S_T0)); P('s_add_u32 s%d, s%d, s%d' % (S_T0, S_T0, S_H))
    P('s_cmp_lt_u32 s%d, 72' % S_T0); P('s_cselect_b32 s%d, 1, 0' % S_RED)
    P('s_cmp_eq_u32 s%d, 0' % S_W); P('s_cselect_b32 s%d, 0, s%d' % (S_RED, S_RED))
    P('s_cmp_eq_u32 s%d, 0' % S_RED); P('s_cselect_b32 s%d, 0, s%d' % (S_T0, S_T0))
    P('s_lshr_b32 s%d, s%d, 3' % (S_T1, S_T0))
    tab = OPT.get('rtab')
    if tab:
        P('s_mov_b32 s%d, %d' % (S_RDEL, tab[0]))
        for T in range(1, 9):
            P('s_cmp_eq_u32 s%d, %d' % (S_T1, T)); P('s_cselect_b32 s%d, %d, s%d' % (S_RDEL, tab[T], S_RDEL))
    else:
        P('s_mul_i32 s%d, s%d, %d' % (S_RDEL, S_T1, OPT.get('rslope', 1))); P('s_add_u32 s%d, s%d, %d' % (S_RDEL, S_RDEL, OPT.get('rbase', 1)))
    P('s_lshl_b32 s%d, s%d, 7' % (S_T2, S_T0))
    P('v_lshl_add_u32 v%d, v%d, 1, v%d' % (t0, rg, nh)); P('s_movk_i32 s%d, 9216' % S_T1); P('v_mul_lo_u32 v%d, v%d, s%d' % (t0, t0, S_T1))
    P('v_lshl_add_u32 v%d, v%d, 4, v%d' % (t0, n7, t0)); P('v_add_u32 v%d, s%d, v%d' % (V_RED, S_T2, t0))
    P('v_lshlrev_b32 v%d, 1, v%d' % (t0, n)); P('v_and_b32 v%d, 7, v%d' % (t0, t0)); P('v_bfe_u32 v%d, v%d, 2, 1' % (t1, n)); P('v_add_u32 v%d, v%d, v%d' % (t0, t0, t1))
    P('s_cmp_lt_u32 s%d, 8' % S_T0); P('s_cselect_b64 vcc, -1, 0'); P('v_cndmask_b32 v%d, v%d, v%d, vcc' % (t0, n, t0))
    P('v_lshlrev_b32 v%d, 4, v%d' % (t0, t0)); P('v_lshl_add_u32 v%d, v%d, 2, v%d' % (t0, rg, t0)); P('v_add_u32 v%d, s%d, v%d' % (t0, S_T2, t0))
    P('v_mov_b32 v%d, 0x%x' % (t1, OOB)); P('v_cmp_lt_u32 vcc, 7, v%d' % n); P('v_cndmask_b32 v%d, v%d, v%d, vcc' % (t0, t0, t1))
    P('s_cmp_eq_u32 s%d, 0' % S_RED); P('s_cselect_b64 vcc, -1, 0'); P('v_cndmask_b32 v%d, v%d, v%d, vcc' % (V_MST, t0, t1))
    P('s_mul_i32 s%d, s%d, 1280' % (S_T0, S_W)); P('s_add_u32 s%d, s%d, %d' % (S_T0, S_T0, L_S)); P('v_add_u32 v%d, s%d, v%d' % (V_SW, S_T0, V_G16))
    P('v_lshl_add_u32 v%d, v%d, 9, v%d' % (t0, nh, V_G16)); P('v_add_u32 v%d, %d, v%d' % (V_SR, L_S, t0))
    P('v_and_b32 v%d, 1, v%d' % (t0, rg)); P('v_lshl_add_u32 v%d, v%d, 3, v%d' % (t0, t0, n7)); P('v_lshlrev_b32 v%d, 4, v%d' % (t0, t0))
    P('s_movk_i32 s%d, 2560' % S_T1); P('v_mul_lo_u32 v%d, v%d, s%d' % (t1, nh, S_T1)); P('v_add_u32 v%d, v%d, v%d' % (t0, t0, t1))
    P('v_add_u32 v%d, %d, v%d' % (V_SM, L_S + 1024, t0))
    P('v_lshl_add_u32 v%d, v%d, 4, v%d' % (dt, nh, n7))
    P('s_lshl_b32 s%d, s%d, 2' % (S_T0, S_W)); P('v_add_u32 v%d, s%d, v%d' % (t0, S_T0, rg)); P('v_lshl_add_u32 v%d, v%d, 5, v%d' % (t0, t0, dt)); P('v_lshlrev_b32 v%d, 4, v%d' % (V_KX, t0))
    P('s_lshl_b32 s%d, s%d, 5' % (S_T0, S_W)); P('v_lshl_add_u32 v%d, v%d, 7, v%d' % (t0, rg, dt)); P('v_add_u32 v%d, s%d, v%d' % (t0, S_T0, t0)); P('v_lshlrev_b32 v%d, 4, v%d' % (V_VX, t0))
    P('v_lshrrev_b32 v%d, 1, v%d' % (t0, rg)); P('v_lshl_add_u32 v%d, v%d, 3, v%d' % (t0, t0, dt)); P('v_add_u32 v%d, s%d, v%d' % (t0, S_T0, t0)); P('v_lshlrev_b32 v%d, 4, v%d' % (t0, t0))
    P('v_and_b32 v%d, 1, v%d' % (t1, rg)); P('v_lshl_add_u32 v%d, v%d, 3, v%d' % (V_VM, t1, t0))
    P('s_mul_i32 s%d, s%d, 36864' % (S_T0, S_W)); P('s_add_u32 s%d, s%d, %d' % (S_T0, S_T0, L_WL)); P('v_add_u32 v%d, s%d, v%d' % (V_WL, S_T0, V_L16))
    P('v_and_b32 v%d, 3, v%d' % (t0, n)); P('v_lshrrev_b32 v%d, 2, v%d' % (t1, n7)); P('v_and_b32 v%d, 1, v%d' % (t2, rg))
    P('v_cmp_eq_u32 s[%d:%d], v%d, v%d' % (S_TS, S_TS+1, t1, t2))
    P('v_and_b32 v%d, 1, v%d' % (t1, t0)); P('v_lshlrev_b32 v%d, 4, v%d' % (t1, t1)); P('v_mov_b32 v28, 0x3f80'); P('v_lshlrev_b32 v%d, v%d, v28' % (V_BVAL, t1))
    P('v_cndmask_b32 v29, 0, v%d, s[%d:%d]' % (V_BVAL, S_TS, S_TS+1))
    P('v_cmp_gt_u32 vcc, 2, v%d' % t0); P('v_cndmask_b32 v%d, 0, v29, vcc' % V_BSEL)
    P('v_cmp_lt_u32 vcc, 1, v%d' % t0); P('v_cndmask_b32 v%d, 0, v29, vcc' % (V_BSEL+1))
    P('v_lshrrev_b32 v%d, 1, v%d' % (t1, n))
    for r in range(4): P('v_cmp_eq_u32 s[%d:%d], %d, v%d' % (S_BM+2*r, S_BM+2*r+1, r, t1))
    P('s_mov_b32 s%d, 0x00ff00ff' % S_EXN8); P('s_mov_b32 s%d, 0x00ff00ff' % (S_EXN8+1))
    P('s_mov_b32 s%d, 0x00ff00ff' % S_EXMM); P('s_mov_b32 s%d, 0' % (S_EXMM+1))
    P('s_mov_b32 s%d, 0x3e0293ee' % S_C)
    P('s_lshl_b32 s%d, s%d, 9' % (S_OW, S_W)); P('s_add_u32 s%d, s%d, %d' % (S_OW, S_OW, L_O))
    P('s_lshl_b32 s%d, s%d, 10' % (S_GW, S_W))
    P('s_mov_b32 s%d, 0' % S_ERR); P('s_mov_b32 s%d, %d' % (S_TMOV, TMO))
    P('s_mul_i32 s%d, s%d, %d' % (S_PCUR, S_H, P_HEAD)); P('s_add_u32 s%d, s%d, 0x%x' % (S_PCUR, S_PCUR, WS_P)); P('s_add_u32 s%d, s%d, 4096' % (S_PCUR4, S_PCUR))
    for t in range(4): P('s_mov_b32 s%d, 0x%x' % (S_PR0+t, WS_P + t*8*P_HEAD))
    P('s_mov_b32 s%d, 0x%x' % (S_MNXT, WS_M + 1*M_SLOT)); P('s_mov_b32 s%d, 0x%x' % (S_MPOI, WS_M + 2*M_SLOT))
    P('s_lshl_b32 s%d, s%d, 13' % (S_KV, S_H)); P('s_add_u32 s%d, s%d, 0x%x' % (S_VV, S_KV, WS_VF)); P('s_add_u32 s%d, s%d, 0x%x' % (S_KV, S_KV, WS_KF))
    P('s_lshl_b32 s%d, s%d, 11' % (S_KM, S_H)); P('s_lshl_b32 s%d, s%d, 9' % (S_T1, S_W))
    P('s_add_u32 s%d, s%d, s%d' % (S_KMW, S_KM, S_T1)); P('s_add_u32 s%d, s%d, 0x%x' % (S_KMW, S_KMW, WS_KM))
    P('s_add_u32 s%d, s%d, 0x%x' % (S_KM, S_KM, WS_VM))
    if OPT.get('puboob') == 1: P('s_mov_b32 s%d, 0x40000000' % S_KMW); P('s_mov_b32 s%d, 0x40000000' % S_KM)
    if OPT.get('puboob') == 2:
        P('s_cmp_eq_u32 s%d, 0' % S_W); P('s_cselect_b32 s%d, s%d, 0x40000000' % (S_KMW, S_KMW)); P('s_cselect_b32 s%d, s%d, 0x40000000' % (S_KM, S_KM))
    if OPT.get('puboob') == 3:
        P('s_cmp_lt_u32 s%d, 8' % S_H); P('s_cselect_b32 s%d, s%d, 0x40000000' % (S_KMW, S_KMW)); P('s_cselect_b32 s%d, s%d, 0x40000000' % (S_KM, S_KM))
    P('s_mov_b32 s%d, 0' % S_STEP); P('s_mov_b32 s%d, 0' % S_TAG)
    P('s_mov_b32 s%d, 0x%x' % (S_VMP, OOB)); P('v_mov_b64 %s, 0' % vr(V_VMH,2))
    P('s_mov_b32 s%d, 0' % S_RC); P('s_mov_b32 s%d, 0' % (S_RC+1))
    k.straight(P)

def initial_m(k):
    P = Prog()
    P('s_mov_b32 s%d, s%d' % (S_SRD2, S_PTR+8)); P('s_mov_b32 s%d, s%d' % (S_SRD2+1, S_PTR+9))
    P('s_mov_b32 s%d, %d' % (S_SRD2+2, 8*576*2)); P('s_mov_b32 s%d, 0x20000' % (S_SRD2+3))
    P('s_mov_b32 s%d, 0x05040100' % S_PERM); P('s_mov_b32 s%d, 0x07060302' % S_PERM2)
    P('s_lshl_b32 s%d, s%d, 6' % (S_T0, S_W)); P('v_add_u32 v20, s%d, v0' % S_T0)
    for i in range(3):
        P('v_add_u32 v21, %d, v20' % (256*i)); P('v_and_b32 v22, 7, v21'); P('v_lshrrev_b32 v23, 3, v21')
        P('s_movk_i32 s%d, 1152' % S_T1); P('v_mul_lo_u32 v22, v22, s%d' % S_T1); P('v_lshl_add_u32 v22, v23, 4, v22')
        P('v_cmp_gt_u32 vcc, 576, v21'); P('v_mov_b32 v24, 0x%x' % OOB); P('v_cndmask_b32 v22, v24, v22, vcc')
        P('buffer_load_dwordx4 v[28:31], v22, s[%d:%d], 0 offen' % (S_SRD2, S_SRD2+3))
        P('v_perm_b32 v32, v29, v28, s%d' % S_PERM); P('v_perm_b32 v33, v31, v30, s%d' % S_PERM)
        P('v_perm_b32 v34, v29, v28, s%d' % S_PERM2); P('v_perm_b32 v35, v31, v30, s%d' % S_PERM2)
        P('v_lshlrev_b32 v25, 4, v21')
        P('s_and_saveexec_b64 s[%d:%d], vcc' % (S_TS, S_TS+1))
        P('ds_write_b128 v25, v[32:35] offset:%d' % L_MF)
        P('s_mov_b64 exec, s[%d:%d]' % (S_TS, S_TS+1))
    P('s_waitcnt lgkmcnt(0)')
    k.straight(P)

def poison_init(k, st=''):
    P = Prog()
    P('v_mov_b32 v20, -1'); P('v_mov_b32 v21, -1'); P('v_mov_b32 v22, -1'); P('v_mov_b32 v23, -1')
    if OPT.get('quad', 1):
        P('buffer_store_dword v20, v%d, %s, s%d offen%s' % (V_PT0, WS, S_PCUR, st))
        P('buffer_store_dwordx4 v[20:23], v%d, %s, s%d offen offset:1024%s' % (V_PST, WS, S_PCUR, st))
        P('buffer_store_dwordx4 v[20:23], v%d, %s, s%d offen offset:1024%s' % (V_PST, WS, S_PCUR4, st))
    else:
      for T in (0, 2, 4, 6, 7):
        off = T*1024
        P('buffer_store_dwordx2 v[20:21], v%d, %s, s%d offen offset:%d%s' % (V_PST, WS, S_PCUR if off < 4096 else S_PCUR4, off & 4095, st))
    for slot in range(4):
        P('s_mov_b32 s%d, 0x%x' % (S_T1, WS_M + slot*M_SLOT))
        P('buffer_store_dword v20, v%d, %s, s%d offen%s' % (V_MST, WS, S_T1, st))
    P('s_waitcnt vmcnt(0)')
    P('v_mov_b32 v%d, -1' % V_NEG1)
    k.straight(P); k.reset_state()

STAMP_SET = None
def stamp(P, i):
    if not OPT['stamps']: return
    if STAMP_SET is not None and i not in STAMP_SET: return
    P('s_memtime s[%d:%d]' % (S_TS, S_TS+1)); P('s_waitcnt lgkmcnt(0)'); P('s_mov_b32 s%d, s%d' % (S_ST+i, S_TS))
def flush_stamps(P, n=8):
    if not OPT['stamps']: return
    P('s_lshl_b32 s%d, s%d, 2' % (S_T0, S_H)); P('s_add_u32 s%d, s%d, s%d' % (S_T0, S_T0, S_W))
    P('s_lshl_b32 s%d, s%d, 6' % (S_T0, S_T0)); P('s_add_u32 s%d, s%d, s%d' % (S_T0, S_T0, S_STEP)); P('s_sub_u32 s%d, s%d, 1' % (S_T0, S_T0))
    P('s_lshl_b32 s%d, s%d, 6' % (S_T0, S_T0)); P('s_add_u32 s%d, s%d, 0x%x' % (S_T0, S_T0, WS_STAT))
    P('s_mov_b64 exec, 1')
    for i in range(n):
        P('v_mov_b32 v21, s%d' % (S_ST+i)); P('buffer_store_dword v21, off, %s, s%d offset:%d' % (WS, S_T0, 4*i))
    P('s_mov_b64 exec, -1')

def poll_tail(P, lab, done, errbit, rc):
    P('s_cbranch_vccz %s' % done)
    if OPT['rc']: P('s_add_u32 s%d, s%d, 1' % (S_RC+rc, S_RC+rc))
    P('s_sub_u32 s%d, s%d, 1' % (S_TMO, S_TMO)); P('s_cmp_lg_u32 s%d, 0' % S_TMO); P('s_cbranch_scc1 %s' % lab)
    P('s_or_b32 s%d, s%d, %d' % (S_ERR, S_ERR, errbit))
    P.label(done)

def delay(P, sreg, label):
    P('s_cmp_eq_u32 s%d, 0' % sreg)
    P('s_cbranch_scc1 %s_x' % label)
    P('s_mov_b32 s%d, s%d' % (S_T3, sreg))
    P.label(label)
    P('s_sub_u32 s%d, s%d, 1' % (S_T3, S_T3)); P('s_cmp_gt_i32 s%d, 0' % S_T3); P('s_cbranch_scc1 %s' % label)
    P.label(label + '_x')

def kx_loads(P):
    P('buffer_load_dwordx4 %s, v%d, %s, s%d offen%s' % (vr(V_KF,4), V_KX, WS, S_KV, OPT.get('kvf', '')))
    P('buffer_load_dwordx4 %s, v%d, %s, s%d offen offset:128%s' % (vr(V_KF+4,4), V_KX, WS, S_KV, OPT.get('kvf', '')))
def prefetch(P, lab, tmp, kvwait):
    P('s_cmp_eq_u32 s%d, 0' % S_W)
    P('s_cbranch_scc0 %s' % lab)
    P('v_lshlrev_b32 v%d, 3, v%d' % (tmp, V_L16))
    P('s_add_u32 s%d, s%d, %d' % (S_T0, S_KV, OPT.get('pfd', 1)*32*8192)); P('s_mov_b32 m0, %d' % L_S); P('s_add_u32 s%d, s%d, %d' % (S_T1, S_VV, OPT.get('pfd', 1)*32*8192))
    if kvwait: P('s_cmp_eq_u32 s%d, 0' % S_KVRDY); P('s_cbranch_scc1 %s' % lab)
    P('buffer_load_dword v%d, %s, s%d offen%s lds' % (tmp, WS, S_T0, OPT.get('pff', ''))); P('buffer_load_dword v%d, %s, s%d offen%s lds' % (tmp, WS, S_T1, OPT.get('pff', '')))
    P.label(lab)
def pre_step(P):
    if not OPT.get('kxtop'): kx_loads(P)
    for r in range(V_QA, V_VB+4, 2): P('v_mov_b64 %s, 0' % vr(r,2))
    P(blk_s(('k',0,0), V_ST)); P(blk_s(('k',1,0), V_ST+8))

class Filler:
    def __init__(self): self.q = []
    def add(self, t): self.q.append(t)
    def emit(self, P, n):
        for _ in range(n):
            if self.q: P(self.q.pop(0))
    def drain(self, P): self.emit(P, len(self.q))

def bop(blk, buf): return REG_OF[blk][0] if blk in REG_OF else vr(buf, 8)

def main_loop(k, st='', kvwait=None, publish=None):
    P = Prog()
    SB = [V_ST, V_ST+8]
    if 'align' in OPT:
        P('.p2align %d' % OPT['align'])
        pass
    P.label('L_chain_loop')
    stamp(P, 0)
    P(aread_s(0, V_AR)); P(aread_s(1, V_AR+4))
    kxpos = OPT.get('kxpos', 0)
    if OPT.get('kxtop') and kxpos == 0: kx_loads(P)
    for t in range(9):
        a = V_AR + 4*(t % 3)
        if t + 2 < 9: P(aread_s(t+2, V_AR + 4*((t+2) % 3)))
        if t < 8:
            smf(P, V_QA, a, bop(('q',0,t), 0))
            if OPT.get('kxtop') and kxpos == 1 and t == 0: P('buffer_load_dwordx4 %s, v%d, %s, s%d offen' % (vr(V_KF,4), V_KX, WS, S_KV))
            if t == 6: P('WAIT_SPEC'); P('v_mov_b64 %s, 0' % vr(V_VB,2))
            smf(P, V_QB, a, bop(('q',1,t), 0))
            if OPT.get('kxtop') and kxpos == 1 and t == 0: P('buffer_load_dwordx4 %s, v%d, %s, s%d offen offset:128' % (vr(V_KF+4,4), V_KX, WS, S_KV))
            if t == 6: P('v_mov_b64 %s, 0' % vr(V_VB+2,2))
            if t % 2 == 1: P(blk_s(('k',0,t+1), SB[0]))
            smf(P, V_KA, a, bop(('k',0,t), SB[0]))
            if t % 2 == 1: P(blk_s(('k',1,t+1), SB[1]))
            smf(P, V_KB, a, bop(('k',1,t), SB[1]))
    a = V_AR + 4*(8 % 3)
    smf(P, V_QA, a, bop(('q',0,8), 0)); smf(P, V_QB, a, bop(('q',1,8), 0))
    vorder = [2, 6, 0, 1, 3, 4, 5, 7, 8]
    ring = [V_AR, V_AR+4, V_AR+8]
    P(aread_s(vorder[0], ring[0])); P(aread_s(vorder[1], ring[1]))
    smf(P, V_KA, a, bop(('k',0,8), SB[0])); P(blk_s(('v',0,2), SB[0]))
    smf(P, V_KB, a, bop(('k',1,8), SB[1])); P(blk_s(('v',1,2), SB[1]))
    stamp(P, 1)
    F = Filler()
    for i, t in enumerate(vorder):
        ar = ring[i % 3] if i != 2 else ring[2]
        g1 = []; g2 = []
        if i + 2 < 9: g1.append(aread_s(vorder[i+2], ring[(i+2) % 3]))
        s1 = smf_s(V_VA, ar, bop(('v',0,t), SB[0])); s2 = smf_s(V_VB, ar, bop(('v',1,t), SB[1]))
        if t == 2:
            F.add('\n'.join([s1, blk_s(('v',0,6), SB[0])])); F.add('\n'.join([s2, blk_s(('v',1,6), SB[1])] + g1))
        else:
            F.add('\n'.join([s1] + g1)); F.add(s2)
    cvt(P, V_QA, V_QA, V_QA+1); cvt(P, V_QA+1, V_QA+2, V_QA+3); cvt(P, V_QB, V_QB, V_QB+1); cvt(P, V_QB+1, V_QB+2, V_QB+3)
    mfma16(P, V_QA, V_QA, V_BSEL); mfma16(P, V_QB, V_QB, V_BSEL)
    cvt(P, V_KA, V_KA, V_KA+1); cvt(P, V_KA+1, V_KA+2, V_KA+3); cvt(P, V_KB, V_KB, V_KB+1); cvt(P, V_KB+1, V_KB+2, V_KB+3)
    mfma16(P, V_KA, V_KA, V_BSEL); mfma16(P, V_KB, V_KB, V_BSEL)
    F.emit(P, 1)
    for i in range(4): cvt(P, V_QA+i, V_QA+2*i, V_QA+2*i+1)
    qop = V_QA; kop = V_KA
    X0, X1, MM = V_QB, V_KF+4, V_KB
    mfma32(P, X0, V_KF, qop); mfma32(P, X1, V_KF+4, qop)
    for i in range(4): cvt(P, V_KA+i, V_KA+2*i, V_KA+2*i+1)
    F.emit(P, 1)
    mfma32(P, MM, kop, qop)
    F.emit(P, 1)
    P('s_mov_b64 exec, s[%d:%d]' % (S_EXN8, S_EXN8+1))
    P('ds_write_b128 v%d, %s' % (V_SW, vr(X0,4)))
    P('ds_write_b128 v%d, %s offset:512' % (V_SW, vr(X1,4)))
    P('s_mov_b64 exec, -1')
    P('buffer_load_dwordx4 %s, v%d, %s, s%d offen%s' % (vr(V_KF,4), V_VX, WS, S_VV, OPT.get('kvf', '')))
    P('s_mov_b64 exec, s[%d:%d]' % (S_EXMM, S_EXMM+1))
    P('ds_write_b128 v%d, %s offset:1024' % (V_SW, vr(MM,4)))
    P('s_mov_b64 exec, -1')
    P('buffer_load_dwordx4 %s, v%d, %s, s%d offen offset:128%s' % (vr(V_KF+4,4), V_VX, WS, S_VV, OPT.get('kvf', '')))
    def km_store():
        P('s_mov_b64 exec, s[%d:%d]' % (S_EXN8, S_EXN8+1))
        if OPT.get('nopub', 0) in (0, 2): P('buffer_store_dwordx4 %s, v%d, %s, s%d offen%s' % (vr(kop,4), V_G16, WS, S_KMW, OPT.get('pubf', ' sc1')))
        P('s_mov_b64 exec, -1')
    late = OPT.get('kmlate', 1)
    F.emit(P, 1)
    if not late: km_store()
    F.emit(P, 2)
    P('WAIT_LDSW')
    stamp(P, 2)
    Flast = list(F.q)
    if OPT.get('earlylast', 1) and late:
        P('s_cmp_eq_u32 s%d, 63' % S_STEP)
        P('s_cbranch_scc1 L_chain_last')
    P('s_barrier')
    X, M = V_QA, SB[1]
    for e in ((0, 1, 3) if late else range(4)): P('ds_read_b128 %s, v%d offset:%d' % (vr(V_QA+4*e,4), V_SR, 1280*e))
    for e in range(2): P('ds_read_b128 %s, v%d offset:%d' % (vr(M+4*e,4), V_SM, 1280*e))
    if late:
        km_store()
        P('s_nop 3')
        P('ds_read_b128 %s, v%d offset:%d' % (vr(V_QA+8,4), V_SR, 2560))
    if OPT.get('nopub', 0) in (0, 3): P('buffer_store_dwordx2 %s, v%d, %s, s%d offen%s' % (vr(V_VMH,2), V_VM, WS, S_VMP, OPT.get('pubf', ' sc1')))
    F.emit(P, 2)
    if publish: publish(P)
    F.emit(P, 3)
    pk_add(P, X, X, X+4); pk_add(P, X+2, X+2, X+6); F.emit(P, 1)
    pk_add(P, X+8, X+8, X+12); pk_add(P, X+10, X+10, X+14); F.emit(P, 1)
    pk_add(P, M, M, M+4); pk_add(P, M+2, M+2, M+6); F.emit(P, 1)
    pk_add(P, X, X, X+8); pk_add(P, X+2, X+2, X+10)
    for i in range(4): P('v_add_f32_dpp v%d, v%d, v%d %s' % (M+i, M+i, M+i, DPP8))
    mx, t1 = M+4, M+5
    P('v_max3_f32 v%d, v%d, v%d, v%d' % (mx, X, X+1, X+2)); P('v_max3_f32 v%d, v%d, v%d, v%d' % (mx, mx, X+3, M))
    P('v_max3_f32 v%d, v%d, v%d, v%d' % (mx, mx, M+1, M+2)); P('v_max_f32 v%d, v%d, v%d' % (mx, mx, M+3))
    AV = V_QA + 10
    F.emit(P, 1)
    P('v_max_f32_dpp v%d, v%d, v%d %s' % (mx, mx, mx, DPP8))
    P('v_mov_b32 v%d, 0x3f803f80' % (V_QA+14))
    P('v_mov_b32 v%d, v%d' % (t1, mx))
    F.drain(P)
    P('v_mov_b32 v%d, 0x3f803f80' % (V_QA+15))
    P('v_permlane16_swap_b32 v%d, v%d' % (mx, t1))
    P('v_max_f32 v%d, v%d, v%d' % (mx, mx, t1))
    P('v_mov_b32 v%d, v%d' % (t1, mx))
    P('v_mov_b32 v%d, 0x3f003f00' % (M+6)); P('v_mov_b32 v%d, 0x3f003f00' % (M+7))
    P('v_permlane32_swap_b32 v%d, v%d' % (mx, t1))
    P('v_max_f32 v%d, v%d, v%d' % (mx, mx, t1))
    P('v_mul_f32 v%d, s%d, v%d' % (mx, S_C, mx))
    vals = [X+i for i in range(4)] + [M+i for i in range(4)]
    for r in vals: P('v_fma_f32 v%d, v%d, s%d, -v%d' % (r, r, S_C, mx))
    for r in vals: P('v_exp_f32 v%d, v%d' % (r, r))
    px, pm = V_QA+4, V_QA+8
    cvt(P, pm, M, M+1); cvt(P, pm+1, M+2, M+3); cvt(P, px, X, X+1); cvt(P, px+1, X+2, X+3)
    oa, ob, sm = V_AR, V_AR+4, V_AR+8
    ONES, HALF = V_QA+14, M+6
    mfma16(P, sm, HALF, pm)
    P('v_mov_b32_dpp v%d, v%d %s' % (px+2, px, DPP8)); P('v_mov_b32_dpp v%d, v%d %s' % (px+3, px+1, DPP8))
    mfma16(P, sm, ONES, px, sm)
    cvt(P, AV, V_VA, V_VA+1)
    mfma16(P, sm, ONES, px+2, sm)
    cvt(P, AV+1, V_VA+2, V_VA+3)
    mfma32(P, oa, V_KF, px)
    cvt(P, AV+2, V_VB, V_VB+1)
    mfma32(P, ob, V_KF+4, px)
    cvt(P, AV+3, V_VB+2, V_VB+3)
    mfma16(P, oa, AV, pm, oa)
    ow = M
    P('v_add_u32 v%d, s%d, v%d' % (ow, S_OW, V_G16))
    mfma16(P, ob, AV+2, pm, ob)
    lds_o = [('od', p, 3) for p in range(4)]
    P('v_rcp_f32 v%d, v%d' % (sm, sm))
    P(blk_s(lds_o[0], SB[0]))
    for i in range(0, 8, 2): P('v_pk_mul_f32 %s, %s, %s op_sel_hi:[1,0]' % (vr(oa+i,2), vr(oa+i,2), vr(sm,2)))
    og = V_QA + 12
    for i in range(4): cvt(P, og+i, oa+2*i, oa+2*i+1)
    P('s_mov_b64 exec, s[%d:%d]' % (S_EXN8, S_EXN8+1))
    P('ds_write_b128 v%d, %s' % (ow, vr(og,4)))
    P('s_mov_b64 exec, -1')
    if not (OPT.get('earlylast', 1) and late):
        P('s_cmp_eq_u32 s%d, 63' % S_STEP)
        P('s_cbranch_scc1 L_chain_last')
    th = V_AR + 8
    accs = [V_KF, V_KF+4, V_AR, V_AR+4]
    for r in list(range(V_KF, V_KF+8, 2)) + [th, th+2]: P('v_mov_b64 %s, 0' % vr(r,2))
    P(blk_s(lds_o[1], SB[1]))
    P('WAIT_LDSW')
    stamp(P, 3)
    if OPT.get('ackat3'): P('s_waitcnt vmcnt(0)'); stamp(P, 7)
    P('s_barrier')
    dual, half = V_QA, V_AR
    for s2 in range(2): P('ds_read_b128 %s, v%d offset:%d' % (vr(half+4*s2,4), V_SR, L_O - L_S + 1024*s2))
    for c in range(4): P('ds_read_b128 %s, v%d offset:%d' % (vr(dual+4*c,4), V_G16, L_O + 512*c))
    smf(P, th, half, bop(('oh',0), 0)); smf(P, th, half+4, bop(('oh',1), 0))
    def tagst(reg): P('v_bfi_b32 v%d, 1, s%d, v%d' % (reg, S_TAG, reg))
    def pstore(pr):
        off = (1 + 2*pr)*1024
        P('buffer_store_dwordx2 %s, v%d, %s, s%d offen offset:%d%s' % (vr(accs[pr],2), V_PST, WS, S_PCUR if off < 4096 else S_PCUR4, off & 4095, st))
    def pcvt(pr):
        acc = accs[pr]; cvt(P, acc, acc, acc+1); cvt(P, acc+1, acc+2, acc+3)
    seq = [(p, c) for p in range(4) for c in range(4)]
    extra = {0: lambda: [P('v_mov_b64 %s, 0' % vr(V_AR, 2)), P('v_mov_b64 %s, 0' % vr(V_AR+2, 2))],
             1: lambda: [P('v_mov_b64 %s, 0' % vr(V_AR+4, 2)), P('v_mov_b64 %s, 0' % vr(V_AR+6, 2))],
             2: lambda: [P('v_permlane32_swap_b32 v%d, v%d' % (th, th+1))],
             3: lambda: [P(blk_s(lds_o[2], SB[0])), P('v_permlane32_swap_b32 v%d, v%d' % (th+2, th+3))],
             4: lambda: [P('v_add_f32 v%d, v%d, v%d' % (th, th, th+1)), P('v_add_f32 v%d, v%d, v%d' % (th+2, th+2, th+3))],
             5: lambda: [cvt(P, th, th, th+2), tagst(th), P('buffer_store_dword v%d, v%d, %s, s%d offen%s' % (th, V_PT0, WS, S_PCUR, st))],
             6: lambda: [pcvt(0), tagst(accs[0]), pstore(0)],
             7: lambda: [P(blk_s(lds_o[3], SB[1]))],
             10: lambda: [pcvt(1), tagst(accs[1]), pstore(1)],
             14: lambda: [pcvt(2), tagst(accs[2]), pstore(2)]}
    for i, (pr, c) in enumerate(seq):
        smf(P, accs[pr], dual + 4*c, bop(('od', pr, c), SB[pr % 2]))
        if i in extra: extra[i]()
    pcvt(3); tagst(accs[3]); pstore(3)
    stamp(P, 4)
    def idle_a(P):
        for i in range(4): P('v_permlane32_swap_b32 v%d, v%d' % (V_VA+i, V_VB+i))
        pk_add(P, V_VA, V_VA, V_VB); pk_add(P, V_VA+2, V_VA+2, V_VB+2)
        cvt(P, V_VMH, V_VA, V_VA+1); cvt(P, V_VMH+1, V_VA+2, V_VA+3)
        P('s_mov_b32 s%d, s%d' % (S_VMP, S_KM))
        if not OPT.get('nokv'):
            P('s_add_u32 s%d, s%d, %d' % (S_KV, S_KV, 32*8192)); P('s_add_u32 s%d, s%d, %d' % (S_VV, S_VV, 32*8192))
        if not OPT.get('nokm'): P('s_add_u32 s%d, s%d, %d' % (S_KM, S_KM, 32*2048)); P('s_add_u32 s%d, s%d, %d' % (S_KMW, S_KMW, 32*2048))
        P('s_add_u32 s%d, s%d, s%d' % (S_G0, S_MNXT, S_GW)); P('s_add_u32 s%d, s%d, 4096' % (S_G1, S_G0)); P('s_add_u32 s%d, s%d, 8192' % (S_G2, S_MNXT))
        P('s_add_u32 s%d, s%d, 3' % (S_T1, S_STEP)); P('s_and_b32 s%d, s%d, 3' % (S_T1, S_T1)); P('s_mul_i32 s%d, s%d, %d' % (S_T1, S_T1, M_SLOT))
        P('s_add_u32 s%d, s%d, 0x%x' % (S_MPN, S_T1, WS_M))
        P('s_add_u32 s%d, s%d, 1' % (S_STEP, S_STEP))
    BR = V_QA; CK = V_QA+4
    RL = [V_AR, V_AR+4, V_AR+8, SB[1]]; D = SB[1]+4
    def red_loads(P):
        for t in range(4): P('buffer_load_dwordx4 %s, v%d, %s, s%d offen sc1 ;@spec' % (vr(RL[t],4), V_RED, WS, S_PR0+t))
    def red_check(P, par):
        if par == 0:
            P('v_or3_b32 v%d, v%d, v%d, v%d' % (CK, RL[0], RL[0]+2, RL[1])); P('v_or3_b32 v%d, v%d, v%d, v%d' % (CK+1, RL[1]+2, RL[2], RL[2]+2))
            P('v_or3_b32 v%d, v%d, v%d, v%d' % (CK, CK, RL[3], RL[3]+2)); P('v_or_b32 v%d, v%d, v%d' % (CK, CK, CK+1))
        else:
            P('v_and_b32 v%d, v%d, v%d' % (CK, RL[0], RL[0]+2)); P('v_and_b32 v%d, v%d, v%d' % (CK+1, RL[1], RL[1]+2))
            P('v_and_b32 v%d, v%d, v%d' % (CK+2, RL[2], RL[2]+2)); P('v_and_b32 v%d, v%d, v%d' % (CK+3, RL[3], RL[3]+2))
            P('v_and_b32 v%d, v%d, v%d' % (CK, CK, CK+1)); P('v_and_b32 v%d, v%d, v%d' % (CK+2, CK+2, CK+3)); P('v_and_b32 v%d, v%d, v%d' % (CK, CK, CK+2))
        P('v_and_b32 v%d, 1, v%d' % (CK, CK))
        P('v_cmp_ne_u32 vcc, s%d, v%d' % (S_TAG, CK))
    P('s_cmp_eq_u32 s%d, 0' % S_RED)
    P('s_cbranch_scc1 L_nored')
    P('buffer_store_dword v%d, v%d, %s, s%d offen%s' % (V_NEG1, V_MST, WS, S_MPOI, st))
    if OPT.get('canary'):
        P('s_memtime s[90:91]')
        P('s_cmp_eq_u32 s%d, 0' % S_TAG); P('s_cbranch_scc0 L_can1')
        for par in range(2):
            P.label('L_can%d' % par)
            for t in range(4): P('buffer_load_dword v%d, v%d, %s, s%d offen offset:8 sc1' % (V_AR+t, V_RED, WS, S_PR0+t))
            P('s_waitcnt vmcnt(0)')
            if par == 0: P('v_or3_b32 v24, v20, v21, v22'); P('v_or_b32 v24, v24, v23')
            else: P('v_and_b32 v24, v20, v21'); P('v_and_b32 v25, v22, v23'); P('v_and_b32 v24, v24, v25')
            P('v_and_b32 v24, 1, v24'); P('v_cmp_ne_u32 vcc, s%d, v24' % S_TAG)
            P('s_cbranch_vccnz L_can%d' % par)
            P('s_branch L_can_done')
        P.label('L_can_done')
        P('s_memtime s[92:93]'); P('s_waitcnt lgkmcnt(0)'); P('s_sub_u32 s%d, s92, s90' % (S_ST+3))
    delay(P, S_RDEL, 'L_rdel')
    stamp(P, 7)
    red_loads(P)
    for r in range(4): P('v_cndmask_b32 v%d, 0, v%d, s[%d:%d]' % (BR+r, V_BVAL, S_BM+2*r, S_BM+2*r+1))
    idle_a(P)
    RD = OPT.get('rdepth', 2)
    if RD == 2: red_loads(P)
    P('s_mov_b32 s%d, s%d' % (S_TMO, S_TMOV))
    P('s_cmp_eq_u32 s%d, 0' % S_TAG); P('s_cbranch_scc0 L_red_poll1')
    for par in range(2):
        P.label('L_red_poll%d' % par)
        P('s_waitcnt vmcnt(%d)' % (4 if RD == 2 else 0))
        red_check(P, par)
        P('s_cbranch_vccz L_red_done')
        if OPT['rc']: P('s_add_u32 s%d, s%d, 1' % (S_RC, S_RC))
        red_loads(P)
        P('s_sub_u32 s%d, s%d, 1' % (S_TMO, S_TMO)); P('s_cmp_lg_u32 s%d, 0' % S_TMO); P('s_cbranch_scc1 L_red_poll%d' % par)
        P('s_or_b32 s%d, s%d, 1' % (S_ERR, S_ERR)); P('s_mov_b32 s%d, 1' % S_TMOV)
        P('s_branch L_red_done')
    P.label('L_red_done')
    mfma32(P, D, RL[0], BR)
    for t in range(1, 4): mfma32(P, D, RL[t], BR, D)
    P('v_permlane32_swap_b32 v%d, v%d' % (D, D+1)); P('v_permlane32_swap_b32 v%d, v%d' % (D+2, D+3))
    P('v_add_f32 v%d, v%d, v%d' % (D, D, D+1)); P('v_add_f32 v%d, v%d, v%d' % (D+2, D+2, D+3))
    cvt(P, D, D, D+2)
    P('buffer_store_dword v%d, v%d, %s, s%d offen%s' % (D, V_MST, WS, S_MNXT, st))
    P('s_mov_b32 s%d, %d' % (S_T2, OPT['gdel']))
    P('s_branch L_red_done2')
    P.label('L_nored')
    idle_a(P)
    if kvwait: kvwait(P)
    if OPT.get('gsl0'):
        P('s_sleep %d' % OPT['gsl0']); P('s_mov_b32 s%d, %d' % (S_T2, OPT.get('gsl0r', 0)))
    else:
        P('s_mov_b32 s%d, %d' % (S_T2, OPT['gdel0']))
    P.label('L_red_done2')
    stamp(P, 5)
    GL = V_QA + 8; CK = V_QA + 9
    P('v_add_u32 v%d, s%d, v%d' % (GL, S_GW, V_L16))
    delay(P, S_T2, 'L_gdel')
    def gat_loads(P, w0):
        P('buffer_load_dwordx4 v[72:75], v%d, %s, s%d offen sc1 ;@spec' % (V_L16, WS, S_G0))
        P('buffer_load_dwordx4 v[76:79], v%d, %s, s%d offen sc1 ;@spec' % (V_L16, WS, S_G1))
        if w0: P('buffer_load_dwordx4 v[68:71], v%d, %s, s%d offen sc1 ;@spec' % (V_L16, WS, S_G2))
    def gat_check(P, w0):
        P('v_max3_u32 v%d, v72, v73, v74' % CK); P('v_max3_u32 v%d, v75, v76, v77' % (CK+1))
        P('v_max3_u32 v%d, v%d, v78, v79' % (CK, CK))
        if w0:
            P('v_max3_u32 v%d, v%d, v68, v69' % (CK+1, CK+1)); P('v_max3_u32 v%d, v%d, v70, v71' % (CK, CK))
        P('v_max_u32 v%d, v%d, v%d' % (CK, CK, CK+1))
        P('v_cmp_eq_u32 vcc, -1, v%d' % CK)
    def idle_b(P):
        P('s_xor_b32 s%d, s%d, 1' % (S_TAG, S_TAG))
        P('s_mov_b32 s%d, s%d' % (S_MNXT, S_MPOI)); P('s_mov_b32 s%d, s%d' % (S_MPOI, S_MPN))
        P('s_mov_b32 s%d, s%d' % (S_TMO, S_TMOV))
        for r in (V_QA, V_QA+2, V_QA+4, V_QA+6, V_QA+12, V_QA+14, V_VA, V_VA+2): P('v_mov_b64 %s, 0' % vr(r,2))
        P(blk_s(('k',0,0), V_ST))
    P('s_cmp_eq_u32 s%d, 0' % S_W)
    P('s_cbranch_scc1 L_gat0')
    for w0, pfx in ((False, 'L_gat'), (True, 'L_gat0')):
        n = 3 if w0 else 2
        if w0: P.label('L_gat0')
        gat_loads(P, w0)
        idle_b(P)
        GD = OPT.get('gdepth', 2)
        if GD == 2: gat_loads(P, w0)
        P.label(pfx + '_poll')
        P('s_waitcnt vmcnt(%d)' % (n if GD == 2 else 0))
        gat_check(P, w0)
        P('s_cbranch_vccz %s_ok' % pfx)
        if OPT['rc']: P('s_add_u32 s%d, s%d, 1' % (S_RC+1, S_RC+1))
        gat_loads(P, w0)
        P('s_sub_u32 s%d, s%d, 1' % (S_TMO, S_TMO)); P('s_cmp_lg_u32 s%d, 0' % S_TMO); P('s_cbranch_scc1 %s_poll' % pfx)
        P('s_or_b32 s%d, s%d, 2' % (S_ERR, S_ERR)); P('s_mov_b32 s%d, 1' % S_TMOV)
        P.label(pfx + '_ok')
        P('ds_write_b128 v%d, v[72:75] offset:%d' % (GL, L_MF))
        P('ds_write_b128 v%d, v[76:79] offset:%d' % (GL, L_MF + 4096))
        if w0: P('ds_write_b128 v%d, v[68:71] offset:%d' % (V_L16, L_MF + 8192))
        P(blk_s(('k',1,0), V_ST+8))
        P('v_mov_b64 %s, 0' % vr(V_QA+8,2)); P('v_mov_b64 %s, 0' % vr(V_QA+10,2))
        if not w0: P('s_branch L_gat_w')
    P.label('L_gat_w')
    stamp(P, 6)
    flush_stamps(P)
    P('WAIT_LDSW')
    P('s_barrier')
    P('s_branch L_chain_loop')
    P.label('L_chain_last')
    if OPT.get('earlylast', 1) and late:
        km_store()
        P('buffer_store_dwordx2 %s, v%d, %s, s%d offen sc1' % (vr(V_VMH,2), V_VM, WS, S_VMP))
        for x in Flast: P(x)
    for i in range(4): P('v_permlane32_swap_b32 v%d, v%d' % (V_VA+i, V_VB+i))
    pk_add(P, V_VA, V_VA, V_VB); pk_add(P, V_VA+2, V_VA+2, V_VB+2)
    cvt(P, V_VA, V_VA, V_VA+1); cvt(P, V_VA+1, V_VA+2, V_VA+3)
    P('buffer_store_dwordx2 %s, v%d, %s, s%d offen sc1' % (vr(V_VA,2), V_VM, WS, S_KM))
    P('s_branch L_chain_done')
    return P


def early_init(st, cb_off, zcheck=None):
    def hook(P, second=False):
        if not second:
            if zcheck:
                P('v_mov_b32 v59, %d' % zcheck[1]); P('global_load_dword v58, v59, s[%d:%d] sc1' % (zcheck[0], zcheck[0]+1))
                P('v_mov_b32 v57, %d' % zcheck[2]); P('global_load_dword v56, v57, s[%d:%d] sc1' % (zcheck[0], zcheck[0]+1))
            P('s_mov_b32 s64, s%d' % (S_PTR+8)); P('s_mov_b32 s65, s%d' % (S_PTR+9)); P('s_mov_b32 s66, %d' % (8*576*2)); P('s_mov_b32 s67, 0x20000')
            P('s_lshl_b32 s%d, s%d, 6' % (S_T0, S_W)); P('v_add_u32 v60, s%d, v0' % S_T0)
            for i in range(3):
                P('v_add_u32 v61, %d, v60' % (256*i)); P('v_and_b32 v62, 7, v61'); P('v_lshrrev_b32 v63, 3, v61')
                P('s_movk_i32 s%d, 1152' % S_T1); P('v_mul_lo_u32 v62, v62, s%d' % S_T1); P('v_lshl_add_u32 v62, v63, 4, v62')
                P('v_cmp_gt_u32 vcc, 576, v61'); P('v_mov_b32 v63, 0x%x' % OOB); P('v_cndmask_b32 v62, v63, v62, vcc')
                P('buffer_load_dwordx4 %s, v62, s[64:67], 0 offen' % vr(64+4*i,4))
            P('v_mov_b32 v76, -1'); P('v_mov_b32 v77, -1'); P('v_mov_b32 v78, -1'); P('v_mov_b32 v79, -1')
            P('s_mul_i32 s%d, s%d, %d' % (S_T0, S_H, P_HEAD)); P('s_add_u32 s%d, s%d, 0x%x' % (S_T0, S_T0, WS_P))
            P('v_lshlrev_b32 v61, 4, v60')
            for i in range(3):
                if i == 2:
                    P('v_mov_b32 v63, 0x%x' % OOB); P('v_cmp_gt_u32 vcc, 64, v60'); P('v_cndmask_b32 v61, v63, v61, vcc')
                P('s_add_u32 s%d, s%d, %d' % (S_T1, S_T0, 4096*i)); P('buffer_store_dwordx4 v[76:79], v61, %s, s%d offen%s' % (WS, S_T1, st))
            P('s_sub_u32 s%d, s%d, 1' % (S_T0, S_W)); P('s_lshl_b32 s%d, s%d, 5' % (S_T0, S_T0)); P('s_add_u32 s%d, s%d, s%d' % (S_T0, S_T0, S_H))
            P('s_cmp_lt_u32 s%d, 72' % S_T0); P('s_cselect_b32 s%d, 1, 0' % S_T1); P('s_cmp_eq_u32 s%d, 0' % S_W); P('s_cselect_b32 s%d, 0, s%d' % (S_T1, S_T1))
            P('s_lshl_b32 s%d, s%d, 7' % (S_T0, S_T0))
            P('v_lshlrev_b32 v61, 2, v0'); P('v_mov_b32 v63, 0x%x' % OOB); P('v_cmp_gt_u32 vcc, 32, v0'); P('v_cndmask_b32 v61, v63, v61, vcc')
            P('s_cmp_eq_u32 s%d, 0' % S_T1); P('s_cselect_b64 vcc, -1, 0'); P('v_cndmask_b32 v61, v61, v63, vcc')
            for slot in range(4):
                P('s_add_u32 s%d, s%d, 0x%x' % (S_T1, S_T0, WS_M + slot*M_SLOT)); P('buffer_store_dword v76, v61, %s, s%d offen%s' % (WS, S_T1, st))
        else:
            if zcheck: P('v_readfirstlane_b32 s%d, v56' % zcheck[3])
            P('s_mov_b32 s%d, 0x05040100' % S_PERM); P('s_mov_b32 s%d, 0x07060302' % S_PERM2)
            for i in range(3):
                d = 64 + 4*i
                P('v_perm_b32 v76, v%d, v%d, s%d' % (d+1, d, S_PERM)); P('v_perm_b32 v77, v%d, v%d, s%d' % (d+3, d+2, S_PERM))
                P('v_perm_b32 v78, v%d, v%d, s%d' % (d+1, d, S_PERM2)); P('v_perm_b32 v79, v%d, v%d, s%d' % (d+3, d+2, S_PERM2))
                P('v_add_u32 v61, %d, v60' % (256*i)); P('v_cmp_gt_u32 vcc, 576, v61'); P('v_lshlrev_b32 v61, 4, v61')
                P('s_and_saveexec_b64 s[%d:%d], vcc' % (S_TS, S_TS+1))
                P('ds_write_b128 v61, v[76:79] offset:%d' % L_MF)
                P('s_mov_b64 exec, s[%d:%d]' % (S_TS, S_TS+1))
            if cb_off is not None:
                P('s_cmp_eq_u32 s%d, 0' % S_W); P('s_cbranch_scc0 L_ei_%s' % ('s' if st else 'f'))
                if zcheck:
                    P('s_mov_b32 s%d, 30000' % S_TMO)
                    P.label('L_ei_z')
                    P('v_readfirstlane_b32 s%d, v58' % S_T1); P('s_cmp_lg_u32 s%d, 0' % S_T1); P('s_cbranch_scc1 L_ei_zd')
                    P('global_load_dword v58, v59, s[%d:%d] sc1' % (zcheck[0], zcheck[0]+1)); P('s_waitcnt vmcnt(0)')
                    P('s_sub_u32 s%d, s%d, 1' % (S_TMO, S_TMO)); P('s_cmp_lg_u32 s%d, 0' % S_TMO); P('s_cbranch_scc1 L_ei_z')
                    P.label('L_ei_zd')
                P('s_mov_b32 s%d, 0x%x' % (S_T1, cb_off)); P('v_mov_b32 v61, 1'); P('s_mov_b64 exec, 1')
                P('buffer_atomic_add v61, off, %s, s%d' % (WS, S_T1)); P('s_mov_b64 exec, -1')
                P.label('L_ei_%s' % ('s' if st else 'f'))
    return hook
```

```python
import sys
from asmlib import *
from common import *
import chain2 as C
import workers as W1
import workers2 as W2
import gemm2 as G2
from gemm2 import vr, WSs, G_W, G_T0, G_T1, G_T2, G_T3, G_BSRD, G_OSRD, G_DST
from workers import srd
from gen_chain_test import header, kdesc

F_QUEUE = 0; F_LN = 128*1; F_KV = 128*9; F_Q = 128*17; F_H = 128*25; F_M2 = 128*33; F_PROG = 128*41; F_O = 128*73
F_DIAG = 128*140; F_CB = 128*137; F_LD = 128*139; F_ERR = 128*138
F_ZERO = 24576
FL = WS_FLAG
BIGTMO = 30000
S_ABORT = 3
S_X = 4; S_TK = 5; S_G = 6; S_RANK = 7
S_DBG = 42
OPT = dict(force_abnormal=0)
NPF = 3
_uid = [0]
def uid(p):
    _uid[0] += 1; return '%s_%d' % (p, _uid[0])

def poll_ge(P, soff, target, vtmp=2, stmp=G_T0, scnt=G_T1, tgt_is_sgpr=False, x4min=False, sleep=4):
    L = uid('L_pg'); D = L + '_d'
    P('s_mov_b32 s%d, s%d' % (scnt, S_ABORT))
    P.label(L)
    P('s_mov_b64 exec, 1')
    if x4min:
        P('buffer_load_dwordx4 %s, off, %s, s%d sc1' % (vr(vtmp,4), WSs, soff))
        P('s_waitcnt vmcnt(0)')
        P('v_min_u32 v%d, v%d, v%d' % (vtmp, vtmp, vtmp+1)); P('v_min_u32 v%d, v%d, v%d' % (vtmp+2, vtmp+2, vtmp+3)); P('v_min_u32 v%d, v%d, v%d' % (vtmp, vtmp, vtmp+2))
    else:
        P('buffer_load_dword v%d, off, %s, s%d sc1' % (vtmp, WSs, soff))
        P('s_waitcnt vmcnt(0)')
    P('s_nop 0')
    P('v_readfirstlane_b32 s%d, v%d' % (stmp, vtmp))
    P('s_mov_b64 exec, -1')
    P('s_cmp_ge_u32 s%d, %s' % (stmp, ('s%d' % target) if tgt_is_sgpr else str(target)))
    P('s_cbranch_scc1 %s' % D)
    if sleep: P('s_sleep %d' % sleep)
    P('s_sub_u32 s%d, s%d, 1' % (scnt, scnt)); P('s_cmp_lg_u32 s%d, 0' % scnt); P('s_cbranch_scc1 %s' % L)
    P('s_mov_b32 s%d, 1' % S_ABORT)
    P.label(D)

def wg_wait(P, soff, target, vtmp=2, sleep=16):
    L = uid('L_wgw')
    P('s_cmp_eq_u32 s%d, 0' % G_W); P('s_cbranch_scc0 %s' % L)
    poll_ge(P, soff, target, vtmp=vtmp, sleep=sleep)
    P.label(L)
    P('s_barrier')

def signal(P, soff, vtmp=2, val='1'):
    L = uid('L_sig')
    P('s_waitcnt vmcnt(0)'); P('s_barrier')
    P('s_cmp_eq_u32 s%d, 0' % G_W); P('s_cbranch_scc0 %s' % L)
    P('v_mov_b32 v%d, %s' % (vtmp, val)); P('s_mov_b64 exec, 1')
    P('buffer_atomic_add v%d, off, %s, s%d' % (vtmp, WSs, soff))
    P('s_mov_b64 exec, -1')
    P.label(L)

D_CNT0 = 0; D_CNTX = 128; D_ZERO = 192
def read_counts(P, v):
    P('v_and_b32 v%d, 7, v0' % (v+1)); P('v_lshlrev_b32 v%d, 2, v%d' % (v+1, v+1)); P('v_add_u32 v%d, %d, v%d' % (v+1, D_CNTX, v+1))
    P('v_and_b32 v%d, 7, v0' % v); P('v_cmp_eq_u32 vcc, 0, v%d' % v); P('v_cndmask_b32 v%d, v%d, 0, vcc' % (v+1, v+1))
    P('global_load_dword v%d, v%d, s[%d:%d] sc1' % (v, v+1, S_DBG, S_DBG+1)); P('s_waitcnt vmcnt(0)')

def wait_zeroed(P):
    L = uid('L_wz')
    P('s_cmp_eq_u32 s%d, 0' % G_W); P('s_cbranch_scc0 %s_d' % L)
    P('s_mov_b32 s13, s%d' % S_ABORT)
    P.label(L)
    P('v_mov_b32 v2, %d' % D_ZERO); P('global_load_dword v3, v2, s[%d:%d] sc1' % (S_DBG, S_DBG+1)); P('s_waitcnt vmcnt(0)')
    P('v_readfirstlane_b32 s12, v3'); P('s_cmp_lg_u32 s12, 0'); P('s_cbranch_scc1 %s_d' % L)
    P('s_sleep 8'); P('s_sub_u32 s13, s13, 1'); P('s_cmp_lg_u32 s13, 0'); P('s_cbranch_scc1 %s' % L)
    P.label(L + '_d')
    P('s_barrier')

def bootstrap(k):
    P = Prog()
    P('s_cmp_ge_u32 s2, 256'); P('s_cbranch_scc1 L_end')
    P('s_mov_b32 s%d, %d' % (S_ABORT, BIGTMO))
    if OPT.get('diag'): P('s_memrealtime s[90:91]')
    P('s_load_dwordx2 s[%d:%d], s[0:1], %d' % (S_DBG, S_DBG+1, KA['dbg']))
    P('s_load_dwordx2 s[8:9], s[0:1], %d' % KA['ws'])
    P('s_getreg_b32 s%d, hwreg(HW_REG_XCC_ID, 0, 4)' % S_X)
    P('v_lshrrev_b32 v1, 6, v0'); P('v_and_b32 v0, 63, v0'); P('s_nop 0')
    P('v_readfirstlane_b32 s%d, v1' % G_W)
    P('s_and_b32 s%d, s%d, %d' % (S_X, S_X, 6 if OPT['force_abnormal'] == 3 else 7))
    P('s_waitcnt lgkmcnt(0)')
    P('s_mov_b32 s10, 0x%x' % WS_SIZE); P('s_mov_b32 s11, 0x20000')
    if OPT.get('wopf', 0):
        P('s_cmp_eq_u32 s%d, 0' % G_W); P('s_cbranch_scc1 L_wopf_done')
        P('s_cmp_eq_u32 s%d, 0' % S_X); P('s_cbranch_scc0 L_wopf_done')
        P('s_load_dwordx2 s[12:13], s[0:1], %d' % KA['Wo'])
        P('s_lshr_b32 s14, s2, 3'); P('s_and_b32 s14, s14, 31'); P('s_mul_i32 s14, s14, 147456')
        P('s_sub_u32 s15, s%d, 1' % G_W); P('s_mul_i32 s15, s15, 36864'); P('s_add_u32 s14, s14, s15')
        P('v_lshlrev_b32 v2, 7, v0'); P('v_add_u32 v2, s14, v2')
        P('s_waitcnt lgkmcnt(0)')
        for i in range(OPT.get('wopfn', 4)):
            P('global_load_dword v%d, v2, s[12:13]' % (40+i)); P('v_add_u32 v2, 8192, v2')
        P.label('L_wopf_done')
    P('s_cmp_eq_u32 s%d, 0' % G_W); P('s_cbranch_scc0 L_bs1')
    P('s_lshl_b32 s12, s%d, 2' % S_X); P('s_add_u32 s12, s12, %d' % D_CNTX); P('s_cmp_eq_u32 s%d, 0' % S_X); P('s_cselect_b32 s12, %d, s12' % D_CNT0)
    P('v_mov_b32 v2, s12'); P('v_mov_b32 v3, 1'); P('s_mov_b64 exec, 1')
    P('global_atomic_add v4, v2, v3, s[%d:%d] sc0' % (S_DBG, S_DBG+1))
    P('s_waitcnt vmcnt(0)'); P('v_mov_b32 v2, 0'); P('ds_write_b32 v2, v4'); P('s_waitcnt lgkmcnt(0)')
    P('s_mov_b64 exec, -1')
    P.label('L_bs1')
    P('s_cmp_eq_u32 s2, 0'); P('s_cbranch_scc0 L_bs2')
    P('s_lshl_b32 s12, s%d, 6' % G_W); P('v_add_u32 v2, s12, v0'); P('v_lshlrev_b32 v2, 4, v2')
    P('v_mov_b64 v[4:5], 0'); P('v_mov_b64 v[6:7], 0')
    for i in range(F_ZERO // 4096):
        P('s_mov_b32 s12, 0x%x' % (FL + i*4096)); P('buffer_store_dwordx4 v[4:7], v2, %s, s12 offen sc1' % WSs)
    P('s_waitcnt vmcnt(0)'); P('s_barrier')
    P('s_cmp_eq_u32 s%d, 0' % G_W); P('s_cbranch_scc0 L_bs2')
    P('v_mov_b32 v2, %d' % D_ZERO); P('v_mov_b32 v3, 1'); P('s_mov_b64 exec, 1'); P('global_store_dword v2, v3, s[%d:%d] sc1' % (S_DBG, S_DBG+1)); P('s_mov_b64 exec, -1')
    P.label('L_bs2')
    P('s_barrier'); P('v_mov_b32 v2, 0'); P('ds_read_b32 v4, v2'); P('s_waitcnt lgkmcnt(0)')
    P('v_readfirstlane_b32 s%d, v4' % S_TK)
    P('s_barrier')
    P('s_cmp_lt_u32 s%d, 32' % S_TK); P('s_cbranch_scc1 L_role')
    P('s_mov_b32 s13, s%d' % S_ABORT)
    P.label('L_ov_poll')
    read_counts(P, 4)
    for x in range(8): P('v_readlane_b32 s%d, v4, %d' % (20+x, x))
    P('s_mov_b32 s12, 0')
    for x in range(8): P('s_add_u32 s12, s12, s%d' % (20+x))
    P('s_cmp_ge_u32 s12, 256'); P('s_cbranch_scc1 L_ov_ok')
    P('s_sleep 8'); P('s_sub_u32 s13, s13, 1'); P('s_cmp_lg_u32 s13, 0'); P('s_cbranch_scc1 L_ov_poll')
    P.label('L_ov_ok')
    P('s_sub_u32 s12, s%d, 32' % S_TK)
    for x in range(8):
        P('s_sub_i32 s14, s%d, 32' % (20+x)); P('s_max_i32 s14, s14, 0'); P('s_cmp_gt_u32 s%d, %d' % (S_X, x)); P('s_cselect_b32 s14, s14, 0'); P('s_add_u32 s12, s12, s14')
    P('s_mov_b32 s15, 0')
    for x in range(8):
        P('s_sub_i32 s14, 32, s%d' % (20+x)); P('s_max_i32 s14, s14, 0')
        P('s_cmp_eq_u32 s15, 0'); P('s_cselect_b32 s16, 1, 0'); P('s_cmp_lt_u32 s12, s14'); P('s_cselect_b32 s16, s16, 0')
        P('s_cmp_eq_u32 s16, 1'); P('s_cbranch_scc0 L_ov_n%d' % x)
        P('s_mov_b32 s%d, %d' % (S_X, x)); P('s_add_u32 s%d, s%d, s12' % (S_TK, 20+x)); P('s_mov_b32 s15, 1')
        P.label('L_ov_n%d' % x)
        P('s_cmp_eq_u32 s15, 0'); P('s_cselect_b32 s14, s14, 0'); P('s_sub_u32 s12, s12, s14')
    P.label('L_role')
    if OPT['force_abnormal'] == 2:
        P('s_and_b32 s12, s%d, 1' % S_TK); P('s_add_u32 s%d, s%d, s12' % (S_X, S_X)); P('s_and_b32 s%d, s%d, 7' % (S_X, S_X))
    P('s_cmp_eq_u32 s%d, 0' % S_X); P('s_cbranch_scc0 L_wk')
    P('s_mov_b32 s%d, s%d' % (C.S_H, S_TK))
    P('s_branch L_chain')
    P.label('L_wk')
    P('s_sub_u32 s%d, s%d, 1' % (S_RANK, S_X)); P('s_lshl_b32 s%d, s%d, 5' % (S_RANK, S_RANK)); P('s_add_u32 s%d, s%d, s%d' % (S_RANK, S_RANK, S_TK))
    P('s_branch L_worker')
    k.straight(P); k.reset_state()

def chain_ptrs(P):
    for i, n in enumerate(('Wq', 'Wk', 'Wv', 'Wo', 'mem0')): P('s_load_dwordx2 s[%d:%d], s[0:1], %d' % (C.S_PTR+2*i, C.S_PTR+2*i+1, KA[n]))
    P('s_waitcnt lgkmcnt(0)')

def chain_common(k):
    P = Prog(); P.label('L_chain'); chain_ptrs(P)
    if OPT.get('diag'): P('s_memrealtime s[94:95]'); P('s_waitcnt lgkmcnt(0)')
    k.straight(P)
    C.load_weights(k, hook=C.early_init(' sc1', FL + F_CB, zcheck=(S_DBG, D_ZERO, D_CNT0, 75)))
    P = Prog()
    if OPT.get('diag'):
        P('s_memrealtime s[92:93]'); P('s_waitcnt lgkmcnt(0)')
        if OPT.get('loaderonly'):
            P('s_sub_u32 s92, s92, s90'); P('s_sub_u32 s94, s94, s90'); P('v_mov_b32 v20, s92'); P('v_mov_b32 v21, s94'); P('v_mov_b32 v22, 0'); P('v_mov_b32 v23, 0')
            P('s_cmp_eq_u32 s17, 0'); P('s_cbranch_scc0 L_end')
            P('s_mov_b32 s88, 0x%x' % (FL + F_DIAG + 16)); P('buffer_store_dwordx4 v[20:23], off, %s, s88 sc1' % C.WS); P('s_waitcnt vmcnt(0)'); P('s_branch L_end')
    P('s_cmp_ge_u32 s75, 32'); P('s_cselect_b32 s13, 1, 0')
    if OPT['force_abnormal']: P('s_mov_b32 s13, 0')
    P('s_cmp_eq_u32 s13, 1'); P('s_cbranch_scc0 L_chain_slow')
    k.straight(P); k.reset_state()

def chain_role(k, fast):
    st = '' if fast else ' sc1'
    sfx = 'f' if fast else 's'
    P = Prog(); P.label('L_chain_fast' if fast else 'L_chain_slow'); k.straight(P)
    P = Prog()
    Lx = uid('L_ld')
    P('s_cmp_eq_u32 s%d, 0' % C.S_W); P('s_cbranch_scc0 %s' % Lx)
    P('s_mov_b32 s%d, 0x%x' % (C.S_T1, FL + F_LD)); P('v_mov_b32 v61, 1'); P('s_mov_b64 exec, 1')
    P('buffer_atomic_add v61, off, %s, s%d' % (C.WS, C.S_T1)); P('s_mov_b64 exec, -1')
    P('s_mov_b32 s%d, 0x%x' % (C.S_T1, FL + F_CB)); P('buffer_load_dword v78, off, %s, s%d sc1' % (C.WS, C.S_T1))
    P('s_mov_b32 s%d, 0x%x' % (C.S_T1, FL + F_KV)); P('buffer_load_dword v79, off, %s, s%d sc1' % (C.WS, C.S_T1))
    P.label(Lx)
    k.straight(P)
    C.lane_setup(k)
    P = Prog()
    P('v_mov_b32 v%d, -1' % C.V_NEG1)
    P('s_lshl_b32 s%d, s%d, 7' % (C.S_PROG, C.S_H))
    P('s_add_u32 s%d, s%d, 0x%x' % (C.S_PROG, C.S_PROG, FL + F_PROG))
    P('s_cmp_eq_u32 s%d, 0' % C.S_W); P('s_cselect_b32 s%d, s%d, 0x40000000' % (C.S_PROGW, C.S_PROG))
    L = 'L_cb_%s' % sfx
    P('s_cmp_eq_u32 s%d, 0' % C.S_W); P('s_cbranch_scc0 %s_wait' % L)
    P('s_waitcnt vmcnt(0)')
    P('v_readfirstlane_b32 s%d, v78' % C.S_T0); P('v_readfirstlane_b32 s%d, v79' % C.S_T1)
    P('s_cmp_ge_u32 s%d, 32' % C.S_T0); P('s_cselect_b32 s%d, 1, 0' % C.S_T0); P('s_cmp_ge_u32 s%d, 128' % C.S_T1); P('s_cselect_b32 s%d, s%d, 0' % (C.S_T0, C.S_T0))
    P('s_cmp_eq_u32 s%d, 1' % C.S_T0); P('s_cbranch_scc1 %s_wait' % L)
    P('s_mov_b32 s%d, 0x%x' % (C.S_T2, FL + F_CB))
    poll_ge(P, C.S_T2, 32, vtmp=22, stmp=C.S_T0, scnt=C.S_TMO, sleep=2)
    P('s_mov_b32 s%d, 0x%x' % (C.S_T2, FL + F_KV))
    poll_ge(P, C.S_T2, 128, vtmp=22, stmp=C.S_T0, scnt=C.S_TMO, sleep=2)
    P.label(L + '_wait')
    C.pre_step(P)
    P('s_waitcnt vmcnt(0) lgkmcnt(0)'); P('s_barrier')
    if OPT.get('diag'): P('s_memtime s[94:95]'); P('s_memrealtime s[96:97]'); P('s_waitcnt lgkmcnt(0)')
    k.straight(P)
    def kvwait(P):
        Lx = uid('L_kvw')
        P('s_and_b32 s%d, s%d, 7' % (C.S_T0, C.S_STEP)); P('s_or_b32 s%d, s%d, s%d' % (C.S_T0, C.S_T0, C.S_W))
        P('s_cmp_eq_u32 s%d, 0' % C.S_T0); P('s_cbranch_scc0 %s' % Lx)
        P('s_lshl_b32 s%d, s%d, 4' % (C.S_T3, C.S_STEP)); P('s_add_u32 s%d, s%d, 0x%x' % (C.S_T3, C.S_T3, FL + F_KV))
        poll_ge(P, C.S_T3, 128, vtmp=22, stmp=C.S_T0, scnt=C.S_TMO, sleep=0)
        P.label(Lx)
    def publish(P):
        P('s_sub_i32 s%d, s%d, 1' % (C.S_T0, C.S_STEP)); P('s_max_i32 s%d, s%d, 0' % (C.S_T0, C.S_T0))
        P('v_mov_b32 v%d, s%d' % (C.V_VMH, C.S_T0))
        P('s_mov_b64 exec, 1')
        P('buffer_store_dword v%d, off, %s, s%d sc1' % (C.V_VMH, C.WS, C.S_PROGW))
        P('s_mov_b64 exec, -1')
    body = C.main_loop(k, st=st, kvwait=kvwait, publish=publish)
    txt = [i.text for i in body.items]
    B = Prog()
    for t in txt:
        t2 = t
        for lab in ('L_chain_loop', 'L_red', 'L_rdel', 'L_nored', 'L_gat', 'L_gdel', 'L_chain_last', 'L_chain_done', 'L_nopf'):
            t2 = t2.replace(lab, lab + sfx) if lab in t2 else t2
        B(t2)
    k.loop(B)
    P = Prog()
    P.label('L_chain_done' + sfx)
    P('s_waitcnt vmcnt(0)'); P('s_barrier')
    P('s_cmp_eq_u32 s%d, 0' % C.S_W); P('s_cbranch_scc0 L_cdn_%s' % sfx)
    P('v_mov_b32 v20, 64'); P('s_mov_b64 exec, 1'); P('buffer_store_dword v20, off, %s, s%d sc1' % (C.WS, C.S_PROG)); P('s_mov_b64 exec, -1')
    P.label('L_cdn_%s' % sfx)
    if OPT.get('diag'):
        P('s_memtime s[98:99]'); P('s_memrealtime s[40:41]'); P('s_waitcnt lgkmcnt(0)')
        P('s_sub_u32 s98, s98, s94'); P('s_sub_u32 s40, s40, s90'); P('s_sub_u32 s96, s96, s90'); P('s_sub_u32 s92, s92, s90')
        P('v_mov_b32 v20, s92'); P('v_mov_b32 v21, s96'); P('v_mov_b32 v22, s40'); P('v_mov_b32 v23, s98'); P('s_mov_b32 s88, 0x%x' % (FL + F_DIAG + 16))
        P('buffer_store_dwordx4 v[20:23], off, %s, s88 sc1' % C.WS)
    P('s_cmp_eq_u32 s%d, 0' % C.S_ERR); P('s_cbranch_scc1 L_cd_%s' % sfx)
    P('s_mov_b32 s%d, 0x%x' % (C.S_T2, FL + F_ERR)); P('v_mov_b32 v21, s%d' % C.S_ERR); P('buffer_atomic_or v21, off, %s, s%d' % (C.WS, C.S_T2))
    P.label('L_cd_%s' % sfx)
    P('s_waitcnt vmcnt(0)')
    P('s_branch L_end')
    k.straight(P); k.reset_state()

def worker_dispatch(k):
    P = Prog()
    P.label('L_worker')
    if OPT.get('loaderonly') == 1: P('s_branch L_end')
    end_stamp(P, 51)
    W1.load_ptrs(P, ['Wk', 'Wv', 'Wq', 'w1', 'b1', 'w2'], 48)
    W1.load_ptrs(P, ['x', 'b2', 'out', 'Wo'], 64)
    P('s_waitcnt lgkmcnt(0)')
    P('s_mov_b32 s%d, 0xc0135761' % G2.G_C0); P('s_mov_b32 s%d, 0xbdd2d3e7' % G2.G_C1)
    P('s_sub_u32 s46, s%d, 64' % S_RANK); P('s_cmp_lt_u32 s46, 128'); P('s_cbranch_scc0 L_noln')
    srd(P, G_BSRD, 64, 65, 2048*1152)
    P('s_lshl_b32 s47, s46, 4'); P('s_lshl_b32 s45, s%d, 2' % G_W); P('s_add_u32 s47, s47, s45')
    W1.ln_rows2(P, 47, ' sc1')
    wait_zeroed(P)
    P('s_lshr_b32 s46, s46, 4'); P('s_lshl_b32 s46, s46, 7'); P('s_add_u32 s46, s46, 0x%x' % (FL + F_LN))
    signal(P, 46)
    end_stamp(P, 52)
    P('s_branch L_roles')
    P.label('L_noln')
    wait_zeroed(P)
    P.label('L_roles')
    if OPT.get('loaderonly') == 2: P('s_branch L_end')
    P('s_cmp_lt_u32 s%d, 18' % S_RANK); P('s_cbranch_scc1 L_w6a')
    P('s_sub_u32 s46, s%d, 32' % S_RANK); P('s_cmp_lt_u32 s46, 18'); P('s_cbranch_scc1 L_w6b')
    P('s_sub_u32 s46, s%d, 192' % S_RANK); P('s_cmp_lt_u32 s46, 18'); P('s_cbranch_scc1 L_w6c')
    P('s_sub_u32 s46, s%d, 64' % S_RANK); P('s_cmp_lt_u32 s46, 16'); P('s_cbranch_scc1 L_w5')
    P('s_branch L_gemm')
    k.straight(P); k.reset_state()

def gemm_role(k):
    QI = 60; QN = 61
    P = Prog()
    P.label('L_gemm')
    def pull(dst_v):
        P('s_mov_b32 s62, 0x%x' % (FL + F_QUEUE))
        P('v_mov_b32 v%d, 1' % dst_v); P('s_mov_b64 exec, 1')
        P('buffer_atomic_add v%d, off, %s, s62 sc0' % (dst_v, WSs))
        P('s_mov_b64 exec, -1')
    P('s_mov_b32 s%d, s%d' % (QI, S_RANK))
    P('s_cmp_ge_u32 s%d, 80' % S_RANK); P('s_cselect_b32 s46, 52, 0'); P('s_cmp_ge_u32 s%d, 210' % S_RANK); P('s_cselect_b32 s46, 70, s46')
    P('s_cmp_lt_u32 s%d, 64' % S_RANK); P('s_cselect_b32 s47, 36, s46'); P('s_cmp_lt_u32 s%d, 32' % S_RANK); P('s_cselect_b32 s47, 18, s47')
    P('s_sub_u32 s%d, s%d, s47' % (QI, QI))
    if OPT.get('first18', 1):
        if W2.HALF:
            P('s_cmp_lt_u32 s%d, 128' % QI); P('s_cbranch_scc1 L_gm_first')
            P('s_sub_u32 s%d, s%d, 64' % (QI, QI))
        else:
            P('s_cmp_lt_u32 s%d, 64' % QI); P('s_cbranch_scc1 L_gm_first')
    if OPT.get('hold', 1):
        P('s_cmp_lt_u32 s%d, 64' % QI); P('s_cbranch_scc1 L_gm_decode')
        P('s_mov_b32 s46, 0x%x' % (FL + F_LD)); wg_wait(P, 46, OPT.get('holdn', 16), sleep=48)
    P('s_branch L_gm_decode')
    P.label('L_gm_next')
    P('s_waitcnt vmcnt(0) lgkmcnt(0)'); P('s_barrier')
    P('s_cmp_eq_u32 s%d, 0' % G_W); P('s_cbranch_scc0 L_gm_b')
    pull(2)
    P('s_waitcnt vmcnt(0)'); P('v_mov_b32 v3, 0x%x' % 65536); P('s_mov_b64 exec, 1'); P('ds_write_b32 v3, v2'); P('s_waitcnt lgkmcnt(0)'); P('s_mov_b64 exec, -1')
    P.label('L_gm_b')
    P('s_barrier'); P('v_mov_b32 v3, 0x%x' % 65536); P('ds_read_b32 v2, v3'); P('s_waitcnt lgkmcnt(0)')
    P('v_readfirstlane_b32 s%d, v2' % QI)
    P('s_add_u32 s%d, s%d, %d' % (QI, QI, 154 - (64 if (W2.HALF and OPT.get('first18', 1)) else 0)))
    P.label('L_gm_decode')
    P('s_mov_b32 s61, 1')
    TT, FG = W2.S_TT, W2.S_FG
    P('s_cmp_ge_u32 s%d, %d' % (QI, 264 + 6*156 + 48)); P('s_cbranch_scc1 L_end_drain')
    P('s_cmp_lt_u32 s%d, 264' % QI); P('s_cbranch_scc0 L_gm_d2')
    P('s_cmp_ge_u32 s%d, 132' % QI); P('s_cselect_b32 s%d, 1, 0' % TT); P('s_mul_i32 s46, s%d, 132' % TT); P('s_sub_u32 s%d, s%d, s46' % (FG, QI))
    P('s_branch L_gm_kvqh')
    P.label('L_gm_d2')
    P('s_sub_u32 s46, s%d, 264' % QI)
    P('s_cmp_ge_u32 s46, %d' % (6*156)); P('s_cbranch_scc1 L_gm_d3')
    P('s_mul_i32 s47, s46, 26887'); P('s_lshr_b32 s47, s47, 22')
    P('s_mul_i32 s45, s47, 156'); P('s_sub_u32 s45, s46, s45')
    P('s_cmp_lt_u32 s45, 24'); P('s_cbranch_scc0 L_gm_d2b')
    P('s_mov_b32 s%d, s47' % TT); P('s_mov_b32 s%d, s45' % FG); P('s_branch L_gm_m2')
    P.label('L_gm_d2b')
    P('s_add_u32 s%d, s47, 2' % TT); P('s_sub_u32 s%d, s45, 24' % FG); P('s_branch L_gm_kvqh')
    P.label('L_gm_d3')
    P('s_sub_u32 s46, s46, %d' % (6*156)); P('s_cmp_ge_u32 s46, 24'); P('s_cselect_b32 s47, 1, 0'); P('s_add_u32 s%d, s47, 6' % TT)
    P('s_mul_i32 s47, s47, 24'); P('s_sub_u32 s%d, s46, s47' % FG)
    P.label('L_gm_m2')
    P('s_lshl_b32 s63, s%d, 7' % TT); P('s_add_u32 s46, s63, 0x%x' % (FL + F_H))
    wg_wait(P, 46, 36)
    P('s_add_u32 s63, s63, 0x%x' % (FL + F_M2))
    P('s_branch L_gm_run_m2')
    P.label('L_gm_kvqh')
    P('s_lshl_b32 s63, s%d, 7' % TT); P('s_add_u32 s46, s63, 0x%x' % (FL + F_LN))
    wg_wait(P, 46, 16, sleep=8)
    P('s_cmp_ge_u32 s%d, 96' % FG); P('s_cbranch_scc1 L_gm_h')
    P('s_cmp_ge_u32 s%d, 64' % FG); P('s_cselect_b32 s46, %d, %d' % (F_Q, F_Q)) if False else None
    P('s_mov_b32 s46, 0x%x' % (FL + F_KV)); P('s_cmp_ge_u32 s%d, 64' % FG); P('s_cselect_b32 s46, 0x%x, s46' % (FL + F_Q)); P('s_cselect_b32 s61, 1, 2')
    P('s_add_u32 s63, s63, s46')
    if OPT.get('diag'):
        P('s_cmp_lt_u32 s%d, 64' % QI); P('s_cbranch_scc0 L_dg1'); end_stamp(P, 53); P.label('L_dg1')
    k.straight(P)
    W2.task_kvq(k, 'L_gk', 'L_gm_sig')
    P = Prog(); P.label('L_gm_h'); P('s_sub_u32 s%d, s%d, 96' % (FG, FG)); P('s_add_u32 s63, s63, 0x%x' % (FL + F_H)); k.straight(P)
    W2.task_h(k, 'L_gh', 'L_gm_sig')
    P = Prog(); P.label('L_gm_run_m2'); k.straight(P)
    W2.task_m2(k, 'L_g2m', 'L_gm_sig')
    if OPT.get('first18', 1):
        P = Prog(); P.label('L_gm_first')
        P('s_lshr_b32 s%d, s%d, 6' % (TT, QI)); P('s_and_b32 s%d, s%d, 63' % (FG, QI)); P('s_mov_b32 s63, 0x%x' % (FL + F_KV)); P('s_mov_b32 s61, %d' % (1 if W2.HALF else 2))
        P('s_mov_b32 s%d, 0' % QI)
        k.straight(P)
        def wx(P):
            P('s_mov_b32 s62, 0x%x' % (FL + F_LN)); wg_wait(P, 62, 16, sleep=4)
        W2.task_kvq(k, 'L_gf', 'L_gm_sig', resident=True, wait_x=wx)
    P = Prog(); P.label('L_gm_sig'); signal(P, 63, val='s61')
    if OPT.get('diag'):
        P('s_cmp_lt_u32 s%d, 64' % QI); P('s_cbranch_scc0 L_dg2'); end_stamp(P, 54); P.label('L_dg2')
    P('s_branch L_gm_next')
    P.label('L_end_drain'); P('s_waitcnt vmcnt(0)'); end_stamp(P, 50); P('s_branch L_end')
    k.straight(P); k.reset_state()

def w5_role(k):
    P = Prog()
    P.label('L_w5')
    P('s_lshl_b32 s47, s46, 2'); P('s_add_u32 s47, s47, s%d' % G_W); P('s_and_b32 s%d, s47, 31' % W1.A_H); P('s_lshr_b32 s%d, s46, 3' % W1.A_S)
    W1.attn_setup(P)
    P('s_lshl_b32 s80, s%d, 7' % W1.A_H); P('s_add_u32 s80, s80, 0x%x' % (FL + F_PROG))
    k.straight(P)
    P = Prog()
    P.label('L_w5_loop')
    P('s_and_b32 s81, s%d, 6' % W1.A_S); P('s_cmp_eq_u32 s81, 0'); P('s_cbranch_scc0 L_w5_go')
    P('s_lshr_b32 s81, s%d, 3' % W1.A_S); P('s_lshl_b32 s81, s81, 7')
    P('s_add_u32 s82, s81, 0x%x' % (FL + F_KV)); poll_ge(P, 82, 128, vtmp=8, sleep=32)
    P('s_add_u32 s82, s81, 0x%x' % (FL + F_Q)); poll_ge(P, 82, 32, vtmp=8, sleep=32)
    P.label('L_w5_go')
    def wait_mem(P):
        P('s_add_u32 s83, s%d, 1' % W1.A_S)
        poll_ge(P, 80, 83, vtmp=8, tgt_is_sgpr=True, sleep=OPT.get('w5sleep', 4))
    W1.attn_task(P, stflag=' sc1', wait_mem=wait_mem)
    P('s_waitcnt vmcnt(0)')
    P('s_lshl_b32 s81, s%d, 7' % W1.A_S); P('s_add_u32 s81, s81, 0x%x' % (FL + F_O))
    P('v_mov_b32 v8, 1'); P('s_mov_b64 exec, 1'); P('buffer_atomic_add v8, off, %s, s81' % WSs); P('s_mov_b64 exec, -1')
    P('s_add_u32 s%d, s%d, 2' % (W1.A_S, W1.A_S)); P('s_cmp_lt_u32 s%d, 64' % W1.A_S); P('s_cbranch_scc1 L_w5_loop')
    k.loop(P)
    P = Prog(); P('s_waitcnt vmcnt(0)'); end_stamp(P, 49); P('s_branch L_end'); k.straight(P); k.reset_state()

def w6_role(k):
    S_CT, S_SEG, S_PAR = 44, 45, 46
    P = Prog()
    P.label('L_w6a'); P('s_mov_b32 s%d, s%d' % (S_CT, S_RANK)); P('s_mov_b32 s%d, 0' % S_SEG); P('s_branch L_w6')
    P.label('L_w6b'); P('s_mov_b32 s%d, s46' % S_CT); P('s_mov_b32 s%d, 1' % S_SEG); P('s_branch L_w6')
    P.label('L_w6c'); P('s_mov_b32 s%d, s46' % S_CT); P('s_mov_b32 s%d, 2' % S_SEG)
    P.label('L_w6')
    if OPT.get('hold', 1):
        P('s_mov_b32 s47, 0x%x' % (FL + F_LD)); wg_wait(P, 47, OPT.get('holdn', 16), sleep=48)
    srd(P, 12, 70, 71, 4096*1152); srd(P, G_BSRD, 64, 65, 2048*1152); srd(P, G_OSRD, 68, 69, 2048*1152); srd(P, 76, 66, 67, 1152)
    L16, TRA, DMO = 1, 2, 3
    P('v_lshlrev_b32 v%d, 4, v0' % L16)
    P('v_lshrrev_b32 v4, 2, v0'); P('s_movk_i32 s%d, 1152' % G_T0); P('v_mul_lo_u32 v4, v4, s%d' % G_T0); P('v_and_b32 v5, 3, v0'); P('v_lshl_add_u32 v%d, v5, 4, v4' % DMO)
    P('v_lshrrev_b32 v4, 5, v0'); P('v_bfe_u32 v5, v0, 2, 2'); P('v_lshl_add_u32 v4, v4, 2, v5'); P('v_lshlrev_b32 v4, 6, v4')
    P('v_bfe_u32 v5, v0, 4, 1'); P('v_lshl_add_u32 v4, v5, 5, v4'); P('v_and_b32 v5, 3, v0'); P('v_lshl_add_u32 v4, v5, 3, v4')
    P('s_lshl_b32 s47, s%d, 15' % G_W); P('v_add_u32 v%d, s47, v4' % TRA)
    P('s_mul_i32 s48, s%d, %d' % (G_W, 1024*1152)); P('s_lshl_b32 s49, s%d, 6' % S_CT); P('s_add_u32 s48, s48, s49')
    for rnd in range(2):
        P('s_mov_b32 m0, s47')
        for j in range(32):
            P('buffer_load_dwordx4 v%d, s[12:15], s48 offen lds' % DMO)
            P('s_add_u32 m0, m0, 1024'); P('s_add_u32 s48, s48, %d' % (16*1152))
        P('s_waitcnt vmcnt(0)')
        for f in range(32):
            a = 4*(32*rnd + f)
            P('ds_read_b64_tr_b16 a[%d:%d], v%d offset:%d' % (a, a+1, TRA, f*1024)); P('ds_read_b64_tr_b16 a[%d:%d], v%d offset:%d' % (a+2, a+3, TRA, f*1024 + 512))
        P('s_waitcnt lgkmcnt(0)')
    P('v_and_b32 v4, 31, v0'); P('s_movk_i32 s%d, 1152' % G_T0); P('v_mul_lo_u32 v4, v4, s%d' % G_T0)
    P('v_lshrrev_b32 v5, 5, v0'); P('v_lshlrev_b32 v5, 4, v5'); P('v_add_u32 v4, v4, v5')
    P('s_barrier')
    k.straight(P)
    XA, XB, XC, ACC, T = 16, 80, 144, 208, 16
    P = Prog()
    P.label('L_w6_loop')
    P('s_lshr_b32 s50, s%d, 3' % S_SEG); P('s_lshl_b32 s50, s50, 7'); P('s_add_u32 s50, s50, 0x%x' % (FL + F_M2))
    wg_wait(P, 50, 24, vtmp=8, sleep=32)
    P('s_lshl_b32 s51, s%d, 6' % G_W); P('s_add_u32 s51, s51, s%d' % S_SEG); P('s_mul_i32 s51, s51, 18'); P('s_add_u32 s51, s51, s%d' % S_CT)
    P('s_lshl_b32 s51, s51, 12'); P('s_add_u32 s51, s51, 0x%x' % WS_BASE)
    for q in range(4): P('buffer_load_dwordx4 %s, v%d, %s, s51 offen offset:%d' % (vr(ACC+4*q,4), L16, WSs, q*1024))
    P('s_lshl_b32 s50, s%d, 7' % S_SEG); P('s_add_u32 s50, s50, 0x%x' % (FL + F_O))
    wg_wait(P, 50, 32, vtmp=8, sleep=4)
    if OPT.get('diag'):
        Lq = uid('L_w6d'); P('s_cmp_eq_u32 s%d, 63' % S_SEG); P('s_cbranch_scc0 %s' % Lq); end_stamp(P, 55, force=True); P.label(Lq)
    P('s_lshl_b32 s52, s%d, 18' % S_SEG); P('s_lshl_b32 s53, s%d, 16' % G_W); P('s_add_u32 s52, s52, s53'); P('s_add_u32 s52, s52, 0x%x' % WS_OF)
    def xbatch(reg, b):
        for i in range(16):
            if i % 4 == 0: P('s_add_u32 s53, s52, %d' % ((16*b + i)*1024))
            P('buffer_load_dwordx4 %s, v%d, %s, s53 offen offset:%d' % (vr(reg+4*i,4), L16, WSs, (i % 4)*1024))
    def mbatch(reg, b):
        for i in range(16):
            f = 16*b + i
            P('v_mfma_f32_32x32x16_bf16 %s, a[%d:%d], %s, %s' % (vr(ACC,16), 4*f, 4*f+3, vr(reg+4*i,4), vr(ACC,16)))
    xbatch(XA, 0); xbatch(XB, 1); xbatch(XC, 2); mbatch(XA, 0); xbatch(XA, 3); mbatch(XB, 1); mbatch(XC, 2); mbatch(XA, 3)
    if OPT.get('diag'):
        Lq = uid('L_w6d'); P('s_cmp_eq_u32 s%d, 63' % S_SEG); P('s_cbranch_scc0 %s' % Lq); end_stamp(P, 56, force=True); P.label(Lq)
    P('s_cmp_eq_u32 s%d, 0' % G_W); P('s_cbranch_scc1 L_w6_r0')
    P('s_lshl_b32 s53, s%d, 12' % G_W); P('v_add_u32 v8, s53, v%d' % L16)
    for q in range(4): P('ds_write_b128 v8, %s offset:%d' % (vr(ACC+4*q,4), q*1024))
    P('s_waitcnt lgkmcnt(0)'); P('s_barrier'); P('s_barrier')
    P('s_branch L_w6_next')
    P.label('L_w6_r0')
    P('s_mul_i32 s53, s%d, %d' % (S_SEG, 32*1152)); P('s_lshl_b32 s54, s%d, 6' % S_CT); P('s_add_u32 s53, s53, s54')
    for qp in range(2):
        P('buffer_load_dwordx4 %s, v4, s[%d:%d], s53 offen offset:%d' % (vr(T+8*qp,4), G_BSRD, G_BSRD+3, 32*qp))
        P('buffer_load_dwordx4 %s, v5, s[76:79], s54 offen offset:%d' % (vr(T+8*qp+4,4), 32*qp))
    P('s_barrier')
    for wv in range(1, 4):
        for q in range(4): P('ds_read_b128 %s, v%d offset:%d' % (vr(T+16+4*q,4), L16, wv*4096 + q*1024))
        for i in range(0, 16, 2): P('v_pk_add_f32 %s, %s, %s' % (vr(ACC+i,2), vr(ACC+i,2), vr(T+16+i,2)))
    P('s_waitcnt lgkmcnt(0)'); P('s_barrier')
    for qp in range(2):
        a = ACC + 8*qp
        for i in range(4): P('v_permlane32_swap_b32 v%d, v%d' % (a+i, a+4+i))
        for i in range(4):
            for src in (T+8*qp+i, T+8*qp+4+i):
                P('v_lshlrev_b32 v8, 16, v%d' % src); P('v_add_f32 v%d, v%d, v8' % (a+2*i, a+2*i))
                P('v_and_b32 v9, 0xffff0000, v%d' % src); P('v_add_f32 v%d, v%d, v9' % (a+2*i+1, a+2*i+1))
        G2.pack8(P, T+32, a)
        P('buffer_store_dwordx4 %s, v4, s[%d:%d], s53 offen offset:%d' % (vr(T+32,4), G_OSRD, G_OSRD+3, 32*qp))
    P.label('L_w6_next')
    P('s_add_u32 s%d, s%d, 3' % (S_SEG, S_SEG)); P('s_cmp_lt_u32 s%d, 64' % S_SEG); P('s_cbranch_scc1 L_w6_loop')
    k.loop(P)
    P = Prog(); P('s_waitcnt vmcnt(0)'); end_stamp(P, 48); P('s_branch L_end'); k.straight(P); k.reset_state()

def end_stamp(P, idx, force=False):
    if not OPT.get('diag'): return
    L = uid('L_es')
    P('s_and_b32 s88, s%d, %d' % (S_RANK, 0 if force else 7)); P('s_or_b32 s88, s88, s%d' % G_W); P('s_cmp_eq_u32 s88, 0'); P('s_cbranch_scc0 %s' % L)
    P('s_memrealtime s[92:93]'); P('s_waitcnt lgkmcnt(0)'); P('s_sub_u32 s92, s92, s90')
    P('s_mov_b32 s88, 0x%x' % (FL + F_DIAG + 128*(idx-44))); P('v_mov_b32 v21, s92'); P('s_mov_b64 exec, 1')
    P('buffer_atomic_umax v21, off, %s, s88' % WSs); P('s_mov_b64 exec, -1')
    P.label(L)

def gen(name):
    k = Kernel()
    bootstrap(k)
    worker_dispatch(k)
    gemm_role(k)
    w5_role(k)
    w6_role(k)
    chain_common(k)
    chain_role(k, True)
    chain_role(k, False)
    P = Prog(); P.label('L_end'); P('s_endpgm'); P.label('L_code_end'); k.straight(P)
    return '.globl %s\n.p2align 8\n.type %s,@function\n%s:\n' % (name, name, name) + k.text() + kdesc(name)

HDR = open('parallel_sum__memory_aug_recurrent_mem_tr__mixer_channel_mlp__prompt.s.ref').read().split('; Override launch')[0]
NAME = 'parallel_sum__memory_aug_recurrent_mem_tr__mixer_channel_mlp__prompt_kernel'
if __name__ == '__main__':
    out = sys.argv[1]
    for a in sys.argv[2:]:
        kk, vv = a.split('=')
        if kk == 'half': W2.HALF = bool(int(vv))
        elif kk == 'set': C.STAMP_SET = set(int(x) for x in vv.split(',')); C.OPT['stamps'] = 1
        elif kk.startswith('c.'): C.OPT[kk[2:]] = int(vv)
        else: OPT[kk] = int(vv)
    txt = HDR + header(['; @launch grid=(256,1,1) block=(256,1,1) lds=163840']) + gen(NAME).replace('CODE_THIRD', str(NPF*8192)).replace('CODE_LEN', 'L_code_end-L_pc_here-4')
    pad = C.OPT.get('pad', 0)
    if pad: txt = txt.replace('L_chain_loopf:', '    s_nop 0\n'*pad + 'L_chain_loopf:')
    open(out, 'w').write(txt)
    print('written', out, len(txt))
```

```python
from asmlib import *
from common import *

OPT = dict(stamps=0, rbase=1, rslope=1, gdel=5, gdel0=27, rc=0, pf=0, kxtop=1, quad=0, rdepth=2, gdepth=1, align=6)

L_MF = 0; L_S = 9216; L_O = 14336; L_WL = 16384; LDS_TOTAL = 163840

def wreg(i):
    if i < 32: return 'a[%d:%d]' % (8*i, 8*i+7), ('a', 8*i)
    j = i - 32
    return 'v[%d:%d]' % (80+8*j, 80+8*j+7), ('v', 80+8*j)
LDS_CHUNKS = [('k',0), ('k',2), ('k',4), ('k',6), ('k',8), ('v',2), ('v',6)]
LDS_BLOCKS = [(m, tile, t) for (m, t) in LDS_CHUNKS for tile in (0, 1)] + [('od', p, 3) for p in range(4)]
ALL_BLOCKS = [(m,tile,t) for m in 'qkv' for t in range(9) for tile in (0,1)] + [('oh',0),('oh',1)] + [('od',p,c) for p in range(4) for c in range(4)]
REG_BLOCKS = [b for b in ALL_BLOCKS if b not in LDS_BLOCKS]
assert len(LDS_BLOCKS) == 18 and len(REG_BLOCKS) == 54
REG_OF = {b: wreg(i) for i, b in enumerate(REG_BLOCKS)}
LDS_OF = {b: i for i, b in enumerate(LDS_BLOCKS)}

S_WS = 8; S_SRD2 = 12
S_H = 16; S_W = 17; S_STEP = 18; S_T0 = 19; S_T1 = 20; S_T2 = 21; S_T3 = 22
S_PCUR = 23; S_PCUR4 = 24; S_PR0 = 25
S_MNXT = 30; S_MPOI = 31
S_KV = 32; S_KM = 33; S_RED = 34; S_TMO = 35
S_EXN8 = 36; S_C = 38; S_ERR = 39; S_TS = 40; S_DBG = 42
S_TAG = 44; S_RDEL = 45
S_PTR = 46
S_OW = 56; S_GW = 57; S_EXMM = 60; S_PERM = 62; S_PERM2 = 63
S_BM = 64
S_VV = 72; S_KMW = 73; S_VMP = 74; S_KVRDY = 75
S_ST = 76
S_RC = 84
S_PROG = 86
S_G0 = 87; S_G1 = 88; S_G2 = 89; S_MPN = 29; S_TMOV = 58; S_PROGW = 59

V_NEG1=0; V_L16=1; V_IDX=2; V_PST=3; V_RED=4; V_MST=5; V_G16=6; V_SW=7; V_SR=8; V_SM=9; V_KX=10; V_VX=11; V_WL=12; V_VM=13
V_BSEL=14; V_BVAL=16; V_PT0=17; V_VMH=18
V_AR=20; V_ST=32
V_QA=48; V_QB=52; V_KA=56; V_KB=60; V_VA=64; V_VB=68; V_KF=72

def vr(a, n=1): return 'v%d' % a if n == 1 else 'v[%d:%d]' % (a, a+n-1)
WS = 's[%d:%d]' % (S_WS, S_WS+3)
DPP8 = 'row_ror:8 row_mask:0xf bank_mask:0xf'
OOB = 0x40000000
TMO = 20000
def pk_add(P, d, a, b): P('v_pk_add_f32 %s, %s, %s' % (vr(d,2), vr(a,2), vr(b,2)))
def cvt(P, d, a, b): P('v_cvt_pk_bf16_f32 v%d, v%d, v%d' % (d, a, b))
def mfma16(P, d, a, b, c=None): P('v_mfma_f32_16x16x16_bf16 %s, %s, %s, %s' % (vr(d,4), vr(a,2), vr(b,2), '0' if c is None else vr(c,4)))
def mfma32(P, d, a, b, c=None): P('v_mfma_f32_16x16x32_bf16 %s, %s, %s, %s' % (vr(d,4), vr(a,4), vr(b,4), '0' if c is None else vr(c,4)))
def smf_s(acc, a, b): return 'v_smfmac_f32_16x16x64_bf16 %s, %s, %s, v%d' % (vr(acc, 4), vr(a, 4), b, V_IDX)
def smf(P, acc, a, b): P(smf_s(acc, a, b))
def aread_s(t, dst): return 'ds_read_b128 %s, v%d offset:%d' % (vr(dst, 4), V_L16, L_MF + 1024*t)
def blk_s(blk, buf):
    off = LDS_OF[blk]*2048
    return 'ds_read_b128 %s, v%d offset:%d\nds_read_b128 %s, v%d offset:%d' % (vr(buf,4), V_WL, off, vr(buf+4,4), V_WL, off+1024)

def load_weights(k, hook=None):
    P = Prog()
    n, gb = 2, 3
    DA0, DA1, TA0, TA1, TB0, TB1, OD, OH, OL = 4, 5, 6, 7, 8, 9, 10, 11, 12
    t0, t1, t2, t3 = 14, 15, 16, 17
    P('v_and_b32 v%d, 15, v0' % n); P('v_lshrrev_b32 v%d, 4, v0' % gb)
    P('v_and_b32 v%d, 1, v%d' % (t0, gb)); P('v_lshrrev_b32 v%d, 1, v%d' % (t1, gb)); P('v_lshl_add_u32 v%d, v%d, 2, v%d' % (t0, t1, t0))
    for var, dst in ((0, DA0), (1, DA1)):
        P('v_xor_b32 v%d, v%d, v%d' % (t1, n, t0))
        if var: P('v_xor_b32 v%d, 8, v%d' % (t1, t1))
        P('v_lshlrev_b32 v%d, 4, v%d' % (t1, t1))
        P('v_lshl_add_u32 v%d, v%d, 13, v%d' % (dst, gb, t1))
    P('v_bfe_u32 v%d, v0, 3, 1' % t0)
    P('v_bfe_u32 v%d, v0, 2, 1' % t1)
    P('v_and_b32 v%d, 1, v%d' % (t2, gb))
    P('v_lshlrev_b32 v%d, 3, v%d' % (t3, t0)); P('v_lshl_add_u32 v%d, v%d, 1, v%d' % (t3, t1, t3)); P('v_add_u32 v%d, v%d, v%d' % (t3, t3, t2))
    P('v_lshlrev_b32 v%d, 8, v%d' % (t3, t3))
    P('v_lshlrev_b32 v%d, 3, v%d' % (t0, t0)); P('v_lshl_add_u32 v%d, v%d, 2, v%d' % (t0, t1, t0)); P('v_add_u32 v%d, v%d, v%d' % (t0, t0, t2))
    P('v_bfe_u32 v%d, v0, 1, 1' % t1); P('v_lshlrev_b32 v%d, 1, v%d' % (t1, t1))
    P('s_lshl_b32 s%d, s%d, 2' % (S_T0, S_W)); P('v_add_u32 v%d, s%d, v%d' % (t1, S_T0, t1))
    P('v_lshrrev_b32 v%d, 1, v%d' % (t2, gb)); P('s_mov_b32 s%d, 36864' % S_T0); P('v_mul_lo_u32 v%d, v%d, s%d' % (t2, t2, S_T0))
    P('v_add_u32 v%d, v%d, v%d' % (t3, t3, t2))
    P('v_and_b32 v%d, 1, v0' % t2); P('v_lshl_add_u32 v%d, v%d, 3, v%d' % (t3, t2, t3))
    P('v_add_u32 v%d, %d, v%d' % (t3, L_WL, t3))
    for tile, (d0, d1) in ((0, (TA0, TA1)), (1, (TB0, TB1))):
        P('v_xor_b32 v%d, v%d, v%d' % (t2, t1, t0))
        if tile: P('v_xor_b32 v%d, 1, v%d' % (t2, t2))
        P('v_lshl_add_u32 v%d, v%d, 4, v%d' % (d0, t2, t3))
        P('v_add_u32 v%d, 73728, v%d' % (d1, d0))
    P('v_lshrrev_b32 v%d, 1, v%d' % (t0, gb)); P('v_lshlrev_b32 v%d, 2, v%d' % (t0, t0))
    P('v_bfe_u32 v%d, v0, 2, 1' % t1); P('v_add_u32 v%d, v%d, v%d' % (t0, t0, t1))
    P('v_and_b32 v%d, 1, v%d' % (t1, gb)); P('v_lshl_add_u32 v%d, v%d, 3, v%d' % (t0, t1, t0))
    P('s_movk_i32 s%d, 1152' % S_T0); P('v_mul_lo_u32 v%d, v%d, s%d' % (t0, t0, S_T0))
    P('v_and_b32 v%d, 3, v0' % t1); P('v_lshl_add_u32 v%d, v%d, 3, v%d' % (t0, t1, t0))
    P('s_lshl_b32 s%d, s%d, 5' % (S_T0, S_W)); P('s_add_u32 s%d, s%d, %d' % (S_T0, S_T0, L_WL)); P('v_add_u32 v%d, s%d, v%d' % (t0, S_T0, t0))
    P('v_bfe_u32 v%d, v0, 3, 1' % t1)
    P('v_lshl_add_u32 v%d, v%d, 7, v%d' % (OD, t1, t0))
    P('s_mov_b32 s%d, 36864' % S_T0); P('v_mul_lo_u32 v%d, v%d, s%d' % (t1, t1, S_T0)); P('v_add_u32 v%d, v%d, v%d' % (OH, t1, t0))
    P('v_lshlrev_b32 v%d, 4, v0' % OL)
    WL = 13
    P('s_mul_i32 s%d, s%d, 36864' % (S_G0, S_W)); P('s_add_u32 s%d, s%d, %d' % (S_G0, S_G0, L_WL)); P('v_add_u32 v%d, s%d, v%d' % (WL, S_G0, OL))
    SR = 's[%d:%d]' % (S_SRD2, S_SRD2+3)
    def set_srd(ptr, size):
        P('s_mov_b32 s%d, s%d' % (S_SRD2, ptr)); P('s_mov_b32 s%d, s%d' % (S_SRD2+1, ptr+1))
        P('s_mov_b32 s%d, 0x%x' % (S_SRD2+2, size)); P('s_mov_b32 s%d, 0x20000' % (S_SRD2+3))
    set_srd(S_PTR+6, 4096*576*2)
    P('s_mul_i32 s%d, s%d, %d' % (S_T0, S_H, 147456)); P('s_mul_i32 s%d, s%d, 36864' % (S_T1, S_W)); P('s_add_u32 s%d, s%d, s%d' % (S_T0, S_T0, S_T1))
    P('s_mov_b32 m0, s%d' % S_G0)
    for j in range(36):
        P('buffer_load_dwordx4 v%d, %s, s%d offen lds' % (OL, SR, S_T0))
        if j < 35: P('s_add_u32 m0, m0, 1024'); P('s_add_u32 s%d, s%d, 1024' % (S_T0, S_T0))
    if hook: hook(P)
    P('s_waitcnt vmcnt(0) lgkmcnt(0)'); P('s_barrier')
    if hook: hook(P, True)
    def dst_regs(blk):
        cls, r0 = REG_OF[blk][1]; return cls, r0
    def tr(dstcls, r0, addr, off): P('ds_read_b64_tr_b16 %s[%d:%d], v%d offset:%d' % (dstcls, r0, r0+1, addr, off))
    TC = 20
    for pr in range(4):
        for c in range(4):
            blk = ('od', pr, c); Ta = 1 + 2*pr
            if blk in REG_OF: cls, r0 = dst_regs(blk)
            else: cls, r0 = 'v', TC + 8*pr
            for q in range(4):
                Pq, p1 = q >> 1, q & 1
                off = (16*Pq + 2*p1)*1152 + 128*Ta
                if c == 0: tr(cls, r0+2*q, OD, off)
                else:
                    if q == 0: P('v_add_u32 v%d, %d, v%d' % (t0, c*36864, OD))
                    tr(cls, r0+2*q, t0, off)
    for s2 in range(2):
        cls, r0 = dst_regs(('oh', s2))
        P('v_add_u32 v%d, %d, v%d' % (t0, 2*s2*36864, OH))
        for q in range(4): tr(cls, r0+2*q, t0, (16*(q >> 1) + 2*(q & 1))*1152)
    P('s_waitcnt lgkmcnt(0)'); P('s_barrier')
    for pr in range(4):
        off = LDS_OF[('od', pr, 3)]*2048
        P('ds_write_b128 v%d, %s offset:%d' % (WL, vr(TC+8*pr,4), off)); P('ds_write_b128 v%d, %s offset:%d' % (WL, vr(TC+8*pr+4,4), off+1024))
    k.straight(P)
    reg_chunks = [(m, t) for m in 'qkv' for t in range(9) if (m, t) not in LDS_CHUNKS]
    order = reg_chunks + LDS_CHUNKS
    NS = 7
    slot_of = {}
    for j, ch in enumerate(reg_chunks): slot_of[ch] = j % NS
    for i, ch in enumerate(LDS_CHUNKS): slot_of[ch] = i
    last_use = {}
    for j, ch in enumerate(reg_chunks): last_use[slot_of[ch]] = j
    lds_sorted = sorted(LDS_CHUNKS, key=lambda ch: last_use[slot_of[ch]])
    order = reg_chunks + lds_sorted
    cur_m = [None]
    def issue(P, ch):
        m, t = ch
        if cur_m[0] != m:
            ptr = {'q': S_PTR, 'k': S_PTR+2, 'v': S_PTR+4}[m]
            P('s_mov_b32 s%d, s%d' % (S_SRD2, ptr)); P('s_mov_b32 s%d, s%d' % (S_SRD2+1, ptr+1))
            P('s_mov_b32 s%d, 0x%x' % (S_SRD2+2, 576*8192)); P('s_mov_b32 s%d, 0x20000' % (S_SRD2+3))
            cur_m[0] = m
        for jj in range(4):
            P('s_add_u32 m0, s%d, %d' % (S_G0, slot_of[ch]*4096 + jj*1024))
            P('s_add_u32 s%d, s%d, %d' % (S_T0, S_G1, (64*t + 4*jj)*8192))
            P('buffer_load_dwordx4 v%d, %s, s%d offen lds' % (DA0 if jj < 2 else DA1, SR, S_T0))
    P = Prog()
    P('s_lshl_b32 s%d, s%d, 8' % (S_G1, S_H)); P('s_mul_i32 s%d, s%d, %d' % (S_T0, S_W, 16*8192)); P('s_add_u32 s%d, s%d, s%d' % (S_G1, S_G1, S_T0))
    issued = 0
    def can_issue(j, consumed):
        ch = order[j]; s = slot_of[ch]
        prev = [i for i in range(j) if slot_of[order[i]] == s]
        return (not prev) or prev[-1] < consumed
    while issued < len(order) and can_issue(issued, 0) and issued < NS:
        issue(P, order[issued]); issued += 1
    TB = 20
    for j, ch in enumerate(order):
        m, t = ch
        P('s_waitcnt vmcnt(%d) lgkmcnt(0)' % (4*(issued - j - 1)))
        P('s_barrier')
        while issued < len(order) and can_issue(issued, j):
            issue(P, order[issued]); issued += 1
        so = slot_of[ch]*4096
        for tile, (a0, a1) in ((0, (TA0, TA1)), (1, (TB0, TB1))):
            blk = (m, tile, t)
            if blk in REG_OF: cls, r0 = dst_regs(blk)
            else: cls, r0 = 'v', TB + 8*tile
            for q in range(4): tr(cls, r0+2*q, a0 if q < 2 else a1, so + (q & 1)*1024)
        if ch in LDS_CHUNKS:
            P('s_waitcnt lgkmcnt(0)'); P('s_barrier')
            for tile in range(2):
                off = LDS_OF[(m, tile, t)]*2048
                P('ds_write_b128 v%d, %s offset:%d' % (WL, vr(TB+8*tile,4), off)); P('ds_write_b128 v%d, %s offset:%d' % (WL, vr(TB+8*tile+4,4), off+1024))
    P('s_waitcnt lgkmcnt(0)'); P('s_barrier')
    k.straight(P); k.reset_state()

def lane_setup(k):
    P = Prog()
    n, rg, t0, t1, t2, nh, n7, dt = 20, 21, 22, 23, 24, 25, 26, 27
    P('v_and_b32 v%d, 15, v0' % n); P('v_lshrrev_b32 v%d, 4, v0' % rg); P('v_lshlrev_b32 v%d, 4, v0' % V_L16)
    P('v_mov_b32 v%d, 0x44444444' % V_IDX); P('v_mov_b32 v%d, 0xeeeeeeee' % t0)
    P('v_cmp_lt_u32 vcc, 7, v%d' % n); P('v_cndmask_b32 v%d, v%d, v%d, vcc' % (V_IDX, V_IDX, t0))
    P('v_lshrrev_b32 v%d, 3, v%d' % (nh, n)); P('v_and_b32 v%d, 7, v%d' % (n7, n))
    P('v_lshl_add_u32 v%d, v%d, 3, v%d' % (t0, rg, n7)); P('v_lshlrev_b32 v%d, 4, v%d' % (V_G16, t0))
    P('v_lshrrev_b32 v%d, 1, v%d' % (t0, rg)); P('v_lshl_add_u32 v%d, v%d, 6, v%d' % (t0, t0, n))
    P('s_lshl_b32 s%d, s%d, 4' % (S_T0, S_W)); P('v_add_u32 v%d, s%d, v%d' % (t0, S_T0, t0)); P('v_lshlrev_b32 v%d, 4, v%d' % (t0, t0))
    P('v_and_b32 v%d, 1, v%d' % (t1, rg)); P('v_lshl_add_u32 v%d, v%d, 3, v%d' % (V_PST, t1, t0))
    if OPT.get('quad', 1):
        P('v_and_b32 v%d, 1, v%d' % (t0, rg)); P('v_lshlrev_b32 v%d, 1, v%d' % (t0, t0)); P('v_lshrrev_b32 v%d, 1, v%d' % (t1, rg)); P('v_add_u32 v%d, v%d, v%d' % (t0, t0, t1))
        P('v_lshl_add_u32 v%d, v%d, 6, v%d' % (t0, t0, n)); P('s_lshl_b32 s%d, s%d, 4' % (S_T0, S_W)); P('v_add_u32 v%d, s%d, v%d' % (t0, S_T0, t0))
        P('v_lshlrev_b32 v%d, 4, v%d' % (V_PST, t0))
    P('v_lshlrev_b32 v%d, 4, v%d' % (t0, n)); P('v_lshl_add_u32 v%d, v%d, 2, v%d' % (t0, rg, t0))
    P('s_lshl_b32 s%d, s%d, 8' % (S_T0, S_W)); P('v_add_u32 v%d, s%d, v%d' % (V_PT0, S_T0, t0))
    P('s_sub_u32 s%d, s%d, 1' % (S_T0, S_W)); P('s_lshl_b32 s%d, s%d, 5' % (S_T0, S_T0)); P('s_add_u32 s%d, s%d, s%d' % (S_T0, S_T0, S_H))
    P('s_cmp_lt_u32 s%d, 72' % S_T0); P('s_cselect_b32 s%d, 1, 0' % S_RED)
    P('s_cmp_eq_u32 s%d, 0' % S_W); P('s_cselect_b32 s%d, 0, s%d' % (S_RED, S_RED))
    P('s_cmp_eq_u32 s%d, 0' % S_RED); P('s_cselect_b32 s%d, 0, s%d' % (S_T0, S_T0))
    P('s_lshr_b32 s%d, s%d, 3' % (S_T1, S_T0))
    tab = OPT.get('rtab')
    if tab:
        P('s_mov_b32 s%d, %d' % (S_RDEL, tab[0]))
        for T in range(1, 9):
            P('s_cmp_eq_u32 s%d, %d' % (S_T1, T)); P('s_cselect_b32 s%d, %d, s%d' % (S_RDEL, tab[T], S_RDEL))
    else:
        P('s_mul_i32 s%d, s%d, %d' % (S_RDEL, S_T1, OPT.get('rslope', 1))); P('s_add_u32 s%d, s%d, %d' % (S_RDEL, S_RDEL, OPT.get('rbase', 1)))
    P('s_lshl_b32 s%d, s%d, 7' % (S_T2, S_T0))
    P('v_lshl_add_u32 v%d, v%d, 1, v%d' % (t0, rg, nh)); P('s_movk_i32 s%d, 9216' % S_T1); P('v_mul_lo_u32 v%d, v%d, s%d' % (t0, t0, S_T1))
    P('v_lshl_add_u32 v%d, v%d, 4, v%d' % (t0, n7, t0)); P('v_add_u32 v%d, s%d, v%d' % (V_RED, S_T2, t0))
    P('v_lshlrev_b32 v%d, 1, v%d' % (t0, n)); P('v_and_b32 v%d, 7, v%d' % (t0, t0)); P('v_bfe_u32 v%d, v%d, 2, 1' % (t1, n)); P('v_add_u32 v%d, v%d, v%d' % (t0, t0, t1))
    P('s_cmp_lt_u32 s%d, 8' % S_T0); P('s_cselect_b64 vcc, -1, 0'); P('v_cndmask_b32 v%d, v%d, v%d, vcc' % (t0, n, t0))
    P('v_lshlrev_b32 v%d, 4, v%d' % (t0, t0)); P('v_lshl_add_u32 v%d, v%d, 2, v%d' % (t0, rg, t0)); P('v_add_u32 v%d, s%d, v%d' % (t0, S_T2, t0))
    P('v_mov_b32 v%d, 0x%x' % (t1, OOB)); P('v_cmp_lt_u32 vcc, 7, v%d' % n); P('v_cndmask_b32 v%d, v%d, v%d, vcc' % (t0, t0, t1))
    P('s_cmp_eq_u32 s%d, 0' % S_RED); P('s_cselect_b64 vcc, -1, 0'); P('v_cndmask_b32 v%d, v%d, v%d, vcc' % (V_MST, t0, t1))
    P('s_mul_i32 s%d, s%d, 1280' % (S_T0, S_W)); P('s_add_u32 s%d, s%d, %d' % (S_T0, S_T0, L_S)); P('v_add_u32 v%d, s%d, v%d' % (V_SW, S_T0, V_G16))
    P('v_lshl_add_u32 v%d, v%d, 9, v%d' % (t0, nh, V_G16)); P('v_add_u32 v%d, %d, v%d' % (V_SR, L_S, t0))
    P('v_and_b32 v%d, 1, v%d' % (t0, rg)); P('v_lshl_add_u32 v%d, v%d, 3, v%d' % (t0, t0, n7)); P('v_lshlrev_b32 v%d, 4, v%d' % (t0, t0))
    P('s_movk_i32 s%d, 2560' % S_T1); P('v_mul_lo_u32 v%d, v%d, s%d' % (t1, nh, S_T1)); P('v_add_u32 v%d, v%d, v%d' % (t0, t0, t1))
    P('v_add_u32 v%d, %d, v%d' % (V_SM, L_S + 1024, t0))
    P('v_lshl_add_u32 v%d, v%d, 4, v%d' % (dt, nh, n7))
    P('s_lshl_b32 s%d, s%d, 2' % (S_T0, S_W)); P('v_add_u32 v%d, s%d, v%d' % (t0, S_T0, rg)); P('v_lshl_add_u32 v%d, v%d, 5, v%d' % (t0, t0, dt)); P('v_lshlrev_b32 v%d, 4, v%d' % (V_KX, t0))
    P('s_lshl_b32 s%d, s%d, 5' % (S_T0, S_W)); P('v_lshl_add_u32 v%d, v%d, 7, v%d' % (t0, rg, dt)); P('v_add_u32 v%d, s%d, v%d' % (t0, S_T0, t0)); P('v_lshlrev_b32 v%d, 4, v%d' % (V_VX, t0))
    P('v_lshrrev_b32 v%d, 1, v%d' % (t0, rg)); P('v_lshl_add_u32 v%d, v%d, 3, v%d' % (t0, t0, dt)); P('v_add_u32 v%d, s%d, v%d' % (t0, S_T0, t0)); P('v_lshlrev_b32 v%d, 4, v%d' % (t0, t0))
    P('v_and_b32 v%d, 1, v%d' % (t1, rg)); P('v_lshl_add_u32 v%d, v%d, 3, v%d' % (V_VM, t1, t0))
    P('s_mul_i32 s%d, s%d, 36864' % (S_T0, S_W)); P('s_add_u32 s%d, s%d, %d' % (S_T0, S_T0, L_WL)); P('v_add_u32 v%d, s%d, v%d' % (V_WL, S_T0, V_L16))
    P('v_and_b32 v%d, 3, v%d' % (t0, n)); P('v_lshrrev_b32 v%d, 2, v%d' % (t1, n7)); P('v_and_b32 v%d, 1, v%d' % (t2, rg))
    P('v_cmp_eq_u32 s[%d:%d], v%d, v%d' % (S_TS, S_TS+1, t1, t2))
    P('v_and_b32 v%d, 1, v%d' % (t1, t0)); P('v_lshlrev_b32 v%d, 4, v%d' % (t1, t1)); P('v_mov_b32 v28, 0x3f80'); P('v_lshlrev_b32 v%d, v%d, v28' % (V_BVAL, t1))
    P('v_cndmask_b32 v29, 0, v%d, s[%d:%d]' % (V_BVAL, S_TS, S_TS+1))
    P('v_cmp_gt_u32 vcc, 2, v%d' % t0); P('v_cndmask_b32 v%d, 0, v29, vcc' % V_BSEL)
    P('v_cmp_lt_u32 vcc, 1, v%d' % t0); P('v_cndmask_b32 v%d, 0, v29, vcc' % (V_BSEL+1))
    P('v_lshrrev_b32 v%d, 1, v%d' % (t1, n))
    for r in range(4): P('v_cmp_eq_u32 s[%d:%d], %d, v%d' % (S_BM+2*r, S_BM+2*r+1, r, t1))
    P('s_mov_b32 s%d, 0x00ff00ff' % S_EXN8); P('s_mov_b32 s%d, 0x00ff00ff' % (S_EXN8+1))
    P('s_mov_b32 s%d, 0x00ff00ff' % S_EXMM); P('s_mov_b32 s%d, 0' % (S_EXMM+1))
    P('s_mov_b32 s%d, 0x3e0293ee' % S_C)
    P('s_lshl_b32 s%d, s%d, 9' % (S_OW, S_W)); P('s_add_u32 s%d, s%d, %d' % (S_OW, S_OW, L_O))
    P('s_lshl_b32 s%d, s%d, 10' % (S_GW, S_W))
    P('s_mov_b32 s%d, 0' % S_ERR); P('s_mov_b32 s%d, %d' % (S_TMOV, TMO))
    P('s_mul_i32 s%d, s%d, %d' % (S_PCUR, S_H, P_HEAD)); P('s_add_u32 s%d, s%d, 0x%x' % (S_PCUR, S_PCUR, WS_P)); P('s_add_u32 s%d, s%d, 4096' % (S_PCUR4, S_PCUR))
    for t in range(4): P('s_mov_b32 s%d, 0x%x' % (S_PR0+t, WS_P + t*8*P_HEAD))
    P('s_mov_b32 s%d, 0x%x' % (S_MNXT, WS_M + 1*M_SLOT)); P('s_mov_b32 s%d, 0x%x' % (S_MPOI, WS_M + 2*M_SLOT))
    P('s_lshl_b32 s%d, s%d, 13' % (S_KV, S_H)); P('s_add_u32 s%d, s%d, 0x%x' % (S_VV, S_KV, WS_VF)); P('s_add_u32 s%d, s%d, 0x%x' % (S_KV, S_KV, WS_KF))
    P('s_lshl_b32 s%d, s%d, 11' % (S_KM, S_H)); P('s_lshl_b32 s%d, s%d, 9' % (S_T1, S_W))
    P('s_add_u32 s%d, s%d, s%d' % (S_KMW, S_KM, S_T1)); P('s_add_u32 s%d, s%d, 0x%x' % (S_KMW, S_KMW, WS_KM))
    P('s_add_u32 s%d, s%d, 0x%x' % (S_KM, S_KM, WS_VM))
    if OPT.get('puboob') == 1: P('s_mov_b32 s%d, 0x40000000' % S_KMW); P('s_mov_b32 s%d, 0x40000000' % S_KM)
    if OPT.get('puboob') == 2:
        P('s_cmp_eq_u32 s%d, 0' % S_W); P('s_cselect_b32 s%d, s%d, 0x40000000' % (S_KMW, S_KMW)); P('s_cselect_b32 s%d, s%d, 0x40000000' % (S_KM, S_KM))
    if OPT.get('puboob') == 3:
        P('s_cmp_lt_u32 s%d, 8' % S_H); P('s_cselect_b32 s%d, s%d, 0x40000000' % (S_KMW, S_KMW)); P('s_cselect_b32 s%d, s%d, 0x40000000' % (S_KM, S_KM))
    P('s_mov_b32 s%d, 0' % S_STEP); P('s_mov_b32 s%d, 0' % S_TAG)
    P('s_mov_b32 s%d, 0x%x' % (S_VMP, OOB)); P('v_mov_b64 %s, 0' % vr(V_VMH,2))
    P('s_mov_b32 s%d, 0' % S_RC); P('s_mov_b32 s%d, 0' % (S_RC+1))
    k.straight(P)

def initial_m(k):
    P = Prog()
    P('s_mov_b32 s%d, s%d' % (S_SRD2, S_PTR+8)); P('s_mov_b32 s%d, s%d' % (S_SRD2+1, S_PTR+9))
    P('s_mov_b32 s%d, %d' % (S_SRD2+2, 8*576*2)); P('s_mov_b32 s%d, 0x20000' % (S_SRD2+3))
    P('s_mov_b32 s%d, 0x05040100' % S_PERM); P('s_mov_b32 s%d, 0x07060302' % S_PERM2)
    P('s_lshl_b32 s%d, s%d, 6' % (S_T0, S_W)); P('v_add_u32 v20, s%d, v0' % S_T0)
    for i in range(3):
        P('v_add_u32 v21, %d, v20' % (256*i)); P('v_and_b32 v22, 7, v21'); P('v_lshrrev_b32 v23, 3, v21')
        P('s_movk_i32 s%d, 1152' % S_T1); P('v_mul_lo_u32 v22, v22, s%d' % S_T1); P('v_lshl_add_u32 v22, v23, 4, v22')
        P('v_cmp_gt_u32 vcc, 576, v21'); P('v_mov_b32 v24, 0x%x' % OOB); P('v_cndmask_b32 v22, v24, v22, vcc')
        P('buffer_load_dwordx4 v[28:31], v22, s[%d:%d], 0 offen' % (S_SRD2, S_SRD2+3))
        P('v_perm_b32 v32, v29, v28, s%d' % S_PERM); P('v_perm_b32 v33, v31, v30, s%d' % S_PERM)
        P('v_perm_b32 v34, v29, v28, s%d' % S_PERM2); P('v_perm_b32 v35, v31, v30, s%d' % S_PERM2)
        P('v_lshlrev_b32 v25, 4, v21')
        P('s_and_saveexec_b64 s[%d:%d], vcc' % (S_TS, S_TS+1))
        P('ds_write_b128 v25, v[32:35] offset:%d' % L_MF)
        P('s_mov_b64 exec, s[%d:%d]' % (S_TS, S_TS+1))
    P('s_waitcnt lgkmcnt(0)')
    k.straight(P)

def poison_init(k, st=''):
    P = Prog()
    P('v_mov_b32 v20, -1'); P('v_mov_b32 v21, -1'); P('v_mov_b32 v22, -1'); P('v_mov_b32 v23, -1')
    if OPT.get('quad', 1):
        P('buffer_store_dword v20, v%d, %s, s%d offen%s' % (V_PT0, WS, S_PCUR, st))
        P('buffer_store_dwordx4 v[20:23], v%d, %s, s%d offen offset:1024%s' % (V_PST, WS, S_PCUR, st))
        P('buffer_store_dwordx4 v[20:23], v%d, %s, s%d offen offset:1024%s' % (V_PST, WS, S_PCUR4, st))
    else:
      for T in (0, 2, 4, 6, 7):
        off = T*1024
        P('buffer_store_dwordx2 v[20:21], v%d, %s, s%d offen offset:%d%s' % (V_PST, WS, S_PCUR if off < 4096 else S_PCUR4, off & 4095, st))
    for slot in range(4):
        P('s_mov_b32 s%d, 0x%x' % (S_T1, WS_M + slot*M_SLOT))
        P('buffer_store_dword v20, v%d, %s, s%d offen%s' % (V_MST, WS, S_T1, st))
    P('s_waitcnt vmcnt(0)')
    P('v_mov_b32 v%d, -1' % V_NEG1)
    k.straight(P); k.reset_state()

STAMP_SET = None
def stamp(P, i):
    if not OPT['stamps']: return
    if STAMP_SET is not None and i not in STAMP_SET: return
    P('s_memtime s[%d:%d]' % (S_TS, S_TS+1)); P('s_waitcnt lgkmcnt(0)'); P('s_mov_b32 s%d, s%d' % (S_ST+i, S_TS))
def flush_stamps(P, n=8):
    if not OPT['stamps']: return
    P('s_lshl_b32 s%d, s%d, 2' % (S_T0, S_H)); P('s_add_u32 s%d, s%d, s%d' % (S_T0, S_T0, S_W))
    P('s_lshl_b32 s%d, s%d, 6' % (S_T0, S_T0)); P('s_add_u32 s%d, s%d, s%d' % (S_T0, S_T0, S_STEP)); P('s_sub_u32 s%d, s%d, 1' % (S_T0, S_T0))
    P('s_lshl_b32 s%d, s%d, 6' % (S_T0, S_T0)); P('s_add_u32 s%d, s%d, 0x%x' % (S_T0, S_T0, WS_STAT))
    P('s_mov_b64 exec, 1')
    for i in range(n):
        P('v_mov_b32 v21, s%d' % (S_ST+i)); P('buffer_store_dword v21, off, %s, s%d offset:%d' % (WS, S_T0, 4*i))
    P('s_mov_b64 exec, -1')

def poll_tail(P, lab, done, errbit, rc):
    P('s_cbranch_vccz %s' % done)
    if OPT['rc']: P('s_add_u32 s%d, s%d, 1' % (S_RC+rc, S_RC+rc))
    P('s_sub_u32 s%d, s%d, 1' % (S_TMO, S_TMO)); P('s_cmp_lg_u32 s%d, 0' % S_TMO); P('s_cbranch_scc1 %s' % lab)
    P('s_or_b32 s%d, s%d, %d' % (S_ERR, S_ERR, errbit))
    P.label(done)

def delay(P, sreg, label):
    P('s_cmp_eq_u32 s%d, 0' % sreg)
    P('s_cbranch_scc1 %s_x' % label)
    P('s_mov_b32 s%d, s%d' % (S_T3, sreg))
    P.label(label)
    P('s_sub_u32 s%d, s%d, 1' % (S_T3, S_T3)); P('s_cmp_gt_i32 s%d, 0' % S_T3); P('s_cbranch_scc1 %s' % label)
    P.label(label + '_x')

def kx_loads(P):
    P('buffer_load_dwordx4 %s, v%d, %s, s%d offen%s' % (vr(V_KF,4), V_KX, WS, S_KV, OPT.get('kvf', '')))
    P('buffer_load_dwordx4 %s, v%d, %s, s%d offen offset:128%s' % (vr(V_KF+4,4), V_KX, WS, S_KV, OPT.get('kvf', '')))
def prefetch(P, lab, tmp, kvwait):
    P('s_cmp_eq_u32 s%d, 0' % S_W)
    P('s_cbranch_scc0 %s' % lab)
    P('v_lshlrev_b32 v%d, 3, v%d' % (tmp, V_L16))
    P('s_add_u32 s%d, s%d, %d' % (S_T0, S_KV, OPT.get('pfd', 1)*32*8192)); P('s_mov_b32 m0, %d' % L_S); P('s_add_u32 s%d, s%d, %d' % (S_T1, S_VV, OPT.get('pfd', 1)*32*8192))
    if kvwait: P('s_cmp_eq_u32 s%d, 0' % S_KVRDY); P('s_cbranch_scc1 %s' % lab)
    P('buffer_load_dword v%d, %s, s%d offen%s lds' % (tmp, WS, S_T0, OPT.get('pff', ''))); P('buffer_load_dword v%d, %s, s%d offen%s lds' % (tmp, WS, S_T1, OPT.get('pff', '')))
    P.label(lab)
def pre_step(P):
    if not OPT.get('kxtop'): kx_loads(P)
    for r in range(V_QA, V_VB+4, 2): P('v_mov_b64 %s, 0' % vr(r,2))
    P(blk_s(('k',0,0), V_ST)); P(blk_s(('k',1,0), V_ST+8))

class Filler:
    def __init__(self): self.q = []
    def add(self, t): self.q.append(t)
    def emit(self, P, n):
        for _ in range(n):
            if self.q: P(self.q.pop(0))
    def drain(self, P): self.emit(P, len(self.q))

def bop(blk, buf): return REG_OF[blk][0] if blk in REG_OF else vr(buf, 8)

def main_loop(k, st='', kvwait=None, publish=None):
    P = Prog()
    SB = [V_ST, V_ST+8]
    if 'align' in OPT:
        P('.p2align %d' % OPT['align'])
        pass
    P.label('L_chain_loop')
    stamp(P, 0)
    P(aread_s(0, V_AR)); P(aread_s(1, V_AR+4))
    kxpos = OPT.get('kxpos', 0)
    if OPT.get('kxtop') and kxpos == 0: kx_loads(P)
    for t in range(9):
        a = V_AR + 4*(t % 3)
        if t + 2 < 9: P(aread_s(t+2, V_AR + 4*((t+2) % 3)))
        if t < 8:
            smf(P, V_QA, a, bop(('q',0,t), 0))
            if OPT.get('kxtop') and kxpos == 1 and t == 0: P('buffer_load_dwordx4 %s, v%d, %s, s%d offen' % (vr(V_KF,4), V_KX, WS, S_KV))
            if t == 6: P('WAIT_SPEC'); P('v_mov_b64 %s, 0' % vr(V_VB,2))
            smf(P, V_QB, a, bop(('q',1,t), 0))
            if OPT.get('kxtop') and kxpos == 1 and t == 0: P('buffer_load_dwordx4 %s, v%d, %s, s%d offen offset:128' % (vr(V_KF+4,4), V_KX, WS, S_KV))
            if t == 6: P('v_mov_b64 %s, 0' % vr(V_VB+2,2))
            if t % 2 == 1: P(blk_s(('k',0,t+1), SB[0]))
            smf(P, V_KA, a, bop(('k',0,t), SB[0]))
            if t % 2 == 1: P(blk_s(('k',1,t+1), SB[1]))
            smf(P, V_KB, a, bop(('k',1,t), SB[1]))
    a = V_AR + 4*(8 % 3)
    smf(P, V_QA, a, bop(('q',0,8), 0)); smf(P, V_QB, a, bop(('q',1,8), 0))
    vorder = [2, 6, 0, 1, 3, 4, 5, 7, 8]
    ring = [V_AR, V_AR+4, V_AR+8]
    P(aread_s(vorder[0], ring[0])); P(aread_s(vorder[1], ring[1]))
    smf(P, V_KA, a, bop(('k',0,8), SB[0])); P(blk_s(('v',0,2), SB[0]))
    smf(P, V_KB, a, bop(('k',1,8), SB[1])); P(blk_s(('v',1,2), SB[1]))
    stamp(P, 1)
    F = Filler()
    for i, t in enumerate(vorder):
        ar = ring[i % 3] if i != 2 else ring[2]
        g1 = []; g2 = []
        if i + 2 < 9: g1.append(aread_s(vorder[i+2], ring[(i+2) % 3]))
        s1 = smf_s(V_VA, ar, bop(('v',0,t), SB[0])); s2 = smf_s(V_VB, ar, bop(('v',1,t), SB[1]))
        if t == 2:
            F.add('\n'.join([s1, blk_s(('v',0,6), SB[0])])); F.add('\n'.join([s2, blk_s(('v',1,6), SB[1])] + g1))
        else:
            F.add('\n'.join([s1] + g1)); F.add(s2)
    cvt(P, V_QA, V_QA, V_QA+1); cvt(P, V_QA+1, V_QA+2, V_QA+3); cvt(P, V_QB, V_QB, V_QB+1); cvt(P, V_QB+1, V_QB+2, V_QB+3)
    mfma16(P, V_QA, V_QA, V_BSEL); mfma16(P, V_QB, V_QB, V_BSEL)
    cvt(P, V_KA, V_KA, V_KA+1); cvt(P, V_KA+1, V_KA+2, V_KA+3); cvt(P, V_KB, V_KB, V_KB+1); cvt(P, V_KB+1, V_KB+2, V_KB+3)
    mfma16(P, V_KA, V_KA, V_BSEL); mfma16(P, V_KB, V_KB, V_BSEL)
    F.emit(P, 1)
    for i in range(4): cvt(P, V_QA+i, V_QA+2*i, V_QA+2*i+1)
    qop = V_QA; kop = V_KA
    X0, X1, MM = V_QB, V_KF+4, V_KB
    mfma32(P, X0, V_KF, qop); mfma32(P, X1, V_KF+4, qop)
    for i in range(4): cvt(P, V_KA+i, V_KA+2*i, V_KA+2*i+1)
    F.emit(P, 1)
    mfma32(P, MM, kop, qop)
    F.emit(P, 1)
    P('s_mov_b64 exec, s[%d:%d]' % (S_EXN8, S_EXN8+1))
    P('ds_write_b128 v%d, %s' % (V_SW, vr(X0,4)))
    P('ds_write_b128 v%d, %s offset:512' % (V_SW, vr(X1,4)))
    P('s_mov_b64 exec, -1')
    P('buffer_load_dwordx4 %s, v%d, %s, s%d offen%s' % (vr(V_KF,4), V_VX, WS, S_VV, OPT.get('kvf', '')))
    P('s_mov_b64 exec, s[%d:%d]' % (S_EXMM, S_EXMM+1))
    P('ds_write_b128 v%d, %s offset:1024' % (V_SW, vr(MM,4)))
    P('s_mov_b64 exec, -1')
    P('buffer_load_dwordx4 %s, v%d, %s, s%d offen offset:128%s' % (vr(V_KF+4,4), V_VX, WS, S_VV, OPT.get('kvf', '')))
    def km_store():
        P('s_mov_b64 exec, s[%d:%d]' % (S_EXN8, S_EXN8+1))
        if OPT.get('nopub', 0) in (0, 2): P('buffer_store_dwordx4 %s, v%d, %s, s%d offen%s' % (vr(kop,4), V_G16, WS, S_KMW, OPT.get('pubf', ' sc1')))
        P('s_mov_b64 exec, -1')
    late = OPT.get('kmlate', 1)
    F.emit(P, 1)
    if not late: km_store()
    F.emit(P, 2)
    P('WAIT_LDSW')
    stamp(P, 2)
    Flast = list(F.q)
    if OPT.get('earlylast', 1) and late:
        P('s_cmp_eq_u32 s%d, 63' % S_STEP)
        P('s_cbranch_scc1 L_chain_last')
    P('s_barrier')
    X, M = V_QA, SB[1]
    for e in ((0, 1, 3) if late else range(4)): P('ds_read_b128 %s, v%d offset:%d' % (vr(V_QA+4*e,4), V_SR, 1280*e))
    for e in range(2): P('ds_read_b128 %s, v%d offset:%d' % (vr(M+4*e,4), V_SM, 1280*e))
    if late:
        km_store()
        P('s_nop 3')
        P('ds_read_b128 %s, v%d offset:%d' % (vr(V_QA+8,4), V_SR, 2560))
    if OPT.get('nopub', 0) in (0, 3): P('buffer_store_dwordx2 %s, v%d, %s, s%d offen%s' % (vr(V_VMH,2), V_VM, WS, S_VMP, OPT.get('pubf', ' sc1')))
    F.emit(P, 2)
    if publish: publish(P)
    F.emit(P, 3)
    pk_add(P, X, X, X+4); pk_add(P, X+2, X+2, X+6); F.emit(P, 1)
    pk_add(P, X+8, X+8, X+12); pk_add(P, X+10, X+10, X+14); F.emit(P, 1)
    pk_add(P, M, M, M+4); pk_add(P, M+2, M+2, M+6); F.emit(P, 1)
    pk_add(P, X, X, X+8); pk_add(P, X+2, X+2, X+10)
    for i in range(4): P('v_add_f32_dpp v%d, v%d, v%d %s' % (M+i, M+i, M+i, DPP8))
    mx, t1 = M+4, M+5
    P('v_max3_f32 v%d, v%d, v%d, v%d' % (mx, X, X+1, X+2)); P('v_max3_f32 v%d, v%d, v%d, v%d' % (mx, mx, X+3, M))
    P('v_max3_f32 v%d, v%d, v%d, v%d' % (mx, mx, M+1, M+2)); P('v_max_f32 v%d, v%d, v%d' % (mx, mx, M+3))
    AV = V_QA + 10
    F.emit(P, 1)
    P('v_max_f32_dpp v%d, v%d, v%d %s' % (mx, mx, mx, DPP8))
    P('v_mov_b32 v%d, 0x3f803f80' % (V_QA+14))
    P('v_mov_b32 v%d, v%d' % (t1, mx))
    F.drain(P)
    P('v_mov_b32 v%d, 0x3f803f80' % (V_QA+15))
    P('v_permlane16_swap_b32 v%d, v%d' % (mx, t1))
    P('v_max_f32 v%d, v%d, v%d' % (mx, mx, t1))
    P('v_mov_b32 v%d, v%d' % (t1, mx))
    P('v_mov_b32 v%d, 0x3f003f00' % (M+6)); P('v_mov_b32 v%d, 0x3f003f00' % (M+7))
    P('v_permlane32_swap_b32 v%d, v%d' % (mx, t1))
    P('v_max_f32 v%d, v%d, v%d' % (mx, mx, t1))
    P('v_mul_f32 v%d, s%d, v%d' % (mx, S_C, mx))
    vals = [X+i for i in range(4)] + [M+i for i in range(4)]
    for r in vals: P('v_fma_f32 v%d, v%d, s%d, -v%d' % (r, r, S_C, mx))
    for r in vals: P('v_exp_f32 v%d, v%d' % (r, r))
    px, pm = V_QA+4, V_QA+8
    cvt(P, pm, M, M+1); cvt(P, pm+1, M+2, M+3); cvt(P, px, X, X+1); cvt(P, px+1, X+2, X+3)
    oa, ob, sm = V_AR, V_AR+4, V_AR+8
    ONES, HALF = V_QA+14, M+6
    mfma16(P, sm, HALF, pm)
    P('v_mov_b32_dpp v%d, v%d %s' % (px+2, px, DPP8)); P('v_mov_b32_dpp v%d, v%d %s' % (px+3, px+1, DPP8))
    mfma16(P, sm, ONES, px, sm)
    cvt(P, AV, V_VA, V_VA+1)
    mfma16(P, sm, ONES, px+2, sm)
    cvt(P, AV+1, V_VA+2, V_VA+3)
    mfma32(P, oa, V_KF, px)
    cvt(P, AV+2, V_VB, V_VB+1)
    mfma32(P, ob, V_KF+4, px)
    cvt(P, AV+3, V_VB+2, V_VB+3)
    mfma16(P, oa, AV, pm, oa)
    ow = M
    P('v_add_u32 v%d, s%d, v%d' % (ow, S_OW, V_G16))
    mfma16(P, ob, AV+2, pm, ob)
    lds_o = [('od', p, 3) for p in range(4)]
    P('v_rcp_f32 v%d, v%d' % (sm, sm))
    P(blk_s(lds_o[0], SB[0]))
    for i in range(0, 8, 2): P('v_pk_mul_f32 %s, %s, %s op_sel_hi:[1,0]' % (vr(oa+i,2), vr(oa+i,2), vr(sm,2)))
    og = V_QA + 12
    for i in range(4): cvt(P, og+i, oa+2*i, oa+2*i+1)
    P('s_mov_b64 exec, s[%d:%d]' % (S_EXN8, S_EXN8+1))
    P('ds_write_b128 v%d, %s' % (ow, vr(og,4)))
    P('s_mov_b64 exec, -1')
    if not (OPT.get('earlylast', 1) and late):
        P('s_cmp_eq_u32 s%d, 63' % S_STEP)
        P('s_cbranch_scc1 L_chain_last')
    th = V_AR + 8
    accs = [V_KF, V_KF+4, V_AR, V_AR+4]
    for r in list(range(V_KF, V_KF+8, 2)) + [th, th+2]: P('v_mov_b64 %s, 0' % vr(r,2))
    P(blk_s(lds_o[1], SB[1]))
    P('WAIT_LDSW')
    stamp(P, 3)
    if OPT.get('ackat3'): P('s_waitcnt vmcnt(0)'); stamp(P, 7)
    P('s_barrier')
    dual, half = V_QA, V_AR
    for s2 in range(2): P('ds_read_b128 %s, v%d offset:%d' % (vr(half+4*s2,4), V_SR, L_O - L_S + 1024*s2))
    for c in range(4): P('ds_read_b128 %s, v%d offset:%d' % (vr(dual+4*c,4), V_G16, L_O + 512*c))
    smf(P, th, half, bop(('oh',0), 0)); smf(P, th, half+4, bop(('oh',1), 0))
    def tagst(reg): P('v_bfi_b32 v%d, 1, s%d, v%d' % (reg, S_TAG, reg))
    def pstore(pr):
        off = (1 + 2*pr)*1024
        P('buffer_store_dwordx2 %s, v%d, %s, s%d offen offset:%d%s' % (vr(accs[pr],2), V_PST, WS, S_PCUR if off < 4096 else S_PCUR4, off & 4095, st))
    def pcvt(pr):
        acc = accs[pr]; cvt(P, acc, acc, acc+1); cvt(P, acc+1, acc+2, acc+3)
    seq = [(p, c) for p in range(4) for c in range(4)]
    extra = {0: lambda: [P('v_mov_b64 %s, 0' % vr(V_AR, 2)), P('v_mov_b64 %s, 0' % vr(V_AR+2, 2))],
             1: lambda: [P('v_mov_b64 %s, 0' % vr(V_AR+4, 2)), P('v_mov_b64 %s, 0' % vr(V_AR+6, 2))],
             2: lambda: [P('v_permlane32_swap_b32 v%d, v%d' % (th, th+1))],
             3: lambda: [P(blk_s(lds_o[2], SB[0])), P('v_permlane32_swap_b32 v%d, v%d' % (th+2, th+3))],
             4: lambda: [P('v_add_f32 v%d, v%d, v%d' % (th, th, th+1)), P('v_add_f32 v%d, v%d, v%d' % (th+2, th+2, th+3))],
             5: lambda: [cvt(P, th, th, th+2), tagst(th), P('buffer_store_dword v%d, v%d, %s, s%d offen%s' % (th, V_PT0, WS, S_PCUR, st))],
             6: lambda: [pcvt(0), tagst(accs[0]), pstore(0)],
             7: lambda: [P(blk_s(lds_o[3], SB[1]))],
             10: lambda: [pcvt(1), tagst(accs[1]), pstore(1)],
             14: lambda: [pcvt(2), tagst(accs[2]), pstore(2)]}
    for i, (pr, c) in enumerate(seq):
        smf(P, accs[pr], dual + 4*c, bop(('od', pr, c), SB[pr % 2]))
        if i in extra: extra[i]()
    pcvt(3); tagst(accs[3]); pstore(3)
    stamp(P, 4)
    def idle_a(P):
        for i in range(4): P('v_permlane32_swap_b32 v%d, v%d' % (V_VA+i, V_VB+i))
        pk_add(P, V_VA, V_VA, V_VB); pk_add(P, V_VA+2, V_VA+2, V_VB+2)
        cvt(P, V_VMH, V_VA, V_VA+1); cvt(P, V_VMH+1, V_VA+2, V_VA+3)
        P('s_mov_b32 s%d, s%d' % (S_VMP, S_KM))
        if not OPT.get('nokv'):
            P('s_add_u32 s%d, s%d, %d' % (S_KV, S_KV, 32*8192)); P('s_add_u32 s%d, s%d, %d' % (S_VV, S_VV, 32*8192))
        if not OPT.get('nokm'): P('s_add_u32 s%d, s%d, %d' % (S_KM, S_KM, 32*2048)); P('s_add_u32 s%d, s%d, %d' % (S_KMW, S_KMW, 32*2048))
        P('s_add_u32 s%d, s%d, s%d' % (S_G0, S_MNXT, S_GW)); P('s_add_u32 s%d, s%d, 4096' % (S_G1, S_G0)); P('s_add_u32 s%d, s%d, 8192' % (S_G2, S_MNXT))
        P('s_add_u32 s%d, s%d, 3' % (S_T1, S_STEP)); P('s_and_b32 s%d, s%d, 3' % (S_T1, S_T1)); P('s_mul_i32 s%d, s%d, %d' % (S_T1, S_T1, M_SLOT))
        P('s_add_u32 s%d, s%d, 0x%x' % (S_MPN, S_T1, WS_M))
        P('s_add_u32 s%d, s%d, 1' % (S_STEP, S_STEP))
    BR = V_QA; CK = V_QA+4
    RL = [V_AR, V_AR+4, V_AR+8, SB[1]]; D = SB[1]+4
    def red_loads(P):
        for t in range(4): P('buffer_load_dwordx4 %s, v%d, %s, s%d offen sc1 ;@spec' % (vr(RL[t],4), V_RED, WS, S_PR0+t))
    def red_check(P, par):
        if par == 0:
            P('v_or3_b32 v%d, v%d, v%d, v%d' % (CK, RL[0], RL[0]+2, RL[1])); P('v_or3_b32 v%d, v%d, v%d, v%d' % (CK+1, RL[1]+2, RL[2], RL[2]+2))
            P('v_or3_b32 v%d, v%d, v%d, v%d' % (CK, CK, RL[3], RL[3]+2)); P('v_or_b32 v%d, v%d, v%d' % (CK, CK, CK+1))
        else:
            P('v_and_b32 v%d, v%d, v%d' % (CK, RL[0], RL[0]+2)); P('v_and_b32 v%d, v%d, v%d' % (CK+1, RL[1], RL[1]+2))
            P('v_and_b32 v%d, v%d, v%d' % (CK+2, RL[2], RL[2]+2)); P('v_and_b32 v%d, v%d, v%d' % (CK+3, RL[3], RL[3]+2))
            P('v_and_b32 v%d, v%d, v%d' % (CK, CK, CK+1)); P('v_and_b32 v%d, v%d, v%d' % (CK+2, CK+2, CK+3)); P('v_and_b32 v%d, v%d, v%d' % (CK, CK, CK+2))
        P('v_and_b32 v%d, 1, v%d' % (CK, CK))
        P('v_cmp_ne_u32 vcc, s%d, v%d' % (S_TAG, CK))
    P('s_cmp_eq_u32 s%d, 0' % S_RED)
    P('s_cbranch_scc1 L_nored')
    P('buffer_store_dword v%d, v%d, %s, s%d offen%s' % (V_NEG1, V_MST, WS, S_MPOI, st))
    if OPT.get('canary'):
        P('s_memtime s[90:91]')
        P('s_cmp_eq_u32 s%d, 0' % S_TAG); P('s_cbranch_scc0 L_can1')
        for par in range(2):
            P.label('L_can%d' % par)
            for t in range(4): P('buffer_load_dword v%d, v%d, %s, s%d offen offset:8 sc1' % (V_AR+t, V_RED, WS, S_PR0+t))
            P('s_waitcnt vmcnt(0)')
            if par == 0: P('v_or3_b32 v24, v20, v21, v22'); P('v_or_b32 v24, v24, v23')
            else: P('v_and_b32 v24, v20, v21'); P('v_and_b32 v25, v22, v23'); P('v_and_b32 v24, v24, v25')
            P('v_and_b32 v24, 1, v24'); P('v_cmp_ne_u32 vcc, s%d, v24' % S_TAG)
            P('s_cbranch_vccnz L_can%d' % par)
            P('s_branch L_can_done')
        P.label('L_can_done')
        P('s_memtime s[92:93]'); P('s_waitcnt lgkmcnt(0)'); P('s_sub_u32 s%d, s92, s90' % (S_ST+3))
    delay(P, S_RDEL, 'L_rdel')
    stamp(P, 7)
    red_loads(P)
    for r in range(4): P('v_cndmask_b32 v%d, 0, v%d, s[%d:%d]' % (BR+r, V_BVAL, S_BM+2*r, S_BM+2*r+1))
    idle_a(P)
    RD = OPT.get('rdepth', 2)
    if RD == 2: red_loads(P)
    P('s_mov_b32 s%d, s%d' % (S_TMO, S_TMOV))
    P('s_cmp_eq_u32 s%d, 0' % S_TAG); P('s_cbranch_scc0 L_red_poll1')
    for par in range(2):
        P.label('L_red_poll%d' % par)
        P('s_waitcnt vmcnt(%d)' % (4 if RD == 2 else 0))
        red_check(P, par)
        P('s_cbranch_vccz L_red_done')
        if OPT['rc']: P('s_add_u32 s%d, s%d, 1' % (S_RC, S_RC))
        red_loads(P)
        P('s_sub_u32 s%d, s%d, 1' % (S_TMO, S_TMO)); P('s_cmp_lg_u32 s%d, 0' % S_TMO); P('s_cbranch_scc1 L_red_poll%d' % par)
        P('s_or_b32 s%d, s%d, 1' % (S_ERR, S_ERR)); P('s_mov_b32 s%d, 1' % S_TMOV)
        P('s_branch L_red_done')
    P.label('L_red_done')
    mfma32(P, D, RL[0], BR)
    for t in range(1, 4): mfma32(P, D, RL[t], BR, D)
    P('v_permlane32_swap_b32 v%d, v%d' % (D, D+1)); P('v_permlane32_swap_b32 v%d, v%d' % (D+2, D+3))
    P('v_add_f32 v%d, v%d, v%d' % (D, D, D+1)); P('v_add_f32 v%d, v%d, v%d' % (D+2, D+2, D+3))
    cvt(P, D, D, D+2)
    P('buffer_store_dword v%d, v%d, %s, s%d offen%s' % (D, V_MST, WS, S_MNXT, st))
    P('s_mov_b32 s%d, %d' % (S_T2, OPT['gdel']))
    P('s_branch L_red_done2')
    P.label('L_nored')
    idle_a(P)
    if kvwait: kvwait(P)
    if OPT.get('gsl0'):
        P('s_sleep %d' % OPT['gsl0']); P('s_mov_b32 s%d, %d' % (S_T2, OPT.get('gsl0r', 0)))
    else:
        P('s_mov_b32 s%d, %d' % (S_T2, OPT['gdel0']))
    P.label('L_red_done2')
    stamp(P, 5)
    GL = V_QA + 8; CK = V_QA + 9
    P('v_add_u32 v%d, s%d, v%d' % (GL, S_GW, V_L16))
    delay(P, S_T2, 'L_gdel')
    def gat_loads(P, w0):
        P('buffer_load_dwordx4 v[72:75], v%d, %s, s%d offen sc1 ;@spec' % (V_L16, WS, S_G0))
        P('buffer_load_dwordx4 v[76:79], v%d, %s, s%d offen sc1 ;@spec' % (V_L16, WS, S_G1))
        if w0: P('buffer_load_dwordx4 v[68:71], v%d, %s, s%d offen sc1 ;@spec' % (V_L16, WS, S_G2))
    def gat_check(P, w0):
        P('v_max3_u32 v%d, v72, v73, v74' % CK); P('v_max3_u32 v%d, v75, v76, v77' % (CK+1))
        P('v_max3_u32 v%d, v%d, v78, v79' % (CK, CK))
        if w0:
            P('v_max3_u32 v%d, v%d, v68, v69' % (CK+1, CK+1)); P('v_max3_u32 v%d, v%d, v70, v71' % (CK, CK))
        P('v_max_u32 v%d, v%d, v%d' % (CK, CK, CK+1))
        P('v_cmp_eq_u32 vcc, -1, v%d' % CK)
    def idle_b(P):
        P('s_xor_b32 s%d, s%d, 1' % (S_TAG, S_TAG))
        P('s_mov_b32 s%d, s%d' % (S_MNXT, S_MPOI)); P('s_mov_b32 s%d, s%d' % (S_MPOI, S_MPN))
        P('s_mov_b32 s%d, s%d' % (S_TMO, S_TMOV))
        for r in (V_QA, V_QA+2, V_QA+4, V_QA+6, V_QA+12, V_QA+14, V_VA, V_VA+2): P('v_mov_b64 %s, 0' % vr(r,2))
        P(blk_s(('k',0,0), V_ST))
    P('s_cmp_eq_u32 s%d, 0' % S_W)
    P('s_cbranch_scc1 L_gat0')
    for w0, pfx in ((False, 'L_gat'), (True, 'L_gat0')):
        n = 3 if w0 else 2
        if w0: P.label('L_gat0')
        gat_loads(P, w0)
        idle_b(P)
        GD = OPT.get('gdepth', 2)
        if GD == 2: gat_loads(P, w0)
        P.label(pfx + '_poll')
        P('s_waitcnt vmcnt(%d)' % (n if GD == 2 else 0))
        gat_check(P, w0)
        P('s_cbranch_vccz %s_ok' % pfx)
        if OPT['rc']: P('s_add_u32 s%d, s%d, 1' % (S_RC+1, S_RC+1))
        gat_loads(P, w0)
        P('s_sub_u32 s%d, s%d, 1' % (S_TMO, S_TMO)); P('s_cmp_lg_u32 s%d, 0' % S_TMO); P('s_cbranch_scc1 %s_poll' % pfx)
        P('s_or_b32 s%d, s%d, 2' % (S_ERR, S_ERR)); P('s_mov_b32 s%d, 1' % S_TMOV)
        P.label(pfx + '_ok')
        P('ds_write_b128 v%d, v[72:75] offset:%d' % (GL, L_MF))
        P('ds_write_b128 v%d, v[76:79] offset:%d' % (GL, L_MF + 4096))
        if w0: P('ds_write_b128 v%d, v[68:71] offset:%d' % (V_L16, L_MF + 8192))
        P(blk_s(('k',1,0), V_ST+8))
        P('v_mov_b64 %s, 0' % vr(V_QA+8,2)); P('v_mov_b64 %s, 0' % vr(V_QA+10,2))
        if not w0: P('s_branch L_gat_w')
    P.label('L_gat_w')
    stamp(P, 6)
    flush_stamps(P)
    P('WAIT_LDSW')
    P('s_barrier')
    P('s_branch L_chain_loop')
    P.label('L_chain_last')
    if OPT.get('earlylast', 1) and late:
        km_store()
        P('buffer_store_dwordx2 %s, v%d, %s, s%d offen sc1' % (vr(V_VMH,2), V_VM, WS, S_VMP))
        for x in Flast: P(x)
    for i in range(4): P('v_permlane32_swap_b32 v%d, v%d' % (V_VA+i, V_VB+i))
    pk_add(P, V_VA, V_VA, V_VB); pk_add(P, V_VA+2, V_VA+2, V_VB+2)
    cvt(P, V_VA, V_VA, V_VA+1); cvt(P, V_VA+1, V_VA+2, V_VA+3)
    P('buffer_store_dwordx2 %s, v%d, %s, s%d offen sc1' % (vr(V_VA,2), V_VM, WS, S_KM))
    P('s_branch L_chain_done')
    return P


def early_init(st, cb_off, zcheck=None):
    def hook(P, second=False):
        if not second:
            if zcheck:
                P('v_mov_b32 v59, %d' % zcheck[1]); P('global_load_dword v58, v59, s[%d:%d] sc1' % (zcheck[0], zcheck[0]+1))
                P('v_mov_b32 v57, %d' % zcheck[2]); P('global_load_dword v56, v57, s[%d:%d] sc1' % (zcheck[0], zcheck[0]+1))
            P('s_mov_b32 s64, s%d' % (S_PTR+8)); P('s_mov_b32 s65, s%d' % (S_PTR+9)); P('s_mov_b32 s66, %d' % (8*576*2)); P('s_mov_b32 s67, 0x20000')
            P('s_lshl_b32 s%d, s%d, 6' % (S_T0, S_W)); P('v_add_u32 v60, s%d, v0' % S_T0)
            for i in range(3):
                P('v_add_u32 v61, %d, v60' % (256*i)); P('v_and_b32 v62, 7, v61'); P('v_lshrrev_b32 v63, 3, v61')
                P('s_movk_i32 s%d, 1152' % S_T1); P('v_mul_lo_u32 v62, v62, s%d' % S_T1); P('v_lshl_add_u32 v62, v63, 4, v62')
                P('v_cmp_gt_u32 vcc, 576, v61'); P('v_mov_b32 v63, 0x%x' % OOB); P('v_cndmask_b32 v62, v63, v62, vcc')
                P('buffer_load_dwordx4 %s, v62, s[64:67], 0 offen' % vr(64+4*i,4))
            P('v_mov_b32 v76, -1'); P('v_mov_b32 v77, -1'); P('v_mov_b32 v78, -1'); P('v_mov_b32 v79, -1')
            P('s_mul_i32 s%d, s%d, %d' % (S_T0, S_H, P_HEAD)); P('s_add_u32 s%d, s%d, 0x%x' % (S_T0, S_T0, WS_P))
            P('v_lshlrev_b32 v61, 4, v60')
            for i in range(3):
                if i == 2:
                    P('v_mov_b32 v63, 0x%x' % OOB); P('v_cmp_gt_u32 vcc, 64, v60'); P('v_cndmask_b32 v61, v63, v61, vcc')
                P('s_add_u32 s%d, s%d, %d' % (S_T1, S_T0, 4096*i)); P('buffer_store_dwordx4 v[76:79], v61, %s, s%d offen%s' % (WS, S_T1, st))
            P('s_lshl_b32 s%d, s%d, 11' % (S_T1, S_H)); P('s_lshl_b32 s%d, s%d, 9' % (S_T2, S_W)); P('s_add_u32 s%d, s%d, s%d' % (S_T1, S_T1, S_T2))
            P('v_lshlrev_b32 v62, 4, v0'); P('v_mov_b32 v63, 0x%x' % OOB); P('v_cmp_gt_u32 vcc, 32, v0'); P('v_cndmask_b32 v62, v63, v62, vcc')
            for seg in (60, 61, 62, 63):
                P('s_add_u32 s%d, s%d, 0x%x' % (S_T2, S_T1, WS_KM + seg*32*2048)); P('buffer_store_dwordx4 v[76:79], v62, %s, s%d offen sc1' % (WS, S_T2))
                P('s_add_u32 s%d, s%d, 0x%x' % (S_T2, S_T1, WS_VM + seg*32*2048)); P('buffer_store_dwordx4 v[76:79], v62, %s, s%d offen sc1' % (WS, S_T2))
            P('s_sub_u32 s%d, s%d, 1' % (S_T0, S_W)); P('s_lshl_b32 s%d, s%d, 5' % (S_T0, S_T0)); P('s_add_u32 s%d, s%d, s%d' % (S_T0, S_T0, S_H))
            P('s_cmp_lt_u32 s%d, 72' % S_T0); P('s_cselect_b32 s%d, 1, 0' % S_T1); P('s_cmp_eq_u32 s%d, 0' % S_W); P('s_cselect_b32 s%d, 0, s%d' % (S_T1, S_T1))
            P('s_lshl_b32 s%d, s%d, 7' % (S_T0, S_T0))
            P('v_lshlrev_b32 v61, 2, v0'); P('v_mov_b32 v63, 0x%x' % OOB); P('v_cmp_gt_u32 vcc, 32, v0'); P('v_cndmask_b32 v61, v63, v61, vcc')
            P('s_cmp_eq_u32 s%d, 0' % S_T1); P('s_cselect_b64 vcc, -1, 0'); P('v_cndmask_b32 v61, v61, v63, vcc')
            for slot in range(4):
                P('s_add_u32 s%d, s%d, 0x%x' % (S_T1, S_T0, WS_M + slot*M_SLOT)); P('buffer_store_dword v76, v61, %s, s%d offen%s' % (WS, S_T1, st))
        else:
            if zcheck: P('v_readfirstlane_b32 s%d, v56' % zcheck[3])
            P('s_mov_b32 s%d, 0x05040100' % S_PERM); P('s_mov_b32 s%d, 0x07060302' % S_PERM2)
            for i in range(3):
                d = 64 + 4*i
                P('v_perm_b32 v76, v%d, v%d, s%d' % (d+1, d, S_PERM)); P('v_perm_b32 v77, v%d, v%d, s%d' % (d+3, d+2, S_PERM))
                P('v_perm_b32 v78, v%d, v%d, s%d' % (d+1, d, S_PERM2)); P('v_perm_b32 v79, v%d, v%d, s%d' % (d+3, d+2, S_PERM2))
                P('v_add_u32 v61, %d, v60' % (256*i)); P('v_cmp_gt_u32 vcc, 576, v61'); P('v_lshlrev_b32 v61, 4, v61')
                P('s_and_saveexec_b64 s[%d:%d], vcc' % (S_TS, S_TS+1))
                P('ds_write_b128 v61, v[76:79] offset:%d' % L_MF)
                P('s_mov_b64 exec, s[%d:%d]' % (S_TS, S_TS+1))
            if cb_off is not None:
                P('s_cmp_eq_u32 s%d, 0' % S_W); P('s_cbranch_scc0 L_ei_%s' % ('s' if st else 'f'))
                if zcheck:
                    P('s_mov_b32 s%d, 30000' % S_TMO)
                    P.label('L_ei_z')
                    P('v_readfirstlane_b32 s%d, v58' % S_T1); P('s_cmp_lg_u32 s%d, 0' % S_T1); P('s_cbranch_scc1 L_ei_zd')
                    P('global_load_dword v58, v59, s[%d:%d] sc1' % (zcheck[0], zcheck[0]+1)); P('s_waitcnt vmcnt(0)')
                    P('s_sub_u32 s%d, s%d, 1' % (S_TMO, S_TMO)); P('s_cmp_lg_u32 s%d, 0' % S_TMO); P('s_cbranch_scc1 L_ei_z')
                    P.label('L_ei_zd')
                P('s_mov_b32 s%d, 0x%x' % (S_T1, cb_off)); P('v_mov_b32 v61, 1'); P('s_mov_b64 exec, 1')
                P('buffer_atomic_add v61, off, %s, s%d' % (WS, S_T1)); P('s_mov_b64 exec, -1')
                P.label('L_ei_%s' % ('s' if st else 'f'))
    return hook
```

```python
from asmlib import *
from common import *
import gemm as Gm
from gemm import *

def srd(P, s, lo, hi, size):
    P('s_mov_b32 s%d, s%d' % (s, lo)); P('s_mov_b32 s%d, s%d' % (s+1, hi))
    P('s_mov_b32 s%d, 0x%x' % (s+2, size)); P('s_mov_b32 s%d, 0x20000' % (s+3))

def load_ptrs(P, names, sbase):
    for i, n in enumerate(names): P('s_load_dwordx2 s[%d:%d], s[0:1], %d' % (sbase+2*i, sbase+2*i+1, KA[n]))

def std_entry(P, nwg, endlabel):
    P('s_cmp_ge_u32 s2, %d' % nwg); P('s_cbranch_scc1 %s' % endlabel)
    P('s_load_dwordx2 s[8:9], s[0:1], %d' % KA['ws'])
    P('v_lshrrev_b32 v1, 6, v0'); P('v_and_b32 v0, 63, v0')
    P('s_nop 0')
    P('v_readfirstlane_b32 s%d, v1' % G_W)
    P('s_mov_b32 s10, 0x%x' % WS_SIZE); P('s_mov_b32 s11, 0x20000')

def ln_rows(P, sRow0, stflag=''):
    X = 's[%d:%d]' % (G_BSRD, G_BSRD+3)
    D = 20
    F = 60
    P('v_lshrrev_b32 v2, 3, v0'); P('v_and_b32 v3, 7, v0')
    P('v_add_u32 v2, s%d, v2' % sRow0)
    P('s_movk_i32 s%d, 1152' % G_T0); P('v_mul_lo_u32 v4, v2, s%d' % G_T0)
    P('v_lshl_add_u32 v4, v3, 4, v4')
    for i in range(9): P('buffer_load_dwordx4 %s, v4, %s, 0 offen offset:%d' % (vr(D+4*i,4), X, 128*i))
    for i in range(36):
        P('v_lshlrev_b32 v%d, 16, v%d' % (F+2*i, D+i)); P('v_and_b32 v%d, 0xffff0000, v%d' % (F+2*i+1, D+i))
    def rsum(dst, srcs_first):
        pass
    def xlane_sum(r, t):
        for sh in (1, 2, 4):
            if sh == 1: P('v_add_f32_dpp v%d, v%d, v%d quad_perm:[1,0,3,2] row_mask:0xf bank_mask:0xf' % (r, r, r))
            elif sh == 2: P('v_add_f32_dpp v%d, v%d, v%d quad_perm:[2,3,0,1] row_mask:0xf bank_mask:0xf' % (r, r, r))
            else: P('v_add_f32_dpp v%d, v%d, v%d row_half_mirror row_mask:0xf bank_mask:0xf' % (r, r, r))
    def rbf(r, t):
        P('v_cvt_pk_bf16_f32 v%d, v%d, v%d' % (r, r, r)); P('v_lshlrev_b32 v%d, 16, v%d' % (r, r))
    def layernorm():
        P('v_add_f32 v5, v%d, v%d' % (F, F+1))
        for i in range(2, 72): P('v_add_f32 v5, v5, v%d' % (F+i))
        xlane_sum(5, 6)
        P('v_mul_f32 v5, s%d, v5' % G_T1)
        P('v_sub_f32 v6, v%d, v5' % F); P('v_mul_f32 v7, v6, v6')
        for i in range(1, 72):
            P('v_sub_f32 v6, v%d, v5' % (F+i)); P('v_fmac_f32 v7, v6, v6')
        xlane_sum(7, 6)
        P('v_mul_f32 v7, s%d, v7' % G_T1)
        rbf(5, 6); rbf(7, 6)
        P('v_add_f32 v7, s%d, v7' % G_T2); rbf(7, 6)
        P('v_sqrt_f32 v7, v7'); P('s_nop 0'); rbf(7, 6)
        P('v_rcp_f32 v8, v7')
        for i in range(72):
            r = F + i
            P('v_sub_f32 v%d, v%d, v5' % (r, r))
        for i in range(0, 72, 2):
            r = F + i
            P('v_cvt_pk_bf16_f32 v6, v%d, v%d' % (r, r+1))
            P('v_lshlrev_b32 v%d, 16, v6' % r); P('v_and_b32 v%d, 0xffff0000, v6' % (r+1))
        for i in range(72):
            r = F + i
            P('v_mul_f32 v6, v%d, v8' % r)
            P('v_fma_f32 v9, -v6, v7, v%d' % r)
            P('v_fma_f32 v%d, v9, v8, v6' % r)
        for i in range(0, 72, 2):
            r = F + i
            P('v_cvt_pk_bf16_f32 v%d, v%d, v%d' % (D + i//2, r, r+1))
    def store(region):
        for i in range(9):
            d = D + 4*i
            P('v_cndmask_b32 v10, v%d, v%d, s[%d:%d]' % (d+2, d, 84, 85))
            P('v_cndmask_b32 v11, v%d, v%d, s[%d:%d]' % (d+3, d+1, 84, 85))
            P('v_mov_b32_dpp v12, v10 quad_perm:[1,0,3,2] row_mask:0xf bank_mask:0xf')
            P('v_mov_b32_dpp v13, v11 quad_perm:[1,0,3,2] row_mask:0xf bank_mask:0xf')
            P('v_cndmask_b32 v14, v%d, v12, s[%d:%d]' % (d, 84, 85))
            P('v_cndmask_b32 v15, v%d, v13, s[%d:%d]' % (d+1, 84, 85))
            P('v_cndmask_b32 v16, v12, v%d, s[%d:%d]' % (d+2, 84, 85))
            P('v_cndmask_b32 v17, v13, v%d, s[%d:%d]' % (d+3, 84, 85))
            P('s_add_u32 s%d, s%d, %d' % (G_T3, G_DST, region + i*4096))
            P('buffer_store_dwordx4 v[14:17], v18, %s, s%d offen%s' % (WSs, G_T3, stflag))
    P('s_mov_b32 s%d, 0x3ae38e39' % G_T1)
    P('s_mov_b32 s%d, 0x3727c5ac' % G_T2)
    P('v_and_b32 v10, 1, v3'); P('v_cmp_eq_u32 s[%d:%d], 1, v10' % (84, 85))
    P('v_lshrrev_b32 v18, 1, v3'); P('v_lshlrev_b32 v18, 10, v18'); P('v_lshl_add_u32 v18, v10, 9, v18')
    P('v_and_b32 v11, 31, v2'); P('v_lshl_add_u32 v18, v11, 4, v18')
    P('s_lshr_b32 s%d, s%d, 5' % (G_DST, sRow0)); P('s_mul_i32 s%d, s%d, 36864' % (G_DST, G_DST))
    layernorm()
    store(WS_XNF)
    for i in range(36):
        P('v_lshlrev_b32 v%d, 16, v%d' % (F+2*i, D+i)); P('v_and_b32 v%d, 0xffff0000, v%d' % (F+2*i+1, D+i))
    layernorm()
    store(WS_YF)

def ln_kernel(k, end):
    P = Prog()
    std_entry(P, 64, end)
    load_ptrs(P, ['x'], 44)
    P('s_waitcnt lgkmcnt(0)')
    srd(P, G_BSRD, 44, 45, 2048*1152)
    P('s_lshl_b32 s46, s2, 5'); P('s_lshl_b32 s47, s%d, 3' % G_W); P('s_add_u32 s46, s46, s47')
    ln_rows(P, 46)
    P('s_waitcnt vmcnt(0)')
    k.straight(P)

MAPX = True
DIAG = False
def gemma_kernel(k, end, nwg=256):
    gk = Gemm(8, 2, 8192, 'qkv'); gh = Gemm(8, 2, 9216, 'h')
    gk.stflag = ''; gh.stflag = ''
    P = Prog()
    std_entry(P, nwg, end)
    load_ptrs(P, ['Wk', 'Wv', 'Wq', 'w1', 'b1'], 48)
    P('s_waitcnt lgkmcnt(0)')
    srd(P, G_BSRD, 56, 57, 4608*2)
    P('s_mov_b32 s%d, 0xc0135761' % G_C0)
    P('s_mov_b32 s%d, 0xbdd2d3e7' % G_C1)
    P('s_mov_b32 s%d, s2' % G_TASK)
    k.straight(P)
    P = Prog()
    P.label('L_ga_task')
    P('s_cmp_ge_u32 s%d, %d' % (G_TASK, 256*5 if MAPX else 16*66)); P('s_cbranch_scc1 %s' % end)
    if MAPX:
        P('s_and_b32 s46, s%d, 255' % G_TASK); P('s_lshr_b32 s47, s%d, 8' % G_TASK)
        P('s_lshr_b32 s%d, s46, 3' % G_TT); P('s_lshr_b32 s%d, s%d, 4' % (G_FG, G_TT)); P('s_and_b32 s%d, s%d, 15' % (G_TT, G_TT))
        P('s_lshl_b32 s%d, s%d, 3' % (G_FG, G_FG)); P('s_and_b32 s46, s46, 7'); P('s_add_u32 s%d, s%d, s46' % (G_FG, G_FG))
        P('s_lshl_b32 s47, s47, 4'); P('s_add_u32 s%d, s%d, s47' % (G_FG, G_FG))
        P('s_cmp_ge_u32 s%d, 66' % G_FG); P('s_cbranch_scc1 L_ga_next')
    else:
        P('s_and_b32 s%d, s%d, 15' % (G_TT, G_TASK)); P('s_lshr_b32 s%d, s%d, 4' % (G_FG, G_TASK))
    P('s_lshl_b32 s45, s%d, 2' % G_TT); P('s_add_u32 s45, s45, s%d' % G_W)
    P('s_cmp_ge_u32 s%d, 48' % G_FG); P('s_cbranch_scc1 L_ga_h')
    gk.setup(P)
    P('s_lshr_b32 s46, s%d, 4' % G_FG); P('s_and_b32 s47, s%d, 15' % G_FG)
    P('s_mov_b32 s12, s48'); P('s_mov_b32 s13, s49')
    P('s_cmp_eq_u32 s46, 1'); P('s_cselect_b32 s12, s50, s12'); P('s_cselect_b32 s13, s51, s13')
    P('s_cmp_eq_u32 s46, 2'); P('s_cselect_b32 s12, s52, s12'); P('s_cselect_b32 s13, s53, s13')
    P('s_mov_b32 s14, 0x%x' % (576*8192)); P('s_mov_b32 s15, 0x20000')
    P('s_lshl_b32 s%d, s47, 9' % G_WOFF)
    P('s_mul_i32 s%d, s%d, %d' % (G_T0, G_W, 8*8192)); P('s_add_u32 s%d, s%d, s%d' % (G_WOFF, G_WOFF, G_T0))
    P('s_mul_i32 s%d, s45, 36864' % G_XOFF); P('s_add_u32 s%d, s%d, 0x%x' % (G_XOFF, G_XOFF, WS_XNF))
    P('s_lshl_b32 s%d, s45, 5' % G_DST); P('s_lshl_b32 s%d, s47, 1' % G_T0); P('s_add_u32 s%d, s%d, s%d' % (G_DST, G_DST, G_T0))
    P('s_lshl_b32 s%d, s%d, 13' % (G_DST, G_DST)); P('s_lshl_b32 s%d, s46, 24' % G_T0)
    P('s_add_u32 s%d, s%d, s%d' % (G_DST, G_DST, G_T0)); P('s_add_u32 s%d, s%d, 0x%x' % (G_DST, G_DST, WS_KF))
    if DIAG: P('s_memtime s[64:65]')
    gk.prologue(P); zero_acc(gk, P); gk.first_reads(P)
    P('s_mov_b32 s%d, 9' % G_CNT)
    if DIAG: P('s_memtime s[66:67]'); P('s_waitcnt lgkmcnt(0)')
    P('s_cmp_eq_u32 s46, 1'); P('s_cbranch_scc1 L_ga_v')
    k.straight(P)
    k.loop(gk.body(False, 'L_ga_kq_loop'))
    P = Prog()
    if DIAG: P('s_memtime s[68:69]')
    P('s_waitcnt vmcnt(0)'); epi_kq(gk, P)
    if DIAG:
        P('s_memtime s[70:71]'); P('s_waitcnt lgkmcnt(0)')
        P('s_sub_u32 s66, s66, s64'); P('s_sub_u32 s68, s68, s64'); P('s_sub_u32 s70, s70, s64')
        P('s_lshl_b32 s72, s%d, 4' % G_TASK); P('s_add_u32 s72, s72, 0x%x' % WS_STAT)
        P('v_mov_b32 v2, s66'); P('v_mov_b32 v3, s68'); P('v_mov_b32 v4, s70'); P('v_mov_b32 v5, s64')
        P('buffer_store_dwordx4 v[2:5], off, %s, s72' % WSs)
    P('s_branch L_ga_next'); P.label('L_ga_v'); k.straight(P)
    k.loop(gk.body(True, 'L_ga_v_loop'))
    P = Prog(); P('s_waitcnt vmcnt(0)'); epi_v(gk, P); P('s_branch L_ga_next')
    P.label('L_ga_h')
    gh.setup(P)
    P('s_sub_u32 s47, s%d, 48' % G_FG)
    srd(P, G_WSRD, 54, 55, 576*9216)
    P('s_lshl_b32 s%d, s47, 9' % G_WOFF)
    P('s_mov_b32 s%d, s%d' % (G_T3, G_WOFF))
    P('s_mul_i32 s%d, s%d, %d' % (G_T0, G_W, 8*9216)); P('s_add_u32 s%d, s%d, s%d' % (G_WOFF, G_WOFF, G_T0))
    P('s_mul_i32 s%d, s45, 36864' % G_XOFF); P('s_add_u32 s%d, s%d, 0x%x' % (G_XOFF, G_XOFF, WS_YF))
    P('s_mul_i32 s%d, s45, %d' % (G_DST, 288*1024)); P('s_lshl_b32 s%d, s47, 14' % G_T0)
    P('s_add_u32 s%d, s%d, s%d' % (G_DST, G_DST, G_T0)); P('s_add_u32 s%d, s%d, 0x%x' % (G_DST, G_DST, WS_HF))
    init_bias(gh, P)
    gh.prologue(P); gh.first_reads(P)
    P('s_mov_b32 s%d, 9' % G_CNT)
    k.straight(P)
    k.loop(gh.body(False, 'L_ga_h_loop'))
    P = Prog(); P('s_waitcnt vmcnt(0)'); epi_h(gh, P)
    P.label('L_ga_next')
    P('s_add_u32 s%d, s%d, %d' % (G_TASK, G_TASK, nwg))
    P('s_branch L_ga_task')
    k.straight(P)

A_C = 40
A_MASK = 44
A_BASE = 76; A_S = 77; A_H = 78; A_T = 79
def attn_setup(P):
    P('v_lshlrev_b32 v1, 4, v0')
    P('v_and_b32 v5, 31, v0'); P('v_lshrrev_b32 v6, 5, v0')
    P('v_lshlrev_b32 v2, 7, v6'); P('v_lshl_add_u32 v2, v5, 4, v2')
    P('v_mov_b32 v7, 0x40000000'); P('v_cmp_gt_u32 vcc, 8, v5'); P('v_cndmask_b32 v2, v7, v2, vcc')
    P('v_lshlrev_b32 v3, 11, v6'); P('v_lshl_add_u32 v3, v5, 4, v3')
    P('v_lshlrev_b32 v4, 3, v6'); P('v_lshl_add_u32 v4, v5, 4, v4')
    P('v_lshlrev_b32 v7, 2, v6'); P('v_sub_u32 v7, v5, v7')
    for r in range(16):
        P('v_cmp_le_i32 s[%d:%d], %d, v7' % (A_MASK+2*r, A_MASK+2*r+1, 8*(r >> 2) + (r & 3)))
    P('s_mov_b32 s%d, 0x3e0293ee' % A_C)

def attn_task(P, stflag='', ldflag='', wait_mem=None):
    Q, K, KM, V, VMR = 16, 48, 80, 48, 208
    SX, SM, O = 112, 128, 144
    P('s_lshl_b32 s%d, s%d, 5' % (A_BASE, A_S)); P('s_add_u32 s%d, s%d, s%d' % (A_BASE, A_BASE, A_H))
    P('s_lshl_b32 s%d, s%d, 13' % (A_T, A_BASE))
    for (reg, region) in ((Q, WS_QF), (K, WS_KF)):
        P('s_add_u32 s%d, s%d, 0x%x' % (G_T0, A_T, region)); P('s_add_u32 s%d, s%d, 4096' % (G_T1, G_T0))
        for ks in range(8):
            P('buffer_load_dwordx4 %s, v1, %s, s%d offen offset:%d' % (vr(reg+4*ks,4), WSs, G_T0 if ks < 4 else G_T1, (ks % 4)*1024))
    for ks in range(8):
        P('v_mfma_f32_32x32x16_bf16 %s, %s, %s, %s' % (vr(SX,16), vr(K+4*ks,4), vr(Q+4*ks,4), '0' if ks == 0 else vr(SX,16)))
    P('s_add_u32 s%d, s%d, 0x%x' % (G_T0, A_T, WS_VF)); P('s_add_u32 s%d, s%d, 4096' % (G_T1, G_T0))
    for dt in range(4):
        for G in range(2):
            P('buffer_load_dwordx4 %s, v3, %s, s%d offen offset:%d' % (vr(V+4*(2*dt+G),4), WSs, G_T0 if G == 0 else G_T1, dt*512))
    def mem_loads(X, flag):
        X('s_lshl_b32 s%d, s%d, 11' % (G_T2, A_BASE))
        X('s_add_u32 s%d, s%d, 0x%x' % (G_T0, G_T2, WS_KM))
        for ks in range(8): X('buffer_load_dwordx4 %s, v2, %s, s%d offen offset:%d%s' % (vr(KM+4*ks,4), WSs, G_T0, ks*256, flag))
        X('s_add_u32 s%d, s%d, 0x%x' % (G_T0, G_T2, WS_VM))
        for dt in range(4): X('buffer_load_dwordx2 %s, v4, %s, s%d offen offset:%d%s' % (vr(VMR+4*dt,2), WSs, G_T0, dt*512, flag))
    if wait_mem: wait_mem(P, mem_loads, KM, VMR)
    else: mem_loads(P, ldflag)
    for dt in range(4): P('v_mov_b64 %s, 0' % vr(VMR+4*dt+2,2))
    for ks in range(8):
        P('v_mfma_f32_32x32x16_bf16 %s, %s, %s, %s' % (vr(SM,16), vr(KM+4*ks,4), vr(Q+4*ks,4), '0' if ks == 0 else vr(SM,16)))
    P('v_mov_b32 v8, 0xff800000')
    for r in range(16): P('v_cndmask_b32 v%d, v8, v%d, s[%d:%d]' % (SX+r, SX+r, A_MASK+2*r, A_MASK+2*r+1))
    vals = [SX+r for r in range(16)] + [SM+r for r in range(4)]
    P('v_max3_f32 v9, v%d, v%d, v%d' % tuple(vals[0:3]))
    for i in range(3, 19, 2): P('v_max3_f32 v9, v9, v%d, v%d' % (vals[i], vals[i+1]))
    P('v_max_f32 v9, v9, v%d' % vals[19])
    P('v_mov_b32 v10, v9'); P('v_permlane32_swap_b32 v9, v10'); P('v_max_f32 v9, v9, v10')
    P('v_mul_f32 v9, s%d, v9' % A_C)
    for r in vals: P('v_fma_f32 v%d, v%d, s%d, -v9' % (r, r, A_C))
    for r in vals: P('v_exp_f32 v%d, v%d' % (r, r))
    P('v_add_f32 v10, v%d, v%d' % (vals[0], vals[1]))
    for r in vals[2:]: P('v_add_f32 v10, v10, v%d' % r)
    P('v_mov_b32 v11, v10'); P('v_permlane32_swap_b32 v10, v11'); P('v_add_f32 v10, v10, v11')
    P('v_rcp_f32 v10, v10')
    PX, PM = 16, 24
    for G in range(2): pack8(P, PX+4*G, SX+8*G)
    P('v_cvt_pk_bf16_f32 v%d, v%d, v%d' % (PM, SM, SM+1)); P('v_cvt_pk_bf16_f32 v%d, v%d, v%d' % (PM+1, SM+2, SM+3))
    P('v_mov_b64 %s, 0' % vr(PM+2,2))
    for dt in range(4):
        o = vr(O+16*dt,16)
        P('v_mfma_f32_32x32x16_bf16 %s, %s, %s, 0' % (o, vr(V+8*dt,4), vr(PX,4)))
        P('v_mfma_f32_32x32x16_bf16 %s, %s, %s, %s' % (o, vr(V+8*dt+4,4), vr(PX+4,4), o))
        P('v_mfma_f32_32x32x16_bf16 %s, %s, %s, %s' % (o, vr(VMR+4*dt,4), vr(PM,4), o))
    P('s_lshl_b32 s%d, s%d, 18' % (G_T0, A_S)); P('s_lshl_b32 s%d, s%d, 13' % (G_T1, A_H))
    P('s_add_u32 s%d, s%d, s%d' % (G_T0, G_T0, G_T1)); P('s_add_u32 s%d, s%d, 0x%x' % (G_T0, G_T0, WS_OF))
    P('s_add_u32 s%d, s%d, 4096' % (G_T1, G_T0))
    for dt in range(4):
        for i in range(0, 16, 2): P('v_pk_mul_f32 %s, %s, v[10:11] op_sel_hi:[1,0]' % (vr(O+16*dt+i,2), vr(O+16*dt+i,2)))
        for G in range(2):
            d = 32 + 4*((2*dt+G) % 4)
            pack8(P, d, O+16*dt+8*G)
            j = 2*dt+G
            P('buffer_store_dwordx4 %s, v1, %s, s%d offen offset:%d%s' % (vr(d,4), WSs, G_T0 if j < 4 else G_T1, (j % 4)*1024, stflag))

def attn_kernel(k, end, nwg=256):
    P = Prog()
    std_entry(P, nwg, end)
    P('s_waitcnt lgkmcnt(0)')
    attn_setup(P)
    P('s_lshl_b32 s%d, s2, 2' % G_TASK); P('s_add_u32 s%d, s%d, s%d' % (G_TASK, G_TASK, G_W))
    k.straight(P)
    P = Prog()
    P.label('L_at_task')
    P('s_lshr_b32 s%d, s%d, 5' % (A_S, G_TASK)); P('s_and_b32 s%d, s%d, 31' % (A_H, G_TASK))
    attn_task(P)
    P('s_add_u32 s%d, s%d, %d' % (G_TASK, G_TASK, nwg*4))
    P('s_cmp_lt_u32 s%d, 2048' % G_TASK)
    P('s_cbranch_scc1 L_at_task')
    k.loop(P)
    P = Prog(); P('s_waitcnt vmcnt(0)'); k.straight(P)

def epi_final(g, P, XS, OS, BS):
    t = g.TMP
    P('v_and_b32 v%d, 31, v0' % t); P('s_lshl_b32 s%d, s45, 5' % G_T0); P('v_add_u32 v%d, s%d, v%d' % (t, G_T0, t))
    P('s_movk_i32 s%d, 1152' % G_T0); P('v_mul_lo_u32 v%d, v%d, s%d' % (t, t, G_T0))
    P('v_lshrrev_b32 v%d, 5, v0' % (t+1)); P('v_lshlrev_b32 v%d, 4, v%d' % (t+1, t+1))
    P('v_add_u32 v%d, v%d, v%d' % (t, t, t+1))
    for ft in range(g.NT):
        for qp in range(2):
            a = g.ACC + 16*ft + 8*qp
            off = ft*64 + qp*32
            P('buffer_load_dwordx4 %s, v%d, %s, s%d offen offset:%d' % (vr(t+2,4), t, XS, G_DST, off))
            P('buffer_load_dwordx4 %s, v%d, %s, s%d offen offset:%d' % (vr(t+6,4), t+1, BS, G_DST, off))
            for i in range(4): P('v_permlane32_swap_b32 v%d, v%d' % (a+i, a+4+i))
            for i in range(4):
                for src in (t+2+i, t+6+i):
                    P('v_lshlrev_b32 v%d, 16, v%d' % (t+10, src)); P('v_add_f32 v%d, v%d, v%d' % (a+2*i, a+2*i, t+10))
                    P('v_and_b32 v%d, 0xffff0000, v%d' % (t+11, src)); P('v_add_f32 v%d, v%d, v%d' % (a+2*i+1, a+2*i+1, t+11))
            pack8(P, t+12, a)
            P('buffer_store_dwordx4 %s, v%d, %s, s%d offen offset:%d' % (vr(t+12,4), t, OS, G_DST, off))

def final_kernel(k, end, nwg=96):
    g = Gemm(3, 4, 1152, 'fin'); g.stflag = ''
    P = Prog()
    std_entry(P, nwg, end)
    load_ptrs(P, ['w2', 'Wo', 'x', 'b2', 'out'], 48)
    P('s_waitcnt lgkmcnt(0)')
    srd(P, G_BSRD, 52, 53, 2048*1152); srd(P, G_OSRD, 56, 57, 2048*1152); srd(P, 60, 54, 55, 1152)
    g.setup(P)
    P('s_and_b32 s%d, s2, 15' % G_TT); P('s_lshr_b32 s%d, s2, 4' % G_FG)
    P('s_lshl_b32 s45, s%d, 2' % G_TT); P('s_add_u32 s45, s45, s%d' % G_W)
    P('s_mul_i32 s%d, s%d, 192' % (G_DST, G_FG))
    zero_acc(g, P)
    k.straight(P)
    for part, (ptr, krows, region, ksteps) in enumerate(((48, 4608, WS_HF, 288), (50, 4096, WS_OF, 256))):
        P = Prog()
        srd(P, G_WSRD, ptr, ptr+1, krows*1152)
        P('s_mul_i32 s%d, s%d, %d' % (G_WOFF, G_W, 16*1152)); P('s_add_u32 s%d, s%d, s%d' % (G_WOFF, G_WOFF, G_DST))
        P('s_mul_i32 s%d, s45, %d' % (G_XOFF, ksteps*1024)); P('s_add_u32 s%d, s%d, 0x%x' % (G_XOFF, G_XOFF, region))
        P('s_waitcnt vmcnt(0) lgkmcnt(0)')
        g.prologue(P); g.first_reads(P)
        P('s_mov_b32 s%d, %d' % (G_CNT, ksteps // 8))
        k.straight(P)
        k.loop(g.body(False, 'L_fin_loop%d' % part))
    P = Prog()
    P('s_waitcnt vmcnt(0) lgkmcnt(0)')
    epi_final(g, P, 's[%d:%d]' % (G_BSRD, G_BSRD+3), 's[%d:%d]' % (G_OSRD, G_OSRD+3), 's[60:63]')
    P('s_waitcnt vmcnt(0)')
    k.straight(P)

def ln_rows2(P, sRow0, stflag=''):
    X = 's[%d:%d]' % (G_BSRD, G_BSRD+3)
    D, F = 20, 40
    P('v_lshrrev_b32 v2, 4, v0'); P('v_and_b32 v3, 15, v0')
    P('v_add_u32 v2, s%d, v2' % sRow0)
    P('s_movk_i32 s%d, 1152' % G_T0); P('v_mul_lo_u32 v4, v2, s%d' % G_T0); P('v_lshl_add_u32 v4, v3, 3, v4')
    for i in range(9): P('buffer_load_dwordx2 %s, v4, %s, 0 offen offset:%d' % (vr(D+2*i,2), X, 128*i))
    P('v_lshrrev_b32 v18, 2, v3'); P('v_lshlrev_b32 v18, 10, v18'); P('v_and_b32 v10, 1, v3'); P('v_lshl_add_u32 v18, v10, 9, v18')
    P('v_and_b32 v11, 31, v2'); P('v_lshl_add_u32 v18, v11, 4, v18')
    P('v_bfe_u32 v10, v3, 1, 1'); P('v_cmp_eq_u32 s[84:85], 0, v10')
    P('v_mov_b32 v19, 0x40000000'); P('v_cndmask_b32 v19, v19, v18, s[84:85]')
    P('v_lshl_add_u32 v18, v10, 12, v18')
    P('s_lshr_b32 s%d, s%d, 5' % (G_DST, sRow0)); P('s_mul_i32 s%d, s%d, 36864' % (G_DST, G_DST))
    P('s_mov_b32 s%d, 0x3ae38e39' % G_T1); P('s_mov_b32 s%d, 0x3727c5ac' % G_T2)
    def unpack():
        for i in range(18):
            P('v_lshlrev_b32 v%d, 16, v%d' % (F+2*i, D+i)); P('v_and_b32 v%d, 0xffff0000, v%d' % (F+2*i+1, D+i))
    def rowsum(r):
        for sh in (8, 4, 2, 1): P('v_add_f32_dpp v%d, v%d, v%d row_ror:%d row_mask:0xf bank_mask:0xf' % (r, r, r, sh))
    def rbf(r): P('v_cvt_pk_bf16_f32 v%d, v%d, v%d' % (r, r, r)); P('v_lshlrev_b32 v%d, 16, v%d' % (r, r))
    def layernorm():
        P('v_pk_add_f32 v[6:7], %s, %s' % (vr(F,2), vr(F+2,2)))
        for i in range(4, 36, 2): P('v_pk_add_f32 v[6:7], v[6:7], %s' % vr(F+i,2))
        P('v_add_f32 v5, v6, v7'); rowsum(5)
        P('v_mul_f32 v8, s%d, v5' % G_T1)
        P('v_mov_b32 v12, 0'); P('v_mov_b32 v13, 0')
        for i in range(0, 36, 2):
            P('v_pk_add_f32 v[6:7], %s, v[8:9] op_sel_hi:[1,0] neg_lo:[0,1] neg_hi:[0,1]' % vr(F+i,2))
            P('v_fmac_f32 v12, v6, v6'); P('v_fmac_f32 v13, v7, v7')
        P('v_add_f32 v12, v12, v13'); rowsum(12)
        P('v_mul_f32 v12, s%d, v12' % G_T1)
        rbf(8); rbf(12)
        P('v_add_f32 v12, s%d, v12' % G_T2); rbf(12)
        P('v_sqrt_f32 v12, v12'); rbf(12)
        P('v_rcp_f32 v14, v12')
        for i in range(0, 36, 2):
            P('v_pk_add_f32 %s, %s, v[8:9] op_sel_hi:[1,0] neg_lo:[0,1] neg_hi:[0,1]' % (vr(F+i,2), vr(F+i,2)))
            P('v_cvt_pk_bf16_f32 v6, v%d, v%d' % (F+i, F+i+1))
            P('v_lshlrev_b32 v%d, 16, v6' % (F+i)); P('v_and_b32 v%d, 0xffff0000, v6' % (F+i+1))
            P('v_pk_mul_f32 %s, %s, v[14:15] op_sel_hi:[1,0]' % (vr(F+i,2), vr(F+i,2)))
            P('v_cvt_pk_bf16_f32 v%d, v%d, v%d' % (D + i//2, F+i, F+i+1))
    def store(region):
        Q = 'row_mask:0xf bank_mask:0xf'
        for i in range(0, 9, 2):
            a = D + 2*i; b = a + 2 if i < 8 else a
            P('v_cndmask_b32 v6, v%d, v%d, s[84:85]' % (a, b)); P('v_cndmask_b32 v7, v%d, v%d, s[84:85]' % (a+1, b+1))
            P('v_mov_b32_dpp v8, v6 quad_perm:[2,3,0,1] %s' % Q); P('v_mov_b32_dpp v9, v7 quad_perm:[2,3,0,1] %s' % Q)
            P('v_cndmask_b32 v12, v8, v%d, s[84:85]' % a); P('v_cndmask_b32 v13, v9, v%d, s[84:85]' % (a+1))
            P('v_cndmask_b32 v14, v%d, v8, s[84:85]' % b); P('v_cndmask_b32 v15, v%d, v9, s[84:85]' % (b+1))
            P('s_add_u32 s%d, s%d, %d' % (G_T3, G_DST, region + i*4096))
            P('buffer_store_dwordx4 v[12:15], v%d, %s, s%d offen%s' % (18 if i < 8 else 19, WSs, G_T3, stflag))
    unpack(); layernorm(); store(WS_XNF)
    unpack(); layernorm(); store(WS_YF)
```

```python
import sys
from asmlib import *
from common import *
import chain2 as C
import workers as W1
import workers2 as W2
import gemm2 as G2
from gemm2 import vr, WSs, G_W, G_T0, G_T1, G_T2, G_T3, G_BSRD, G_OSRD, G_DST
from workers import srd
from gen_chain_test import header, kdesc

F_QUEUE = 0; F_LN = 128*1; F_KV = 128*9; F_Q = 128*17; F_H = 128*25; F_M2 = 128*33; F_PROG = 128*41; F_O = 128*73
F_DIAG = 128*140; F_X = 128*136+64; F_CB = 128*137; F_LD = 128*139; F_ERR = 128*138
F_ZERO = 24576
FL = WS_FLAG
BIGTMO = 30000
S_ABORT = 3
S_X = 4; S_TK = 5; S_G = 6; S_RANK = 7
S_DBG = 42
OPT = dict(force_abnormal=0)
NPF = 3
_uid = [0]
def uid(p):
    _uid[0] += 1; return '%s_%d' % (p, _uid[0])

def poll_ge(P, soff, target, vtmp=2, stmp=G_T0, scnt=G_T1, tgt_is_sgpr=False, x4min=False, sleep=4, late=None):
    L = uid('L_pg'); D = L + '_d'
    P('s_mov_b32 s%d, s%d' % (scnt, S_ABORT))
    P.label(L)
    P('s_mov_b64 exec, 1')
    if x4min:
        P('buffer_load_dwordx4 %s, off, %s, s%d sc1' % (vr(vtmp,4), WSs, soff))
        P('s_waitcnt vmcnt(0)')
        P('v_min_u32 v%d, v%d, v%d' % (vtmp, vtmp, vtmp+1)); P('v_min_u32 v%d, v%d, v%d' % (vtmp+2, vtmp+2, vtmp+3)); P('v_min_u32 v%d, v%d, v%d' % (vtmp, vtmp, vtmp+2))
    else:
        P('buffer_load_dword v%d, off, %s, s%d sc1' % (vtmp, WSs, soff))
        P('s_waitcnt vmcnt(0)')
    P('s_nop 0')
    P('v_readfirstlane_b32 s%d, v%d' % (stmp, vtmp))
    P('s_mov_b64 exec, -1')
    P('s_cmp_ge_u32 s%d, %s' % (stmp, ('s%d' % target) if tgt_is_sgpr else str(target)))
    P('s_cbranch_scc1 %s' % D)
    if late:
        P('s_cmp_lt_u32 s%d, %d' % (late[0], late[1])); P('s_cbranch_scc0 %s_s' % L); P('s_sleep %d' % late[2]); P.label(L + '_s')
    if sleep: P('s_sleep %d' % sleep)
    P('s_sub_u32 s%d, s%d, 1' % (scnt, scnt)); P('s_cmp_lg_u32 s%d, 0' % scnt); P('s_cbranch_scc1 %s' % L)
    P('s_mov_b32 s%d, 1' % S_ABORT)
    P.label(D)

def wg_wait(P, soff, target, vtmp=2, sleep=16, late=None):
    L = uid('L_wgw')
    P('s_cmp_eq_u32 s%d, 0' % G_W); P('s_cbranch_scc0 %s' % L)
    poll_ge(P, soff, target, vtmp=vtmp, sleep=sleep, late=late)
    P.label(L)
    P('s_barrier')

def signal(P, soff, vtmp=2, val='1'):
    L = uid('L_sig')
    P('s_waitcnt vmcnt(0)'); P('s_barrier')
    P('s_cmp_eq_u32 s%d, 0' % G_W); P('s_cbranch_scc0 %s' % L)
    P('v_mov_b32 v%d, %s' % (vtmp, val)); P('s_mov_b64 exec, 1')
    P('buffer_atomic_add v%d, off, %s, s%d' % (vtmp, WSs, soff))
    P('s_mov_b64 exec, -1')
    P.label(L)

D_CNT0 = 0; D_CNTX = 128; D_ZERO = 192
def read_counts(P, v):
    P('v_and_b32 v%d, 7, v0' % (v+1)); P('v_lshlrev_b32 v%d, 2, v%d' % (v+1, v+1)); P('v_add_u32 v%d, %d, v%d' % (v+1, D_CNTX, v+1))
    P('v_and_b32 v%d, 7, v0' % v); P('v_cmp_eq_u32 vcc, 0, v%d' % v); P('v_cndmask_b32 v%d, v%d, 0, vcc' % (v+1, v+1))
    P('global_load_dword v%d, v%d, s[%d:%d] sc1' % (v, v+1, S_DBG, S_DBG+1)); P('s_waitcnt vmcnt(0)')

def wait_zeroed(P):
    L = uid('L_wz')
    P('s_cmp_eq_u32 s%d, 0' % G_W); P('s_cbranch_scc0 %s_d' % L)
    P('s_mov_b32 s13, s%d' % S_ABORT)
    P.label(L)
    P('v_mov_b32 v2, %d' % D_ZERO); P('global_load_dword v3, v2, s[%d:%d] sc1' % (S_DBG, S_DBG+1)); P('s_waitcnt vmcnt(0)')
    P('v_readfirstlane_b32 s12, v3'); P('s_cmp_lg_u32 s12, 0'); P('s_cbranch_scc1 %s_d' % L)
    P('s_sleep 8'); P('s_sub_u32 s13, s13, 1'); P('s_cmp_lg_u32 s13, 0'); P('s_cbranch_scc1 %s' % L)
    P.label(L + '_d')
    P('s_barrier')

def bootstrap(k):
    P = Prog()
    P('s_cmp_ge_u32 s2, 256'); P('s_cbranch_scc1 L_end')
    P('s_mov_b32 s%d, %d' % (S_ABORT, BIGTMO))
    if OPT.get('diag'): P('s_memrealtime s[90:91]')
    P('s_load_dwordx2 s[%d:%d], s[0:1], %d' % (S_DBG, S_DBG+1, KA['dbg']))
    P('s_load_dwordx2 s[8:9], s[0:1], %d' % KA['ws'])
    P('s_getreg_b32 s%d, hwreg(HW_REG_XCC_ID, 0, 4)' % S_X)
    P('v_lshrrev_b32 v1, 6, v0'); P('v_and_b32 v0, 63, v0'); P('s_nop 0')
    P('v_readfirstlane_b32 s%d, v1' % G_W)
    P('s_and_b32 s%d, s%d, %d' % (S_X, S_X, 6 if OPT['force_abnormal'] == 3 else 7))
    P('s_waitcnt lgkmcnt(0)')
    P('s_mov_b32 s10, 0x%x' % WS_SIZE); P('s_mov_b32 s11, 0x20000')
    if OPT.get('wopf', 0):
        P('s_cmp_eq_u32 s%d, 0' % G_W); P('s_cbranch_scc1 L_wopf_done')
        P('s_cmp_eq_u32 s%d, 0' % S_X); P('s_cbranch_scc0 L_wopf_done')
        P('s_load_dwordx2 s[12:13], s[0:1], %d' % KA['Wo'])
        P('s_lshr_b32 s14, s2, 3'); P('s_and_b32 s14, s14, 31'); P('s_mul_i32 s14, s14, 147456')
        P('s_sub_u32 s15, s%d, 1' % G_W); P('s_mul_i32 s15, s15, 36864'); P('s_add_u32 s14, s14, s15')
        P('v_lshlrev_b32 v2, 7, v0'); P('v_add_u32 v2, s14, v2')
        P('s_waitcnt lgkmcnt(0)')
        for i in range(OPT.get('wopfn', 4)):
            P('global_load_dword v%d, v2, s[12:13]' % (40+i)); P('v_add_u32 v2, 8192, v2')
        P.label('L_wopf_done')
    P('s_cmp_eq_u32 s%d, 0' % G_W); P('s_cbranch_scc0 L_bs1')
    P('s_lshl_b32 s12, s%d, 2' % S_X); P('s_add_u32 s12, s12, %d' % D_CNTX); P('s_cmp_eq_u32 s%d, 0' % S_X); P('s_cselect_b32 s12, %d, s12' % D_CNT0)
    P('v_mov_b32 v2, s12'); P('v_mov_b32 v3, 1'); P('s_mov_b64 exec, 1')
    P('global_atomic_add v4, v2, v3, s[%d:%d] sc0' % (S_DBG, S_DBG+1))
    P('s_waitcnt vmcnt(0)'); P('v_mov_b32 v2, 0'); P('ds_write_b32 v2, v4'); P('s_waitcnt lgkmcnt(0)')
    P('s_mov_b64 exec, -1')
    P.label('L_bs1')
    P('s_cmp_eq_u32 s2, 0'); P('s_cbranch_scc0 L_bs2')
    P('s_lshl_b32 s12, s%d, 6' % G_W); P('v_add_u32 v2, s12, v0'); P('v_lshlrev_b32 v2, 4, v2')
    P('v_mov_b64 v[4:5], 0'); P('v_mov_b64 v[6:7], 0')
    for i in range(F_ZERO // 4096):
        P('s_mov_b32 s12, 0x%x' % (FL + i*4096)); P('buffer_store_dwordx4 v[4:7], v2, %s, s12 offen sc1' % WSs)
    P('s_waitcnt vmcnt(0)'); P('s_barrier')
    P('s_cmp_eq_u32 s%d, 0' % G_W); P('s_cbranch_scc0 L_bs2')
    P('v_mov_b32 v2, %d' % D_ZERO); P('v_mov_b32 v3, 1'); P('s_mov_b64 exec, 1'); P('global_store_dword v2, v3, s[%d:%d] sc1' % (S_DBG, S_DBG+1)); P('s_mov_b64 exec, -1')
    P.label('L_bs2')
    P('s_barrier'); P('v_mov_b32 v2, 0'); P('ds_read_b32 v4, v2'); P('s_waitcnt lgkmcnt(0)')
    P('v_readfirstlane_b32 s%d, v4' % S_TK)
    P('s_barrier')
    P('s_cmp_lt_u32 s%d, 32' % S_TK); P('s_cbranch_scc1 L_role')
    P('s_mov_b32 s13, s%d' % S_ABORT)
    P.label('L_ov_poll')
    read_counts(P, 4)
    for x in range(8): P('v_readlane_b32 s%d, v4, %d' % (20+x, x))
    P('s_mov_b32 s12, 0')
    for x in range(8): P('s_add_u32 s12, s12, s%d' % (20+x))
    P('s_cmp_ge_u32 s12, 256'); P('s_cbranch_scc1 L_ov_ok')
    P('s_sleep 8'); P('s_sub_u32 s13, s13, 1'); P('s_cmp_lg_u32 s13, 0'); P('s_cbranch_scc1 L_ov_poll')
    P.label('L_ov_ok')
    P('s_sub_u32 s12, s%d, 32' % S_TK)
    for x in range(8):
        P('s_sub_i32 s14, s%d, 32' % (20+x)); P('s_max_i32 s14, s14, 0'); P('s_cmp_gt_u32 s%d, %d' % (S_X, x)); P('s_cselect_b32 s14, s14, 0'); P('s_add_u32 s12, s12, s14')
    P('s_mov_b32 s15, 0')
    for x in range(8):
        P('s_sub_i32 s14, 32, s%d' % (20+x)); P('s_max_i32 s14, s14, 0')
        P('s_cmp_eq_u32 s15, 0'); P('s_cselect_b32 s16, 1, 0'); P('s_cmp_lt_u32 s12, s14'); P('s_cselect_b32 s16, s16, 0')
        P('s_cmp_eq_u32 s16, 1'); P('s_cbranch_scc0 L_ov_n%d' % x)
        P('s_mov_b32 s%d, %d' % (S_X, x)); P('s_add_u32 s%d, s%d, s12' % (S_TK, 20+x)); P('s_mov_b32 s15, 1')
        P.label('L_ov_n%d' % x)
        P('s_cmp_eq_u32 s15, 0'); P('s_cselect_b32 s14, s14, 0'); P('s_sub_u32 s12, s12, s14')
    P.label('L_role')
    if OPT['force_abnormal'] == 2:
        P('s_and_b32 s12, s%d, 1' % S_TK); P('s_add_u32 s%d, s%d, s12' % (S_X, S_X)); P('s_and_b32 s%d, s%d, 7' % (S_X, S_X))
    P('s_cmp_eq_u32 s%d, 0' % S_X); P('s_cbranch_scc0 L_wk')
    P('s_mov_b32 s%d, s%d' % (C.S_H, S_TK))
    P('s_branch L_chain')
    P.label('L_wk')
    P('s_sub_u32 s%d, s%d, 1' % (S_RANK, S_X)); P('s_lshl_b32 s%d, s%d, 5' % (S_RANK, S_RANK)); P('s_add_u32 s%d, s%d, s%d' % (S_RANK, S_RANK, S_TK))
    P('s_branch L_worker')
    k.straight(P); k.reset_state()

def chain_ptrs(P):
    for i, n in enumerate(('Wq', 'Wk', 'Wv', 'Wo', 'mem0')): P('s_load_dwordx2 s[%d:%d], s[0:1], %d' % (C.S_PTR+2*i, C.S_PTR+2*i+1, KA[n]))
    P('s_waitcnt lgkmcnt(0)')

def chain_common(k):
    P = Prog(); P.label('L_chain'); chain_ptrs(P)
    if OPT.get('diag'): P('s_memrealtime s[94:95]'); P('s_waitcnt lgkmcnt(0)')
    k.straight(P)
    C.load_weights(k, hook=C.early_init(' sc1', FL + F_CB, zcheck=(S_DBG, D_ZERO, D_CNT0, 75)))
    P = Prog()
    if OPT.get('diag'):
        P('s_memrealtime s[92:93]'); P('s_waitcnt lgkmcnt(0)')
        if OPT.get('loaderonly'):
            P('s_sub_u32 s92, s92, s90'); P('s_sub_u32 s94, s94, s90'); P('v_mov_b32 v20, s92'); P('v_mov_b32 v21, s94'); P('v_mov_b32 v22, 0'); P('v_mov_b32 v23, 0')
            P('s_cmp_eq_u32 s17, 0'); P('s_cbranch_scc0 L_end')
            P('s_mov_b32 s88, 0x%x' % (FL + F_DIAG + 16)); P('buffer_store_dwordx4 v[20:23], off, %s, s88 sc1' % C.WS); P('s_waitcnt vmcnt(0)'); P('s_branch L_end')
    P('s_cmp_ge_u32 s75, 32'); P('s_cselect_b32 s13, 1, 0')
    if OPT['force_abnormal']: P('s_mov_b32 s13, 0')
    P('s_cmp_eq_u32 s13, 1'); P('s_cbranch_scc0 L_chain_slow')
    k.straight(P); k.reset_state()

def chain_role(k, fast):
    st = '' if fast else ' sc1'
    sfx = 'f' if fast else 's'
    P = Prog(); P.label('L_chain_fast' if fast else 'L_chain_slow'); k.straight(P)
    P = Prog()
    Lx = uid('L_ld')
    P('s_cmp_eq_u32 s%d, 0' % C.S_W); P('s_cbranch_scc0 %s' % Lx)
    P('s_mov_b32 s%d, 0x%x' % (C.S_T1, FL + F_LD)); P('v_mov_b32 v61, 1'); P('s_mov_b64 exec, 1')
    P('buffer_atomic_add v61, off, %s, s%d' % (C.WS, C.S_T1)); P('s_mov_b64 exec, -1')
    P('s_mov_b32 s%d, 0x%x' % (C.S_T1, FL + F_CB)); P('buffer_load_dword v78, off, %s, s%d sc1' % (C.WS, C.S_T1))
    P('s_mov_b32 s%d, 0x%x' % (C.S_T1, FL + F_KV)); P('buffer_load_dword v79, off, %s, s%d sc1' % (C.WS, C.S_T1))
    P.label(Lx)
    k.straight(P)
    C.lane_setup(k)
    P = Prog()
    P('v_mov_b32 v%d, -1' % C.V_NEG1)
    P('s_lshl_b32 s%d, s%d, 7' % (C.S_PROG, C.S_H))
    P('s_add_u32 s%d, s%d, 0x%x' % (C.S_PROG, C.S_PROG, FL + F_PROG))
    P('s_cmp_eq_u32 s%d, 0' % C.S_W); P('s_cselect_b32 s%d, s%d, 0x40000000' % (C.S_PROGW, C.S_PROG))
    L = 'L_cb_%s' % sfx
    P('s_cmp_eq_u32 s%d, 0' % C.S_W); P('s_cbranch_scc0 %s_wait' % L)
    P('s_waitcnt vmcnt(0)')
    P('v_readfirstlane_b32 s%d, v78' % C.S_T0); P('v_readfirstlane_b32 s%d, v79' % C.S_T1)
    P('s_cmp_ge_u32 s%d, 32' % C.S_T0); P('s_cselect_b32 s%d, 1, 0' % C.S_T0); P('s_cmp_ge_u32 s%d, 128' % C.S_T1); P('s_cselect_b32 s%d, s%d, 0' % (C.S_T0, C.S_T0))
    P('s_cmp_eq_u32 s%d, 1' % C.S_T0); P('s_cbranch_scc1 %s_wait' % L)
    P('s_mov_b32 s%d, 0x%x' % (C.S_T2, FL + F_CB))
    poll_ge(P, C.S_T2, 32, vtmp=22, stmp=C.S_T0, scnt=C.S_TMO, sleep=2)
    P('s_mov_b32 s%d, 0x%x' % (C.S_T2, FL + F_KV))
    poll_ge(P, C.S_T2, 128, vtmp=22, stmp=C.S_T0, scnt=C.S_TMO, sleep=2)
    P.label(L + '_wait')
    C.pre_step(P)
    P('s_waitcnt vmcnt(0) lgkmcnt(0)'); P('s_barrier')
    if OPT.get('diag'): P('s_memtime s[94:95]'); P('s_memrealtime s[96:97]'); P('s_waitcnt lgkmcnt(0)')
    k.straight(P)
    def kvwait(P):
        Lx = uid('L_kvw')
        P('s_and_b32 s%d, s%d, 7' % (C.S_T0, C.S_STEP)); P('s_or_b32 s%d, s%d, s%d' % (C.S_T0, C.S_T0, C.S_W))
        P('s_cmp_eq_u32 s%d, 0' % C.S_T0); P('s_cbranch_scc0 %s' % Lx)
        P('s_lshl_b32 s%d, s%d, 4' % (C.S_T3, C.S_STEP)); P('s_add_u32 s%d, s%d, 0x%x' % (C.S_T3, C.S_T3, FL + F_KV))
        poll_ge(P, C.S_T3, 128, vtmp=22, stmp=C.S_T0, scnt=C.S_TMO, sleep=0)
        P.label(Lx)
    def publish(P):
        P('s_sub_i32 s%d, s%d, 1' % (C.S_T0, C.S_STEP)); P('s_max_i32 s%d, s%d, 0' % (C.S_T0, C.S_T0))
        P('v_mov_b32 v%d, s%d' % (C.V_VMH, C.S_T0))
        P('s_mov_b64 exec, 1')
        P('buffer_store_dword v%d, off, %s, s%d sc1' % (C.V_VMH, C.WS, C.S_PROGW))
        P('s_mov_b64 exec, -1')
    body = C.main_loop(k, st=st, kvwait=kvwait, publish=publish)
    txt = [i.text for i in body.items]
    B = Prog()
    for t in txt:
        t2 = t
        for lab in ('L_chain_loop', 'L_red', 'L_rdel', 'L_nored', 'L_gat', 'L_gdel', 'L_chain_last', 'L_chain_done', 'L_nopf'):
            t2 = t2.replace(lab, lab + sfx) if lab in t2 else t2
        B(t2)
    k.loop(B)
    P = Prog()
    P.label('L_chain_done' + sfx)
    P('s_waitcnt vmcnt(0)'); P('s_barrier')
    P('s_cmp_eq_u32 s%d, 0' % C.S_W); P('s_cbranch_scc0 L_cdn_%s' % sfx)
    P('v_mov_b32 v20, 64'); P('s_mov_b64 exec, 1'); P('buffer_store_dword v20, off, %s, s%d sc1' % (C.WS, C.S_PROG)); P('s_mov_b64 exec, -1')
    P.label('L_cdn_%s' % sfx)
    if OPT.get('diag'):
        P('s_memtime s[98:99]'); P('s_memrealtime s[40:41]'); P('s_waitcnt lgkmcnt(0)')
        P('s_sub_u32 s98, s98, s94'); P('s_sub_u32 s40, s40, s90'); P('s_sub_u32 s96, s96, s90'); P('s_sub_u32 s92, s92, s90')
        P('v_mov_b32 v20, s92'); P('v_mov_b32 v21, s96'); P('v_mov_b32 v22, s40'); P('v_mov_b32 v23, s98'); P('s_mov_b32 s88, 0x%x' % (FL + F_DIAG + 16))
        P('buffer_store_dwordx4 v[20:23], off, %s, s88 sc1' % C.WS)
    P('s_cmp_eq_u32 s%d, 0' % C.S_ERR); P('s_cbranch_scc1 L_cd_%s' % sfx)
    P('s_mov_b32 s%d, 0x%x' % (C.S_T2, FL + F_ERR)); P('v_mov_b32 v21, s%d' % C.S_ERR); P('buffer_atomic_or v21, off, %s, s%d' % (C.WS, C.S_T2))
    P.label('L_cd_%s' % sfx)
    P('s_waitcnt vmcnt(0)')
    P('s_branch L_end')
    k.straight(P); k.reset_state()

def worker_dispatch(k):
    P = Prog()
    P.label('L_worker')
    if OPT.get('loaderonly') == 1: P('s_branch L_end')
    end_stamp(P, 51)
    W1.load_ptrs(P, ['Wk', 'Wv', 'Wq', 'w1', 'b1', 'w2'], 48)
    W1.load_ptrs(P, ['x', 'b2', 'out', 'Wo'], 64)
    P('s_waitcnt lgkmcnt(0)')
    P('s_mov_b32 s%d, 0xc0135761' % G2.G_C0); P('s_mov_b32 s%d, 0xbdd2d3e7' % G2.G_C1)
    P('s_sub_u32 s46, s%d, 64' % S_RANK); P('s_cmp_lt_u32 s46, 128'); P('s_cbranch_scc0 L_noln')
    srd(P, G_BSRD, 64, 65, 2048*1152)
    P('s_lshl_b32 s47, s46, 4'); P('s_lshl_b32 s45, s%d, 2' % G_W); P('s_add_u32 s47, s47, s45')
    W1.ln_rows2(P, 47, ' sc1')
    wait_zeroed(P)
    P('s_lshr_b32 s46, s46, 4'); P('s_lshl_b32 s46, s46, 7'); P('s_add_u32 s46, s46, 0x%x' % (FL + F_LN))
    signal(P, 46)
    end_stamp(P, 52)
    P('s_branch L_roles')
    P.label('L_noln')
    wait_zeroed(P)
    P.label('L_roles')
    if OPT.get('loaderonly') == 2: P('s_branch L_end')
    P('s_cmp_lt_u32 s%d, 18' % S_RANK); P('s_cbranch_scc1 L_w6a')
    P('s_sub_u32 s46, s%d, 32' % S_RANK); P('s_cmp_lt_u32 s46, 18'); P('s_cbranch_scc1 L_w6b')
    P('s_sub_u32 s46, s%d, 192' % S_RANK); P('s_cmp_lt_u32 s46, 18'); P('s_cbranch_scc1 L_w6c')
    P('s_sub_u32 s46, s%d, 64' % S_RANK); P('s_cmp_lt_u32 s46, 16'); P('s_cbranch_scc1 L_w5')
    P('s_branch L_gemm')
    k.straight(P); k.reset_state()

def gemm_role(k):
    QI = 60; QN = 61
    P = Prog()
    P.label('L_gemm')
    def pull(dst_v):
        P('s_mov_b32 s62, 0x%x' % (FL + F_QUEUE))
        P('v_mov_b32 v%d, 1' % dst_v); P('s_mov_b64 exec, 1')
        P('buffer_atomic_add v%d, off, %s, s62 sc0' % (dst_v, WSs))
        P('s_mov_b64 exec, -1')
    P('s_mov_b32 s%d, s%d' % (QI, S_RANK))
    P('s_cmp_ge_u32 s%d, 80' % S_RANK); P('s_cselect_b32 s46, 52, 0'); P('s_cmp_ge_u32 s%d, 210' % S_RANK); P('s_cselect_b32 s46, 70, s46')
    P('s_cmp_lt_u32 s%d, 64' % S_RANK); P('s_cselect_b32 s47, 36, s46'); P('s_cmp_lt_u32 s%d, 32' % S_RANK); P('s_cselect_b32 s47, 18, s47')
    P('s_sub_u32 s%d, s%d, s47' % (QI, QI))
    if OPT.get('first18', 1):
        if W2.HALF:
            P('s_cmp_lt_u32 s%d, 128' % QI); P('s_cbranch_scc1 L_gm_first')
            P('s_sub_u32 s%d, s%d, 64' % (QI, QI))
        else:
            P('s_cmp_lt_u32 s%d, 64' % QI); P('s_cbranch_scc1 L_gm_first')
    if OPT.get('hold', 1):
        P('s_cmp_lt_u32 s%d, 64' % QI); P('s_cbranch_scc1 L_gm_decode')
        P('s_mov_b32 s46, 0x%x' % (FL + F_LD)); wg_wait(P, 46, OPT.get('holdn', 16), sleep=48)
    P('s_branch L_gm_decode')
    P.label('L_gm_next')
    P('s_waitcnt vmcnt(0) lgkmcnt(0)'); P('s_barrier')
    P('s_cmp_eq_u32 s%d, 0' % G_W); P('s_cbranch_scc0 L_gm_b')
    pull(2)
    P('s_waitcnt vmcnt(0)'); P('v_mov_b32 v3, 0x%x' % 65536); P('s_mov_b64 exec, 1'); P('ds_write_b32 v3, v2'); P('s_waitcnt lgkmcnt(0)'); P('s_mov_b64 exec, -1')
    P.label('L_gm_b')
    P('s_barrier'); P('v_mov_b32 v3, 0x%x' % 65536); P('ds_read_b32 v2, v3'); P('s_waitcnt lgkmcnt(0)')
    P('v_readfirstlane_b32 s%d, v2' % QI)
    P('s_add_u32 s%d, s%d, %d' % (QI, QI, 154 - (64 if (W2.HALF and OPT.get('first18', 1)) else 0)))
    P.label('L_gm_decode')
    P('s_mov_b32 s61, 1')
    TT, FG = W2.S_TT, W2.S_FG
    P('s_cmp_ge_u32 s%d, %d' % (QI, 264 + 6*156 + 48)); P('s_cbranch_scc1 L_end_drain')
    P('s_cmp_lt_u32 s%d, 264' % QI); P('s_cbranch_scc0 L_gm_d2')
    P('s_cmp_ge_u32 s%d, 132' % QI); P('s_cselect_b32 s%d, 1, 0' % TT); P('s_mul_i32 s46, s%d, 132' % TT); P('s_sub_u32 s%d, s%d, s46' % (FG, QI))
    P('s_branch L_gm_kvqh')
    P.label('L_gm_d2')
    P('s_sub_u32 s46, s%d, 264' % QI)
    P('s_cmp_ge_u32 s46, %d' % (6*156)); P('s_cbranch_scc1 L_gm_d3')
    P('s_mul_i32 s47, s46, 26887'); P('s_lshr_b32 s47, s47, 22')
    P('s_mul_i32 s45, s47, 156'); P('s_sub_u32 s45, s46, s45')
    P('s_cmp_lt_u32 s45, 24'); P('s_cbranch_scc0 L_gm_d2b')
    P('s_mov_b32 s%d, s47' % TT); P('s_mov_b32 s%d, s45' % FG); P('s_branch L_gm_m2')
    P.label('L_gm_d2b')
    P('s_add_u32 s%d, s47, 2' % TT); P('s_sub_u32 s%d, s45, 24' % FG); P('s_branch L_gm_kvqh')
    P.label('L_gm_d3')
    P('s_sub_u32 s46, s46, %d' % (6*156)); P('s_cmp_ge_u32 s46, 24'); P('s_cselect_b32 s47, 1, 0'); P('s_add_u32 s%d, s47, 6' % TT)
    P('s_mul_i32 s47, s47, 24'); P('s_sub_u32 s%d, s46, s47' % FG)
    P.label('L_gm_m2')
    P('s_lshl_b32 s63, s%d, 7' % TT); P('s_add_u32 s46, s63, 0x%x' % (FL + F_H))
    wg_wait(P, 46, 36)
    P('s_add_u32 s63, s63, 0x%x' % (FL + F_M2))
    P('s_branch L_gm_run_m2')
    P.label('L_gm_kvqh')
    P('s_lshl_b32 s63, s%d, 7' % TT); P('s_add_u32 s46, s63, 0x%x' % (FL + F_LN))
    wg_wait(P, 46, 16, sleep=8)
    P('s_cmp_ge_u32 s%d, 96' % FG); P('s_cbranch_scc1 L_gm_h')
    P('s_cmp_ge_u32 s%d, 64' % FG); P('s_cselect_b32 s46, %d, %d' % (F_Q, F_Q)) if False else None
    P('s_mov_b32 s46, 0x%x' % (FL + F_KV)); P('s_cmp_ge_u32 s%d, 64' % FG); P('s_cselect_b32 s46, 0x%x, s46' % (FL + F_Q)); P('s_cselect_b32 s61, 1, 2')
    P('s_add_u32 s63, s63, s46')
    if OPT.get('diag'):
        P('s_cmp_lt_u32 s%d, 64' % QI); P('s_cbranch_scc0 L_dg1'); end_stamp(P, 53); P.label('L_dg1')
    k.straight(P)
    W2.task_kvq(k, 'L_gk', 'L_gm_sig')
    P = Prog(); P.label('L_gm_h'); P('s_sub_u32 s%d, s%d, 96' % (FG, FG)); P('s_add_u32 s63, s63, 0x%x' % (FL + F_H)); k.straight(P)
    W2.task_h(k, 'L_gh', 'L_gm_sig')
    P = Prog(); P.label('L_gm_run_m2'); k.straight(P)
    W2.task_m2(k, 'L_g2m', 'L_gm_sig')
    if OPT.get('first18', 1):
        P = Prog(); P.label('L_gm_first')
        P('s_lshr_b32 s%d, s%d, 6' % (TT, QI)); P('s_and_b32 s%d, s%d, 63' % (FG, QI)); P('s_mov_b32 s63, 0x%x' % (FL + F_KV)); P('s_mov_b32 s61, %d' % (1 if W2.HALF else 2))
        P('s_mov_b32 s%d, 0' % QI)
        k.straight(P)
        def wx(P):
            P('s_mov_b32 s62, 0x%x' % (FL + F_LN)); wg_wait(P, 62, 16, sleep=4)
        W2.task_kvq(k, 'L_gf', 'L_gm_sig', resident=True, wait_x=wx)
    P = Prog(); P.label('L_gm_sig'); signal(P, 63, val='s61')
    if OPT.get('diag'):
        P('s_cmp_lt_u32 s%d, 64' % QI); P('s_cbranch_scc0 L_dg2'); end_stamp(P, 54); P.label('L_dg2')
    P('s_branch L_gm_next')
    P.label('L_end_drain'); P('s_waitcnt vmcnt(0)'); end_stamp(P, 50)
    if OPT.get('w6x', 1):
        P('s_barrier')
        P('s_cmp_eq_u32 s%d, 0' % G_W); P('s_cbranch_scc0 L_gx_b')
        P('s_mov_b32 s62, 0x%x' % (FL + F_X)); P('v_mov_b32 v2, 1'); P('s_mov_b64 exec, 1')
        P('buffer_atomic_add v2, off, %s, s62 sc0' % WSs); P('s_waitcnt vmcnt(0)')
        P('v_mov_b32 v3, 0x%x' % 65536); P('ds_write_b32 v3, v2'); P('s_waitcnt lgkmcnt(0)'); P('s_mov_b64 exec, -1')
        P.label('L_gx_b')
        P('s_barrier'); P('v_mov_b32 v3, 0x%x' % 65536); P('ds_read_b32 v2, v3'); P('s_waitcnt lgkmcnt(0)')
        P('v_readfirstlane_b32 s46, v2'); P('s_barrier')
        P('s_cmp_lt_u32 s46, 36'); P('s_cbranch_scc1 L_w6x')
    P('s_branch L_end')
    k.straight(P); k.reset_state()

def w5_role(k):
    P = Prog()
    P.label('L_w5')
    P('s_lshl_b32 s47, s46, 2'); P('s_add_u32 s47, s47, s%d' % G_W); P('s_and_b32 s%d, s47, 31' % W1.A_H); P('s_lshr_b32 s%d, s46, 3' % W1.A_S)
    W1.attn_setup(P)
    P('s_lshl_b32 s80, s%d, 7' % W1.A_H); P('s_add_u32 s80, s80, 0x%x' % (FL + F_PROG))
    k.straight(P)
    P = Prog()
    P.label('L_w5_loop')
    P('s_and_b32 s81, s%d, 6' % W1.A_S); P('s_cmp_eq_u32 s81, 0'); P('s_cbranch_scc0 L_w5_go')
    P('s_lshr_b32 s81, s%d, 3' % W1.A_S); P('s_lshl_b32 s81, s81, 7')
    P('s_add_u32 s82, s81, 0x%x' % (FL + F_KV)); poll_ge(P, 82, 128, vtmp=8, sleep=32)
    P('s_add_u32 s82, s81, 0x%x' % (FL + F_Q)); poll_ge(P, 82, 32, vtmp=8, sleep=32)
    P.label('L_w5_go')
    def wait_mem(P, mem_loads, KM, VMR):
        if OPT.get('lastpoll', 1):
            P('s_cmp_ge_u32 s%d, 60' % W1.A_S); P('s_cbranch_scc1 L_w5_last')
        P('s_add_u32 s83, s%d, 1' % W1.A_S)
        poll_ge(P, 80, 83, vtmp=8, tgt_is_sgpr=True, sleep=OPT.get('w5sleep', 4))
        mem_loads(P, '')
        if OPT.get('lastpoll', 1):
            P('s_branch L_w5_mem')
            P.label('L_w5_last')
            P('s_mov_b32 s83, s%d' % S_ABORT)
            P.label('L_w5_lp')
            mem_loads(P, ' sc1')
            P('s_waitcnt vmcnt(0)')
            P('v_max3_u32 v8, v%d, v%d, v%d' % (KM, KM+4, KM+8))
            P('v_max3_u32 v8, v8, v%d, v%d' % (KM+12, KM+16)); P('v_max3_u32 v8, v8, v%d, v%d' % (KM+20, KM+24)); P('v_max3_u32 v8, v8, v%d, v%d' % (KM+28, VMR))
            P('v_max3_u32 v8, v8, v%d, v%d' % (VMR+4, VMR+8)); P('v_max_u32 v8, v8, v%d' % (VMR+12))
            P('v_cmp_eq_u32 vcc, -1, v8'); P('s_cbranch_vccz L_w5_mem')
            P('s_sleep 2'); P('s_sub_u32 s83, s83, 1'); P('s_cmp_lg_u32 s83, 0'); P('s_cbranch_scc1 L_w5_lp')
            P('s_mov_b32 s%d, 1' % S_ABORT)
            P.label('L_w5_mem')
    W1.attn_task(P, stflag=' sc1', wait_mem=wait_mem)
    P('s_waitcnt vmcnt(0)')
    P('s_lshl_b32 s81, s%d, 7' % W1.A_S); P('s_add_u32 s81, s81, 0x%x' % (FL + F_O))
    P('v_mov_b32 v8, 1'); P('s_mov_b64 exec, 1'); P('buffer_atomic_add v8, off, %s, s81' % WSs); P('s_mov_b64 exec, -1')
    P('s_add_u32 s%d, s%d, 2' % (W1.A_S, W1.A_S)); P('s_cmp_lt_u32 s%d, 64' % W1.A_S); P('s_cbranch_scc1 L_w5_loop')
    k.loop(P)
    P = Prog(); P('s_waitcnt vmcnt(0)'); end_stamp(P, 49); P('s_branch L_end'); k.straight(P); k.reset_state()

def w6_role(k):
    S_CT, S_SEG, S_PAR = 44, 45, 46
    P = Prog()
    LIM = 62 if OPT.get('w6x', 1) else 64
    P.label('L_w6a'); P('s_mov_b32 s%d, s%d' % (S_CT, S_RANK)); P('s_mov_b32 s%d, 0' % S_SEG); P('s_mov_b32 s86, %d' % LIM); P('s_branch L_w6')
    P.label('L_w6b'); P('s_mov_b32 s%d, s46' % S_CT); P('s_mov_b32 s%d, 1' % S_SEG); P('s_mov_b32 s86, %d' % LIM); P('s_branch L_w6')
    P.label('L_w6x'); P('s_cmp_ge_u32 s46, 18'); P('s_cselect_b32 s%d, 63, 62' % S_SEG); P('s_cselect_b32 s47, 18, 0'); P('s_sub_u32 s%d, s46, s47' % S_CT)
    P('s_mov_b32 s86, 64'); P('s_branch L_w6')
    P.label('L_w6c'); P('s_mov_b32 s%d, s46' % S_CT); P('s_mov_b32 s%d, 2' % S_SEG); P('s_mov_b32 s86, %d' % LIM)
    P.label('L_w6')
    if OPT.get('hold', 1):
        P('s_mov_b32 s47, 0x%x' % (FL + F_LD)); wg_wait(P, 47, OPT.get('holdn', 16), sleep=48)
    srd(P, 12, 70, 71, 4096*1152); srd(P, G_BSRD, 64, 65, 2048*1152); srd(P, G_OSRD, 68, 69, 2048*1152); srd(P, 76, 66, 67, 1152)
    L16, TRA, DMO = 1, 2, 3
    P('v_lshlrev_b32 v%d, 4, v0' % L16)
    P('v_lshrrev_b32 v4, 2, v0'); P('s_movk_i32 s%d, 1152' % G_T0); P('v_mul_lo_u32 v4, v4, s%d' % G_T0); P('v_and_b32 v5, 3, v0'); P('v_lshl_add_u32 v%d, v5, 4, v4' % DMO)
    P('v_lshrrev_b32 v4, 5, v0'); P('v_bfe_u32 v5, v0, 2, 2'); P('v_lshl_add_u32 v4, v4, 2, v5'); P('v_lshlrev_b32 v4, 6, v4')
    P('v_bfe_u32 v5, v0, 4, 1'); P('v_lshl_add_u32 v4, v5, 5, v4'); P('v_and_b32 v5, 3, v0'); P('v_lshl_add_u32 v4, v5, 3, v4')
    P('s_lshl_b32 s47, s%d, 15' % G_W); P('v_add_u32 v%d, s47, v4' % TRA)
    P('s_mul_i32 s48, s%d, %d' % (G_W, 1024*1152)); P('s_lshl_b32 s49, s%d, 6' % S_CT); P('s_add_u32 s48, s48, s49')
    for rnd in range(2):
        P('s_mov_b32 m0, s47')
        for j in range(32):
            P('buffer_load_dwordx4 v%d, s[12:15], s48 offen lds' % DMO)
            P('s_add_u32 m0, m0, 1024'); P('s_add_u32 s48, s48, %d' % (16*1152))
        P('s_waitcnt vmcnt(0)')
        for f in range(32):
            a = 4*(32*rnd + f)
            P('ds_read_b64_tr_b16 a[%d:%d], v%d offset:%d' % (a, a+1, TRA, f*1024)); P('ds_read_b64_tr_b16 a[%d:%d], v%d offset:%d' % (a+2, a+3, TRA, f*1024 + 512))
        P('s_waitcnt lgkmcnt(0)')
    P('v_and_b32 v4, 31, v0'); P('s_movk_i32 s%d, 1152' % G_T0); P('v_mul_lo_u32 v4, v4, s%d' % G_T0)
    P('v_lshrrev_b32 v5, 5, v0'); P('v_lshlrev_b32 v5, 4, v5'); P('v_add_u32 v4, v4, v5')
    P('s_barrier')
    k.straight(P)
    XA, XB, XC, ACC, T = 16, 80, 144, 208, 16
    P = Prog()
    P.label('L_w6_loop')
    P('s_lshr_b32 s50, s%d, 3' % S_SEG); P('s_lshl_b32 s50, s50, 7'); P('s_add_u32 s50, s50, 0x%x' % (FL + F_M2))
    wg_wait(P, 50, 24, vtmp=8, sleep=32)
    P('s_lshl_b32 s51, s%d, 6' % G_W); P('s_add_u32 s51, s51, s%d' % S_SEG); P('s_mul_i32 s51, s51, 18'); P('s_add_u32 s51, s51, s%d' % S_CT)
    P('s_lshl_b32 s51, s51, 12'); P('s_add_u32 s51, s51, 0x%x' % WS_BASE)
    for q in range(4): P('buffer_load_dwordx4 %s, v%d, %s, s51 offen offset:%d' % (vr(ACC+4*q,4), L16, WSs, q*1024))
    P('s_lshl_b32 s50, s%d, 7' % S_SEG); P('s_add_u32 s50, s50, 0x%x' % (FL + F_O))
    wg_wait(P, 50, 32, vtmp=8, sleep=4)
    if OPT.get('diag'):
        Lq = uid('L_w6d'); P('s_cmp_eq_u32 s%d, 63' % S_SEG); P('s_cbranch_scc0 %s' % Lq); end_stamp(P, 55, force=True); P.label(Lq)
    P('s_lshl_b32 s52, s%d, 18' % S_SEG); P('s_lshl_b32 s53, s%d, 16' % G_W); P('s_add_u32 s52, s52, s53'); P('s_add_u32 s52, s52, 0x%x' % WS_OF)
    def xbatch(reg, b):
        for i in range(16):
            if i % 4 == 0: P('s_add_u32 s53, s52, %d' % ((16*b + i)*1024))
            P('buffer_load_dwordx4 %s, v%d, %s, s53 offen offset:%d' % (vr(reg+4*i,4), L16, WSs, (i % 4)*1024))
    def mbatch(reg, b):
        for i in range(16):
            f = 16*b + i
            P('v_mfma_f32_32x32x16_bf16 %s, a[%d:%d], %s, %s' % (vr(ACC,16), 4*f, 4*f+3, vr(reg+4*i,4), vr(ACC,16)))
    xbatch(XA, 0); xbatch(XB, 1); xbatch(XC, 2); mbatch(XA, 0); xbatch(XA, 3); mbatch(XB, 1); mbatch(XC, 2); mbatch(XA, 3)
    if OPT.get('diag'):
        Lq = uid('L_w6d'); P('s_cmp_eq_u32 s%d, 63' % S_SEG); P('s_cbranch_scc0 %s' % Lq); end_stamp(P, 56, force=True); P.label(Lq)
    P('s_cmp_eq_u32 s%d, 0' % G_W); P('s_cbranch_scc1 L_w6_r0')
    P('s_lshl_b32 s53, s%d, 12' % G_W); P('v_add_u32 v8, s53, v%d' % L16)
    for q in range(4): P('ds_write_b128 v8, %s offset:%d' % (vr(ACC+4*q,4), q*1024))
    P('s_waitcnt lgkmcnt(0)'); P('s_barrier'); P('s_barrier')
    P('s_branch L_w6_next')
    P.label('L_w6_r0')
    P('s_mul_i32 s53, s%d, %d' % (S_SEG, 32*1152)); P('s_lshl_b32 s54, s%d, 6' % S_CT); P('s_add_u32 s53, s53, s54')
    for qp in range(2):
        P('buffer_load_dwordx4 %s, v4, s[%d:%d], s53 offen offset:%d' % (vr(T+8*qp,4), G_BSRD, G_BSRD+3, 32*qp))
        P('buffer_load_dwordx4 %s, v5, s[76:79], s54 offen offset:%d' % (vr(T+8*qp+4,4), 32*qp))
    P('s_barrier')
    for wv in range(1, 4):
        for q in range(4): P('ds_read_b128 %s, v%d offset:%d' % (vr(T+16+4*q,4), L16, wv*4096 + q*1024))
        for i in range(0, 16, 2): P('v_pk_add_f32 %s, %s, %s' % (vr(ACC+i,2), vr(ACC+i,2), vr(T+16+i,2)))
    P('s_waitcnt lgkmcnt(0)'); P('s_barrier')
    for qp in range(2):
        a = ACC + 8*qp
        for i in range(4): P('v_permlane32_swap_b32 v%d, v%d' % (a+i, a+4+i))
        for i in range(4):
            for src in (T+8*qp+i, T+8*qp+4+i):
                P('v_lshlrev_b32 v8, 16, v%d' % src); P('v_add_f32 v%d, v%d, v8' % (a+2*i, a+2*i))
                P('v_and_b32 v9, 0xffff0000, v%d' % src); P('v_add_f32 v%d, v%d, v9' % (a+2*i+1, a+2*i+1))
        G2.pack8(P, T+32, a)
        P('buffer_store_dwordx4 %s, v4, s[%d:%d], s53 offen offset:%d' % (vr(T+32,4), G_OSRD, G_OSRD+3, 32*qp))
    P.label('L_w6_next')
    P('s_add_u32 s%d, s%d, 3' % (S_SEG, S_SEG)); P('s_cmp_lt_u32 s%d, s86' % S_SEG); P('s_cbranch_scc1 L_w6_loop')
    k.loop(P)
    P = Prog(); P('s_waitcnt vmcnt(0)'); end_stamp(P, 48); P('s_branch L_end'); k.straight(P); k.reset_state()

def end_stamp(P, idx, force=False):
    if not OPT.get('diag'): return
    L = uid('L_es')
    P('s_and_b32 s88, s%d, %d' % (S_RANK, 0 if force else 7)); P('s_or_b32 s88, s88, s%d' % G_W); P('s_cmp_eq_u32 s88, 0'); P('s_cbranch_scc0 %s' % L)
    P('s_memrealtime s[92:93]'); P('s_waitcnt lgkmcnt(0)'); P('s_sub_u32 s92, s92, s90')
    P('s_mov_b32 s88, 0x%x' % (FL + F_DIAG + 128*(idx-44))); P('v_mov_b32 v21, s92'); P('s_mov_b64 exec, 1')
    P('buffer_atomic_umax v21, off, %s, s88' % WSs); P('s_mov_b64 exec, -1')
    P.label(L)

def gen(name):
    k = Kernel()
    bootstrap(k)
    worker_dispatch(k)
    gemm_role(k)
    w5_role(k)
    w6_role(k)
    chain_common(k)
    chain_role(k, True)
    chain_role(k, False)
    P = Prog(); P.label('L_end'); P('s_endpgm'); P.label('L_code_end'); k.straight(P)
    return '.globl %s\n.p2align 8\n.type %s,@function\n%s:\n' % (name, name, name) + k.text() + kdesc(name)

HDR = open('parallel_sum__memory_aug_recurrent_mem_tr__mixer_channel_mlp__prompt.s.ref').read().split('; Override launch')[0]
NAME = 'parallel_sum__memory_aug_recurrent_mem_tr__mixer_channel_mlp__prompt_kernel'
if __name__ == '__main__':
    out = sys.argv[1]
    for a in sys.argv[2:]:
        kk, vv = a.split('=')
        if kk == 'half': W2.HALF = bool(int(vv))
        elif kk == 'set': C.STAMP_SET = set(int(x) for x in vv.split(',')); C.OPT['stamps'] = 1
        elif kk.startswith('c.'): C.OPT[kk[2:]] = int(vv)
        else: OPT[kk] = int(vv)
    txt = HDR + header(['; @launch grid=(256,1,1) block=(256,1,1) lds=163840']) + gen(NAME).replace('CODE_THIRD', str(NPF*8192)).replace('CODE_LEN', 'L_code_end-L_pc_here-4')
    pad = C.OPT.get('pad', 0)
    if pad: txt = txt.replace('L_chain_loopf:', '    s_nop 0\n'*pad + 'L_chain_loopf:')
    open(out, 'w').write(txt)
    print('written', out, len(txt))
```
